```python
import torch

def _softmax(x, axis=-1):
    return torch.softmax(x, dim=axis)
def _gelu(x):
    return torch.nn.functional.gelu(x, approximate="tanh")
def _silu(x):
    return torch.nn.functional.silu(x)
def _sigmoid(x):
    return torch.sigmoid(x)
def _layernorm(x, axis=-1, eps=1e-5):
    m = x.mean(dim=axis, keepdim=True)
    v = x.var(dim=axis, keepdim=True, unbiased=False)
    return (x - m) / torch.sqrt(v + eps)
def _scatter_add(tgt, idx, src, axis=0):
    return tgt.clone().index_add_(axis, idx, src)
def _segment_sum(src, seg, n):
    out = torch.zeros((n,) + src.shape[1:], dtype=src.dtype)
    return out.index_add_(0, seg, src)
def _pad(x, pw):
    flat = tuple(v for pair in reversed(pw) for v in pair)
    return torch.nn.functional.pad(x, flat)

kernel_name = 'standalone__molecular_angular_gemnet__graph'

def setup_inputs():

    _w = (lambda a: (lambda t: t.to(torch.bfloat16) if t.is_floating_point() else t)(torch.as_tensor(a)))
    N, deg, De, L = 12500, 32, 4, 1
    E = N * deg
    T = E * deg
    NR = 8
    dist = torch.rand(E).to(float)
    angle = (torch.rand(T) * torch.pi).to(float)
    centers = torch.linspace(0.0, 1.0, NR).to(float)
    ang_freq = torch.arange(1, L + 1).to(float)
    return {
        "m": _w((lambda *s: torch.randn(*s, dtype=torch.bfloat16) * 0.05)(E, De)),
        "idx_in": _w((lambda lo, hi, *s: torch.randint(lo, hi, s))(0, E, T).to(torch.int64)),
        "idx_out": _w((lambda lo, hi, *s: torch.randint(lo, hi, s))(0, E, T).to(torch.int64)),
        "dist": _w(dist),
        "angle": _w(angle),
        "centers": _w(centers),
        "ang_freq": _w(ang_freq),
        "w_rbf": _w((lambda *s: torch.randn(*s, dtype=torch.bfloat16) * 0.4)(NR, De)),
        "w_sbf": _w((lambda *s: torch.randn(*s, dtype=torch.bfloat16) * 0.4)(NR * L, De)),
        "w_down": _w((lambda *s: torch.randn(*s, dtype=torch.bfloat16) * 0.4)(De, De)),
        "w_up": _w((lambda *s: torch.randn(*s, dtype=torch.bfloat16) * 0.4)(De, De)),
    }

def reference(m, idx_in, idx_out, dist, angle, centers, ang_freq, w_rbf, w_sbf, w_down, w_up):
    E, De = m.shape[0], m.shape[1]
    NR = centers.shape[0]
    L = ang_freq.shape[0]
    rbf = torch.exp(-10.0 * (dist[:, None] - centers[None, :]) ** 2)
    cbf = torch.cos(ang_freq[None, :] * angle[:, None])
    rbf_t = rbf[idx_out]
    sbf = torch.reshape(rbf_t[:, :, None] * cbf[:, None, :], (-1, NR * L))
    x = (m[idx_in] @ w_down) * (sbf @ w_sbf)
    agg = _segment_sum(x, idx_out, E)
    return m + (agg @ w_up) * (rbf @ w_rbf)
```

```python
HEADER = open('standalone__molecular_angular_gemnet__graph.s.ref').read().split('; Override launch')[0]
E = 400000
T = 12800000
WS = 268435456
KA = dict(m=0, idx_in=8, idx_out=16, dist=24, angle=32, centers=40, ang_freq=48, w_rbf=56, w_sbf=64, w_down=72, w_up=80, out=88, dbg=96, ws=104)

def kernel_begin(name):
    return f""".text
.globl {name}
.p2align 8
.type {name},@function
{name}:
"""

def kernel_desc(name, vgpr, sgpr):
    acc = (vgpr + 3) // 4 * 4
    return f""".section .rodata,"a"
.p2align 6
.amdhsa_kernel {name}
  .amdhsa_next_free_vgpr {vgpr}
  .amdhsa_next_free_sgpr {sgpr}
  .amdhsa_accum_offset {acc}
  .amdhsa_group_segment_fixed_size 0
  .amdhsa_kernarg_size 112
  .amdhsa_user_sgpr_count 2
  .amdhsa_user_sgpr_kernarg_segment_ptr 1
  .amdhsa_system_sgpr_workgroup_id_x 1
  .amdhsa_float_denorm_mode_32 3
  .amdhsa_float_denorm_mode_16_64 3
.end_amdhsa_kernel
"""

def srd(d, b, nbytes):
    s = ""
    if d != b:
        s += f"    s_mov_b32 s{d}, s{b}\n    s_mov_b32 s{d+1}, s{b+1}\n"
    s += f"    s_mov_b32 s{d+2}, {nbytes}\n    s_mov_b32 s{d+3}, 0x00020000\n"
    return s

def load_weights(sw):
    p = sw + 52
    s = f"""    s_load_dwordx2 s[{p}:{p+1}], s[0:1], {KA['centers']}
    s_load_dwordx4 s[{p+4}:{p+7}], s[0:1], {KA['w_rbf']}
    s_load_dwordx4 s[{p+8}:{p+11}], s[0:1], {KA['w_down']}
    s_waitcnt lgkmcnt(0)
    s_load_dwordx16 s[{sw}:{sw+15}], s[{p+4}:{p+5}], 0
    s_load_dwordx16 s[{sw+16}:{sw+31}], s[{p+6}:{p+7}], 0
    s_load_dwordx8 s[{sw+32}:{sw+39}], s[{p+8}:{p+9}], 0
    s_load_dwordx8 s[{sw+40}:{sw+47}], s[{p+10}:{p+11}], 0
    s_load_dwordx4 s[{sw+48}:{sw+51}], s[{p}:{p+1}], 0
"""
    return s

def s_unpack(dst, base, idx):
    r = base + idx // 2
    if idx % 2 == 0:
        return f"    s_lshl_b32 s{dst}, s{r}, 16\n"
    return f"    s_and_b32 s{dst}, s{r}, 0xffff0000\n"

def round_pair(a, b, t):
    return f"""    v_cvt_pk_bf16_f32 v{t}, v{a}, v{b}
    v_lshlrev_b32 v{a}, 16, v{t}
    v_and_b32 v{b}, 0xffff0000, v{t}
"""

def epilogue(sw, st, vS, vd, vm, vo, vt):
    r = vt
    g = vt + 8
    h = vt + 12
    a = vt + 16
    t = vt + 20
    s = ""
    for k in range(8):
        s += s_unpack(st + (k & 1), sw + 48, k)
        s += f"    v_subrev_f32 v{r+k}, s{st+(k&1)}, v{vd}\n"
    for k in range(0, 8, 2):
        s += round_pair(r + k, r + k + 1, t)
    for k in range(8):
        s += f"    v_mul_f32 v{r+k}, v{r+k}, v{r+k}\n"
    for k in range(0, 8, 2):
        s += round_pair(r + k, r + k + 1, t)
    for k in range(8):
        s += f"    v_mul_f32 v{r+k}, 0xc1200000, v{r+k}\n"
    for k in range(0, 8, 2):
        s += round_pair(r + k, r + k + 1, t)
    for k in range(8):
        s += f"    v_mul_f32 v{r+k}, 0x3fb8aa3b, v{r+k}\n"
    for k in range(8):
        s += f"    v_exp_f32 v{r+k}, v{r+k}\n"
    s += "    s_nop 0\n"
    for k in range(0, 8, 2):
        s += round_pair(r + k, r + k + 1, t)
    i = 0
    for (dst, base) in ((h, sw), (g, sw + 16)):
        for k in range(8):
            for c in range(4):
                s += s_unpack(st + (i & 1), base, k * 4 + c)
                if k == 0:
                    s += f"    v_mul_f32 v{dst+c}, s{st+(i&1)}, v{r+k}\n"
                else:
                    s += f"    v_fmac_f32 v{dst+c}, s{st+(i&1)}, v{r+k}\n"
                i += 1
    s += round_pair(h, h + 1, t) + round_pair(h + 2, h + 3, t)
    for j in range(4):
        for c in range(4):
            s += s_unpack(st + (i & 1), sw + 32, j * 4 + c)
            if j == 0:
                s += f"    v_mul_f32 v{a+c}, s{st+(i&1)}, v{vS+j}\n"
            else:
                s += f"    v_fmac_f32 v{a+c}, s{st+(i&1)}, v{vS+j}\n"
            i += 1
    for c in range(4):
        s += f"    v_mul_f32 v{a+c}, v{a+c}, v{g+c}\n"
    s += round_pair(a, a + 1, t) + round_pair(a + 2, a + 3, t)
    for j in range(4):
        for c in range(4):
            s += s_unpack(st + (i & 1), sw + 40, j * 4 + c)
            if j == 0:
                s += f"    v_mul_f32 v{g+c}, s{st+(i&1)}, v{a+j}\n"
            else:
                s += f"    v_fmac_f32 v{g+c}, s{st+(i&1)}, v{a+j}\n"
            i += 1
    s += round_pair(g, g + 1, t) + round_pair(g + 2, g + 3, t)
    for c in range(4):
        s += f"    v_mul_f32 v{g+c}, v{g+c}, v{h+c}\n"
    s += round_pair(g, g + 1, t) + round_pair(g + 2, g + 3, t)
    s += f"""    v_lshlrev_b32 v{a}, 16, v{vm}
    v_and_b32 v{a+1}, 0xffff0000, v{vm}
    v_lshlrev_b32 v{a+2}, 16, v{vm+1}
    v_and_b32 v{a+3}, 0xffff0000, v{vm+1}
"""
    for c in range(4):
        s += f"    v_add_f32 v{g+c}, v{g+c}, v{a+c}\n"
    s += f"""    v_cvt_pk_bf16_f32 v{vo}, v{g}, v{g+1}
    v_cvt_pk_bf16_f32 v{vo+1}, v{g+2}, v{g+3}
"""
    return s
```

```python
import sys
sys.path.insert(0, 'dev')
from common import *
out = HEADER
out += "; baseline: zero, global-atomic scatter, epilogue\n"
out += "; @launch kernel=zero_kernel grid=(1563,1,1) block=(256,1,1) lds=0\n"
out += "; @launch kernel=scat_kernel grid=(200000,1,1) block=(256,1,1) lds=0\n"
out += "; @launch kernel=fin_kernel grid=(1563,1,1) block=(256,1,1) lds=0\n"
out += '.amdgcn_target "amdgcn-amd-amdhsa--gfx950"\n'
out += kernel_begin('zero_kernel')
out += f"""    s_load_dwordx2 s[4:5], s[0:1], {KA['ws']}
    s_lshl_b32 s3, s2, 8
    v_add_u32 v1, s3, v0
    v_lshlrev_b32 v1, 4, v1
    v_mov_b32 v4, 0
    v_mov_b32 v5, 0
    v_mov_b32 v6, 0
    v_mov_b32 v7, 0
    s_waitcnt lgkmcnt(0)
""" + srd(4, 4, E * 16) + """    buffer_store_dwordx4 v[4:7], v1, s[4:7], 0 offen
    s_endpgm
"""
out += kernel_begin('scat_kernel')
out += f"""    s_cmp_ge_u32 s2, 200000
    s_cbranch_scc1 scat_done
    s_load_dwordx2 s[4:5], s[0:1], {KA['m']}
    s_load_dwordx2 s[8:9], s[0:1], {KA['idx_in']}
    s_load_dwordx2 s[12:13], s[0:1], {KA['idx_out']}
    s_load_dwordx2 s[16:17], s[0:1], {KA['angle']}
    s_load_dwordx2 s[20:21], s[0:1], {KA['ang_freq']}
    s_load_dwordx2 s[24:25], s[0:1], {KA['ws']}
    s_lshl_b32 s3, s2, 8
    v_add_u32 v1, s3, v0
    v_and_b32 v2, 3, v1            ; comp
    v_lshrrev_b32 v3, 2, v1        ; rec
    v_lshlrev_b32 v4, 2, v3        ; rec*4
    v_lshlrev_b32 v5, 1, v3        ; rec*2
    v_mov_b32 v10, 0
    s_waitcnt lgkmcnt(0)
""" + srd(4, 4, E * 8) + srd(8, 8, T * 4) + srd(12, 12, T * 4) + srd(16, 16, T * 2) + srd(20, 20, 2) + srd(24, 24, E * 16) + """
    buffer_load_dword v6, v4, s[8:11], 0 offen
    buffer_load_dword v7, v4, s[12:15], 0 offen
    buffer_load_ushort v8, v5, s[16:19], 0 offen
    buffer_load_ushort v9, v10, s[20:23], 0 offen
    s_waitcnt vmcnt(3)
    v_lshlrev_b32 v6, 2, v6
    v_add_u32 v6, v6, v2
    v_lshlrev_b32 v6, 1, v6
    buffer_load_ushort v11, v6, s[4:7], 0 offen
    s_waitcnt vmcnt(1)
    v_lshlrev_b32 v8, 16, v8
    v_lshlrev_b32 v9, 16, v9
    v_mul_f32 v8, v8, v9
    v_cvt_pk_bf16_f32 v8, v8, v8
    v_lshlrev_b32 v8, 16, v8
    v_mul_f32 v8, 0.15915494, v8
    v_fract_f32 v8, v8
    v_cos_f32 v8, v8
    s_nop 0
    v_cvt_pk_bf16_f32 v8, v8, v8
    v_lshlrev_b32 v8, 16, v8
    v_lshlrev_b32 v7, 2, v7
    v_add_u32 v7, v7, v2
    v_lshlrev_b32 v7, 2, v7
    s_waitcnt vmcnt(0)
    v_lshlrev_b32 v11, 16, v11
    v_mul_f32 v11, v11, v8
    buffer_atomic_add_f32 v11, v7, s[24:27], 0 offen
scat_done:
    s_endpgm
"""
out += kernel_begin('fin_kernel')
SW = 32
out += f"""    s_load_dwordx2 s[4:5], s[0:1], {KA['m']}
    s_load_dwordx2 s[8:9], s[0:1], {KA['dist']}
    s_load_dwordx2 s[12:13], s[0:1], {KA['out']}
    s_load_dwordx2 s[16:17], s[0:1], {KA['ws']}
""" + load_weights(SW) + """    s_lshl_b32 s3, s2, 8
    v_add_u32 v1, s3, v0
    v_lshlrev_b32 v2, 4, v1
    v_lshlrev_b32 v3, 3, v1
    v_lshlrev_b32 v4, 1, v1
""" + srd(4, 4, E * 8) + srd(8, 8, E * 2) + srd(12, 12, E * 8) + srd(16, 16, E * 16) + """
    buffer_load_dwordx4 v[8:11], v2, s[16:19], 0 offen
    buffer_load_dwordx2 v[12:13], v3, s[4:7], 0 offen
    buffer_load_ushort v14, v4, s[8:11], 0 offen
    s_waitcnt vmcnt(0) lgkmcnt(0)
    v_lshlrev_b32 v14, 16, v14
""" + epilogue(SW, 20, 8, 14, 12, 16, 20) + """    buffer_store_dwordx2 v[16:17], v3, s[12:15], 0 offen
    s_endpgm
"""
out += kernel_desc('zero_kernel', 8, 16) + kernel_desc('scat_kernel', 16, 32) + kernel_desc('fin_kernel', 48, 100)
open(sys.argv[1], 'w').write(out)
```

```python
import sys, subprocess
sys.path.insert(0, 'dev')
from common import *
base = open('standalone__molecular_angular_gemnet__graph.s').read()
def variant(fn, lp, sp, rp):
    s = base
    launches = ""
    code = ""
    desc = ""
    if lp is not None:
        launches += "; @launch kernel=pa_kernel grid=(3125,1,1) block=(256,1,1) lds=0\n"
        code += kernel_begin('pa_kernel') + f"""    s_cmp_ge_u32 s2, 3125
    s_cbranch_scc1 pa_done
    s_load_dwordx2 s[8:9], s[0:1], {KA['idx_in']}
    s_load_dwordx2 s[12:13], s[0:1], {KA['idx_out']}
    s_load_dwordx2 s[16:17], s[0:1], {KA['angle']}
    s_load_dwordx2 s[24:25], s[0:1], {KA['ws']}
    s_lshl_b32 s3, s2, 14      ; wg*4096 rec *4B
    v_lshlrev_b32 v1, 4, v0
    v_add_u32 v1, s3, v1
    v_lshrrev_b32 v2, 1, v1
    s_mul_i32 s4, s2, 24576
    s_add_u32 s4, s4, 0x1000000
    v_lshlrev_b32 v3, 4, v0
    v_add_u32 v3, s4, v3
    s_waitcnt lgkmcnt(0)
""" + srd(8, 8, T * 4) + srd(12, 12, T * 4) + srd(16, 16, T * 2) + srd(24, 24, WS)
        code += "    s_movk_i32 s5, 0x1000\n    s_movk_i32 s6, 0x2000\n    s_movk_i32 s7, 0x3000\n    s_movk_i32 s20, 0x4000\n    s_movk_i32 s21, 0x5000\n"
        so = ['0', 's5', 's6', 's7', 's20', 's21']
        for u in range(4):
            code += f"    buffer_load_dwordx4 v[{8+u*4}:{11+u*4}], v1, s[8:11], {so[u]} offen {lp}\n"
            code += f"    buffer_load_dwordx4 v[{24+u*4}:{27+u*4}], v1, s[12:15], {so[u]} offen {lp}\n"
            code += f"    buffer_load_dwordx2 v[{40+u*2}:{41+u*2}], v2, s[16:19], {so[u//2]} offen offset:{(u%2)*2048} {lp}\n"
        code += "    s_waitcnt vmcnt(0)\n"
        if sp is not None:
            for i in range(8):
                code += f"    v_xor_b32 v{8+i}, v{8+i}, v{40+i}\n"
            for i in range(8):
                code += f"    v_xor_b32 v{16+i}, v{16+i}, v{32+i}\n"
            for u in range(6):
                code += f"    buffer_store_dwordx4 v[{8+u*4}:{11+u*4}], v3, s[24:27], {so[u]} offen {sp}\n"
        code += "pa_done:\n    s_endpgm\n"
        desc += kernel_desc('pa_kernel', 48, 32)
    if rp is not None:
        launches += "; @launch kernel=pb_kernel grid=(3125,1,1) block=(256,1,1) lds=0\n"
        code += kernel_begin('pb_kernel') + f"""    s_cmp_ge_u32 s2, 3125
    s_cbranch_scc1 pb_done
    s_load_dwordx2 s[24:25], s[0:1], {KA['ws']}
    s_mul_i32 s4, s2, 7
    s_mov_b32 s8, 1374390     ; ceil(2^32/3125)
    s_mul_hi_u32 s9, s4, s8
    s_mul_i32 s9, s9, 3125
    s_sub_u32 s4, s4, s9      ; (wg*7) mod 3125 : different XCD than writer
    s_mul_i32 s4, s4, 24576
    s_add_u32 s4, s4, 0x1000000
    v_lshlrev_b32 v3, 4, v0
    v_add_u32 v3, s4, v3
    s_waitcnt lgkmcnt(0)
""" + srd(24, 24, WS)
        code += "    s_movk_i32 s5, 0x1000\n    s_movk_i32 s6, 0x2000\n    s_movk_i32 s7, 0x3000\n    s_movk_i32 s20, 0x4000\n    s_movk_i32 s21, 0x5000\n"
        so = ['0', 's5', 's6', 's7', 's20', 's21']
        for u in range(6):
            code += f"    buffer_load_dwordx4 v[{8+u*4}:{11+u*4}], v3, s[24:27], {so[u]} offen {rp}\n"
        code += "    s_waitcnt vmcnt(0)\npb_done:\n    s_endpgm\n"
        desc += kernel_desc('pb_kernel', 48, 32)
    s = s.replace("; @launch kernel=zero_kernel", launches + "; @launch kernel=zero_kernel")
    s = s.replace('.section .rodata,"a"', code + '.section .rodata,"a"', 1)
    s += desc
    open(fn, 'w').write(s)
import os
os.makedirs('p', exist_ok=True)
variant('v0.s', None, None, None)
variant('v1.s', 'nt', None, None)
variant('v2.s', '', None, None)
variant('v3.s', 'nt', 'nt', 'nt')
variant('v4.s', 'nt', '', '')
variant('v5.s', 'nt', 'sc1', '')
variant('v6.s', 'nt', 'nt', None)
variant('v7.s', 'nt', '', None)
variant('v8.s', 'nt', 'sc1 nt', 'nt')
variant('v9.s', 'nt', '', 'nt')
variant('v10.s', 'nt', 'nt', '')
variant('v11.s', '', '', '')
```

```python
import sys
sys.path.insert(0, 'dev')
from common import *

NT = 256
TILE = 50000
RB = 6250
CB = 5000
NCB = 80
NPH = 20
F = 64 * NCB
TG = 20480
CAPG = 6826
CAP8 = CAPG * 24
REC_OFF = 0
TAB_OFF = NT * TG * 16
MAX_OFF = TAB_OFF + NT * F * 4
PART_OFF = MAX_OFF + 0x100000
LDS_ALL = 163840

OPT = dict(ld='nt', st='', k2ld='', pst='', pld='')
for a in sys.argv[2:]:
    k, v = a.split('=')
    OPT[k] = v.replace('+', ' ')


class A:
    def __init__(self):
        self.s = ""

    def __call__(self, txt):
        for l in txt.strip('\n').split('\n'):
            l = l.strip()
            if not l:
                continue
            self.s += ("" if l.endswith(':') else "    ") + l + "\n"


def scan(a, op, v, full=True):
    for sh in (1, 2, 4, 8):
        a(f"{op}_dpp v{v}, v{v}, v{v} row_shr:{sh} row_mask:0xf bank_mask:0xf")
        a("s_nop 1")
    if full:
        a(f"{op}_dpp v{v}, v{v}, v{v} row_bcast:15 row_mask:0xa bank_mask:0xf")
        a("s_nop 1")
        a(f"{op}_dpp v{v}, v{v}, v{v} row_bcast:31 row_mask:0xc bank_mask:0xf")
        a("s_nop 1")


def srd_off(a, d, ptr, off_sgpr, off_imm, nbytes):
    if off_sgpr is not None:
        a(f"s_add_u32 s{d}, s{ptr}, s{off_sgpr}")
        a(f"s_addc_u32 s{d+1}, s{ptr+1}, 0")
        if off_imm:
            a(f"s_add_u32 s{d}, s{d}, {off_imm}")
            a(f"s_addc_u32 s{d+1}, s{d+1}, 0")
    else:
        a(f"s_add_u32 s{d}, s{ptr}, {off_imm}")
        a(f"s_addc_u32 s{d+1}, s{ptr+1}, 0")
    a(f"s_mov_b32 s{d+2}, {nbytes}")
    a(f"s_mov_b32 s{d+3}, 0x00020000")


def gen_k1():
    a = A()
    ld, st = OPT['ld'], OPT['st']
    WT = 20480
    MXW = 20544
    ANG = 20736
    S_O, S_I, S_A, S_M, S_R, S_T, S_X, S_F = 4, 8, 12, 16, 20, 24, 28, 32
    P = 36
    sW, sMR, sMC, sNR, sNC, sFreq, sHi, sLo22, sG, sLo8, sT0, sT1, sMax, sCap8, sRem, sSo = range(52, 68)
    vLane, vC, vAng, vT16, vT24 = 1, 2, 3, 4, 5
    T0 = 6
    R48 = 30
    RQ = 32

    def rec(slot):
        if slot == 48:
            return R48
        q, k = divmod(slot, 4)
        return RQ + q * 8 + (0, 4, 2, 6)[k]

    a(f"""
s_cmp_ge_u32 s2, {NT}
s_cbranch_scc1 k1_done
s_load_dwordx4 s[{P}:{P+3}], s[0:1], {KA['m']}
s_load_dwordx2 s[{P+4}:{P+5}], s[0:1], {KA['idx_out']}
s_load_dwordx2 s[{P+6}:{P+7}], s[0:1], {KA['angle']}
s_load_dwordx2 s[{P+8}:{P+9}], s[0:1], {KA['ang_freq']}
s_load_dwordx2 s[{P+10}:{P+11}], s[0:1], {KA['ws']}
v_lshrrev_b32 v{T0}, 6, v0
v_and_b32 v{vLane}, 63, v0
v_readfirstlane_b32 s{sW}, v{T0}
v_lshlrev_b32 v{vT16}, 4, v0
v_mul_u32_u24 v{vT24}, 24, v0
s_mov_b32 s{sMR}, 687195
s_mov_b32 s{sMC}, 858994
s_mov_b32 s{sNR}, {-RB}
s_mov_b32 s{sNC}, {-CB}
s_mov_b32 s{sHi}, 0xffff0000
s_mov_b32 s{sLo22}, 0x3fffff
s_mov_b32 s{sCap8}, {CAP8}
s_mul_i32 s{sT0}, s2, {TILE*4}
s_mul_i32 s{sT1}, s2, {TILE*2}
s_waitcnt lgkmcnt(0)
""")
    srd_off(a, S_O, P + 4, sT0, 0, TILE * 4)
    srd_off(a, S_I, P + 2, sT0, 0, TILE * 4)
    srd_off(a, S_A, P + 6, sT1, 0, TILE * 2)
    srd_off(a, S_M, P, None, 0, E * 8)
    srd_off(a, S_F, P + 8, None, 0, 2)
    vFq, vMq, vA48 = T0 + 20, T0 + 16, T0 + 21
    a(f"""
v_mov_b32 v{T0}, 0
s_mul_i32 s{sT0}, s2, {782*16}
v_add_u32 v{T0+1}, s{sT0}, v{vT16}
v_cmp_gt_u32 vcc, 782, v0
v_mov_b32 v{T0+2}, -1
buffer_load_ushort v{vFq}, v{T0}, s[{S_F}:{S_F+3}], 0 offen
v_cndmask_b32 v{T0+1}, v{T0+2}, v{T0+1}, vcc
buffer_load_dwordx4 v[{vMq}:{vMq+3}], v{T0+1}, s[{S_M}:{S_M+3}], 0 offen
""")
    for q in range(12):
        b = RQ + q * 8
        a(f"s_mov_b32 s{sT0}, {q*16384}")
        a(f"buffer_load_dwordx4 v[{b}:{b+3}], v{vT16}, s[{S_O}:{S_O+3}], s{sT0} offen {ld}")
        a(f"buffer_load_dwordx4 v[{b+4}:{b+7}], v{vT16}, s[{S_I}:{S_I+3}], s{sT0} offen {ld}")
    a(f"""
v_lshlrev_b32 v{T0}, 2, v0
v_add_u32 v{T0}, {49152*4}, v{T0}
v_lshrrev_b32 v{T0+1}, 1, v{T0}
buffer_load_dword v{R48}, v{T0}, s[{S_O}:{S_O+3}], 0 offen {ld}
buffer_load_dword v{R48+1}, v{T0}, s[{S_I}:{S_I+3}], 0 offen {ld}
buffer_load_ushort v{vA48}, v{T0+1}, s[{S_A}:{S_A+3}], 0 offen {ld}
""")
    a(f"""
v_and_b32 v{T0}, 31, v{vLane}
v_lshlrev_b32 v{T0}, 4, v{T0}
v_lshrrev_b32 v{T0+1}, 5, v{vLane}
v_lshl_add_u32 v{T0}, v{T0+1}, 13, v{T0}
s_lshl_b32 s{sT0}, s{sW}, 9
v_add_u32 v{T0}, s{sT0}, v{T0}
s_mul_i32 s{sT1}, s{sW}, 6144
s_add_u32 s{sT1}, s{sT1}, {ANG}
v_lshlrev_b32 v{vAng}, 3, v{vLane}
v_add_u32 v{vAng}, s{sT1}, v{vAng}
""")
    for j in range(6):
        a(f"s_add_u32 m0, s{sT1}, {j*1024}")
        a(f"s_mov_b32 s{sT0}, {j*16384}")
        a(f"buffer_load_dwordx4 v{T0}, s[{S_A}:{S_A+3}], s{sT0} offen {ld} lds")
    a(f"s_mul_i32 s{sT0}, s2, {TG*16}")
    srd_off(a, S_R, P + 10, sT0, REC_OFF, TG * 16)
    a(f"s_mul_i32 s{sT0}, s2, {F*4}")
    srd_off(a, S_T, P + 10, sT0, TAB_OFF, F * 4)
    srd_off(a, S_X, P + 10, None, MAX_OFF, NT * 4)
    a(f"""
v_mov_b32 v{T0+4}, 0
v_mov_b32 v{T0+5}, 0
v_mov_b32 v{T0+6}, 0
v_mov_b32 v{T0+7}, 0
v_lshlrev_b32 v{T0+1}, 2, v0
ds_write_b128 v{vT16}, v[{T0+4}:{T0+7}]
ds_write_b32 v{T0+1}, v{T0+4} offset:16384
v_cmp_gt_u32 vcc, 64, v0
s_and_saveexec_b64 s[{P}:{P+1}], vcc
ds_write_b32 v{T0+1}, v{T0+4} offset:20480
s_mov_b64 exec, s[{P}:{P+1}]
v_mov_b32 v{vC}, 1
s_waitcnt lgkmcnt(0)
s_barrier
""")
    NV = 24 + 3 + 6
    a(f"""
s_waitcnt vmcnt({NV})
s_mov_b32 s{sT0}, 0x7fff7fff
v_lshlrev_b32 v{vFq}, 16, v{vFq}
v_and_b32 v{vMq}, s{sT0}, v{vMq}
v_readfirstlane_b32 s{sFreq}, v{vFq}
v_and_b32 v{vMq+1}, s{sT0}, v{vMq+1}
v_and_b32 v{vMq+2}, s{sT0}, v{vMq+2}
v_and_b32 v{vMq+3}, s{sT0}, v{vMq+3}
v_pk_max_u16 v{vMq}, v{vMq}, v{vMq+1}
v_pk_max_u16 v{vMq+2}, v{vMq+2}, v{vMq+3}
v_pk_max_u16 v{vMq}, v{vMq}, v{vMq+2}
v_lshrrev_b32 v{vMq+1}, 16, v{vMq}
v_and_b32 v{vMq}, 0xffff, v{vMq}
v_max_u32 v{vMq}, v{vMq}, v{vMq+1}
s_nop 1
""")
    scan(a, "v_max_u32", vMq)
    a(f"""
v_mov_b32 v{vMq+1}, {MXW}
s_mov_b32 exec_lo, 0
s_mov_b32 exec_hi, 0x80000000
ds_max_u32 v{vMq+1}, v{vMq}
s_mov_b64 exec, -1
""")
    t1, t2, tR1, tR3 = T0, T0 + 1, T0 + 2, T0 + 3
    tb = T0 + 4
    for q in range(12):
        r = RQ + q * 8
        a(f"s_waitcnt vmcnt({NV - 2*(q+1)})")
        for k in range(4):
            dst = r + k if k % 2 == 0 else (tR1 if k == 1 else tR3)
            a(f"""
v_mul_hi_u32_u24 v{t1}, s{sMR}, v{r+k}
v_mul_hi_u32_u24 v{t2}, s{sMC}, v{r+4+k}
v_mad_i32_i24 v{dst}, v{t1}, s{sNR}, v{r+k}
v_mul_u32_u24 v{t1}, {NCB*4}, v{t1}
v_mad_i32_i24 v{r+4+k}, v{t2}, s{sNC}, v{r+4+k}
v_lshl_add_u32 v{tb+k}, v{t2}, 2, v{t1}
ds_add_u32 v{tb+k}, v{vC}
""")
        for (k0, tR) in ((0, tR1), (2, tR3)):
            a(f"""
v_lshrrev_b32 v{t1}, 10, v{r+4+k0}
v_lshrrev_b32 v{t2}, 10, v{r+5+k0}
v_lshl_or_b32 v{r+k0}, v{r+k0}, 3, v{t1}
v_lshl_or_b32 v{r+k0+1}, v{r+4+k0}, 22, v{tb+k0}
v_lshl_or_b32 v{r+4+k0}, v{tR}, 3, v{t2}
v_lshl_or_b32 v{r+5+k0}, v{r+5+k0}, 22, v{tb+k0+1}
""")
    sV = P + 12
    a(f"""
v_mov_b32 v{t1}, 848
v_cmp_lt_u32 s[{sV}:{sV+1}], v0, v{t1}
s_waitcnt vmcnt({NV - 26})
v_mul_hi_u32_u24 v{t1}, s{sMR}, v{R48}
v_mul_hi_u32_u24 v{t2}, s{sMC}, v{R48+1}
v_mad_i32_i24 v{R48}, v{t1}, s{sNR}, v{R48}
v_mul_u32_u24 v{t1}, {NCB*4}, v{t1}
v_mad_i32_i24 v{R48+1}, v{t2}, s{sNC}, v{R48+1}
v_lshl_add_u32 v{tb}, v{t2}, 2, v{t1}
s_mov_b64 exec, s[{sV}:{sV+1}]
ds_add_u32 v{tb}, v{vC}
s_mov_b64 exec, -1
v_lshrrev_b32 v{t1}, 10, v{R48+1}
v_lshl_or_b32 v{R48}, v{R48}, 3, v{t1}
v_lshl_or_b32 v{R48+1}, v{R48+1}, 22, v{tb}
s_waitcnt lgkmcnt(0)
s_barrier
""")
    c = T0
    g = T0 + 5
    e = T0 + 10
    vA, vS, vI = T0 + 15, T0 + 16, T0 + 17
    assert e % 2 == 0
    a(f"v_mul_u32_u24 v{vA}, 20, v0")
    for i in range(5):
        a(f"ds_read_b32 v{c+i}, v{vA} offset:{4*i}")
    a(f"s_mov_b32 s{sT0}, 43691")
    a("s_waitcnt lgkmcnt(0)")
    for i in range(5):
        a(f"v_add_u32 v{g+i}, 2, v{c+i}")
        a(f"v_mul_u32_u24 v{g+i}, s{sT0}, v{g+i}")
        a(f"v_lshrrev_b32 v{g+i}, 17, v{g+i}")
    a(f"""
v_add3_u32 v{vS}, v{g}, v{g+1}, v{g+2}
v_add3_u32 v{vS}, v{vS}, v{g+3}, v{g+4}
v_mov_b32 v{vI}, v{vS}
s_nop 1
""")
    scan(a, "v_add_u32", vI)
    a(f"""
s_lshl_b32 s{sT0}, s{sW}, 2
s_add_u32 s{sT0}, s{sT0}, {WT}
v_mov_b32 v{vI+1}, s{sT0}
s_mov_b32 exec_lo, 0
s_mov_b32 exec_hi, 0x80000000
ds_write_b32 v{vI+1}, v{vI}
s_mov_b64 exec, -1
""")
    for i in range(5):
        a(f"v_mul_u32_u24 v{e+i}, 3, v{g+i}")
        a(f"v_sub_u32 v{e+i}, v{e+i}, v{c+i}")
        a(f"v_lshlrev_b32 v{e+i}, 30, v{e+i}")
        a(f"v_lshl_or_b32 v{e+i}, v{g+i}, 15, v{e+i}")
    a(f"""
v_sub_u32 v{vI}, v{vI}, v{vS}
v_and_b32 v{vI+1}, 15, v0
v_lshlrev_b32 v{vI+1}, 2, v{vI+1}
v_mov_b32 v{vI+3}, {MXW}
s_waitcnt lgkmcnt(0)
s_barrier
ds_read_b32 v{vI+1}, v{vI+1} offset:{WT}
ds_read_b32 v{vI+3}, v{vI+3}
s_waitcnt lgkmcnt(0)
v_mov_b32 v{vI+2}, v{vI+1}
v_readfirstlane_b32 s{sMax}, v{vI+3}
s_nop 0
""")
    scan(a, "v_add_u32", vI + 1, full=False)
    a(f"""
v_readlane_b32 s{sG}, v{vI+1}, 15
v_sub_u32 v{vI+2}, v{vI+1}, v{vI+2}
s_nop 0
v_readlane_b32 s{sT0}, v{vI+2}, s{sW}
s_nop 1
v_add_u32 v{vI}, s{sT0}, v{vI}
""")
    for i in range(5):
        a(f"v_or_b32 v{e+i}, v{e+i}, v{vI}")
        a(f"v_mul_u32_u24 v{c+i}, 24, v{vI}")
        a(f"ds_write_b32 v{vA}, v{c+i} offset:{4*i}")
        if i < 4:
            a(f"v_add_u32 v{vI}, v{vI}, v{g+i}")
    a(f"""
buffer_store_dwordx4 v[{e}:{e+3}], v{vA}, s[{S_T}:{S_T+3}], 0 offen
buffer_store_dword v{e+4}, v{vA}, s[{S_T}:{S_T+3}], 0 offen offset:16
v_mov_b32 v{vC}, 8
s_waitcnt lgkmcnt(0)
s_barrier
""")
    pt = (T0, T0 + 4)
    an = (T0 + 8, T0 + 10)
    x = T0 + 12
    assert an[0] % 2 == 0
    assert x + 4 < vA48

    def issue(q):
        s = q & 1
        if q % 2 == 0:
            a(f"s_waitcnt vmcnt({5 - q//2 + 2})")
        a(f"ds_read_b64 v[{an[s]}:{an[s]+1}], v{vAng} offset:{q*512}")
        for k in range(4):
            w = rec(q * 4 + k)
            a(f"v_and_b32 v{pt[s]+k}, s{sLo22}, v{w+1}")
            a(f"ds_add_rtn_u32 v{pt[s]+k}, v{pt[s]+k}, v{vC}")

    def cospair(src, w_lo, w_hi, xx):
        a(f"""
v_lshlrev_b32 v{xx}, 16, v{src}
v_and_b32 v{xx+1}, s{sHi}, v{src}
v_mul_f32 v{xx}, s{sFreq}, v{xx}
v_mul_f32 v{xx+1}, s{sFreq}, v{xx+1}
v_cvt_pk_bf16_f32 v{xx+1}, v{xx}, v{xx+1}
v_lshlrev_b32 v{xx}, 16, v{xx+1}
v_and_b32 v{xx+1}, s{sHi}, v{xx+1}
v_mul_f32 v{xx}, 0.15915494, v{xx}
v_mul_f32 v{xx+1}, 0.15915494, v{xx+1}
v_fract_f32 v{xx}, v{xx}
v_fract_f32 v{xx+1}, v{xx+1}
v_cos_f32 v{xx}, v{xx}
v_cos_f32 v{xx+1}, v{xx+1}
s_nop 0
v_cvt_pk_bf16_f32 v{xx}, v{xx}, v{xx+1}
""")
        a(f"v_lshl_or_b32 v{w_lo}, v{xx}, 16, v{w_lo}")
        if w_hi is not None:
            a(f"v_and_or_b32 v{w_hi}, v{xx}, s{sHi}, v{w_hi}")

    def consume(q, pending):
        s = q & 1
        a(f"s_waitcnt lgkmcnt({pending + 4})")
        cospair(an[s], rec(q * 4), rec(q * 4 + 1), x)
        cospair(an[s] + 1, rec(q * 4 + 2), rec(q * 4 + 3), x + 2)
        a(f"s_waitcnt lgkmcnt({pending})")
        for k in range(4):
            w = rec(q * 4 + k)
            a(f"v_bfi_b32 v{w+1}, s{sLo22}, v{pt[s]+k}, v{w+1}")

    p48 = x + 4
    a(f"""
v_and_b32 v{p48}, s{sLo22}, v{R48+1}
s_mov_b64 exec, s[{sV}:{sV+1}]
ds_add_rtn_u32 v{p48}, v{p48}, v{vC}
s_mov_b64 exec, -1
""")
    issue(0)
    cospair(vA48, R48, None, x)
    a(f"""
s_waitcnt lgkmcnt(5)
v_mov_b32 v{x}, s{sLo22}
v_cndmask_b32 v{p48}, v{x}, v{p48}, s[{sV}:{sV+1}]
v_bfi_b32 v{R48+1}, s{sLo22}, v{p48}, v{R48+1}
""")
    for q in range(12):
        if q + 1 < 12:
            issue(q + 1)
            consume(q, 5)
        else:
            consume(q, 0)
    a(f"""
s_min_u32 s{sG}, s{sG}, {3*CAPG}
s_mov_b32 s{sLo8}, 0
s_mov_b32 s{sSo}, 0
s_lshl_b32 s{sW}, s{sW}, 6
s_barrier
k1_round:
""")
    for sl in range(49):
        w = rec(sl)
        t = T0 + (sl & 3)
        a(f"""
v_subrev_u32 v{t}, s{sLo8}, v{w+1}
v_and_b32 v{t}, s{sLo22}, v{t}
v_cmpx_gt_u32 vcc, s{sCap8}, v{t}
ds_write_b64 v{t}, v[{w}:{w+1}]
s_mov_b64 exec, -1
""")
    a(f"""
s_min_u32 s{sRem}, s{sG}, {CAPG}
s_waitcnt lgkmcnt(0)
s_barrier
""")
    qb = T0
    vB = vAng
    for grp in ((0, 1, 2, 3), (4, 5, 6)):
        a(f"s_add_u32 s{sT0}, s{sW}, {grp[0]*1024}")
        a(f"s_cmp_ge_u32 s{sT0}, s{sRem}")
        a(f"s_cbranch_scc1 k1_co_end")
        for n, it in enumerate(grp):
            if n % 2 == 0:
                a(f"v_add_u32 v{vB}, {it*24576}, v{vT24}")
            o = (n % 2) * 24576
            q = qb + n * 6
            if it == 6:
                a(f"v_min_u32 v{vB}, {(CAPG-1)*24}, v{vB}")
            a(f"ds_read_b64 v[{q}:{q+1}], v{vB} offset:{o}")
            a(f"ds_read_b64 v[{q+2}:{q+3}], v{vB} offset:{o+8}")
            a(f"ds_read_b64 v[{q+4}:{q+5}], v{vB} offset:{o+16}")
        for n, it in enumerate(grp):
            q = qb + n * 6
            a(f"s_sub_i32 s{sT0}, s{sRem}, {it*1024}")
            a(f"s_add_u32 s{sT1}, s{sSo}, {it*16384}")
            a(f"s_waitcnt lgkmcnt({3*(len(grp)-1-n)})")
            a(f"""
v_lshrrev_b32 v{q+5}, 22, v{q+5}
v_alignbit_b32 v{q+5}, v{q+5}, v{q+3}, 22
v_mov_b32 v{q+3}, v{q+4}
v_alignbit_b32 v{q+1}, v{q+5}, v{q+1}, 22
v_cmpx_gt_i32 vcc, s{sT0}, v0
buffer_store_dwordx4 v[{q}:{q+3}], v{vT16}, s[{S_R}:{S_R+3}], s{sT1} offen {st}
s_mov_b64 exec, -1
""")
    a(f"""
k1_co_end:
s_add_u32 s{sLo8}, s{sLo8}, {CAP8}
s_add_u32 s{sSo}, s{sSo}, {CAPG*16}
s_sub_u32 s{sG}, s{sG}, s{sRem}
s_cmp_eq_u32 s{sG}, 0
s_cbranch_scc1 k1_fin
s_barrier
s_branch k1_round
k1_fin:
s_cmp_lg_u32 s{sW}, 0
s_cbranch_scc1 k1_done
s_lshl_b32 s{sT0}, s2, 2
v_mov_b32 v{T0}, s{sT0}
v_mov_b32 v{T0+1}, s{sMax}
s_mov_b64 exec, 1
buffer_store_dword v{T0+1}, v{T0}, s[{S_X}:{S_X+3}], 0 offen
k1_done:
s_endpgm
""")
    return a.s


def gen_k2():
    a = A()
    ld, pst = OPT['k2ld'], OPT['pst']
    ACCB = 50000
    MB = 100000
    NW = MB + 40960
    S_R, S_T, S_X, S_M, S_P = 4, 8, 12, 16, 20
    P = 24
    sW, sWb, sRb, sCg, sJ, sMo, sHi, sMB, sMode, sScale, sInv, sT0, sT1, sT2, sCarry, sTot, sXw, sMagic = range(28, 46)
    sNK = 46
    sA, sB, sC, sD = 48, 50, 52, 54
    MK = 56
    MKS = 74
    TOT = 80
    vLane, vTile, vT16, vT8, vLW = 1, 2, 3, 4, 5
    EN = 8
    MP = 28
    RC = 40
    RCS = 52
    GA = 56
    FT = 62
    PT = 70
    NV = 96

    a(f"""
s_cmp_ge_u32 s2, 256
s_cbranch_scc1 k2_done
s_load_dwordx2 s[{P}:{P+1}], s[0:1], {KA['m']}
s_load_dwordx2 s[{P+2}:{P+3}], s[0:1], {KA['ws']}
v_lshrrev_b32 v{FT}, 6, v0
v_and_b32 v{vLane}, 63, v0
v_readfirstlane_b32 s{sW}, v{FT}
v_lshlrev_b32 v{vT16}, 4, v0
v_lshlrev_b32 v{vT8}, 3, v0
s_and_b32 s{sT0}, s2, 7
s_lshr_b32 s{sCg}, s{sT0}, 1
s_lshr_b32 s{sRb}, s2, 3
s_lshl_b32 s{sRb}, s{sRb}, 1
s_and_b32 s{sT0}, s2, 1
s_add_u32 s{sRb}, s{sRb}, s{sT0}
s_and_b32 s{sWb}, s{sW}, 3
s_lshl_b32 s{sWb}, s{sWb}, 6
s_lshr_b32 s{sT0}, s{sW}, 2
s_lshl_b32 s{sT0}, s{sT0}, 6
v_add_u32 v{vTile}, s{sT0}, v{vLane}
s_mov_b32 s{sHi}, 0xffff0000
s_mov_b32 s{sMB}, {MB}
s_mov_b32 s{sMagic}, 0x4b400000
s_mov_b32 s{sNK}, 0xb4c00000
s_mov_b32 s{sNK+1}, 0xb4bfffff
s_waitcnt lgkmcnt(0)
""")
    srd_off(a, S_R, P + 2, None, REC_OFF, NT * TG * 16)
    srd_off(a, S_T, P + 2, None, TAB_OFF, NT * F * 4)
    srd_off(a, S_X, P + 2, None, MAX_OFF, NT * 4)
    srd_off(a, S_M, P, None, 0, E * 8)
    a(f"""
s_mul_i32 s{sT0}, s{sCg}, {E*16}
s_mul_i32 s{sT1}, s{sRb}, {RB*16}
s_add_u32 s{sT0}, s{sT0}, s{sT1}
""")
    srd_off(a, S_P, P + 2, sT0, PART_OFF, RB * 16)
    a(f"""
s_mul_i32 s{sT0}, s{sRb}, {NCB*4}
s_mul_i32 s{sT1}, s{sCg}, {NPH*4}
s_add_u32 s{sT0}, s{sT0}, s{sT1}
v_mul_u32_u24 v{FT}, {F*4}, v{vTile}
v_add_u32 v{FT}, s{sT0}, v{FT}
v_lshlrev_b32 v{FT+1}, 4, v{vLane}
""")
    for i in range(5):
        a(f"buffer_load_dwordx4 v[{EN+4*i}:{EN+4*i+3}], v{FT}, s[{S_T}:{S_T+3}], 0 offen offset:{16*i}")
    a(f"buffer_load_dwordx4 v[{PT}:{PT+3}], v{FT+1}, s[{S_X}:{S_X+3}], 0 offen")
    a(f"""
s_mul_i32 s{sMo}, s{sCg}, {NPH*CB*8}
v_add_u32 v{vLW}, 32768, v{vT8}
v_mul_u32_u24 v{vTile}, {TG}, v{vTile}
""")

    def m_load():
        a(f"""
v_add_u32 v{FT+6}, s{sMo}, v{vT16}
v_add_u32 v{FT+7}, s{sMo}, v{vLW}
buffer_load_dwordx4 v[{MP}:{MP+3}], v{FT+6}, s[{S_M}:{S_M+3}], 0 offen
v_add_u32 v{FT+6}, 16384, v{FT+6}
buffer_load_dwordx2 v[{MP+8}:{MP+9}], v{FT+7}, s[{S_M}:{S_M+3}], 0 offen
buffer_load_dwordx4 v[{MP+4}:{MP+7}], v{FT+6}, s[{S_M}:{S_M+3}], 0 offen
s_add_u32 s{sMo}, s{sMo}, {CB*8}
""")

    def m_write():
        a(f"""
v_add_u32 v{FT+6}, s{sMB}, v{vT16}
v_add_u32 v{FT+7}, s{sMB}, v{vLW}
ds_write_b128 v{FT+6}, v[{MP}:{MP+3}]
ds_write_b128 v{FT+6}, v[{MP+4}:{MP+7}] offset:16384
ds_write_b64 v{FT+7}, v[{MP+8}:{MP+9}]
""")

    m_load()
    z = PT + 4
    a(f"""
v_mov_b32 v{z}, 0
v_mov_b32 v{z+1}, 0
v_mov_b32 v{z+2}, 0
v_mov_b32 v{z+3}, 0
v_add_u32 v{FT+2}, 65536, v{vT16}
ds_write_b128 v{vT16}, v[{z}:{z+3}]
ds_write_b128 v{vT16}, v[{z}:{z+3}] offset:16384
ds_write_b128 v{vT16}, v[{z}:{z+3}] offset:32768
ds_write_b128 v{vT16}, v[{z}:{z+3}] offset:49152
ds_write_b128 v{FT+2}, v[{z}:{z+3}]
ds_write_b128 v{FT+2}, v[{z}:{z+3}] offset:16384
v_mov_b32 v{FT+3}, {NW}
v_cmp_gt_u32 vcc, {6250-6144}, v0
s_and_saveexec_b64 s[{sA}:{sA+1}], vcc
ds_write_b128 v{FT+2}, v[{z}:{z+3}] offset:32768
ds_write_b32 v{FT+3}, v{z}
s_mov_b64 exec, s[{sA}:{sA+1}]
s_waitcnt lgkmcnt(0)
s_barrier
s_waitcnt vmcnt(3)
""")
    a(f"v_bfe_u32 v{FT}, v{EN}, 15, 15")
    for i in range(1, NPH):
        a(f"v_bfe_u32 v{FT+1}, v{EN+i}, 15, 15")
        a(f"v_add_u32 v{FT}, v{FT}, v{FT+1}")
    a(f"""
v_max_u32 v{PT}, v{PT}, v{PT+1}
v_max_u32 v{PT+2}, v{PT+2}, v{PT+3}
v_max_u32 v{PT}, v{PT}, v{PT+2}
s_nop 1
""")
    scan(a, "v_add_u32", FT)
    scan(a, "v_max_u32", PT)
    a(f"""
v_readlane_b32 s{sT2}, v{PT}, 63
s_cmp_lg_u32 s{sWb}, 0
s_cbranch_scc1 k2_skipn
s_mov_b32 exec_lo, 0
s_mov_b32 exec_hi, 0x80000000
ds_add_u32 v{FT+3}, v{FT}
s_mov_b64 exec, -1
k2_skipn:
s_waitcnt vmcnt(0)
""")
    m_write()
    m_load()

    def flatten(ve, swb, vlw_expr, mk, rc, stot):
        ng, inc, pre, V, tg, val = FT, FT + 1, FT + 2, FT + 3, FT + 4, FT + 5
        a(f"""
v_bfe_u32 v{ng}, v{ve}, 15, 15
v_and_b32 v{V}, 0x7fff, v{ve}
v_mov_b32 v{inc}, v{ng}
v_add_u32 v{V}, v{V}, v{vTile}
s_add_u32 s{sT1}, s{swb}, 64
""")
        scan(a, "v_add_u32", inc)
        a(f"""
v_sub_u32 v{pre}, v{inc}, v{ng}
v_readlane_b32 s{stot}, v{inc}, 63
v_cmp_eq_u32 s[{sC}:{sC+1}], s{sT1}, v{inc}
v_sub_u32 v{V}, v{V}, v{pre}
v_cmp_ge_u32 s[{sA}:{sA+1}], s{swb}, v{pre}
v_alignbit_b32 v{V}, v{V}, v{ve}, 30
v_subrev_u32 v{tg}, s{swb}, v{pre}
s_bcnt1_i32_b64 s{sT0}, s[{sA}:{sA+1}]
v_add_u32 v{val}, -1, v{tg}
s_sub_u32 s{sT0}, s{sT0}, 1
v_cmp_gt_u32 vcc, 63, v{val}
v_cmp_ne_u32 s[{sB}:{sB+1}], 0, v{ng}
v_readlane_b32 s{sCarry}, v{V}, s{sT0}
v_lshlrev_b32 v{tg}, 2, v{tg}
s_and_b64 vcc, vcc, s[{sB}:{sB+1}]
v_cndmask_b32 v{tg}, 0, v{tg}, vcc
v_cndmask_b32 v{val}, 0, v{V}, vcc
ds_permute_b32 v{val}, v{tg}, v{val}
v_add_u32 v{pre}, s{swb}, v{vLane}
v_cmp_gt_u32 s[{mk}:{mk+1}], s{stot}, v{pre}
s_cmp_lg_u64 s[{sC}:{sC+1}], 0
s_cselect_b32 s{sC+1}, 0x80000000, 0
s_mov_b32 s{sC}, 0
s_lshr_b64 s[{sA}:{sA+1}], s[{mk}:{mk+1}], 1
s_andn2_b64 s[{sA}:{sA+1}], s[{mk}:{mk+1}], s[{sA}:{sA+1}]
s_bitset0_b64 s[{sA}:{sA+1}], 63
s_or_b64 s[{sC}:{sC+1}], s[{sC}:{sC+1}], s[{sA}:{sA+1}]
s_waitcnt lgkmcnt(0)
v_cmp_ne_u32 s[{sA}:{sA+1}], 0, v{val}
s_nop 0
""")
        scan(a, "v_max_u32", val)
        a(f"""
v_max_u32 v{val}, s{sCarry}, v{val}
s_lshr_b64 s[{sA}:{sA+1}], s[{sA}:{sA+1}], 1
s_or_b64 s[{sC}:{sC+1}], s[{sC}:{sC+1}], s[{sA}:{sA+1}]
v_lshrrev_b32 v{tg}, 2, v{val}
v_and_b32 v{val}, 3, v{val}
v_add_lshl_u32 v{tg}, v{tg}, v{pre}, 4
v_cmp_eq_u32 s[{sA}:{sA+1}], 2, v{val}
v_cmp_ne_u32 s[{sB}:{sB+1}], 0, v{val}
v_cndmask_b32 v{tg}, -1, v{tg}, s[{mk}:{mk+1}]
buffer_load_dwordx4 v[{rc}:{rc+3}], v{tg}, s[{S_R}:{S_R+3}], 0 offen {ld}
s_and_b64 s[{sA}:{sA+1}], s[{sA}:{sA+1}], s[{sC}:{sC+1}]
s_and_b64 s[{sB}:{sB+1}], s[{sB}:{sB+1}], s[{sC}:{sC+1}]
s_andn2_b64 s[{mk+2}:{mk+3}], s[{mk}:{mk+1}], s[{sA}:{sA+1}]
s_andn2_b64 s[{mk+4}:{mk+5}], s[{mk}:{mk+1}], s[{sB}:{sB+1}]
""")

    AK = (0, 2, 3)

    def gather(mk, rc, ga):
        for k in range(3):
            t = PT + 2 * k
            a(f"""
v_bfe_u32 v{t}, v{rc+1}, {10*k}, 10
v_and_b32 v{t+1}, 7, v{rc+AK[k]}
v_lshl_or_b32 v{t}, v{t+1}, 10, v{t}
v_lshl_add_u32 v{t}, v{t}, 3, s{sMB}
s_mov_b64 exec, s[{mk+2*k}:{mk+2*k+1}]
ds_read_b64 v[{ga+2*k}:{ga+2*k+1}], v{t}
s_mov_b64 exec, -1
""")

    def accum(mk, rc, ga, tag):
        a(f"s_cmp_lg_u32 s{sMode}, 0")
        a(f"s_cbranch_scc1 k2_accf_{tag}")
        for k in range(3):
            t = PT + 8 * k
            g = ga + 2 * k
            a(f"""
v_and_b32 v{t}, s{sHi}, v{rc+AK[k]}
v_and_b32 v{t+1}, 0xfff8, v{rc+AK[k]}
v_mul_f32 v{t}, s{sScale}, v{t}
v_lshlrev_b32 v{t+2}, 16, v{g}
v_and_b32 v{t+3}, s{sHi}, v{g}
v_lshlrev_b32 v{t+4}, 16, v{g+1}
v_and_b32 v{t+5}, s{sHi}, v{g+1}
v_fma_f32 v{t+2}, v{t+2}, v{t}, s{sMagic}
v_fma_f32 v{t+3}, v{t+3}, v{t}, s{sMagic}
v_fma_f32 v{t+4}, v{t+4}, v{t}, s{sMagic}
v_fma_f32 v{t+5}, v{t+5}, v{t}, s{sMagic}
v_lshl_add_u64 v[{t+2}:{t+3}], v[{t+2}:{t+3}], 0, s[{sNK}:{sNK+1}]
v_lshl_add_u64 v[{t+4}:{t+5}], v[{t+4}:{t+5}], 0, s[{sNK}:{sNK+1}]
s_mov_b64 exec, s[{mk+2*k}:{mk+2*k+1}]
ds_add_u64 v{t+1}, v[{t+2}:{t+3}]
ds_add_u64 v{t+1}, v[{t+4}:{t+5}] offset:{ACCB}
s_mov_b64 exec, -1
""")
        a(f"s_branch k2_acce_{tag}")
        a(f"k2_accf_{tag}:")
        for k in range(3):
            t = PT + 8 * k
            g = ga + 2 * k
            a(f"""
v_and_b32 v{t}, s{sHi}, v{rc+AK[k]}
v_and_b32 v{t+1}, 0xfff8, v{rc+AK[k]}
v_lshlrev_b32 v{t+2}, 16, v{g}
v_and_b32 v{t+3}, s{sHi}, v{g}
v_lshlrev_b32 v{t+4}, 16, v{g+1}
v_and_b32 v{t+5}, s{sHi}, v{g+1}
v_mul_f32 v{t+2}, v{t+2}, v{t}
v_mul_f32 v{t+3}, v{t+3}, v{t}
v_mul_f32 v{t+4}, v{t+4}, v{t}
v_mul_f32 v{t+5}, v{t+5}, v{t}
s_mov_b64 exec, s[{mk+2*k}:{mk+2*k+1}]
ds_add_f32 v{t+1}, v{t+2}
ds_add_f32 v{t+1}, v{t+3} offset:4
ds_add_f32 v{t+1}, v{t+4} offset:{ACCB}
ds_add_f32 v{t+1}, v{t+5} offset:{ACCB+4}
s_mov_b64 exec, -1
s_waitcnt lgkmcnt(0)
""")
        a(f"k2_acce_{tag}:")

    flatten(EN + 0, sWb, None, MK + 0, RC + 0, TOT + 0)
    flatten(EN + 1, sWb, None, MK + 6, RC + 4, TOT + 1)
    a(f"""
v_mov_b32 v{FT+3}, {NW}
s_waitcnt lgkmcnt(0)
s_barrier
ds_read_b32 v{FT}, v{FT+3}
s_lshl_b32 s{sT2}, s{sT2}, 16
s_waitcnt lgkmcnt(0)
v_mul_u32_u24 v{FT}, 3, v{FT}
v_max_u32 v{FT}, 1024, v{FT}
s_nop 0
v_readfirstlane_b32 s{sT0}, v{FT}
v_cvt_f32_u32 v{FT}, v{FT}
v_mul_f32 v{FT}, s{sT2}, v{FT}
v_mul_f32 v{FT+1}, 0x30000800, v{FT}
v_rcp_f32 v{FT}, v{FT+1}
s_nop 0
v_readfirstlane_b32 s{sInv}, v{FT+1}
v_readfirstlane_b32 s{sScale}, v{FT}
s_mov_b32 s{sMode}, 0
s_cmp_gt_u32 s{sT0}, 65536
s_cselect_b32 s{sMode}, 1, s{sMode}
s_cmp_gt_u32 s{sT2}, 0x70000000
s_cselect_b32 s{sMode}, 1, s{sMode}
s_cmp_lt_u32 s{sT2}, 0x10000000
s_cselect_b32 s{sMode}, 1, s{sMode}
""")
    for j in range(NPH):
        s0 = j % 3
        s2_ = (j + 2) % 3
        mk0, rc0 = MK + 6 * s0, RC + 4 * s0
        if j == 0:
            a("s_waitcnt vmcnt(1)")
        elif j == 1:
            a("s_waitcnt vmcnt(4)")
        gather(mk0, rc0, GA)
        if j + 2 < NPH:
            flatten(EN + j + 2, sWb, None, MK + 6 * s2_, RC + 4 * s2_, TOT + s2_)
        a(f"""
s_add_u32 s{sXw}, s{sWb}, 256
s_cmp_ge_u32 s{sXw}, s{TOT+s0}
s_cbranch_scc1 k2_nx_{j}
v_mov_b32 v{PT+24}, v{EN+j}
s_call_b64 s[{sD}:{sD+1}], k2_slow
k2_nx_{j}:
s_waitcnt lgkmcnt(0)
s_barrier
""")
        if j + 1 < NPH:
            a(f"s_waitcnt vmcnt({1 if j + 2 < NPH else 0})")
            m_write()
            if j + 2 < NPH:
                m_load()
        accum(mk0, rc0, GA, f"p{j}")
        if j + 1 < NPH:
            a(f"s_cmp_lg_u64 s[{mk0+4}:{mk0+5}], 0")
            a(f"s_cbranch_scc1 k2_w6_{j}")
            a("s_waitcnt lgkmcnt(0)")
            a(f"k2_w6_{j}:")
            a("s_waitcnt lgkmcnt(6)")
            a("s_barrier")
    a(f"""
s_waitcnt lgkmcnt(0)
s_barrier
""")
    for it in range(7):
        b = EN + (it % 4) * 4
        if it == 6:
            a(f"v_cmp_gt_u32 vcc, {6250-6144}, v0")
            a(f"s_and_saveexec_b64 s[{sA}:{sA+1}], vcc")
            a(f"s_cbranch_execz k2_done")
        a(f"""
v_add_u32 v{FT}, {it*8192}, v{vT8}
ds_read_b64 v[{b}:{b+1}], v{FT}
ds_read_b64 v[{b+2}:{b+3}], v{FT} offset:{ACCB}
v_add_u32 v{FT+1}, {it*16384}, v{vT16}
s_cmp_lg_u32 s{sMode}, 0
s_waitcnt lgkmcnt(0)
s_cbranch_scc1 k2_epf_{it}
v_ashrrev_i32 v{FT+2}, 31, v{b}
v_ashrrev_i32 v{FT+3}, 31, v{b+2}
v_sub_u32 v{b+1}, v{b+1}, v{FT+2}
v_sub_u32 v{b+3}, v{b+3}, v{FT+3}
v_cvt_f32_i32 v{b}, v{b}
v_cvt_f32_i32 v{b+1}, v{b+1}
v_cvt_f32_i32 v{b+2}, v{b+2}
v_cvt_f32_i32 v{b+3}, v{b+3}
v_mul_f32 v{b}, s{sInv}, v{b}
v_mul_f32 v{b+1}, s{sInv}, v{b+1}
v_mul_f32 v{b+2}, s{sInv}, v{b+2}
v_mul_f32 v{b+3}, s{sInv}, v{b+3}
k2_epf_{it}:
buffer_store_dwordx4 v[{b}:{b+3}], v{FT+1}, s[{S_P}:{S_P+3}], 0 offen {pst}
""")
    a("""
k2_done:
s_endpgm
""")
    GS = PT + 26
    a("k2_slow:")
    flatten(PT + 24, sXw, None, MKS, RCS, sTot)
    a("s_waitcnt vmcnt(0)")
    gather(MKS, RCS, GS)
    a("s_waitcnt lgkmcnt(0)")
    accum(MKS, RCS, GS, "slow")
    a(f"""
s_add_u32 s{sXw}, s{sXw}, 256
s_cmp_lt_u32 s{sXw}, s{sTot}
s_cbranch_scc1 k2_slow
s_setpc_b64 s[{sD}:{sD+1}]
""")
    return a.s, GS + 6


def gen_k3():
    a = A()
    SW = 32
    pld = OPT['pld']
    a(f"""
s_cmp_ge_u32 s2, 1563
s_cbranch_scc1 k3_done
s_load_dwordx2 s[4:5], s[0:1], {KA['m']}
s_load_dwordx2 s[8:9], s[0:1], {KA['dist']}
s_load_dwordx2 s[12:13], s[0:1], {KA['out']}
s_load_dwordx2 s[22:23], s[0:1], {KA['ws']}
""")
    a(load_weights(SW))
    a("""
s_lshl_b32 s3, s2, 8
v_add_u32 v1, s3, v0
v_lshlrev_b32 v2, 4, v1
v_lshlrev_b32 v3, 3, v1
v_lshlrev_b32 v4, 1, v1
""")
    a(srd(4, 4, E * 8) + srd(8, 8, E * 2) + srd(12, 12, E * 8))
    srd_off(a, 16, 22, None, PART_OFF, 4 * E * 16)
    a(f"""
v_add_u32 v5, {E*16}, v2
v_add_u32 v6, {2*E*16}, v2
v_add_u32 v7, {3*E*16}, v2
buffer_load_dwordx4 v[8:11], v2, s[16:19], 0 offen {pld}
buffer_load_dwordx4 v[20:23], v5, s[16:19], 0 offen {pld}
buffer_load_dwordx4 v[24:27], v6, s[16:19], 0 offen {pld}
buffer_load_dwordx4 v[28:31], v7, s[16:19], 0 offen {pld}
buffer_load_dwordx2 v[12:13], v3, s[4:7], 0 offen
buffer_load_ushort v14, v4, s[8:11], 0 offen
s_waitcnt vmcnt(0) lgkmcnt(0)
v_lshlrev_b32 v14, 16, v14
""")
    for c in range(4):
        a(f"v_add_f32 v{8+c}, v{8+c}, v{20+c}")
        a(f"v_add_f32 v{24+c}, v{24+c}, v{28+c}")
    for c in range(4):
        a(f"v_add_f32 v{8+c}, v{8+c}, v{24+c}")
    a(epilogue(SW, 20, 8, 14, 12, 16, 20))
    a("""
buffer_store_dwordx2 v[16:17], v3, s[12:15], 0 offen
k3_done:
s_endpgm
""")
    return a.s


out = HEADER
out += "; K1: 2-D fine binning of triplets (register-resident tile), K2: LDS gather + integer LDS accumulation, K3: finalize\n"
out += f"; @launch kernel=k1_kernel grid=({NT},1,1) block=(1024,1,1) lds={LDS_ALL}\n"
out += f"; @launch kernel=k2_kernel grid=(256,1,1) block=(1024,1,1) lds=141312\n"
out += "; @launch kernel=k3_kernel grid=(1563,1,1) block=(256,1,1) lds=0\n"
out += '.amdgcn_target "amdgcn-amd-amdhsa--gfx950"\n'
out += kernel_begin('k1_kernel') + gen_k1()
k2, k2v = gen_k2()
out += kernel_begin('k2_kernel') + k2
out += kernel_begin('k3_kernel') + gen_k3()
out += kernel_desc('k1_kernel', 128, 80) + kernel_desc('k2_kernel', k2v, 90) + kernel_desc('k3_kernel', 48, 100)
open(sys.argv[1], 'w').write(out)
```

```python
import sys
sys.path.insert(0, 'dev')
from common import *

NT = 250
NMX = 6
TILE = 51200
RB = 6250
CB = 5000
NCB = 80
NPH = 20
F = 64 * NCB
TGB = 20544 * 16
TABS = (F + 4) * 4
CAPG = 6826
CAP8 = CAPG * 24
REC_OFF = 0
TAB_OFF = 0x5000000
MAX_OFF = 0x5500000
FLAG_OFF = 0x5501000
PART_OFF = 0x5600000
P32_OFF = 0x6400000
DIAG_OFF = 0xA000000
LDS_ALL = 163840
assert NT * TGB <= TAB_OFF and TAB_OFF + NT * TABS <= MAX_OFF

OPT = dict(ld='nt', st='', k2ld='', pst='', pld='', diag='0', depth='3', ne='2', nm='1')
for a_ in sys.argv[2:]:
    k_, v_ = a_.split('=')
    OPT[k_] = v_.replace('+', ' ')

BFI = "bitop3:0xca"
ANDOR = "bitop3:0xea"


class A:
    def __init__(self):
        self.s = ""

    def __call__(self, txt):
        for l in txt.strip('\n').split('\n'):
            l = l.strip()
            if not l:
                continue
            self.s += ("" if l.endswith(':') else "    ") + l + "\n"


def srd_off(a, d, ptr, off_sgpr, off_imm, nbytes):
    if off_sgpr is not None:
        a(f"s_add_u32 s{d}, s{ptr}, s{off_sgpr}")
        a(f"s_addc_u32 s{d+1}, s{ptr+1}, 0")
        if off_imm:
            a(f"s_add_u32 s{d}, s{d}, {off_imm}")
            a(f"s_addc_u32 s{d+1}, s{d+1}, 0")
    else:
        a(f"s_add_u32 s{d}, s{ptr}, {off_imm}")
        a(f"s_addc_u32 s{d+1}, s{ptr+1}, 0")
    a(f"s_mov_b32 s{d+2}, {nbytes}")
    a(f"s_mov_b32 s{d+3}, 0x00020000")


class Stamper:
    def __init__(self, a, kidx, sbase, wsptr, vtmp, srd):
        self.a, self.k, self.sb, self.ws, self.v, self.srd = a, kidx, sbase, wsptr, vtmp, srd
        self.on = OPT['diag'] == '1'

    def start(self):
        if self.on:
            self.a(f"s_memrealtime s[{self.sb+2}:{self.sb+3}]")

    def init(self):
        if not self.on:
            return
        a, sb = self.a, self.sb
        a(f"s_mov_b64 s[{sb}:{sb+1}], exec")
        a(f"s_mov_b64 exec, -1")
        a(f"v_mov_b32 v{self.v}, 0")
        a(f"s_mov_b64 exec, s[{sb}:{sb+1}]")
        a(f"v_writelane_b32 v{self.v}, s{sb+2}, 0")
        a(f"s_mov_b32 s{sb+3}, 1")

    def __call__(self):
        if not self.on:
            return
        a, sb = self.a, self.sb
        a(f"s_memrealtime s[{sb}:{sb+1}]")
        a(f"s_mov_b32 s{sb+2}, m0")
        a(f"s_mov_b32 m0, s{sb+3}")
        a("s_waitcnt lgkmcnt(0)")
        a(f"v_writelane_b32 v{self.v}, s{sb}, m0")
        a(f"s_add_u32 s{sb+3}, s{sb+3}, 1")
        a(f"s_mov_b32 m0, s{sb+2}")

    def flush(self, vt):
        if not self.on:
            return
        a, sb = self.a, self.sb
        a(f"s_lshl_b32 s{sb}, s2, 8")
        srd_off(a, self.srd, self.ws, sb, DIAG_OFF + self.k * 0x100000, 256)
        a(f"s_mov_b64 exec, -1")
        a(f"v_cmp_gt_u32 vcc, 64, v0")
        a(f"s_and_b64 exec, exec, vcc")
        a(f"v_lshlrev_b32 v{vt}, 2, v0")
        a(f"buffer_store_dword v{self.v}, v{vt}, s[{self.srd}:{self.srd+3}], 0 offen")
        a(f"s_mov_b64 exec, -1")


def scan(a, op, v, full=True):
    for sh in (1, 2, 4, 8):
        a(f"{op}_dpp v{v}, v{v}, v{v} row_shr:{sh} row_mask:0xf bank_mask:0xf")
        a("s_nop 1")
    if full:
        a(f"{op}_dpp v{v}, v{v}, v{v} row_bcast:15 row_mask:0xa bank_mask:0xf")
        a("s_nop 1")
        a(f"{op}_dpp v{v}, v{v}, v{v} row_bcast:31 row_mask:0xc bank_mask:0xf")
        a("s_nop 1")


EXEC63 = "s_mov_b32 exec_lo, 0\ns_mov_b32 exec_hi, 0x80000000"


def gen_k1():
    a = A()
    ld, st = OPT['ld'], OPT['st']
    D = int(OPT['depth'])
    WT = 20480
    ANG = 20736
    S_O, S_I, S_A, S_R, S_T, S_F = 4, 8, 12, 16, 20, 24
    P = 28
    sW, sMR, sMC, sNR, sNC, sG, sLo8, sT0, sT1, sCap8, sRem, sSo, sAngL = range(40, 53)
    vC, vAng, vT16, vDma = 1, 2, 3, 4
    vFq = 5
    T0 = 6
    RX = 28
    RQ = 32
    vA48 = 27
    vSt = 26

    def rec(slot):
        if slot >= 48:
            return RX + 2 * (slot - 48)
        q, k = divmod(slot, 4)
        return RQ + q * 8 + (0, 4, 2, 6)[k]

    st_ = Stamper(a, 0, 56, P + 10, vSt, S_O)
    st_.start()
    a(f"""
s_cmp_ge_u32 s2, {NT+NMX}
s_cbranch_scc1 k1_done
s_load_dwordx4 s[{P}:{P+3}], s[0:1], {KA['m']}
s_load_dwordx2 s[{P+4}:{P+5}], s[0:1], {KA['idx_out']}
s_load_dwordx2 s[{P+6}:{P+7}], s[0:1], {KA['angle']}
s_load_dwordx2 s[{P+8}:{P+9}], s[0:1], {KA['ang_freq']}
s_load_dwordx2 s[{P+10}:{P+11}], s[0:1], {KA['ws']}
v_lshrrev_b32 v{T0}, 6, v0
v_lshlrev_b32 v{vT16}, 4, v0
v_readfirstlane_b32 s{sW}, v{T0}
s_cmp_ge_u32 s2, {NT}
s_cbranch_scc1 k1_max
v_mov_b32 v{T0+4}, 0
v_mov_b32 v{T0+5}, 0
v_mov_b32 v{T0+6}, 0
v_mov_b32 v{T0+7}, 0
v_lshlrev_b32 v{T0+1}, 2, v0
ds_write_b128 v{vT16}, v[{T0+4}:{T0+7}]
ds_write_b32 v{T0+1}, v{T0+4} offset:16384
v_mov_b32 v{vC}, 1
s_mov_b32 s{sMR}, 687195
s_mov_b32 s{sMC}, 858994
s_mov_b32 s{sNR}, {-RB}
s_mov_b32 s{sNC}, {-CB}
s_mov_b32 s{sCap8}, {CAP8}
s_mul_i32 s{sT0}, s2, {TILE*4}
s_mul_i32 s{sT1}, s2, {TILE*2}
s_waitcnt lgkmcnt(0)
""")
    srd_off(a, S_O, P + 4, sT0, 0, TILE * 4)
    srd_off(a, S_I, P + 2, sT0, 0, TILE * 4)
    srd_off(a, S_A, P + 6, sT1, 0, TILE * 2)

    vm = []

    def issue_pair(q):
        if q < 12:
            b = RQ + q * 8
            a(f"s_mov_b32 s{sT0}, {q*16384}")
            a(f"buffer_load_dwordx4 v[{b}:{b+3}], v{vT16}, s[{S_O}:{S_O+3}], s{sT0} offen {ld}")
            a(f"buffer_load_dwordx4 v[{b+4}:{b+7}], v{vT16}, s[{S_I}:{S_I+3}], s{sT0} offen {ld}")
            vm.extend([('O', q), ('I', q)])
        elif q == 12:
            a(f"""
v_lshrrev_b32 v{vA48}, 1, v{vT16}
s_mov_b32 s{sT0}, {49152*4}
buffer_load_dwordx2 v[{RX}:{RX+1}], v{vA48}, s[{S_O}:{S_O+3}], s{sT0} offen {ld}
buffer_load_dwordx2 v[{RX+2}:{RX+3}], v{vA48}, s[{S_I}:{S_I+3}], s{sT0} offen {ld}
v_lshrrev_b32 v{vA48}, 2, v{vT16}
s_mov_b32 s{sT0}, {49152*2}
buffer_load_dword v{vA48}, v{vA48}, s[{S_A}:{S_A+3}], s{sT0} offen {ld}
""")
            vm.extend([('O', 12), ('I', 12), ('A', 48)])

    def issue_dma(j):
        if j < 6:
            a(f"s_add_u32 m0, s{sAngL}, {j*1024}")
            a(f"s_mov_b32 s{sT1}, {j*16384}")
            a(f"buffer_load_dwordx4 v{vDma}, s[{S_A}:{S_A+3}], s{sT1} offen {ld} lds")
            vm.append(('D', j))

    def wait_for(key):
        n = len(vm) - 1 - vm.index(key)
        a(f"s_waitcnt vmcnt({n})")

    for q in range(D):
        issue_pair(q)
    srd_off(a, S_F, P + 8, None, 0, 2)
    a(f"""
v_mov_b32 v{vFq}, 0
buffer_load_ushort v{vFq}, v{vFq}, s[{S_F}:{S_F+3}], 0 offen
""")
    vm.append(('F', 0))
    a(f"""
v_and_b32 v{vDma}, 31, v0
v_lshlrev_b32 v{vDma}, 4, v{vDma}
v_bfe_u32 v{T0+1}, v0, 5, 1
v_lshl_add_u32 v{vDma}, v{T0+1}, 13, v{vDma}
s_lshl_b32 s{sT0}, s{sW}, 9
v_add_u32 v{vDma}, s{sT0}, v{vDma}
s_mul_i32 s{sAngL}, s{sW}, 6144
s_add_u32 s{sAngL}, s{sAngL}, {ANG}
v_and_b32 v{vAng}, 63, v0
v_lshlrev_b32 v{vAng}, 3, v{vAng}
v_add_u32 v{vAng}, s{sAngL}, v{vAng}
s_mul_i32 s{sT0}, s2, {TGB}
""")
    srd_off(a, S_R, P + 10, sT0, REC_OFF, TGB)
    a(f"s_mul_i32 s{sT0}, s2, {TABS}")
    srd_off(a, S_T, P + 10, sT0, TAB_OFF, TABS)
    st_.init()
    a("s_barrier")
    st_()
    t1, t2, tR1, tR3 = T0, T0 + 1, T0 + 2, T0 + 3
    tb = T0 + 4

    def binning(ro, ri, dst_rl, tbk):
        a(f"""
v_mul_hi_u32_u24 v{t1}, s{sMR}, v{ro}
v_mul_hi_u32_u24 v{t2}, s{sMC}, v{ri}
v_mad_i32_i24 v{dst_rl}, v{t1}, s{sNR}, v{ro}
v_mul_u32_u24 v{t1}, {NCB*4}, v{t1}
v_mad_i32_i24 v{ri}, v{t2}, s{sNC}, v{ri}
v_lshl_add_u32 v{tbk}, v{t2}, 2, v{t1}
ds_add_u32 v{tbk}, v{vC}
""")

    def packpair(o0, o1, i0, i1, tR, b0, b1):
        a(f"""
v_lshrrev_b32 v{t1}, 10, v{i0}
v_lshrrev_b32 v{t2}, 10, v{i1}
v_lshl_or_b32 v{o0}, v{o0}, 3, v{t1}
v_lshl_or_b32 v{o1}, v{i0}, 22, v{b0}
v_lshl_or_b32 v{i0}, v{tR}, 3, v{t2}
v_lshl_or_b32 v{i1}, v{i1}, 22, v{b1}
""")

    for q in range(13):
        wait_for(('I', q))
        issue_pair(q + D)
        if q < 12:
            r = RQ + q * 8
            for k in range(4):
                binning(r + k, r + 4 + k, r + k if k % 2 == 0 else (tR1 if k == 1 else tR3), tb + k)
            packpair(r, r + 1, r + 4, r + 5, tR1, tb, tb + 1)
            packpair(r + 2, r + 3, r + 6, r + 7, tR3, tb + 2, tb + 3)
        else:
            binning(RX, RX + 2, RX, tb)
            binning(RX + 1, RX + 3, tR1, tb + 1)
            packpair(RX, RX + 1, RX + 2, RX + 3, tR1, tb, tb + 1)
    NE = int(OPT['ne'])
    for j in range(NE):
        issue_dma(j)
    a("""
s_waitcnt lgkmcnt(0)
s_barrier
""")
    st_()
    c = T0
    g = T0 + 5
    e = T0 + 10
    vA, vS, vI = T0 + 16, T0 + 17, T0 + 18
    assert e % 2 == 0 and vI + 1 < vSt
    a(f"v_mul_u32_u24 v{vA}, 20, v0")
    for i in range(5):
        a(f"ds_read_b32 v{c+i}, v{vA} offset:{4*i}")
    a(f"s_mov_b32 s{sT0}, 43691")
    a(f"v_lshlrev_b32 v{vFq}, 16, v{vFq}")
    a("s_waitcnt lgkmcnt(0)")
    for i in range(5):
        a(f"v_add_u32 v{g+i}, 2, v{c+i}")
        a(f"v_mul_u32_u24 v{g+i}, s{sT0}, v{g+i}")
        a(f"v_lshrrev_b32 v{g+i}, 17, v{g+i}")
    a(f"""
v_add3_u32 v{vS}, v{g}, v{g+1}, v{g+2}
v_add3_u32 v{vS}, v{vS}, v{g+3}, v{g+4}
v_mov_b32 v{vI}, v{vS}
s_lshl_b32 s{sT0}, s{sW}, 2
s_add_u32 s{sT0}, s{sT0}, {WT}
""")
    scan(a, "v_add_u32", vI)
    a(f"""
v_mov_b32 v{vI+1}, s{sT0}
{EXEC63}
ds_write_b32 v{vI+1}, v{vI}
s_mov_b64 exec, -1
""")
    for i in range(5):
        a(f"v_mul_u32_u24 v{e+i}, 3, v{g+i}")
        a(f"v_sub_u32 v{e+i}, v{e+i}, v{c+i}")
        a(f"v_min_u32 v{c+i}, 0x1fff, v{c+i}")
        a(f"v_lshl_or_b32 v{e+i}, v{c+i}, 19, v{e+i}")
    a(f"""
v_sub_u32 v{vI}, v{vI}, v{vS}
v_and_b32 v{vI+1}, 15, v0
v_lshlrev_b32 v{vI+1}, 2, v{vI+1}
""")
    NM = int(OPT['nm'])
    for j in range(NE, NE + NM):
        issue_dma(j)
    a(f"""
s_waitcnt lgkmcnt(0)
s_barrier
ds_read_b32 v{vI+1}, v{vI+1} offset:{WT}
s_waitcnt lgkmcnt(0)
v_mov_b32 v{vS}, v{vI+1}
""")
    scan(a, "v_add_u32", vI + 1, full=False)
    a(f"""
v_readlane_b32 s{sG}, v{vI+1}, 15
v_sub_u32 v{vS}, v{vI+1}, v{vS}
s_nop 0
v_readlane_b32 s{sT0}, v{vS}, s{sW}
s_nop 1
v_add_u32 v{vI}, s{sT0}, v{vI}
""")
    for i in range(5):
        a(f"v_mul_u32_u24 v{c+i}, 24, v{vI}")
        a(f"v_lshl_or_b32 v{e+i}, v{vI}, 4, v{e+i}")
        a(f"ds_write_b32 v{vA}, v{c+i} offset:{4*i}")
        a(f"v_add_u32 v{vI}, v{vI}, v{g+i}")
    a(f"""
v_lshlrev_b32 v{e+5}, 4, v{vI}
buffer_store_dwordx4 v[{e}:{e+3}], v{vA}, s[{S_T}:{S_T+3}], 0 offen
buffer_store_dword v{e+4}, v{vA}, s[{S_T}:{S_T+3}], 0 offen offset:16
v_mov_b32 v{vI}, 1023
v_cmp_eq_u32 s[{P}:{P+1}], v0, v{vI}
v_mov_b32 v{vC}, 8
v_mov_b32 v{vS}, 0xffff0000
v_cndmask_b32 v{vA}, v{vS}, v{vA}, s[{P}:{P+1}]
buffer_store_dword v{e+5}, v{vA}, s[{S_T}:{S_T+3}], 0 offen offset:20
s_waitcnt lgkmcnt(0)
s_barrier
""")
    vm.extend([('S', 0), ('S', 1), ('S', 2)])
    st_()
    pt = (T0, T0 + 4)
    an = (T0 + 8, T0 + 10)
    x = T0 + 12
    vM22, vMHi = T0 + 16, T0 + 17
    p48 = T0 + 18
    a(f"v_mov_b32 v{vM22}, 0x3fffff")
    a(f"v_mov_b32 v{vMHi}, 0xffff0000")

    def issue(q):
        s = q & 1
        if q % 2 == 0:
            wait_for(('D', q // 2))
            issue_dma(q // 2 + NE + NM)
        a(f"ds_read_b64 v[{an[s]}:{an[s]+1}], v{vAng} offset:{q*512}")
        for k in range(4):
            w = rec(q * 4 + k)
            a(f"v_and_b32 v{pt[s]+k}, v{vM22}, v{w+1}")
            a(f"ds_add_rtn_u32 v{pt[s]+k}, v{pt[s]+k}, v{vC}")

    def cospair(src, w_lo, w_hi, xx):
        a(f"""
v_lshlrev_b32 v{xx}, 16, v{src}
v_and_b32 v{xx+1}, v{vMHi}, v{src}
v_mul_f32 v{xx}, v{vFq}, v{xx}
v_mul_f32 v{xx+1}, v{vFq}, v{xx+1}
v_cvt_pk_bf16_f32 v{xx+1}, v{xx}, v{xx+1}
v_lshlrev_b32 v{xx}, 16, v{xx+1}
v_and_b32 v{xx+1}, v{vMHi}, v{xx+1}
v_mul_f32 v{xx}, 0.15915494, v{xx}
v_mul_f32 v{xx+1}, 0.15915494, v{xx+1}
v_fract_f32 v{xx}, v{xx}
v_fract_f32 v{xx+1}, v{xx+1}
v_cos_f32 v{xx}, v{xx}
v_cos_f32 v{xx+1}, v{xx+1}
s_nop 0
v_cvt_pk_bf16_f32 v{xx}, v{xx}, v{xx+1}
v_lshl_or_b32 v{w_lo}, v{xx}, 16, v{w_lo}
v_bitop3_b32 v{w_hi}, v{xx}, v{vMHi}, v{w_hi} {ANDOR}
""")

    def consume(q, pending):
        s = q & 1
        a(f"s_waitcnt lgkmcnt({pending + 4})")
        cospair(an[s], rec(q * 4), rec(q * 4 + 1), x)
        cospair(an[s] + 1, rec(q * 4 + 2), rec(q * 4 + 3), x + 2)
        a(f"s_waitcnt lgkmcnt({pending})")
        for k in range(4):
            w = rec(q * 4 + k)
            a(f"v_bitop3_b32 v{w+1}, v{vM22}, v{pt[s]+k}, v{w+1} {BFI}")

    for k in range(2):
        a(f"v_and_b32 v{p48+k}, v{vM22}, v{rec(48+k)+1}")
        a(f"ds_add_rtn_u32 v{p48+k}, v{p48+k}, v{vC}")
    issue(0)
    cospair(vA48, rec(48), rec(49), x)
    a("s_waitcnt lgkmcnt(5)")
    for k in range(2):
        a(f"v_bitop3_b32 v{rec(48+k)+1}, v{vM22}, v{p48+k}, v{rec(48+k)+1} {BFI}")
    for q in range(12):
        if q + 1 < 12:
            issue(q + 1)
            consume(q, 5)
        else:
            consume(q, 0)
    vLo, vT24, vMx, vB = vC, vAng, vDma, vFq
    a(f"""
s_min_u32 s{sG}, s{sG}, 20480
v_mov_b32 v{vLo}, 0
v_mul_u32_u24 v{vT24}, 24, v0
v_mov_b32 v{vMx}, 0xffc00000
s_mov_b32 s{sSo}, 0
s_lshl_b32 s{sW}, s{sW}, 6
s_barrier
k1_round:
""")
    st_()
    for sl in range(50):
        w = rec(sl)
        t = T0 + (sl & 3)
        a(f"""
v_sub_u32 v{t}, v{w+1}, v{vLo}
v_and_b32 v{t}, 0x3fffff, v{t}
v_cmpx_gt_u32 vcc, s{sCap8}, v{t}
ds_write_b64 v{t}, v[{w}:{w+1}]
s_mov_b64 exec, -1
""")
    a(f"""
s_min_u32 s{sRem}, s{sG}, {CAPG}
v_add_u32 v{vLo}, {CAP8}, v{vLo}
s_waitcnt lgkmcnt(0)
s_barrier
""")
    st_()
    qb = T0
    for grp in ((0, 1, 2), (3, 4), (5, 6)):
        a(f"s_add_u32 s{sT0}, s{sW}, {grp[0]*1024}")
        a(f"s_cmp_ge_u32 s{sT0}, s{sRem}")
        a(f"s_cbranch_scc1 k1_co_end")
        a(f"v_add_u32 v{vB}, {grp[0]*24576}, v{vT24}")
        for n, it in enumerate(grp):
            o = n * 24576
            q = qb + n * 6
            if it == 6:
                a(f"v_min_u32 v{vB}, {(CAPG-1)*24 - 24576}, v{vB}")
            a(f"ds_read_b64 v[{q}:{q+1}], v{vB} offset:{o}")
            a(f"ds_read_b64 v[{q+2}:{q+3}], v{vB} offset:{o+8}")
            a(f"ds_read_b64 v[{q+4}:{q+5}], v{vB} offset:{o+16}")
        for n, it in enumerate(grp):
            q = qb + n * 6
            a(f"s_sub_i32 s{sT0}, s{sRem}, {it*1024}")
            a(f"s_add_u32 s{sT1}, s{sSo}, {it*16384}")
            a(f"s_waitcnt lgkmcnt({3*(len(grp)-1-n)})")
            a(f"""
v_lshrrev_b32 v{q+5}, 10, v{q+5}
v_bitop3_b32 v{q+5}, v{vMx}, v{q+3}, v{q+5} {BFI}
v_mov_b32 v{q+3}, v{q+4}
v_lshrrev_b32 v{q+5}, 10, v{q+5}
v_bitop3_b32 v{q+1}, v{vMx}, v{q+1}, v{q+5} {BFI}
v_cmpx_gt_i32 vcc, s{sT0}, v0
buffer_store_dwordx4 v[{q}:{q+3}], v{vT16}, s[{S_R}:{S_R+3}], s{sT1} offen {st}
s_mov_b64 exec, -1
""")
    a(f"""
k1_co_end:
s_add_u32 s{sSo}, s{sSo}, {CAPG*16}
s_sub_u32 s{sG}, s{sG}, s{sRem}
s_cmp_eq_u32 s{sG}, 0
s_cbranch_scc1 k1_fin
s_barrier
s_branch k1_round
k1_fin:
""")
    st_()
    if st_.on:
        a("s_waitcnt vmcnt(0)")
    st_()
    st_.flush(T0)
    a("""
k1_done:
s_endpgm
""")
    S_M, S_X = 4, 8
    a(f"""
k1_max:
s_sub_u32 s3, s2, {NT}
s_mul_i32 s{sT0}, s3, {33*16384}
v_add_u32 v{vT16}, s{sT0}, v{vT16}
v_mov_b32 v{vC}, 0
v_mov_b32 v{vAng}, 0
ds_write_b32 v{vC}, v{vC}
s_waitcnt lgkmcnt(0)
""")
    srd_off(a, S_M, P, None, 0, E * 8)
    srd_off(a, S_X, P + 10, None, MAX_OFF, 64)
    a(f"s_mov_b32 s{sT1}, 3")
    a("k1_mxl:")
    for i in range(11):
        a(f"buffer_load_dwordx4 v[{RQ+4*i}:{RQ+4*i+3}], v{vT16}, s[{S_M}:{S_M+3}], 0 offen")
        a(f"v_add_u32 v{vT16}, 16384, v{vT16}")
    for i in range(11):
        a(f"s_waitcnt vmcnt({10-i})")
        for k in range(4):
            a(f"v_and_b32 v{RQ+4*i+k}, 0x7fff7fff, v{RQ+4*i+k}")
            a(f"v_pk_max_u16 v{vAng}, v{vAng}, v{RQ+4*i+k}")
    a(f"""
s_sub_u32 s{sT1}, s{sT1}, 1
s_cmp_lg_u32 s{sT1}, 0
s_cbranch_scc1 k1_mxl
v_lshrrev_b32 v{T0}, 16, v{vAng}
v_and_b32 v{vAng}, 0xffff, v{vAng}
v_max_u32 v{vAng}, v{vAng}, v{T0}
s_barrier
s_nop 1
""")
    scan(a, "v_max_u32", vAng)
    a(f"""
{EXEC63}
ds_max_u32 v{vC}, v{vAng}
s_mov_b64 exec, -1
s_waitcnt lgkmcnt(0)
s_barrier
s_cmp_lg_u32 s{sW}, 0
s_cbranch_scc1 k1_done2
ds_read_b32 v{vAng}, v{vC}
s_lshl_b32 s3, s3, 2
v_mov_b32 v{T0}, s3
s_mov_b64 exec, 1
s_waitcnt lgkmcnt(0)
buffer_store_dword v{vAng}, v{T0}, s[{S_X}:{S_X+3}], 0 offen
k1_done2:
s_endpgm
""")
    return a.s


def gen_k2():
    a = A()
    ld, pst = OPT['k2ld'], OPT['pst']
    ACC = 40960
    ACCB = 50000
    NW = ACC + 2 * ACCB
    S_R, S_T, S_M, S_P = 4, 8, 12, 16
    P = 20
    MXS = 24
    sW, sRb, sCg, sJ, sMo, sMode, sPf, sT0, sT1, sT2, sCarry, sTot, sXw = range(32, 45)
    sNK = 46
    sA, sB, sC, sD = 48, 50, 52, 54
    MK = (56, 62)
    MN = (68, 74)
    MX = (80, 86)
    TOT = (92, 93)
    MS = MXS
    vLane16, vBase, vT16, vLW, vMagic, vMHi = 1, 2, 3, 4, 5, 6
    vSt = 7
    EN = 8
    TH = 31
    MP = 34
    RC = (44, 48)
    RXW = (52, 56)
    GA = 60
    CR = (66, 72)
    GX = 78
    FT = 84
    PT = 92
    HQ = 96
    XT = 104
    RS, CS = 108, 112
    NVG = 118

    st_ = Stamper(a, 1, 94, P + 2, vSt, S_R)
    st_.start()
    a(f"""
s_cmp_ge_u32 s2, 256
s_cbranch_scc1 k2_done
s_load_dwordx2 s[{P}:{P+1}], s[0:1], {KA['m']}
s_load_dwordx2 s[{P+2}:{P+3}], s[0:1], {KA['ws']}
v_lshrrev_b32 v{FT}, 6, v0
v_and_b32 v{FT+1}, 63, v0
v_readfirstlane_b32 s{sW}, v{FT}
v_lshlrev_b32 v{vT16}, 4, v0
v_lshlrev_b32 v{vLane16}, 4, v{FT+1}
s_and_b32 s{sT0}, s2, 7
s_lshr_b32 s{sCg}, s{sT0}, 1
s_lshr_b32 s{sRb}, s2, 3
s_lshl_b32 s{sRb}, s{sRb}, 1
s_and_b32 s{sT0}, s2, 1
s_add_u32 s{sRb}, s{sRb}, s{sT0}
v_mul_u32_u24 v{FT+2}, 43, v{FT+1}
v_lshrrev_b32 v{FT+2}, 7, v{FT+2}
v_mul_u32_u24 v{FT+3}, 3, v{FT+2}
v_sub_u32 v{FT+3}, v{FT+1}, v{FT+3}
s_cmp_lt_u32 s{sW}, 4
s_cbranch_scc1 k2_rl0
s_sub_u32 s{sT0}, s{sW}, 4
s_mul_i32 s{sT0}, s{sT0}, 21
v_add_u32 v{FT+2}, s{sT0}, v{FT+2}
s_branch k2_rl1
k2_rl0:
s_mul_i32 s{sT0}, s{sW}, 63
v_add_u32 v{FT+2}, s{sT0}, v{FT+1}
v_mov_b32 v{FT+3}, 3
k2_rl1:
s_mul_i32 s{sT0}, s{sRb}, {NCB*4}
s_mul_i32 s{sT1}, s{sCg}, {NPH*4}
s_add_u32 s{sT0}, s{sT0}, s{sT1}
v_mul_u32_u24 v{FT}, {TABS}, v{FT+2}
v_add_u32 v{FT}, s{sT0}, v{FT}
s_mov_b32 s{sT0}, 0xffff0000
v_writelane_b32 v{FT}, s{sT0}, 63
v_lshrrev_b32 v{vLW}, 1, v{vT16}
v_add_u32 v{vLW}, 32768, v{vLW}
v_min_u32 v{vLW}, {CB*8-8}, v{vLW}
s_mul_i32 s{sMo}, s{sCg}, {NPH*CB*8}
s_waitcnt lgkmcnt(0)
""")
    srd_off(a, S_T, P + 2, None, TAB_OFF, NT * TABS)
    a(f"buffer_load_dwordx4 v[{EN}:{EN+3}], v{FT}, s[{S_T}:{S_T+3}], 0 offen")
    srd_off(a, S_M, P, None, 0, E * 8)

    def m_load():
        a(f"""
s_add_u32 s{sT0}, s{sMo}, 16384
buffer_load_dwordx4 v[{MP}:{MP+3}], v{vT16}, s[{S_M}:{S_M+3}], s{sMo} offen
buffer_load_dwordx4 v[{MP+4}:{MP+7}], v{vT16}, s[{S_M}:{S_M+3}], s{sT0} offen
buffer_load_dwordx2 v[{MP+8}:{MP+9}], v{vLW}, s[{S_M}:{S_M+3}], s{sMo} offen
s_add_u32 s{sMo}, s{sMo}, {CB*8}
s_min_u32 s{sMo}, s{sMo}, {E*8 - CB*8}
""")

    def m_write():
        a(f"""
ds_write_b128 v{vT16}, v[{MP}:{MP+3}]
ds_write_b128 v{vT16}, v[{MP+4}:{MP+7}] offset:16384
ds_write_b64 v{vLW}, v[{MP+8}:{MP+9}]
""")

    m_load()
    a(f"buffer_load_dword v{EN+20}, v{FT}, s[{S_T}:{S_T+3}], 0 offen offset:80")
    for i in range(1, 5):
        a(f"buffer_load_dwordx4 v[{EN+4*i}:{EN+4*i+3}], v{FT}, s[{S_T}:{S_T+3}], 0 offen offset:{16*i}")
    a(f"""
s_add_u32 s{sA}, s{P+2}, {MAX_OFF}
s_addc_u32 s{sA+1}, s{P+3}, 0
s_load_dwordx8 s[{MXS}:{MXS+7}], s[{sA}:{sA+1}], 0
s_mov_b32 s{sT0}, {TGB}
v_mul_lo_u32 v{vBase}, v{FT+2}, s{sT0}
v_lshl_add_u32 v{vBase}, v{FT+3}, 4, v{vBase}
v_mul_u32_u24 v{TH}, 3, v{FT+3}
v_add_u32 v{TH}, 1, v{TH}
v_lshlrev_b32 v{TH}, 19, v{TH}
v_add_u32 v{TH+1}, 0x80000, v{TH}
v_add_u32 v{TH+2}, 0x100000, v{TH}
v_mov_b32 v{vMHi}, 0xffff0000
v_mov_b32 v{EN+21}, 0
v_mov_b32 v{EN+22}, 0
""")
    srd_off(a, S_R, P + 2, None, REC_OFF, NT * TGB)
    z = PT
    a(f"""
v_mov_b32 v{z}, 0
v_mov_b32 v{z+1}, 0
v_mov_b32 v{z+2}, 0
v_mov_b32 v{z+3}, 0
v_add_u32 v{FT+2}, {ACC}, v{vT16}
v_add_u32 v{FT+3}, {ACC+65536}, v{vT16}
ds_write_b128 v{FT+2}, v[{z}:{z+3}]
ds_write_b128 v{FT+2}, v[{z}:{z+3}] offset:16384
ds_write_b128 v{FT+2}, v[{z}:{z+3}] offset:32768
ds_write_b128 v{FT+2}, v[{z}:{z+3}] offset:49152
ds_write_b128 v{FT+3}, v[{z}:{z+3}]
ds_write_b128 v{FT+3}, v[{z}:{z+3}] offset:16384
v_cmp_gt_u32 vcc, {6250-6144}, v0
s_and_saveexec_b64 s[{sB}:{sB+1}], vcc
ds_write_b128 v{FT+3}, v[{z}:{z+3}] offset:32768
s_mov_b64 exec, s[{sB}:{sB+1}]
s_mov_b64 s[{MK[1]+2}:{MK[1]+3}], 0
s_mov_b64 s[{MK[1]+4}:{MK[1]+5}], 0
v_mov_b32 v{CR[1]+4}, 0
v_mov_b32 v{CR[1]+5}, 0
""")
    st_.init()

    AK = (0, 2, 3)

    def gathers(mk, rc, ga):
        t = PT
        a(f"""
v_alignbit_b32 v{t}, v{rc}, v{rc+1}, 19
v_lshlrev_b32 v{t+1}, 10, v{rc+1}
v_and_b32 v{t}, 0xfff8, v{t}
v_lshlrev_b32 v{t+2}, 20, v{rc+1}
s_mov_b64 exec, s[{mk}:{mk+1}]
ds_read_b64 v[{ga}:{ga+1}], v{t}
s_mov_b64 exec, -1
v_alignbit_b32 v{t+1}, v{rc+2}, v{t+1}, 19
v_alignbit_b32 v{t+2}, v{rc+3}, v{t+2}, 19
v_and_b32 v{t+1}, 0xfff8, v{t+1}
v_and_b32 v{t+2}, 0xfff8, v{t+2}
s_mov_b64 exec, s[{mk+2}:{mk+3}]
ds_read_b64 v[{ga+2}:{ga+3}], v{t+1}
s_mov_b64 exec, s[{mk+4}:{mk+5}]
ds_read_b64 v[{ga+4}:{ga+5}], v{t+2}
s_mov_b64 exec, -1
""")

    def cosrow(rc, cr):
        for k in range(3):
            a(f"v_and_b32 v{cr+3+k}, 0xfff8, v{rc+AK[k]}")
            a(f"v_and_b32 v{cr+k}, v{vMHi}, v{rc+AK[k]}")
            a(f"v_add_u32 v{cr+3+k}, {ACC}, v{cr+3+k}")

    def qcalc(t, g, c):
        a(f"""
v_lshlrev_b32 v{t}, 16, v{g}
v_and_b32 v{t+1}, v{vMHi}, v{g}
v_lshlrev_b32 v{t+2}, 16, v{g+1}
v_and_b32 v{t+3}, v{vMHi}, v{g+1}
v_fma_f32 v{t}, v{t}, v{c}, v{vMagic}
v_fma_f32 v{t+1}, v{t+1}, v{c}, v{vMagic}
v_fma_f32 v{t+2}, v{t+2}, v{c}, v{vMagic}
v_fma_f32 v{t+3}, v{t+3}, v{c}, v{vMagic}
v_lshl_add_u64 v[{t}:{t+1}], v[{t}:{t+1}], 0, s[{sNK}:{sNK+1}]
v_lshl_add_u64 v[{t+2}:{t+3}], v[{t+2}:{t+3}], 0, s[{sNK}:{sNK+1}]
""")

    def adds(mkp, row, t):
        a(f"""
s_mov_b64 exec, s[{mkp}:{mkp+1}]
ds_add_u64 v{row}, v[{t}:{t+1}]
ds_add_u64 v{row}, v[{t+2}:{t+3}] offset:{ACCB}
""")

    late = []

    def accum_main(h, tag):
        mk, cr = MK[h], CR[h]
        a(f"s_cmp_lg_u32 s{sMode}, 0")
        a(f"s_cbranch_scc1 k2_accf_{tag}")
        qcalc(PT, GA, cr)
        adds(mk, cr + 3, PT)
        a("s_mov_b64 exec, -1")
        qcalc(HQ, GA + 2, cr + 1)
        qcalc(HQ + 4, GA + 4, cr + 2)
        a(f"k2_acce_{tag}:")
        late.append((mk, GA, cr, tag, True))

    def held(h):
        mk, cr = MK[h], CR[h]
        adds(mk + 2, cr + 4, HQ)
        adds(mk + 4, cr + 5, HQ + 4)
        a("s_mov_b64 exec, -1")

    def accum_now(mk, ga, cr, tag):
        a(f"s_cmp_lg_u32 s{sMode}, 0")
        a(f"s_cbranch_scc1 k2_accf_{tag}")
        for k in range(3):
            qcalc(XT, ga + 2 * k, cr + k)
            adds(mk + 2 * k, cr + 3 + k, XT)
            a("s_mov_b64 exec, -1")
        a(f"k2_acce_{tag}:")
        late.append((mk, ga, cr, tag, False))

    def accum_f32(mk, ga, cr, tag, clear):
        a(f"k2_accf_{tag}:")
        for k in range(3):
            t = XT
            g = ga + 2 * k
            a(f"""
v_lshlrev_b32 v{t}, 16, v{g}
v_and_b32 v{t+1}, v{vMHi}, v{g}
v_lshlrev_b32 v{t+2}, 16, v{g+1}
v_and_b32 v{t+3}, v{vMHi}, v{g+1}
v_mul_f32 v{t}, v{t}, v{cr+k}
v_mul_f32 v{t+1}, v{t+1}, v{cr+k}
v_mul_f32 v{t+2}, v{t+2}, v{cr+k}
v_mul_f32 v{t+3}, v{t+3}, v{cr+k}
s_mov_b64 exec, s[{mk+2*k}:{mk+2*k+1}]
ds_add_f32 v{cr+3+k}, v{t}
ds_add_f32 v{cr+3+k}, v{t+1} offset:4
ds_add_f32 v{cr+3+k}, v{t+2} offset:{ACCB}
ds_add_f32 v{cr+3+k}, v{t+3} offset:{ACCB+4}
s_mov_b64 exec, -1
s_waitcnt lgkmcnt(0)
""")
        if clear:
            a(f"s_mov_b64 s[{mk+2}:{mk+3}], 0")
            a(f"s_mov_b64 s[{mk+4}:{mk+5}], 0")
        a(f"s_branch k2_acce_{tag}")

    def scale_setup():
        a(f"""
v_mov_b32 v{FT+3}, {NW}
ds_read_b128 v[{FT+4}:{FT+7}], v{FT+3}
s_max_u32 s{MXS}, s{MXS}, s{MXS+1}
s_max_u32 s{MXS+2}, s{MXS+2}, s{MXS+3}
s_max_u32 s{MXS+4}, s{MXS+4}, s{MXS+5}
s_max_u32 s{MXS}, s{MXS}, s{MXS+2}
s_max_u32 s{MXS}, s{MXS}, s{MXS+4}
s_lshl_b32 s{sT2}, s{MXS}, 16
s_waitcnt lgkmcnt(0)
v_add_u32 v{FT}, v{FT+4}, v{FT+5}
v_add_u32 v{FT+1}, v{FT+6}, v{FT+7}
v_add_u32 v{FT}, v{FT}, v{FT+1}
v_lshrrev_b32 v{FT}, 4, v{FT}
v_mul_u32_u24 v{FT}, 3, v{FT}
v_max_u32 v{FT}, 1024, v{FT}
s_nop 0
v_readfirstlane_b32 s{sT0}, v{FT}
v_cvt_f32_u32 v{FT}, v{FT}
v_mul_f32 v{FT}, s{sT2}, v{FT}
v_mul_f32 v{FT}, 0x3f802000, v{FT}
s_nop 0
v_readfirstlane_b32 s{sT1}, v{FT}
s_mov_b32 s{sMode}, 0
s_cmp_gt_u32 s{sT0}, 65536
s_cselect_b32 s{sMode}, 1, s{sMode}
s_cmp_gt_u32 s{sT2}, 0x70000000
s_cselect_b32 s{sMode}, 1, s{sMode}
s_cmp_lt_u32 s{sT2}, 0x18000000
s_cselect_b32 s{sMode}, 1, s{sMode}
s_and_b32 s{sT1}, s{sT1}, 0x7f800000
s_and_b32 s{sT2}, s{sT2}, 0x7f800000
s_sub_u32 s{sPf}, s{sT1}, s{sT2}
s_add_u32 s{sPf}, s{sPf}, {(125 - 30) << 23}
s_sub_u32 s{sT1}, s{sT1}, {(7 << 23) - 0x400000}
v_mov_b32 v{vMagic}, s{sT1}
s_sub_u32 s{sNK}, 0, s{sT1}
s_not_b32 s{sNK+1}, s{sT1}
""")

    def wait_bar(mkp, n, tag):
        a(f"""
s_cmp_lg_u64 s[{mkp}:{mkp+1}], 0
s_cbranch_scc1 k2_w_{tag}
s_waitcnt lgkmcnt(0)
k2_w_{tag}:
s_waitcnt lgkmcnt({n})
s_barrier
""")

    a(f"""
s_mov_b32 s{sJ}, 0
s_cmp_lt_u32 s{sW}, 4
s_cbranch_scc1 k2_rem
""")

    def d_load(e, rc):
        a(f"""
v_and_b32 v{FT}, 0x7fff0, v{e}
v_add_u32 v{FT}, v{FT}, v{vBase}
buffer_load_dwordx4 v[{rc}:{rc+3}], v{FT}, s[{S_R}:{S_R+3}], 0 offen {ld}
""")

    a("s_waitcnt vmcnt(8)")
    d_load(EN, RC[0])
    d_load(EN + 1, RC[1])
    a("s_waitcnt vmcnt(7)")
    m_write()
    m_load()
    a("s_waitcnt lgkmcnt(0)")
    a("s_barrier")
    scale_setup()
    a("s_waitcnt vmcnt(4)")
    a("k2_dloop:")
    for h in range(2):
        mk = MK[h]
        a(f"""
s_set_gpr_idx_on s{sJ}, 0x1
v_mov_b32 v{FT+1}, v{EN+h}
v_mov_b32 v{FT+2}, v{EN+h+2}
s_set_gpr_idx_off
v_cmp_le_u32 s[{mk}:{mk+1}], v{TH}, v{FT+1}
v_cmp_le_u32 s[{mk+2}:{mk+3}], v{TH+1}, v{FT+1}
v_cmp_le_u32 s[{mk+4}:{mk+5}], v{TH+2}, v{FT+1}
""")
        gathers(mk, RC[h], GA)
        held(h ^ 1)
        cosrow(RC[h], CR[h])
        d_load(FT + 2, RC[h])
        wait_bar(MK[h ^ 1] + 4, 4, f"da{h}")
        a("s_waitcnt vmcnt(1)")
        m_write()
        m_load()
        accum_main(h, f"d{h}")
        wait_bar(mk, 2, f"db{h}")
    a(f"""
s_add_u32 s{sJ}, s{sJ}, 2
s_cmp_lt_u32 s{sJ}, {NPH}
s_cbranch_scc1 k2_dloop
s_branch k2_epi
""")

    nr, inc, pre, V, tg, val, e0 = FT, FT + 1, FT + 2, FT + 3, FT + 4, FT + 5, FT + 6

    def flat_scan(ea, eb, stot):
        a(f"""
v_and_b32 v{V}, 0x7fff3, v{ea}
v_and_b32 v{nr}, 0x7fff0, v{eb}
v_and_b32 v{pre}, 0x7fff0, v{ea}
v_add_u32 v{V}, v{V}, v{vBase}
v_sub_u32 v{nr}, v{nr}, v{pre}
v_add_u32 v{nr}, -48, v{nr}
v_max_i32 v{nr}, 0, v{nr}
v_mov_b32 v{inc}, v{nr}
s_nop 1
""")
        scan(a, "v_add_u32", inc)
        a(f"""
v_sub_u32 v{pre}, v{inc}, v{nr}
v_readlane_b32 s{stot}, v{inc}, 63
v_sub_u32 v{V}, v{V}, v{pre}
v_cmp_ne_u32 s[{sD}:{sD+1}], 0, v{nr}
""")

    def flat_push(swb):
        a(f"""
s_add_u32 s{sT1}, {swb}, 1024
v_cmp_ge_u32 s[{sA}:{sA+1}], {swb}, v{pre}
v_subrev_u32 v{tg}, {swb}, v{pre}
v_cmp_eq_u32 s[{sC}:{sC+1}], s{sT1}, v{inc}
s_bcnt1_i32_b64 s{sT0}, s[{sA}:{sA+1}]
v_add_u32 v{val}, -16, v{tg}
s_sub_u32 s{sT0}, s{sT0}, 1
v_cmp_gt_u32 vcc, 1008, v{val}
v_readlane_b32 s{sCarry}, v{V}, s{sT0}
v_lshrrev_b32 v{tg}, 2, v{tg}
s_and_b64 s[{sB}:{sB+1}], vcc, s[{sD}:{sD+1}]
v_cndmask_b32 v{tg}, 0, v{tg}, s[{sB}:{sB+1}]
v_cndmask_b32 v{val}, 0, v{V}, s[{sB}:{sB+1}]
ds_permute_b32 v{val}, v{tg}, v{val}
""")

    def flat_fin(swb, stot, mk, rc):
        dpp = "row_mask:0xf bank_mask:0xf"
        a(f"""
v_cmp_ne_u32 s[{sA}:{sA+1}], 0, v{val}
v_add_u32 v{tg}, {swb}, v{vLane16}
s_cmp_lg_u64 s[{sC}:{sC+1}], 0
v_max_u32_dpp v{val}, v{val}, v{val} row_shr:1 {dpp}
v_cmp_gt_u32 s[{mk}:{mk+1}], s{stot}, v{tg}
s_cselect_b32 s{sC+1}, 0x80000000, 0
v_max_u32_dpp v{val}, v{val}, v{val} row_shr:2 {dpp}
s_mov_b32 s{sC}, 0
s_lshr_b64 s[{sA}:{sA+1}], s[{sA}:{sA+1}], 1
v_max_u32_dpp v{val}, v{val}, v{val} row_shr:4 {dpp}
s_or_b64 s[{sC}:{sC+1}], s[{sC}:{sC+1}], s[{sA}:{sA+1}]
s_lshr_b64 s[{sA}:{sA+1}], s[{mk}:{mk+1}], 1
v_max_u32_dpp v{val}, v{val}, v{val} row_shr:8 {dpp}
s_andn2_b64 s[{sA}:{sA+1}], s[{mk}:{mk+1}], s[{sA}:{sA+1}]
s_bitset0_b64 s[{sA}:{sA+1}], 63
v_max_u32_dpp v{val}, v{val}, v{val} row_bcast:15 row_mask:0xa bank_mask:0xf
s_or_b64 s[{sC}:{sC+1}], s[{sC}:{sC+1}], s[{sA}:{sA+1}]
s_nop 0
v_max_u32_dpp v{val}, v{val}, v{val} row_bcast:31 row_mask:0xc bank_mask:0xf
v_max_u32 v{val}, s{sCarry}, v{val}
v_add_u32 v{tg}, v{tg}, v{val}
v_and_b32 v{val}, 3, v{val}
v_and_b32 v{tg}, -16, v{tg}
v_cmp_eq_u32 s[{sA}:{sA+1}], 2, v{val}
v_cmp_ne_u32 s[{sB}:{sB+1}], 0, v{val}
v_cndmask_b32 v{tg}, v{vMHi}, v{tg}, s[{mk}:{mk+1}]
buffer_load_dwordx4 v[{rc}:{rc+3}], v{tg}, s[{S_R}:{S_R+3}], 0 offen {ld}
s_and_b64 s[{sA}:{sA+1}], s[{sA}:{sA+1}], s[{sC}:{sC+1}]
s_and_b64 s[{sB}:{sB+1}], s[{sB}:{sB+1}], s[{sC}:{sC+1}]
s_andn2_b64 s[{mk+2}:{mk+3}], s[{mk}:{mk+1}], s[{sA}:{sA+1}]
s_andn2_b64 s[{mk+4}:{mk+5}], s[{mk}:{mk+1}], s[{sB}:{sB+1}]
""")

    def second(h, tag):
        a(f"""
s_cmp_le_u32 s{TOT[h]}, 1024
s_cbranch_scc1 k2_ns_{tag}
s_movk_i32 s{sXw}, 1024
""")
        flat_push(f"s{sXw}")
        a("s_waitcnt lgkmcnt(0)")
        flat_fin(f"s{sXw}", TOT[h], MX[h], RXW[h])
        a(f"k2_ns_{tag}:")

    a("k2_rem:")
    a("s_waitcnt vmcnt(8)")
    for h in range(2):
        flat_scan(EN + h, EN + h + 1, TOT[h])
        flat_push("0")
        a("s_waitcnt lgkmcnt(0)")
        flat_fin("0", TOT[h], MN[h], RC[h])
        second(h, f"p{h}")
        if h == 0:
            a("s_waitcnt vmcnt(5)")
            m_write()
            m_load()
            a(f"""
v_and_b32 v{FT}, 0x7fff0, v{EN+20}
v_and_b32 v{FT+1}, 0x7fff0, v{EN}
v_sub_u32 v{FT}, v{FT}, v{FT+1}
s_lshl_b32 s{sT0}, s{sW}, 2
s_add_u32 s{sT0}, s{sT0}, {NW}
""")
            scan(a, "v_add_u32", FT)
            a(f"""
v_mov_b32 v{FT+3}, s{sT0}
{EXEC63}
ds_write_b32 v{FT+3}, v{FT}
s_mov_b64 exec, -1
s_waitcnt lgkmcnt(0)
s_barrier
""")
            st_()
    scale_setup()
    st_()
    a("k2_rloop:")
    for h in range(2):
        mk = MK[h]
        a("s_waitcnt vmcnt(4)")
        for i in range(0, 6, 2):
            a(f"s_mov_b64 s[{mk+i}:{mk+i+1}], s[{MN[h]+i}:{MN[h]+i+1}]")
        gathers(mk, RC[h], GA)
        cosrow(RC[h], CR[h])
        a(f"""
s_cmp_le_u32 s{TOT[h]}, 1024
s_cbranch_scc1 k2_nx_{h}
""")
        gathers(MX[h], RXW[h], GX)
        cosrow(RXW[h], FT)
        a("s_waitcnt lgkmcnt(0)")
        accum_now(MX[h], GX, FT, f"x{h}")
        a(f"""
s_cmp_le_u32 s{TOT[h]}, 2048
s_cbranch_scc1 k2_nx_{h}
s_movk_i32 s{sXw}, 2048
s_add_u32 s{sT2}, s{sJ}, {h}
s_call_b64 s[{P}:{P+1}], k2_slow
k2_nx_{h}:
s_set_gpr_idx_on s{sJ}, 0x1
v_mov_b32 v{e0}, v{EN+h+2}
v_mov_b32 v{e0+1}, v{EN+h+3}
s_set_gpr_idx_off
""")
        flat_scan(e0, e0 + 1, TOT[h])
        flat_push("0")
        held(h ^ 1)
        wait_bar(MK[h ^ 1] + 4, 4, f"ra{h}")
        a("s_waitcnt vmcnt(1)")
        m_write()
        m_load()
        accum_main(h, f"r{h}")
        flat_fin("0", TOT[h], MN[h], RC[h])
        second(h, f"l{h}")
        wait_bar(mk, 2, f"rb{h}")
        if h == 1:
            st_()
    a(f"""
s_add_u32 s{sJ}, s{sJ}, 2
s_cmp_lt_u32 s{sJ}, {NPH}
s_cbranch_scc1 k2_rloop
""")
    a("k2_epi:")
    held(1)
    a(f"""
v_add_u32 v{vLW}, {ACC}, v{vT16}
v_add_u32 v{vBase}, {ACC+ACCB}, v{vT16}
v_mov_b32 v{vMagic}, s{sPf}
s_lshl_b32 s{sT0}, s{sRb}, 2
s_add_u32 s{sT0}, s{sT0}, s{sCg}
s_lshl_b32 s{sT0}, s{sT0}, 2
v_mov_b32 v{FT}, s{sT0}
v_mov_b32 v{FT+1}, s{sMode}
""")
    srd_off(a, S_T, P + 2, None, FLAG_OFF, 1024)
    a(f"""
s_mul_i32 s{sT0}, s{sCg}, {E*8}
s_mul_i32 s{sT1}, s{sRb}, {RB*8}
s_add_u32 s{sT0}, s{sT0}, s{sT1}
""")
    srd_off(a, S_P, P + 2, sT0, PART_OFF, RB * 8)
    a(f"s_lshl_b32 s{sT0}, s{sT0}, 1")
    srd_off(a, S_M, P + 2, sT0, P32_OFF, RB * 16)
    a(f"""
s_waitcnt vmcnt(0) lgkmcnt(0)
s_barrier
""")
    st_()
    for it in range(4):
        b = EN + it * 8
        if it == 3:
            a(f"v_min_u32 v{vLW}, {ACC + 52*16}, v{vLW}")
            a(f"v_min_u32 v{vBase}, {ACC + ACCB + 52*16}, v{vBase}")
        a(f"ds_read_b128 v[{b}:{b+3}], v{vLW} offset:{it*16384}")
        a(f"ds_read_b128 v[{b+4}:{b+7}], v{vBase} offset:{it*16384}")
    a(f"""
v_cmp_eq_u32 vcc, 0, v0
s_and_saveexec_b64 s[{sA}:{sA+1}], vcc
buffer_store_dword v{FT+1}, v{FT}, s[{S_T}:{S_T+3}], 0 offen
s_mov_b64 exec, s[{sA}:{sA+1}]
s_cmp_lg_u32 s{sMode}, 0
s_cbranch_scc1 k2_epf
""")
    for it in range(4):
        b = EN + it * 8
        a(f"s_waitcnt lgkmcnt({2*(3-it)})")
        for p in range(4):
            a(f"v_ashrrev_i32 v{FT+2+p}, 31, v{b+2*p}")
        for p in range(4):
            a(f"v_sub_u32 v{b+2*p+1}, v{b+2*p+1}, v{FT+2+p}")
        for p in range(8):
            a(f"v_cvt_f32_i32 v{b+p}, v{b+p}")
        for p in range(8):
            a(f"v_mul_f32 v{b+p}, v{vMagic}, v{b+p}")
        a(f"""
v_cvt_pk_f16_f32 v{b}, v{b}, v{b+1}
v_cvt_pk_f16_f32 v{b+1}, v{b+4}, v{b+5}
v_cvt_pk_f16_f32 v{b+2}, v{b+2}, v{b+3}
v_cvt_pk_f16_f32 v{b+3}, v{b+6}, v{b+7}
buffer_store_dwordx4 v[{b}:{b+3}], v{vT16}, s[{S_P}:{S_P+3}], 0 offen {pst}
""")
        if it < 3:
            a(f"v_add_u32 v{vT16}, 16384, v{vT16}")
    st_()
    if st_.on:
        a("s_waitcnt vmcnt(0)")
    st_()
    st_.flush(FT)
    a("""
k2_done:
s_endpgm
k2_epf:
s_waitcnt lgkmcnt(0)
""")
    a(f"v_lshlrev_b32 v{vT16}, 1, v{vT16}")
    for it in range(4):
        b = EN + it * 8
        a(f"""
buffer_store_dwordx2 v[{b}:{b+1}], v{vT16}, s[{S_M}:{S_M+3}], 0 offen
buffer_store_dwordx2 v[{b+4}:{b+5}], v{vT16}, s[{S_M}:{S_M+3}], 0 offen offset:8
buffer_store_dwordx2 v[{b+2}:{b+3}], v{vT16}, s[{S_M}:{S_M+3}], 0 offen offset:16
buffer_store_dwordx2 v[{b+6}:{b+7}], v{vT16}, s[{S_M}:{S_M+3}], 0 offen offset:24
v_add_u32 v{vT16}, 32768, v{vT16}
""")
    a("s_endpgm")
    a("k2_slow:")
    a(f"""
s_set_gpr_idx_on s{sT2}, 0x1
v_mov_b32 v{e0}, v{EN}
v_mov_b32 v{e0+1}, v{EN+1}
s_set_gpr_idx_off
""")
    flat_scan(e0, e0 + 1, sTot)
    a("k2_slow_l:")
    flat_push(f"s{sXw}")
    a("s_waitcnt lgkmcnt(0)")
    flat_fin(f"s{sXw}", sTot, MS, RS)
    a("s_waitcnt vmcnt(0)")
    gathers(MS, RS, GX)
    cosrow(RS, CS)
    a("s_waitcnt lgkmcnt(0)")
    accum_now(MS, GX, CS, "slow")
    a(f"""
s_add_u32 s{sXw}, s{sXw}, 1024
s_cmp_lt_u32 s{sXw}, s{sTot}
s_cbranch_scc1 k2_slow_l
s_setpc_b64 s[{P}:{P+1}]
""")
    for args in list(late):
        accum_f32(*args)
    return a.s, NVG


def gen_k3():
    a = A()
    pld = OPT['pld']
    S_M, S_D, S_O, S_P = 4, 8, 12, 16
    WR, WSB, WD, WU, CE = 20, 36, 52, 60, 68
    CF = 72
    PP = 72
    FL = 84
    MXS = 88
    sT = 80
    sWs = 96
    st_ = Stamper(a, 2, 98, sWs, 60, S_P)
    st_.start()
    vO16, vD, vM, vHi = 1, 2, 4, 8
    PL = 12
    R = (28, 36)
    G = (44, 48)
    H = (52, 56)
    S = (28, 32)
    RP = (62, 66)
    vT = 9
    a(f"""
s_cmp_ge_u32 s2, 1600
s_cbranch_scc1 k3_done
s_load_dwordx2 s[{S_M}:{S_M+1}], s[0:1], {KA['m']}
s_load_dwordx2 s[{S_D}:{S_D+1}], s[0:1], {KA['dist']}
s_load_dwordx2 s[{S_O}:{S_O+1}], s[0:1], {KA['out']}
s_load_dwordx2 s[{sWs}:{sWs+1}], s[0:1], {KA['ws']}
s_load_dwordx2 s[{PP}:{PP+1}], s[0:1], {KA['centers']}
s_load_dwordx4 s[{PP+4}:{PP+7}], s[0:1], {KA['w_rbf']}
s_load_dwordx4 s[{PP+8}:{PP+11}], s[0:1], {KA['w_down']}
s_mul_i32 s3, s2, 2000
v_lshlrev_b32 v{vO16}, 4, v0
v_add_u32 v{vO16}, s3, v{vO16}
v_mov_b32 v{vHi}, 0xffff0000
v_cmp_gt_u32 vcc, 125, v0
s_and_b64 exec, exec, vcc
v_lshrrev_b32 v{vT}, 2, v{vO16}
s_mul_i32 s3, s2, 5243
s_lshr_b32 s3, s3, 17
s_lshl_b32 s3, s3, 4
s_waitcnt lgkmcnt(0)
""")
    a(srd(S_D, S_D, E * 2))
    a(f"buffer_load_dword v{vD}, v{vT}, s[{S_D}:{S_D+3}], 0 offen")
    a(f"""
s_load_dwordx4 s[{CE}:{CE+3}], s[{PP}:{PP+1}], 0
s_load_dwordx16 s[{WR}:{WR+15}], s[{PP+4}:{PP+5}], 0
s_load_dwordx16 s[{WSB}:{WSB+15}], s[{PP+6}:{PP+7}], 0
s_load_dwordx8 s[{WD}:{WD+7}], s[{PP+8}:{PP+9}], 0
s_load_dwordx8 s[{WU}:{WU+7}], s[{PP+10}:{PP+11}], 0
s_add_u32 s{PP+2}, s{sWs}, {MAX_OFF}
s_addc_u32 s{PP+3}, s{sWs+1}, 0
s_load_dwordx8 s[{MXS}:{MXS+7}], s[{PP+2}:{PP+3}], 0
s_add_u32 s{PP+2}, s{PP+2}, s3
s_addc_u32 s{PP+3}, s{PP+3}, 0
s_load_dwordx4 s[{FL}:{FL+3}], s[{PP+2}:{PP+3}], {FLAG_OFF-MAX_OFF}
""")
    srd_off(a, S_P, sWs, None, PART_OFF, 4 * E * 8)
    for c in range(4):
        if c:
            a(f"s_mov_b32 s3, {c*E*8}")
        a(f"buffer_load_dwordx4 v[{PL+4*c}:{PL+4*c+3}], v{vO16}, s[{S_P}:{S_P+3}], {'s3' if c else '0'} offen {pld}")
    a(srd(S_M, S_M, E * 8) + srd(S_O, S_O, E * 8))
    a(f"buffer_load_dwordx4 v[{vM}:{vM+3}], v{vO16}, s[{S_M}:{S_M+3}], 0 offen")
    a("s_waitcnt lgkmcnt(0)")
    for k in range(8):
        a(s_unpack(CF + k, CE, k))
    a(f"""
s_max_u32 s{MXS}, s{MXS}, s{MXS+1}
s_max_u32 s{MXS+2}, s{MXS+2}, s{MXS+3}
s_max_u32 s{MXS+4}, s{MXS+4}, s{MXS+5}
s_max_u32 s{MXS}, s{MXS}, s{MXS+2}
s_max_u32 s{MXS}, s{MXS}, s{MXS+4}
s_lshl_b32 s3, s{MXS}, 16
s_and_b32 s3, s3, 0x7f800000
s_add_u32 s3, s3, {2 << 23}
s_waitcnt vmcnt(5)
v_and_b32 v{vD+1}, v{vHi}, v{vD}
v_lshlrev_b32 v{vD}, 16, v{vD}
""")

    st_.init()
    st_()

    def rnd(x):
        a(f"v_cvt_pk_bf16_f32 v{x+1}, v{x}, v{x+1}")
        a(f"v_lshlrev_b32 v{x}, 16, v{x+1}")
        a(f"v_and_b32 v{x+1}, v{vHi}, v{x+1}")

    for r in range(2):
        for k in range(0, 8, 2):
            a(f"v_pk_add_f32 v[{R[r]+k}:{R[r]+k+1}], v[{vD}:{vD+1}], s[{CF+k}:{CF+k+1}] op_sel:[{r},0] op_sel_hi:[{r},1] neg_lo:[0,1] neg_hi:[0,1]")
    allr = [R[r] + k for r in range(2) for k in range(8)]
    for x in allr[::2]:
        rnd(x)
    for x in allr:
        a(f"v_mul_f32 v{x}, v{x}, v{x}")
    for x in allr[::2]:
        rnd(x)
    for x in allr:
        a(f"v_mul_f32 v{x}, 0xc1200000, v{x}")
    for x in allr[::2]:
        rnd(x)
    for x in allr:
        a(f"v_mul_f32 v{x}, 0x3fb8aa3b, v{x}")
    for x in allr:
        a(f"v_exp_f32 v{x}, v{x}")
    a("s_nop 0")
    for r in range(2):
        for kk in range(4):
            a(f"v_cvt_pk_bf16_f32 v{RP[r]+kk}, v{R[r]+2*kk}, v{R[r]+2*kk+1}")

    cnt = [0]

    def wpair(base, kk, c):
        d = sT + (cnt[0] & 3)
        cnt[0] += 1
        op = "s_pack_ll_b32_b16" if c % 2 == 0 else "s_pack_hh_b32_b16"
        a(f"{op} s{d}, s{base + 4*kk + c//2}, s{base + 4*kk + 2 + c//2}")
        return d

    def dotmat(dst, src, base, nk):
        for kk in range(nk):
            for c in range(4):
                w = wpair(base, kk, c)
                for r in range(2):
                    acc = "0" if kk == 0 else f"v{dst[r]+c}"
                    a(f"v_dot2_f32_bf16 v{dst[r]+c}, v{src[r]+kk}, s{w}, {acc}")

    dotmat(H, RP, WR, 4)
    dotmat(G, RP, WSB, 4)
    for r in range(2):
        rnd(H[r])
        rnd(H[r] + 2)
    a(f"""
s_or_b32 s{sT}, s{FL}, s{FL+1}
s_or_b32 s{sT+1}, s{FL+2}, s{FL+3}
s_or_b32 s{sT}, s{sT}, s{sT+1}
v_mov_b32 v{vT}, s3
s_cmp_lg_u32 s{sT}, 0
s_cbranch_scc1 k3_slow
s_waitcnt vmcnt(1)
""")
    for r in range(2):
        for c in range(4):
            reg = 2 * r + c // 2
            hi = c % 2
            d = S[r] + c
            a(f"v_fma_mix_f32 v{d}, v{PL+reg}, 1.0, v{PL+4+reg} op_sel:[{hi},0,{hi}] op_sel_hi:[1,0,1]")
            a(f"v_fma_mix_f32 v{d}, v{PL+8+reg}, 1.0, v{d} op_sel:[{hi},0,0] op_sel_hi:[1,0,0]")
            a(f"v_fma_mix_f32 v{d}, v{PL+12+reg}, 1.0, v{d} op_sel:[{hi},0,0] op_sel_hi:[1,0,0]")
    for r in range(2):
        for c in range(4):
            a(f"v_mul_f32 v{S[r]+c}, v{vT}, v{S[r]+c}")
    a("k3_join:")
    st_()
    AG = (36, 40)
    for j in range(4):
        for cp in range(2):
            d = sT + 2 * ((j * 2 + cp) & 1)
            a(s_unpack(d, WD, j * 4 + cp * 2))
            a(s_unpack(d + 1, WD, j * 4 + cp * 2 + 1))
            for r in range(2):
                sp = S[r] + (j & ~1)
                o = j & 1
                dd = AG[r] + 2 * cp
                if j == 0:
                    a(f"v_pk_mul_f32 v[{dd}:{dd+1}], v[{sp}:{sp+1}], s[{d}:{d+1}] op_sel:[{o},0] op_sel_hi:[{o},1]")
                else:
                    a(f"v_pk_fma_f32 v[{dd}:{dd+1}], v[{sp}:{sp+1}], s[{d}:{d+1}], v[{dd}:{dd+1}] op_sel:[{o},0,0] op_sel_hi:[{o},1,1]")
    for r in range(2):
        for c in range(4):
            a(f"v_mul_f32 v{AG[r]+c}, v{AG[r]+c}, v{G[r]+c}")
    for r in range(2):
        for kk in range(2):
            a(f"v_cvt_pk_bf16_f32 v{RP[r]+kk}, v{AG[r]+2*kk}, v{AG[r]+2*kk+1}")
    dotmat(G, RP, WU, 2)
    a("s_waitcnt vmcnt(0)")
    for r in range(2):
        for cp in range(2):
            a(f"v_lshlrev_b32 v{S[r]+2*cp}, 16, v{vM+2*r+cp}")
            a(f"v_and_b32 v{S[r]+2*cp+1}, v{vHi}, v{vM+2*r+cp}")
    for r in range(2):
        rnd(G[r])
        rnd(G[r] + 2)
    for r in range(2):
        for c in range(4):
            a(f"v_mul_f32 v{G[r]+c}, v{G[r]+c}, v{H[r]+c}")
    for r in range(2):
        rnd(G[r])
        rnd(G[r] + 2)
    for r in range(2):
        for c in range(4):
            a(f"v_add_f32 v{G[r]+c}, v{G[r]+c}, v{S[r]+c}")
    for r in range(2):
        for cp in range(2):
            a(f"v_cvt_pk_bf16_f32 v{vM+2*r+cp}, v{G[r]+2*cp}, v{G[r]+2*cp+1}")
    a(f"""
buffer_store_dwordx4 v[{vM}:{vM+3}], v{vO16}, s[{S_O}:{S_O+3}], 0 offen
""")
    st_()
    st_.flush(61)
    a(f"""
k3_done:
s_endpgm
k3_slow:
""")
    srd_off(a, S_D, sWs, None, P32_OFF, 4 * E * 16)
    a(f"v_lshlrev_b32 v{vT+1}, 1, v{vO16}")
    for i in range(8):
        a(f"v_mov_b32 v{S[0]+i}, 0")
    a("s_waitcnt vmcnt(0)")
    for c in range(4):
        a(f"""
s_cmp_lg_u32 s{FL+c}, 0
s_cbranch_scc1 k3_s32_{c}
""")
        for r in range(2):
            for cc in range(4):
                reg = 2 * r + cc // 2
                a(f"v_fma_mix_f32 v{S[r]+cc}, v{PL+4*c+reg}, v{vT}, v{S[r]+cc} op_sel:[{cc%2},0,0] op_sel_hi:[1,0,0]")
        a(f"""
s_branch k3_sn_{c}
k3_s32_{c}:
buffer_load_dwordx4 v[36:39], v{vT+1}, s[{S_D}:{S_D+3}], 0 offen
buffer_load_dwordx4 v[40:43], v{vT+1}, s[{S_D}:{S_D+3}], 0 offen offset:16
s_waitcnt vmcnt(0)
""")
        for i in range(8):
            a(f"v_add_f32 v{S[0]+i}, v{S[0]+i}, v{36+i}")
        a(f"k3_sn_{c}:")
        a(f"v_add_u32 v{vT+1}, {E*16}, v{vT+1}")
    a("s_branch k3_join")
    return a.s


out = HEADER
out += "; K1: 2-D fine binning of triplets (register-resident tile), K2: LDS gather + integer LDS accumulation, K3: finalize\n"
out += f"; @launch kernel=k1_kernel grid=({NT+NMX},1,1) block=(1024,1,1) lds={LDS_ALL}\n"
out += f"; @launch kernel=k2_kernel grid=(256,1,1) block=(1024,1,1) lds=141312\n"
out += "; @launch kernel=k3_kernel grid=(1600,1,1) block=(128,1,1) lds=0\n"
out += '.amdgcn_target "amdgcn-amd-amdhsa--gfx950"\n'
out += kernel_begin('k1_kernel') + gen_k1()
k2, k2v = gen_k2()
out += kernel_begin('k2_kernel') + k2
out += kernel_begin('k3_kernel') + gen_k3()
out += kernel_desc('k1_kernel', 128, 80) + kernel_desc('k2_kernel', k2v, 102) + kernel_desc('k3_kernel', 70, 102 if OPT['diag'] == '1' else 98)
open(sys.argv[1], 'w').write(out)
```

```python
import sys
sys.path.insert(0, 'dev')
from common import *

NT = 250
NMX = 6
TILE = 51200
RB = 6250
CB = 5000
NCB = 80
NPH = 20
F = 64 * NCB
TGB = 20544 * 16
TABS = (F + 4) * 4
CAPG = 6826
CAP8 = CAPG * 24
REC_OFF = 0
TAB_OFF = 0x5000000
MAX_OFF = 0x5500000
FLAG_OFF = 0x5501000
PART_OFF = 0x5600000
P32_OFF = 0x6400000
DIAG_OFF = 0xA000000
LDS_ALL = 163840
assert NT * TGB <= TAB_OFF and TAB_OFF + NT * TABS <= MAX_OFF

OPT = dict(ld='nt', st='', k2ld='', pst='', pld='', diag='0', depth='3', ne='2', nm='1', abl='')
for a_ in sys.argv[2:]:
    k_, v_ = a_.split('=')
    OPT[k_] = v_.replace('+', ' ')

BFI = "bitop3:0xca"
ANDOR = "bitop3:0xea"


class A:
    def __init__(self):
        self.s = ""

    def __call__(self, txt):
        for l in txt.strip('\n').split('\n'):
            l = l.strip()
            if not l:
                continue
            self.s += ("" if l.endswith(':') else "    ") + l + "\n"


def srd_off(a, d, ptr, off_sgpr, off_imm, nbytes):
    if off_sgpr is not None:
        a(f"s_add_u32 s{d}, s{ptr}, s{off_sgpr}")
        a(f"s_addc_u32 s{d+1}, s{ptr+1}, 0")
        if off_imm:
            a(f"s_add_u32 s{d}, s{d}, {off_imm}")
            a(f"s_addc_u32 s{d+1}, s{d+1}, 0")
    else:
        a(f"s_add_u32 s{d}, s{ptr}, {off_imm}")
        a(f"s_addc_u32 s{d+1}, s{ptr+1}, 0")
    a(f"s_mov_b32 s{d+2}, {nbytes}")
    a(f"s_mov_b32 s{d+3}, 0x00020000")


class Stamper:
    def __init__(self, a, kidx, sbase, wsptr, vtmp, srd):
        self.a, self.k, self.sb, self.ws, self.v, self.srd = a, kidx, sbase, wsptr, vtmp, srd
        self.on = OPT['diag'] in ('1', '2')

    def start(self):
        if self.on:
            self.a(f"s_memrealtime s[{self.sb+2}:{self.sb+3}]")

    def init(self):
        if not self.on:
            return
        a, sb = self.a, self.sb
        a(f"s_mov_b64 s[{sb}:{sb+1}], exec")
        a(f"s_mov_b64 exec, -1")
        a(f"v_mov_b32 v{self.v}, 0")
        a(f"s_mov_b64 exec, s[{sb}:{sb+1}]")
        a(f"v_writelane_b32 v{self.v}, s{sb+2}, 0")
        a(f"s_mov_b32 s{sb+3}, 1")

    def __call__(self):
        if not self.on:
            return
        a, sb = self.a, self.sb
        a(f"s_memrealtime s[{sb}:{sb+1}]")
        a(f"s_mov_b32 s{sb+2}, m0")
        a(f"s_mov_b32 m0, s{sb+3}")
        a("s_waitcnt lgkmcnt(0)")
        a(f"v_writelane_b32 v{self.v}, s{sb}, m0")
        a(f"s_add_u32 s{sb+3}, s{sb+3}, 1")
        a(f"s_mov_b32 m0, s{sb+2}")

    def flush(self, vt):
        if not self.on:
            return
        a, sb = self.a, self.sb
        if OPT['diag'] == '2':
            a(f"s_load_dwordx2 s[{sb}:{sb+1}], s[0:1], {KA['dbg']}")
            a("s_waitcnt lgkmcnt(0)")
            srd_off(a, self.srd, sb, None, 0, 64)
            a(f"s_cmp_eq_u32 s2, 100")
            a(f"s_cselect_b32 s{self.srd+2}, 64, 0")
        else:
            a(f"s_lshl_b32 s{sb}, s2, 8")
            srd_off(a, self.srd, self.ws, sb, DIAG_OFF + self.k * 0x100000, 256)
        a(f"s_mov_b64 exec, -1")
        a(f"v_cmp_gt_u32 vcc, 64, v0")
        a(f"s_and_b64 exec, exec, vcc")
        a(f"v_lshlrev_b32 v{vt}, 2, v0")
        a(f"buffer_store_dword v{self.v}, v{vt}, s[{self.srd}:{self.srd+3}], 0 offen")
        a(f"s_mov_b64 exec, -1")


def scan(a, op, v, full=True):
    for sh in (1, 2, 4, 8):
        a(f"{op}_dpp v{v}, v{v}, v{v} row_shr:{sh} row_mask:0xf bank_mask:0xf")
        a("s_nop 1")
    if full:
        a(f"{op}_dpp v{v}, v{v}, v{v} row_bcast:15 row_mask:0xa bank_mask:0xf")
        a("s_nop 1")
        a(f"{op}_dpp v{v}, v{v}, v{v} row_bcast:31 row_mask:0xc bank_mask:0xf")
        a("s_nop 1")


EXEC63 = "s_mov_b32 exec_lo, 0\ns_mov_b32 exec_hi, 0x80000000"


def gen_k1():
    a = A()
    ld, st = OPT['ld'], OPT['st']
    D = int(OPT['depth'])
    WT = 20480
    ANG = 20736
    S_O, S_I, S_A, S_R, S_T, S_F = 4, 8, 12, 16, 20, 24
    P = 28
    sW, sMR, sMC, sNR, sNC, sG, sLo8, sT0, sT1, sCap8, sRem, sSo, sAngL = range(40, 53)
    vC, vAng, vT16, vDma = 1, 2, 3, 4
    vFq = 5
    T0 = 6
    RX = 28
    RQ = 32
    vA48 = 27
    vSt = 26

    def rec(slot):
        if slot >= 48:
            return RX + 2 * (slot - 48)
        q, k = divmod(slot, 4)
        return RQ + q * 8 + (0, 4, 2, 6)[k]

    st_ = Stamper(a, 0, 56, P + 10, vSt, S_O)
    st_.start()
    a(f"""
s_cmp_ge_u32 s2, {NT+NMX}
s_cbranch_scc1 k1_done
s_load_dwordx4 s[{P}:{P+3}], s[0:1], {KA['m']}
s_load_dwordx2 s[{P+4}:{P+5}], s[0:1], {KA['idx_out']}
s_load_dwordx2 s[{P+6}:{P+7}], s[0:1], {KA['angle']}
s_load_dwordx2 s[{P+8}:{P+9}], s[0:1], {KA['ang_freq']}
s_load_dwordx2 s[{P+10}:{P+11}], s[0:1], {KA['ws']}
v_lshrrev_b32 v{T0}, 6, v0
v_lshlrev_b32 v{vT16}, 4, v0
v_readfirstlane_b32 s{sW}, v{T0}
s_cmp_ge_u32 s2, {NT}
s_cbranch_scc1 k1_max
v_mov_b32 v{T0+4}, 0
v_mov_b32 v{T0+5}, 0
v_mov_b32 v{T0+6}, 0
v_mov_b32 v{T0+7}, 0
v_lshlrev_b32 v{T0+1}, 2, v0
ds_write_b128 v{vT16}, v[{T0+4}:{T0+7}]
ds_write_b32 v{T0+1}, v{T0+4} offset:16384
v_mov_b32 v{vC}, 1
s_mov_b32 s{sMR}, 687195
s_mov_b32 s{sMC}, 858994
s_mov_b32 s{sNR}, {-RB}
s_mov_b32 s{sNC}, {-CB}
s_mov_b32 s{sCap8}, {CAP8}
s_mul_i32 s{sT0}, s2, {TILE*4}
s_mul_i32 s{sT1}, s2, {TILE*2}
s_waitcnt lgkmcnt(0)
""")
    srd_off(a, S_O, P + 4, sT0, 0, TILE * 4)
    srd_off(a, S_I, P + 2, sT0, 0, TILE * 4)
    srd_off(a, S_A, P + 6, sT1, 0, TILE * 2)

    vm = []

    def issue_pair(q):
        if q < 12:
            b = RQ + q * 8
            a(f"s_mov_b32 s{sT0}, {q*16384}")
            a(f"buffer_load_dwordx4 v[{b}:{b+3}], v{vT16}, s[{S_O}:{S_O+3}], s{sT0} offen {ld}")
            a(f"buffer_load_dwordx4 v[{b+4}:{b+7}], v{vT16}, s[{S_I}:{S_I+3}], s{sT0} offen {ld}")
            vm.extend([('O', q), ('I', q)])
        elif q == 12:
            a(f"""
v_lshrrev_b32 v{vA48}, 1, v{vT16}
s_mov_b32 s{sT0}, {49152*4}
buffer_load_dwordx2 v[{RX}:{RX+1}], v{vA48}, s[{S_O}:{S_O+3}], s{sT0} offen {ld}
buffer_load_dwordx2 v[{RX+2}:{RX+3}], v{vA48}, s[{S_I}:{S_I+3}], s{sT0} offen {ld}
v_lshrrev_b32 v{vA48}, 2, v{vT16}
s_mov_b32 s{sT0}, {49152*2}
buffer_load_dword v{vA48}, v{vA48}, s[{S_A}:{S_A+3}], s{sT0} offen {ld}
""")
            vm.extend([('O', 12), ('I', 12), ('A', 48)])

    def issue_dma(j):
        if j < 6:
            a(f"s_add_u32 m0, s{sAngL}, {j*1024}")
            a(f"s_mov_b32 s{sT1}, {j*16384}")
            a(f"buffer_load_dwordx4 v{vDma}, s[{S_A}:{S_A+3}], s{sT1} offen {ld} lds")
            vm.append(('D', j))

    def wait_for(key):
        n = len(vm) - 1 - vm.index(key)
        a(f"s_waitcnt vmcnt({n})")

    for q in range(D):
        issue_pair(q)
    srd_off(a, S_F, P + 8, None, 0, 2)
    a(f"""
v_mov_b32 v{vFq}, 0
buffer_load_ushort v{vFq}, v{vFq}, s[{S_F}:{S_F+3}], 0 offen
""")
    vm.append(('F', 0))
    a(f"""
v_and_b32 v{vDma}, 31, v0
v_lshlrev_b32 v{vDma}, 4, v{vDma}
v_bfe_u32 v{T0+1}, v0, 5, 1
v_lshl_add_u32 v{vDma}, v{T0+1}, 13, v{vDma}
s_lshl_b32 s{sT0}, s{sW}, 9
v_add_u32 v{vDma}, s{sT0}, v{vDma}
s_mul_i32 s{sAngL}, s{sW}, 6144
s_add_u32 s{sAngL}, s{sAngL}, {ANG}
v_and_b32 v{vAng}, 63, v0
v_lshlrev_b32 v{vAng}, 3, v{vAng}
v_add_u32 v{vAng}, s{sAngL}, v{vAng}
s_mul_i32 s{sT0}, s2, {TGB}
""")
    srd_off(a, S_R, P + 10, sT0, REC_OFF, TGB)
    a(f"s_mul_i32 s{sT0}, s2, {TABS}")
    srd_off(a, S_T, P + 10, sT0, TAB_OFF, TABS)
    st_.init()
    a("s_barrier")
    st_()
    t1, t2, tR1, tR3 = T0, T0 + 1, T0 + 2, T0 + 3
    tb = T0 + 4

    def binning(ro, ri, dst_rl, tbk):
        a(f"""
v_mul_hi_u32_u24 v{t1}, s{sMR}, v{ro}
v_mul_hi_u32_u24 v{t2}, s{sMC}, v{ri}
v_mad_i32_i24 v{dst_rl}, v{t1}, s{sNR}, v{ro}
v_mul_u32_u24 v{t1}, {NCB*4}, v{t1}
v_mad_i32_i24 v{ri}, v{t2}, s{sNC}, v{ri}
v_lshl_add_u32 v{tbk}, v{t2}, 2, v{t1}
ds_add_u32 v{tbk}, v{vC}
""")

    def packpair(o0, o1, i0, i1, tR, b0, b1):
        a(f"""
v_lshrrev_b32 v{t1}, 10, v{i0}
v_lshrrev_b32 v{t2}, 10, v{i1}
v_lshl_or_b32 v{o0}, v{o0}, 3, v{t1}
v_lshl_or_b32 v{o1}, v{i0}, 22, v{b0}
v_lshl_or_b32 v{i0}, v{tR}, 3, v{t2}
v_lshl_or_b32 v{i1}, v{i1}, 22, v{b1}
""")

    for q in range(13):
        wait_for(('I', q))
        issue_pair(q + D)
        if q < 12:
            r = RQ + q * 8
            for k in range(4):
                binning(r + k, r + 4 + k, r + k if k % 2 == 0 else (tR1 if k == 1 else tR3), tb + k)
            packpair(r, r + 1, r + 4, r + 5, tR1, tb, tb + 1)
            packpair(r + 2, r + 3, r + 6, r + 7, tR3, tb + 2, tb + 3)
        else:
            binning(RX, RX + 2, RX, tb)
            binning(RX + 1, RX + 3, tR1, tb + 1)
            packpair(RX, RX + 1, RX + 2, RX + 3, tR1, tb, tb + 1)
    NE = int(OPT['ne'])
    for j in range(NE):
        issue_dma(j)
    a("""
s_waitcnt lgkmcnt(0)
s_barrier
""")
    st_()
    c = T0
    g = T0 + 5
    e = T0 + 10
    vA, vS, vI = T0 + 16, T0 + 17, T0 + 18
    assert e % 2 == 0 and vI + 1 < vSt
    a(f"v_mul_u32_u24 v{vA}, 20, v0")
    for i in range(5):
        a(f"ds_read_b32 v{c+i}, v{vA} offset:{4*i}")
    a(f"s_mov_b32 s{sT0}, 43691")
    a(f"v_lshlrev_b32 v{vFq}, 16, v{vFq}")
    a("s_waitcnt lgkmcnt(0)")
    for i in range(5):
        a(f"v_add_u32 v{g+i}, 2, v{c+i}")
        a(f"v_mul_u32_u24 v{g+i}, s{sT0}, v{g+i}")
        a(f"v_lshrrev_b32 v{g+i}, 17, v{g+i}")
    a(f"""
v_add3_u32 v{vS}, v{g}, v{g+1}, v{g+2}
v_add3_u32 v{vS}, v{vS}, v{g+3}, v{g+4}
v_mov_b32 v{vI}, v{vS}
s_lshl_b32 s{sT0}, s{sW}, 2
s_add_u32 s{sT0}, s{sT0}, {WT}
""")
    scan(a, "v_add_u32", vI)
    a(f"""
v_mov_b32 v{vI+1}, s{sT0}
{EXEC63}
ds_write_b32 v{vI+1}, v{vI}
s_mov_b64 exec, -1
""")
    for i in range(5):
        a(f"v_mul_u32_u24 v{e+i}, 3, v{g+i}")
        a(f"v_sub_u32 v{e+i}, v{e+i}, v{c+i}")
        a(f"v_min_u32 v{c+i}, 0x1fff, v{c+i}")
        a(f"v_lshl_or_b32 v{e+i}, v{c+i}, 19, v{e+i}")
    a(f"""
v_sub_u32 v{vI}, v{vI}, v{vS}
v_and_b32 v{vI+1}, 15, v0
v_lshlrev_b32 v{vI+1}, 2, v{vI+1}
""")
    NM = int(OPT['nm'])
    for j in range(NE, NE + NM):
        issue_dma(j)
    a(f"""
s_waitcnt lgkmcnt(0)
s_barrier
ds_read_b32 v{vI+1}, v{vI+1} offset:{WT}
s_waitcnt lgkmcnt(0)
v_mov_b32 v{vS}, v{vI+1}
""")
    scan(a, "v_add_u32", vI + 1, full=False)
    a(f"""
v_readlane_b32 s{sG}, v{vI+1}, 15
v_sub_u32 v{vS}, v{vI+1}, v{vS}
s_nop 0
v_readlane_b32 s{sT0}, v{vS}, s{sW}
s_nop 1
v_add_u32 v{vI}, s{sT0}, v{vI}
""")
    for i in range(5):
        a(f"v_mul_u32_u24 v{c+i}, 24, v{vI}")
        a(f"v_lshl_or_b32 v{e+i}, v{vI}, 4, v{e+i}")
        a(f"ds_write_b32 v{vA}, v{c+i} offset:{4*i}")
        a(f"v_add_u32 v{vI}, v{vI}, v{g+i}")
    a(f"""
v_lshlrev_b32 v{e+5}, 4, v{vI}
buffer_store_dwordx4 v[{e}:{e+3}], v{vA}, s[{S_T}:{S_T+3}], 0 offen
buffer_store_dword v{e+4}, v{vA}, s[{S_T}:{S_T+3}], 0 offen offset:16
v_mov_b32 v{vI}, 1023
v_cmp_eq_u32 s[{P}:{P+1}], v0, v{vI}
v_mov_b32 v{vC}, 8
v_mov_b32 v{vS}, 0xffff0000
v_cndmask_b32 v{vA}, v{vS}, v{vA}, s[{P}:{P+1}]
buffer_store_dword v{e+5}, v{vA}, s[{S_T}:{S_T+3}], 0 offen offset:20
s_waitcnt lgkmcnt(0)
s_barrier
""")
    vm.extend([('S', 0), ('S', 1), ('S', 2)])
    st_()
    pt = (T0, T0 + 4)
    an = (T0 + 8, T0 + 10)
    x = T0 + 12
    vM22, vMHi = T0 + 16, T0 + 17
    p48 = T0 + 18
    a(f"v_mov_b32 v{vM22}, 0x3fffff")
    a(f"v_mov_b32 v{vMHi}, 0xffff0000")

    def issue(q):
        s = q & 1
        if q % 2 == 0:
            wait_for(('D', q // 2))
            issue_dma(q // 2 + NE + NM)
        a(f"ds_read_b64 v[{an[s]}:{an[s]+1}], v{vAng} offset:{q*512}")
        for k in range(4):
            w = rec(q * 4 + k)
            a(f"v_and_b32 v{pt[s]+k}, v{vM22}, v{w+1}")
            a(f"ds_add_rtn_u32 v{pt[s]+k}, v{pt[s]+k}, v{vC}")

    def cospair(src, w_lo, w_hi, xx):
        a(f"""
v_lshlrev_b32 v{xx}, 16, v{src}
v_and_b32 v{xx+1}, v{vMHi}, v{src}
v_mul_f32 v{xx}, v{vFq}, v{xx}
v_mul_f32 v{xx+1}, v{vFq}, v{xx+1}
v_cvt_pk_bf16_f32 v{xx+1}, v{xx}, v{xx+1}
v_lshlrev_b32 v{xx}, 16, v{xx+1}
v_and_b32 v{xx+1}, v{vMHi}, v{xx+1}
v_mul_f32 v{xx}, 0.15915494, v{xx}
v_mul_f32 v{xx+1}, 0.15915494, v{xx+1}
v_fract_f32 v{xx}, v{xx}
v_fract_f32 v{xx+1}, v{xx+1}
v_cos_f32 v{xx}, v{xx}
v_cos_f32 v{xx+1}, v{xx+1}
s_nop 0
v_cvt_pk_bf16_f32 v{xx}, v{xx}, v{xx+1}
v_lshl_or_b32 v{w_lo}, v{xx}, 16, v{w_lo}
v_bitop3_b32 v{w_hi}, v{xx}, v{vMHi}, v{w_hi} {ANDOR}
""")

    def consume(q, pending):
        s = q & 1
        a(f"s_waitcnt lgkmcnt({pending + 4})")
        cospair(an[s], rec(q * 4), rec(q * 4 + 1), x)
        cospair(an[s] + 1, rec(q * 4 + 2), rec(q * 4 + 3), x + 2)
        a(f"s_waitcnt lgkmcnt({pending})")
        for k in range(4):
            w = rec(q * 4 + k)
            a(f"v_bitop3_b32 v{w+1}, v{vM22}, v{pt[s]+k}, v{w+1} {BFI}")

    for k in range(2):
        a(f"v_and_b32 v{p48+k}, v{vM22}, v{rec(48+k)+1}")
        a(f"ds_add_rtn_u32 v{p48+k}, v{p48+k}, v{vC}")
    issue(0)
    cospair(vA48, rec(48), rec(49), x)
    a("s_waitcnt lgkmcnt(5)")
    for k in range(2):
        a(f"v_bitop3_b32 v{rec(48+k)+1}, v{vM22}, v{p48+k}, v{rec(48+k)+1} {BFI}")
    for q in range(12):
        if q + 1 < 12:
            issue(q + 1)
            consume(q, 5)
        else:
            consume(q, 0)
    vLo, vT24, vMx, vB = vC, vAng, vDma, vFq
    a(f"""
s_min_u32 s{sG}, s{sG}, 20480
v_mov_b32 v{vLo}, 0
v_mul_u32_u24 v{vT24}, 24, v0
v_mov_b32 v{vMx}, 0xffc00000
s_mov_b32 s{sSo}, 0
s_lshl_b32 s{sW}, s{sW}, 6
s_barrier
k1_round:
""")
    st_()
    for sl in range(50):
        w = rec(sl)
        t = T0 + (sl & 3)
        a(f"""
v_sub_u32 v{t}, v{w+1}, v{vLo}
v_and_b32 v{t}, 0x3fffff, v{t}
v_cmpx_gt_u32 vcc, s{sCap8}, v{t}
ds_write_b64 v{t}, v[{w}:{w+1}]
s_mov_b64 exec, -1
""")
    a(f"""
s_min_u32 s{sRem}, s{sG}, {CAPG}
v_add_u32 v{vLo}, {CAP8}, v{vLo}
s_waitcnt lgkmcnt(0)
s_barrier
""")
    st_()
    qb = T0
    for grp in ((0, 1, 2), (3, 4), (5, 6)):
        a(f"s_add_u32 s{sT0}, s{sW}, {grp[0]*1024}")
        a(f"s_cmp_ge_u32 s{sT0}, s{sRem}")
        a(f"s_cbranch_scc1 k1_co_end")
        a(f"v_add_u32 v{vB}, {grp[0]*24576}, v{vT24}")
        for n, it in enumerate(grp):
            o = n * 24576
            q = qb + n * 6
            if it == 6:
                a(f"v_min_u32 v{vB}, {(CAPG-1)*24 - 24576}, v{vB}")
            a(f"ds_read_b64 v[{q}:{q+1}], v{vB} offset:{o}")
            a(f"ds_read_b64 v[{q+2}:{q+3}], v{vB} offset:{o+8}")
            a(f"ds_read_b64 v[{q+4}:{q+5}], v{vB} offset:{o+16}")
        for n, it in enumerate(grp):
            q = qb + n * 6
            a(f"s_sub_i32 s{sT0}, s{sRem}, {it*1024}")
            a(f"s_add_u32 s{sT1}, s{sSo}, {it*16384}")
            a(f"s_waitcnt lgkmcnt({3*(len(grp)-1-n)})")
            a(f"""
v_lshrrev_b32 v{q+5}, 10, v{q+5}
v_bitop3_b32 v{q+5}, v{vMx}, v{q+3}, v{q+5} {BFI}
v_mov_b32 v{q+3}, v{q+4}
v_lshrrev_b32 v{q+5}, 10, v{q+5}
v_bitop3_b32 v{q+1}, v{vMx}, v{q+1}, v{q+5} {BFI}
v_cmpx_gt_i32 vcc, s{sT0}, v0
buffer_store_dwordx4 v[{q}:{q+3}], v{vT16}, s[{S_R}:{S_R+3}], s{sT1} offen {st}
s_mov_b64 exec, -1
""")
    a(f"""
k1_co_end:
s_add_u32 s{sSo}, s{sSo}, {CAPG*16}
s_sub_u32 s{sG}, s{sG}, s{sRem}
s_cmp_eq_u32 s{sG}, 0
s_cbranch_scc1 k1_fin
s_barrier
s_branch k1_round
k1_fin:
""")
    st_()
    if st_.on:
        a("s_waitcnt vmcnt(0)")
    st_()
    st_.flush(T0)
    a("""
k1_done:
s_endpgm
""")
    S_M, S_X = 4, 8
    a(f"""
k1_max:
s_sub_u32 s3, s2, {NT}
s_mul_i32 s{sT0}, s3, {33*16384}
v_add_u32 v{vT16}, s{sT0}, v{vT16}
v_mov_b32 v{vC}, 0
v_mov_b32 v{vAng}, 0
ds_write_b32 v{vC}, v{vC}
s_waitcnt lgkmcnt(0)
""")
    srd_off(a, S_M, P, None, 0, E * 8)
    srd_off(a, S_X, P + 10, None, MAX_OFF, 64)
    a(f"s_mov_b32 s{sT1}, 3")
    a("k1_mxl:")
    for i in range(11):
        a(f"buffer_load_dwordx4 v[{RQ+4*i}:{RQ+4*i+3}], v{vT16}, s[{S_M}:{S_M+3}], 0 offen")
        a(f"v_add_u32 v{vT16}, 16384, v{vT16}")
    for i in range(11):
        a(f"s_waitcnt vmcnt({10-i})")
        for k in range(4):
            a(f"v_and_b32 v{RQ+4*i+k}, 0x7fff7fff, v{RQ+4*i+k}")
            a(f"v_pk_max_u16 v{vAng}, v{vAng}, v{RQ+4*i+k}")
    a(f"""
s_sub_u32 s{sT1}, s{sT1}, 1
s_cmp_lg_u32 s{sT1}, 0
s_cbranch_scc1 k1_mxl
v_lshrrev_b32 v{T0}, 16, v{vAng}
v_and_b32 v{vAng}, 0xffff, v{vAng}
v_max_u32 v{vAng}, v{vAng}, v{T0}
s_barrier
s_nop 1
""")
    scan(a, "v_max_u32", vAng)
    a(f"""
{EXEC63}
ds_max_u32 v{vC}, v{vAng}
s_mov_b64 exec, -1
s_waitcnt lgkmcnt(0)
s_barrier
s_cmp_lg_u32 s{sW}, 0
s_cbranch_scc1 k1_done2
ds_read_b32 v{vAng}, v{vC}
s_lshl_b32 s3, s3, 2
v_mov_b32 v{T0}, s3
s_mov_b64 exec, 1
s_waitcnt lgkmcnt(0)
buffer_store_dword v{vAng}, v{T0}, s[{S_X}:{S_X+3}], 0 offen
k1_done2:
s_endpgm
""")
    return a.s


def gen_k2():
    a = A()
    ld, pst = OPT['k2ld'], OPT['pst']
    ACC = 40960
    ACCB = 50000
    NW = ACC + 2 * ACCB
    S_R, S_T, S_M, S_P = 4, 8, 12, 16
    P = 20
    MXS = 24
    sW, sRb, sCg, sJ, sMo, sMode, sPf, sT0, sT1, sT2, sCarry, sTot, sXw = range(32, 45)
    sNK = 46
    sA, sB, sC, sD = 48, 50, 52, 54
    MK = (56, 62)
    MN = (68, 74)
    MX = (80, 86)
    TOT = (92, 93)
    MS = MXS
    vLane16, vBase, vT16, vLW, vMagic, vMHi = 1, 2, 3, 4, 5, 6
    vSt = 7
    EN = 8
    TH = 31
    MP = 34
    RC = (44, 48)
    RXW = (52, 56)
    GA = 60
    CR = (66, 72)
    GX = 78
    FT = 84
    PT = 92
    HQ = 96
    XT = 104
    RS, CS = 108, 112
    NVG = 118

    st_ = Stamper(a, 1, 94, P + 2, vSt, S_R)
    st_.start()
    a(f"""
s_cmp_ge_u32 s2, 256
s_cbranch_scc1 k2_done
s_load_dwordx2 s[{P}:{P+1}], s[0:1], {KA['m']}
s_load_dwordx2 s[{P+2}:{P+3}], s[0:1], {KA['ws']}
v_lshrrev_b32 v{FT}, 6, v0
v_and_b32 v{FT+1}, 63, v0
v_readfirstlane_b32 s{sW}, v{FT}
v_lshlrev_b32 v{vT16}, 4, v0
v_lshlrev_b32 v{vLane16}, 4, v{FT+1}
s_and_b32 s{sT0}, s2, 7
s_lshr_b32 s{sCg}, s{sT0}, 1
s_lshr_b32 s{sRb}, s2, 3
s_lshl_b32 s{sRb}, s{sRb}, 1
s_and_b32 s{sT0}, s2, 1
s_add_u32 s{sRb}, s{sRb}, s{sT0}
v_mul_u32_u24 v{FT+2}, 43, v{FT+1}
v_lshrrev_b32 v{FT+2}, 7, v{FT+2}
v_mul_u32_u24 v{FT+3}, 3, v{FT+2}
v_sub_u32 v{FT+3}, v{FT+1}, v{FT+3}
s_cmp_lt_u32 s{sW}, 4
s_cbranch_scc1 k2_rl0
s_sub_u32 s{sT0}, s{sW}, 4
s_mul_i32 s{sT0}, s{sT0}, 21
v_add_u32 v{FT+2}, s{sT0}, v{FT+2}
s_branch k2_rl1
k2_rl0:
s_mul_i32 s{sT0}, s{sW}, 63
v_add_u32 v{FT+2}, s{sT0}, v{FT+1}
v_mov_b32 v{FT+3}, 3
k2_rl1:
s_mul_i32 s{sT0}, s{sRb}, {NCB*4}
s_mul_i32 s{sT1}, s{sCg}, {NPH*4}
s_add_u32 s{sT0}, s{sT0}, s{sT1}
v_mul_u32_u24 v{FT}, {TABS}, v{FT+2}
v_add_u32 v{FT}, s{sT0}, v{FT}
s_mov_b32 s{sT0}, 0xffff0000
v_writelane_b32 v{FT}, s{sT0}, 63
v_lshrrev_b32 v{vLW}, 1, v{vT16}
v_add_u32 v{vLW}, 32768, v{vLW}
v_min_u32 v{vLW}, {CB*8-8}, v{vLW}
s_mul_i32 s{sMo}, s{sCg}, {NPH*CB*8}
s_waitcnt lgkmcnt(0)
""")
    srd_off(a, S_T, P + 2, None, TAB_OFF, NT * TABS)
    a(f"buffer_load_dwordx4 v[{EN}:{EN+3}], v{FT}, s[{S_T}:{S_T+3}], 0 offen")
    srd_off(a, S_M, P, None, 0, E * 8)

    def m_load():
        if 'm' in OPT['abl']:
            for i in range(3):
                a(f"buffer_load_dword v{MP+i}, v{vLane16}, s[{S_M}:{S_M+3}], 0 offen")
            return
        a(f"""
s_add_u32 s{sT0}, s{sMo}, 16384
buffer_load_dwordx4 v[{MP}:{MP+3}], v{vT16}, s[{S_M}:{S_M+3}], s{sMo} offen
buffer_load_dwordx4 v[{MP+4}:{MP+7}], v{vT16}, s[{S_M}:{S_M+3}], s{sT0} offen
buffer_load_dwordx2 v[{MP+8}:{MP+9}], v{vLW}, s[{S_M}:{S_M+3}], s{sMo} offen
s_add_u32 s{sMo}, s{sMo}, {CB*8}
s_min_u32 s{sMo}, s{sMo}, {E*8 - CB*8}
""")

    def m_write():
        if 'w' in OPT['abl']:
            return
        a(f"""
ds_write_b128 v{vT16}, v[{MP}:{MP+3}]
ds_write_b128 v{vT16}, v[{MP+4}:{MP+7}] offset:16384
ds_write_b64 v{vLW}, v[{MP+8}:{MP+9}]
""")

    m_load()
    a(f"buffer_load_dword v{EN+20}, v{FT}, s[{S_T}:{S_T+3}], 0 offen offset:80")
    for i in range(1, 5):
        a(f"buffer_load_dwordx4 v[{EN+4*i}:{EN+4*i+3}], v{FT}, s[{S_T}:{S_T+3}], 0 offen offset:{16*i}")
    a(f"""
s_add_u32 s{sA}, s{P+2}, {MAX_OFF}
s_addc_u32 s{sA+1}, s{P+3}, 0
s_load_dwordx8 s[{MXS}:{MXS+7}], s[{sA}:{sA+1}], 0
s_mov_b32 s{sT0}, {TGB}
v_mul_lo_u32 v{vBase}, v{FT+2}, s{sT0}
v_lshl_add_u32 v{vBase}, v{FT+3}, 4, v{vBase}
v_mul_u32_u24 v{TH}, 3, v{FT+3}
v_add_u32 v{TH}, 1, v{TH}
v_lshlrev_b32 v{TH}, 19, v{TH}
v_add_u32 v{TH+1}, 0x80000, v{TH}
v_add_u32 v{TH+2}, 0x100000, v{TH}
v_mov_b32 v{vMHi}, 0xffff0000
v_mov_b32 v{EN+21}, 0
v_mov_b32 v{EN+22}, 0
""")
    srd_off(a, S_R, P + 2, None, REC_OFF, NT * TGB)
    z = PT
    a(f"""
v_mov_b32 v{z}, 0
v_mov_b32 v{z+1}, 0
v_mov_b32 v{z+2}, 0
v_mov_b32 v{z+3}, 0
v_add_u32 v{FT+2}, {ACC}, v{vT16}
v_add_u32 v{FT+3}, {ACC+65536}, v{vT16}
ds_write_b128 v{FT+2}, v[{z}:{z+3}]
ds_write_b128 v{FT+2}, v[{z}:{z+3}] offset:16384
ds_write_b128 v{FT+2}, v[{z}:{z+3}] offset:32768
ds_write_b128 v{FT+2}, v[{z}:{z+3}] offset:49152
ds_write_b128 v{FT+3}, v[{z}:{z+3}]
ds_write_b128 v{FT+3}, v[{z}:{z+3}] offset:16384
v_cmp_gt_u32 vcc, {6250-6144}, v0
s_and_saveexec_b64 s[{sB}:{sB+1}], vcc
ds_write_b128 v{FT+3}, v[{z}:{z+3}] offset:32768
s_mov_b64 exec, s[{sB}:{sB+1}]
s_mov_b64 s[{MK[1]+2}:{MK[1]+3}], 0
s_mov_b64 s[{MK[1]+4}:{MK[1]+5}], 0
v_mov_b32 v{CR[1]+4}, 0
v_mov_b32 v{CR[1]+5}, 0
""")
    st_.init()

    AK = (0, 2, 3)

    def gathers(mk, rc, ga):
        t = PT
        a(f"""
v_alignbit_b32 v{t}, v{rc}, v{rc+1}, 19
v_lshlrev_b32 v{t+1}, 10, v{rc+1}
v_and_b32 v{t}, 0xfff8, v{t}
v_lshlrev_b32 v{t+2}, 20, v{rc+1}
s_mov_b64 exec, s[{mk}:{mk+1}]
ds_read_b64 v[{ga}:{ga+1}], v{t}
s_mov_b64 exec, -1
v_alignbit_b32 v{t+1}, v{rc+2}, v{t+1}, 19
v_alignbit_b32 v{t+2}, v{rc+3}, v{t+2}, 19
v_and_b32 v{t+1}, 0xfff8, v{t+1}
v_and_b32 v{t+2}, 0xfff8, v{t+2}
s_mov_b64 exec, s[{mk+2}:{mk+3}]
ds_read_b64 v[{ga+2}:{ga+3}], v{t+1}
s_mov_b64 exec, s[{mk+4}:{mk+5}]
ds_read_b64 v[{ga+4}:{ga+5}], v{t+2}
s_mov_b64 exec, -1
""")

    def cosrow(rc, cr):
        for k in range(3):
            a(f"v_and_b32 v{cr+3+k}, 0xfff8, v{rc+AK[k]}")
            a(f"v_and_b32 v{cr+k}, v{vMHi}, v{rc+AK[k]}")
            a(f"v_add_u32 v{cr+3+k}, {ACC}, v{cr+3+k}")

    def qcalc(t, g, c):
        a(f"""
v_lshlrev_b32 v{t}, 16, v{g}
v_and_b32 v{t+1}, v{vMHi}, v{g}
v_lshlrev_b32 v{t+2}, 16, v{g+1}
v_and_b32 v{t+3}, v{vMHi}, v{g+1}
v_fma_f32 v{t}, v{t}, v{c}, v{vMagic}
v_fma_f32 v{t+1}, v{t+1}, v{c}, v{vMagic}
v_fma_f32 v{t+2}, v{t+2}, v{c}, v{vMagic}
v_fma_f32 v{t+3}, v{t+3}, v{c}, v{vMagic}
v_lshl_add_u64 v[{t}:{t+1}], v[{t}:{t+1}], 0, s[{sNK}:{sNK+1}]
v_lshl_add_u64 v[{t+2}:{t+3}], v[{t+2}:{t+3}], 0, s[{sNK}:{sNK+1}]
""")

    def adds(mkp, row, t):
        a(f"""
s_mov_b64 exec, {"1" if 'a' in OPT['abl'] else "s[%d:%d]" % (mkp, mkp+1)}
ds_add_u64 v{row}, v[{t}:{t+1}]
ds_add_u64 v{row}, v[{t+2}:{t+3}] offset:{ACCB}
""")

    late = []

    def accum_main(h, tag):
        mk, cr = MK[h], CR[h]
        a(f"s_cmp_lg_u32 s{sMode}, 0")
        a(f"s_cbranch_scc1 k2_accf_{tag}")
        qcalc(PT, GA, cr)
        adds(mk, cr + 3, PT)
        a("s_mov_b64 exec, -1")
        qcalc(HQ, GA + 2, cr + 1)
        qcalc(HQ + 4, GA + 4, cr + 2)
        a(f"k2_acce_{tag}:")
        late.append((mk, GA, cr, tag, True))

    def held(h):
        mk, cr = MK[h], CR[h]
        adds(mk + 2, cr + 4, HQ)
        adds(mk + 4, cr + 5, HQ + 4)
        a("s_mov_b64 exec, -1")

    def accum_now(mk, ga, cr, tag):
        a(f"s_cmp_lg_u32 s{sMode}, 0")
        a(f"s_cbranch_scc1 k2_accf_{tag}")
        for k in range(3):
            qcalc(XT, ga + 2 * k, cr + k)
            adds(mk + 2 * k, cr + 3 + k, XT)
            a("s_mov_b64 exec, -1")
        a(f"k2_acce_{tag}:")
        late.append((mk, ga, cr, tag, False))

    def accum_f32(mk, ga, cr, tag, clear):
        a(f"k2_accf_{tag}:")
        for k in range(3):
            t = XT
            g = ga + 2 * k
            a(f"""
v_lshlrev_b32 v{t}, 16, v{g}
v_and_b32 v{t+1}, v{vMHi}, v{g}
v_lshlrev_b32 v{t+2}, 16, v{g+1}
v_and_b32 v{t+3}, v{vMHi}, v{g+1}
v_mul_f32 v{t}, v{t}, v{cr+k}
v_mul_f32 v{t+1}, v{t+1}, v{cr+k}
v_mul_f32 v{t+2}, v{t+2}, v{cr+k}
v_mul_f32 v{t+3}, v{t+3}, v{cr+k}
s_mov_b64 exec, s[{mk+2*k}:{mk+2*k+1}]
ds_add_f32 v{cr+3+k}, v{t}
ds_add_f32 v{cr+3+k}, v{t+1} offset:4
ds_add_f32 v{cr+3+k}, v{t+2} offset:{ACCB}
ds_add_f32 v{cr+3+k}, v{t+3} offset:{ACCB+4}
s_mov_b64 exec, -1
s_waitcnt lgkmcnt(0)
""")
        if clear:
            a(f"s_mov_b64 s[{mk+2}:{mk+3}], 0")
            a(f"s_mov_b64 s[{mk+4}:{mk+5}], 0")
        a(f"s_branch k2_acce_{tag}")

    def scale_setup():
        a(f"""
v_mov_b32 v{FT+3}, {NW}
ds_read_b128 v[{FT+4}:{FT+7}], v{FT+3}
s_max_u32 s{MXS}, s{MXS}, s{MXS+1}
s_max_u32 s{MXS+2}, s{MXS+2}, s{MXS+3}
s_max_u32 s{MXS+4}, s{MXS+4}, s{MXS+5}
s_max_u32 s{MXS}, s{MXS}, s{MXS+2}
s_max_u32 s{MXS}, s{MXS}, s{MXS+4}
s_lshl_b32 s{sT2}, s{MXS}, 16
s_waitcnt lgkmcnt(0)
v_add_u32 v{FT}, v{FT+4}, v{FT+5}
v_add_u32 v{FT+1}, v{FT+6}, v{FT+7}
v_add_u32 v{FT}, v{FT}, v{FT+1}
v_lshrrev_b32 v{FT}, 4, v{FT}
v_mul_u32_u24 v{FT}, 3, v{FT}
v_max_u32 v{FT}, 1024, v{FT}
s_nop 0
v_readfirstlane_b32 s{sT0}, v{FT}
v_cvt_f32_u32 v{FT}, v{FT}
v_mul_f32 v{FT}, s{sT2}, v{FT}
v_mul_f32 v{FT}, 0x3f802000, v{FT}
s_nop 0
v_readfirstlane_b32 s{sT1}, v{FT}
s_mov_b32 s{sMode}, 0
s_cmp_gt_u32 s{sT0}, 65536
s_cselect_b32 s{sMode}, 1, s{sMode}
s_cmp_gt_u32 s{sT2}, 0x70000000
s_cselect_b32 s{sMode}, 1, s{sMode}
s_cmp_lt_u32 s{sT2}, 0x18000000
s_cselect_b32 s{sMode}, 1, s{sMode}
s_and_b32 s{sT1}, s{sT1}, 0x7f800000
s_and_b32 s{sT2}, s{sT2}, 0x7f800000
s_sub_u32 s{sPf}, s{sT1}, s{sT2}
s_add_u32 s{sPf}, s{sPf}, {(125 - 30) << 23}
s_sub_u32 s{sT1}, s{sT1}, {(7 << 23) - 0x400000}
v_mov_b32 v{vMagic}, s{sT1}
s_sub_u32 s{sNK}, 0, s{sT1}
s_not_b32 s{sNK+1}, s{sT1}
""")

    def wait_bar(mkp, n, tag):
        a(f"""
s_cmp_lg_u64 s[{mkp}:{mkp+1}], 0
s_cbranch_scc1 k2_w_{tag}
s_waitcnt lgkmcnt(0)
k2_w_{tag}:
s_waitcnt lgkmcnt({n})
s_barrier
""")

    a(f"""
s_mov_b32 s{sJ}, 0
s_cmp_lt_u32 s{sW}, 4
s_cbranch_scc1 k2_rem
""")

    def d_load(e, rc):
        a(f"""
v_and_b32 v{FT}, 0x7fff0, v{e}
v_add_u32 v{FT}, v{FT}, v{vBase}
{"v_mov_b32 v%d, v%d" % (FT, vLane16) if 'r' in OPT['abl'] else ""}
buffer_load_dwordx4 v[{rc}:{rc+3}], v{FT}, s[{S_R}:{S_R+3}], 0 offen {ld}
""")

    a("s_waitcnt vmcnt(8)")
    d_load(EN, RC[0])
    d_load(EN + 1, RC[1])
    a("s_waitcnt vmcnt(7)")
    m_write()
    m_load()
    a("s_waitcnt lgkmcnt(0)")
    a("s_barrier")
    scale_setup()
    a("s_waitcnt vmcnt(4)")
    a("k2_dloop:")
    for h in range(2):
        mk = MK[h]
        a(f"""
s_set_gpr_idx_on s{sJ}, 0x1
v_mov_b32 v{FT+1}, v{EN+h}
v_mov_b32 v{FT+2}, v{EN+h+2}
s_set_gpr_idx_off
v_cmp_le_u32 s[{mk}:{mk+1}], v{TH}, v{FT+1}
v_cmp_le_u32 s[{mk+2}:{mk+3}], v{TH+1}, v{FT+1}
v_cmp_le_u32 s[{mk+4}:{mk+5}], v{TH+2}, v{FT+1}
""")
        gathers(mk, RC[h], GA)
        held(h ^ 1)
        cosrow(RC[h], CR[h])
        d_load(FT + 2, RC[h])
        wait_bar(MK[h ^ 1] + 4, 4, f"da{h}")
        a("s_waitcnt vmcnt(1)")
        m_write()
        m_load()
        accum_main(h, f"d{h}")
        wait_bar(mk, 2, f"db{h}")
    a(f"""
s_add_u32 s{sJ}, s{sJ}, 2
s_cmp_lt_u32 s{sJ}, {NPH}
s_cbranch_scc1 k2_dloop
s_branch k2_epi
""")

    nr, inc, pre, V, tg, val, e0 = FT, FT + 1, FT + 2, FT + 3, FT + 4, FT + 5, FT + 6

    def flat_scan(ea, eb, stot):
        a(f"""
v_and_b32 v{V}, 0x7fff3, v{ea}
v_and_b32 v{nr}, 0x7fff0, v{eb}
v_and_b32 v{pre}, 0x7fff0, v{ea}
v_add_u32 v{V}, v{V}, v{vBase}
v_sub_u32 v{nr}, v{nr}, v{pre}
v_add_u32 v{nr}, -48, v{nr}
v_max_i32 v{nr}, 0, v{nr}
v_mov_b32 v{inc}, v{nr}
s_nop 1
""")
        scan(a, "v_add_u32", inc)
        a(f"""
v_sub_u32 v{pre}, v{inc}, v{nr}
v_readlane_b32 s{stot}, v{inc}, 63
v_sub_u32 v{V}, v{V}, v{pre}
v_cmp_ne_u32 s[{sD}:{sD+1}], 0, v{nr}
""")

    def flat_push(swb):
        a(f"""
s_add_u32 s{sT1}, {swb}, 1024
v_cmp_ge_u32 s[{sA}:{sA+1}], {swb}, v{pre}
v_subrev_u32 v{tg}, {swb}, v{pre}
v_cmp_eq_u32 s[{sC}:{sC+1}], s{sT1}, v{inc}
s_bcnt1_i32_b64 s{sT0}, s[{sA}:{sA+1}]
v_add_u32 v{val}, -16, v{tg}
s_sub_u32 s{sT0}, s{sT0}, 1
v_cmp_gt_u32 vcc, 1008, v{val}
v_readlane_b32 s{sCarry}, v{V}, s{sT0}
v_lshrrev_b32 v{tg}, 2, v{tg}
s_and_b64 s[{sB}:{sB+1}], vcc, s[{sD}:{sD+1}]
v_cndmask_b32 v{tg}, 0, v{tg}, s[{sB}:{sB+1}]
v_cndmask_b32 v{val}, 0, v{V}, s[{sB}:{sB+1}]
ds_permute_b32 v{val}, v{tg}, v{val}
""")

    def flat_fin(swb, stot, mk, rc):
        dpp = "row_mask:0xf bank_mask:0xf"
        a(f"""
v_cmp_ne_u32 s[{sA}:{sA+1}], 0, v{val}
v_add_u32 v{tg}, {swb}, v{vLane16}
s_cmp_lg_u64 s[{sC}:{sC+1}], 0
v_max_u32_dpp v{val}, v{val}, v{val} row_shr:1 {dpp}
v_cmp_gt_u32 s[{mk}:{mk+1}], s{stot}, v{tg}
s_cselect_b32 s{sC+1}, 0x80000000, 0
v_max_u32_dpp v{val}, v{val}, v{val} row_shr:2 {dpp}
s_mov_b32 s{sC}, 0
s_lshr_b64 s[{sA}:{sA+1}], s[{sA}:{sA+1}], 1
v_max_u32_dpp v{val}, v{val}, v{val} row_shr:4 {dpp}
s_or_b64 s[{sC}:{sC+1}], s[{sC}:{sC+1}], s[{sA}:{sA+1}]
s_lshr_b64 s[{sA}:{sA+1}], s[{mk}:{mk+1}], 1
v_max_u32_dpp v{val}, v{val}, v{val} row_shr:8 {dpp}
s_andn2_b64 s[{sA}:{sA+1}], s[{mk}:{mk+1}], s[{sA}:{sA+1}]
s_bitset0_b64 s[{sA}:{sA+1}], 63
v_max_u32_dpp v{val}, v{val}, v{val} row_bcast:15 row_mask:0xa bank_mask:0xf
s_or_b64 s[{sC}:{sC+1}], s[{sC}:{sC+1}], s[{sA}:{sA+1}]
s_nop 0
v_max_u32_dpp v{val}, v{val}, v{val} row_bcast:31 row_mask:0xc bank_mask:0xf
v_max_u32 v{val}, s{sCarry}, v{val}
v_add_u32 v{tg}, v{tg}, v{val}
v_and_b32 v{val}, 3, v{val}
v_and_b32 v{tg}, -16, v{tg}
v_cmp_eq_u32 s[{sA}:{sA+1}], 2, v{val}
v_cmp_ne_u32 s[{sB}:{sB+1}], 0, v{val}
v_cndmask_b32 v{tg}, v{vMHi}, v{tg}, s[{mk}:{mk+1}]
{"v_mov_b32 v%d, v%d" % (tg, vLane16) if 'r' in OPT['abl'] else ""}
buffer_load_dwordx4 v[{rc}:{rc+3}], v{tg}, s[{S_R}:{S_R+3}], 0 offen {ld}
s_and_b64 s[{sA}:{sA+1}], s[{sA}:{sA+1}], s[{sC}:{sC+1}]
s_and_b64 s[{sB}:{sB+1}], s[{sB}:{sB+1}], s[{sC}:{sC+1}]
s_andn2_b64 s[{mk+2}:{mk+3}], s[{mk}:{mk+1}], s[{sA}:{sA+1}]
s_andn2_b64 s[{mk+4}:{mk+5}], s[{mk}:{mk+1}], s[{sB}:{sB+1}]
""")

    def second(h, tag):
        a(f"""
s_cmp_le_u32 s{TOT[h]}, 1024
s_cbranch_scc1 k2_ns_{tag}
s_movk_i32 s{sXw}, 1024
""")
        flat_push(f"s{sXw}")
        a("s_waitcnt lgkmcnt(0)")
        flat_fin(f"s{sXw}", TOT[h], MX[h], RXW[h])
        a(f"k2_ns_{tag}:")

    a("k2_rem:")
    a("s_waitcnt vmcnt(8)")
    for h in range(2):
        flat_scan(EN + h, EN + h + 1, TOT[h])
        flat_push("0")
        a("s_waitcnt lgkmcnt(0)")
        flat_fin("0", TOT[h], MN[h], RC[h])
        second(h, f"p{h}")
        if h == 0:
            a("s_waitcnt vmcnt(5)")
            m_write()
            m_load()
            a(f"""
v_and_b32 v{FT}, 0x7fff0, v{EN+20}
v_and_b32 v{FT+1}, 0x7fff0, v{EN}
v_sub_u32 v{FT}, v{FT}, v{FT+1}
s_lshl_b32 s{sT0}, s{sW}, 2
s_add_u32 s{sT0}, s{sT0}, {NW}
""")
            scan(a, "v_add_u32", FT)
            a(f"""
v_mov_b32 v{FT+3}, s{sT0}
{EXEC63}
ds_write_b32 v{FT+3}, v{FT}
s_mov_b64 exec, -1
s_waitcnt lgkmcnt(0)
s_barrier
""")
            st_()
    scale_setup()
    st_()
    a("k2_rloop:")
    for h in range(2):
        mk = MK[h]
        a("s_waitcnt vmcnt(4)")
        for i in range(0, 6, 2):
            a(f"s_mov_b64 s[{mk+i}:{mk+i+1}], s[{MN[h]+i}:{MN[h]+i+1}]")
        gathers(mk, RC[h], GA)
        cosrow(RC[h], CR[h])
        a(f"""
s_cmp_le_u32 s{TOT[h]}, 1024
s_cbranch_scc1 k2_nx_{h}
""")
        gathers(MX[h], RXW[h], GX)
        cosrow(RXW[h], FT)
        a("s_waitcnt lgkmcnt(0)")
        accum_now(MX[h], GX, FT, f"x{h}")
        a(f"""
s_cmp_le_u32 s{TOT[h]}, 2048
s_cbranch_scc1 k2_nx_{h}
s_movk_i32 s{sXw}, 2048
s_add_u32 s{sT2}, s{sJ}, {h}
s_call_b64 s[{P}:{P+1}], k2_slow
k2_nx_{h}:
s_set_gpr_idx_on s{sJ}, 0x1
v_mov_b32 v{e0}, v{EN+h+2}
v_mov_b32 v{e0+1}, v{EN+h+3}
s_set_gpr_idx_off
""")
        flat_scan(e0, e0 + 1, TOT[h])
        flat_push("0")
        held(h ^ 1)
        wait_bar(MK[h ^ 1] + 4, 4, f"ra{h}")
        a("s_waitcnt vmcnt(1)")
        m_write()
        m_load()
        accum_main(h, f"r{h}")
        flat_fin("0", TOT[h], MN[h], RC[h])
        second(h, f"l{h}")
        wait_bar(mk, 2, f"rb{h}")
        if h == 1:
            st_()
    a(f"""
s_add_u32 s{sJ}, s{sJ}, 2
s_cmp_lt_u32 s{sJ}, {NPH}
s_cbranch_scc1 k2_rloop
""")
    a("k2_epi:")
    held(1)
    a(f"""
v_add_u32 v{vLW}, {ACC}, v{vT16}
v_add_u32 v{vBase}, {ACC+ACCB}, v{vT16}
v_mov_b32 v{vMagic}, s{sPf}
s_lshl_b32 s{sT0}, s{sRb}, 2
s_add_u32 s{sT0}, s{sT0}, s{sCg}
s_lshl_b32 s{sT0}, s{sT0}, 2
v_mov_b32 v{FT}, s{sT0}
v_mov_b32 v{FT+1}, s{sMode}
""")
    srd_off(a, S_T, P + 2, None, FLAG_OFF, 1024)
    a(f"""
s_mul_i32 s{sT0}, s{sCg}, {E*8}
s_mul_i32 s{sT1}, s{sRb}, {RB*8}
s_add_u32 s{sT0}, s{sT0}, s{sT1}
""")
    srd_off(a, S_P, P + 2, sT0, PART_OFF, RB * 8)
    a(f"s_lshl_b32 s{sT0}, s{sT0}, 1")
    srd_off(a, S_M, P + 2, sT0, P32_OFF, RB * 16)
    a(f"""
s_waitcnt vmcnt(0) lgkmcnt(0)
s_barrier
""")
    st_()
    for it in range(4):
        b = EN + it * 8
        if it == 3:
            a(f"v_min_u32 v{vLW}, {ACC + 52*16}, v{vLW}")
            a(f"v_min_u32 v{vBase}, {ACC + ACCB + 52*16}, v{vBase}")
        a(f"ds_read_b128 v[{b}:{b+3}], v{vLW} offset:{it*16384}")
        a(f"ds_read_b128 v[{b+4}:{b+7}], v{vBase} offset:{it*16384}")
    a(f"""
v_cmp_eq_u32 vcc, 0, v0
s_and_saveexec_b64 s[{sA}:{sA+1}], vcc
buffer_store_dword v{FT+1}, v{FT}, s[{S_T}:{S_T+3}], 0 offen
s_mov_b64 exec, s[{sA}:{sA+1}]
s_cmp_lg_u32 s{sMode}, 0
s_cbranch_scc1 k2_epf
""")
    for it in range(4):
        b = EN + it * 8
        a(f"s_waitcnt lgkmcnt({2*(3-it)})")
        for p in range(4):
            a(f"v_ashrrev_i32 v{FT+2+p}, 31, v{b+2*p}")
        for p in range(4):
            a(f"v_sub_u32 v{b+2*p+1}, v{b+2*p+1}, v{FT+2+p}")
        for p in range(8):
            a(f"v_cvt_f32_i32 v{b+p}, v{b+p}")
        for p in range(8):
            a(f"v_mul_f32 v{b+p}, v{vMagic}, v{b+p}")
        a(f"""
v_cvt_pk_f16_f32 v{b}, v{b}, v{b+1}
v_cvt_pk_f16_f32 v{b+1}, v{b+4}, v{b+5}
v_cvt_pk_f16_f32 v{b+2}, v{b+2}, v{b+3}
v_cvt_pk_f16_f32 v{b+3}, v{b+6}, v{b+7}
buffer_store_dwordx4 v[{b}:{b+3}], v{vT16}, s[{S_P}:{S_P+3}], 0 offen {pst}
""")
        if it < 3:
            a(f"v_add_u32 v{vT16}, 16384, v{vT16}")
    st_()
    if st_.on:
        a("s_waitcnt vmcnt(0)")
    st_()
    st_.flush(FT)
    a("""
k2_done:
s_endpgm
k2_epf:
s_waitcnt lgkmcnt(0)
""")
    a(f"v_lshlrev_b32 v{vT16}, 1, v{vT16}")
    for it in range(4):
        b = EN + it * 8
        a(f"""
buffer_store_dwordx2 v[{b}:{b+1}], v{vT16}, s[{S_M}:{S_M+3}], 0 offen
buffer_store_dwordx2 v[{b+4}:{b+5}], v{vT16}, s[{S_M}:{S_M+3}], 0 offen offset:8
buffer_store_dwordx2 v[{b+2}:{b+3}], v{vT16}, s[{S_M}:{S_M+3}], 0 offen offset:16
buffer_store_dwordx2 v[{b+6}:{b+7}], v{vT16}, s[{S_M}:{S_M+3}], 0 offen offset:24
v_add_u32 v{vT16}, 32768, v{vT16}
""")
    a("s_endpgm")
    a("k2_slow:")
    a(f"""
s_set_gpr_idx_on s{sT2}, 0x1
v_mov_b32 v{e0}, v{EN}
v_mov_b32 v{e0+1}, v{EN+1}
s_set_gpr_idx_off
""")
    flat_scan(e0, e0 + 1, sTot)
    a("k2_slow_l:")
    flat_push(f"s{sXw}")
    a("s_waitcnt lgkmcnt(0)")
    flat_fin(f"s{sXw}", sTot, MS, RS)
    a("s_waitcnt vmcnt(0)")
    gathers(MS, RS, GX)
    cosrow(RS, CS)
    a("s_waitcnt lgkmcnt(0)")
    accum_now(MS, GX, CS, "slow")
    a(f"""
s_add_u32 s{sXw}, s{sXw}, 1024
s_cmp_lt_u32 s{sXw}, s{sTot}
s_cbranch_scc1 k2_slow_l
s_setpc_b64 s[{P}:{P+1}]
""")
    for args in list(late):
        accum_f32(*args)
    return a.s, NVG


def gen_k3():
    a = A()
    pld = OPT['pld']
    S_M, S_D, S_O, S_P = 4, 8, 12, 16
    WR, WSB, WD, WU, CE = 20, 36, 52, 60, 68
    CF = 72
    PP = 72
    FL = 84
    MXS = 88
    sT = 80
    sWs = 96
    st_ = Stamper(a, 2, 98, sWs, 60, S_P)
    st_.start()
    vO16, vD, vM, vHi = 1, 2, 4, 8
    PL = 12
    R = (28, 36)
    G = (44, 48)
    H = (52, 56)
    S = (28, 32)
    RP = (62, 66)
    vT = 9
    a(f"""
s_cmp_ge_u32 s2, 1600
s_cbranch_scc1 k3_done
s_load_dwordx2 s[{S_M}:{S_M+1}], s[0:1], {KA['m']}
s_load_dwordx2 s[{S_D}:{S_D+1}], s[0:1], {KA['dist']}
s_load_dwordx2 s[{S_O}:{S_O+1}], s[0:1], {KA['out']}
s_load_dwordx2 s[{sWs}:{sWs+1}], s[0:1], {KA['ws']}
s_load_dwordx2 s[{PP}:{PP+1}], s[0:1], {KA['centers']}
s_load_dwordx4 s[{PP+4}:{PP+7}], s[0:1], {KA['w_rbf']}
s_load_dwordx4 s[{PP+8}:{PP+11}], s[0:1], {KA['w_down']}
s_mul_i32 s3, s2, 2000
v_lshlrev_b32 v{vO16}, 4, v0
v_add_u32 v{vO16}, s3, v{vO16}
v_mov_b32 v{vHi}, 0xffff0000
v_cmp_gt_u32 vcc, 125, v0
s_and_b64 exec, exec, vcc
v_lshrrev_b32 v{vT}, 2, v{vO16}
s_mul_i32 s3, s2, 5243
s_lshr_b32 s3, s3, 17
s_lshl_b32 s3, s3, 4
s_waitcnt lgkmcnt(0)
""")
    a(srd(S_D, S_D, E * 2))
    a(f"buffer_load_dword v{vD}, v{vT}, s[{S_D}:{S_D+3}], 0 offen")
    a(f"""
s_load_dwordx4 s[{CE}:{CE+3}], s[{PP}:{PP+1}], 0
s_load_dwordx16 s[{WR}:{WR+15}], s[{PP+4}:{PP+5}], 0
s_load_dwordx16 s[{WSB}:{WSB+15}], s[{PP+6}:{PP+7}], 0
s_load_dwordx8 s[{WD}:{WD+7}], s[{PP+8}:{PP+9}], 0
s_load_dwordx8 s[{WU}:{WU+7}], s[{PP+10}:{PP+11}], 0
s_add_u32 s{PP+2}, s{sWs}, {MAX_OFF}
s_addc_u32 s{PP+3}, s{sWs+1}, 0
s_load_dwordx8 s[{MXS}:{MXS+7}], s[{PP+2}:{PP+3}], 0
s_add_u32 s{PP+2}, s{PP+2}, s3
s_addc_u32 s{PP+3}, s{PP+3}, 0
s_load_dwordx4 s[{FL}:{FL+3}], s[{PP+2}:{PP+3}], {FLAG_OFF-MAX_OFF}
""")
    srd_off(a, S_P, sWs, None, PART_OFF, 4 * E * 8)
    for c in range(4):
        if c:
            a(f"s_mov_b32 s3, {c*E*8}")
        a(f"buffer_load_dwordx4 v[{PL+4*c}:{PL+4*c+3}], v{vO16}, s[{S_P}:{S_P+3}], {'s3' if c else '0'} offen {pld}")
    a(srd(S_M, S_M, E * 8) + srd(S_O, S_O, E * 8))
    a(f"buffer_load_dwordx4 v[{vM}:{vM+3}], v{vO16}, s[{S_M}:{S_M+3}], 0 offen")
    a("s_waitcnt lgkmcnt(0)")
    for k in range(8):
        a(s_unpack(CF + k, CE, k))
    a(f"""
s_max_u32 s{MXS}, s{MXS}, s{MXS+1}
s_max_u32 s{MXS+2}, s{MXS+2}, s{MXS+3}
s_max_u32 s{MXS+4}, s{MXS+4}, s{MXS+5}
s_max_u32 s{MXS}, s{MXS}, s{MXS+2}
s_max_u32 s{MXS}, s{MXS}, s{MXS+4}
s_lshl_b32 s3, s{MXS}, 16
s_and_b32 s3, s3, 0x7f800000
s_add_u32 s3, s3, {2 << 23}
s_waitcnt vmcnt(5)
v_and_b32 v{vD+1}, v{vHi}, v{vD}
v_lshlrev_b32 v{vD}, 16, v{vD}
""")

    st_.init()
    st_()

    def rnd(x):
        a(f"v_cvt_pk_bf16_f32 v{x+1}, v{x}, v{x+1}")
        a(f"v_lshlrev_b32 v{x}, 16, v{x+1}")
        a(f"v_and_b32 v{x+1}, v{vHi}, v{x+1}")

    for r in range(2):
        for k in range(0, 8, 2):
            a(f"v_pk_add_f32 v[{R[r]+k}:{R[r]+k+1}], v[{vD}:{vD+1}], s[{CF+k}:{CF+k+1}] op_sel:[{r},0] op_sel_hi:[{r},1] neg_lo:[0,1] neg_hi:[0,1]")
    allr = [R[r] + k for r in range(2) for k in range(8)]
    for x in allr[::2]:
        rnd(x)
    for x in allr:
        a(f"v_mul_f32 v{x}, v{x}, v{x}")
    for x in allr[::2]:
        rnd(x)
    for x in allr:
        a(f"v_mul_f32 v{x}, 0xc1200000, v{x}")
    for x in allr[::2]:
        rnd(x)
    for x in allr:
        a(f"v_mul_f32 v{x}, 0x3fb8aa3b, v{x}")
    for x in allr:
        a(f"v_exp_f32 v{x}, v{x}")
    a("s_nop 0")
    for r in range(2):
        for kk in range(4):
            a(f"v_cvt_pk_bf16_f32 v{RP[r]+kk}, v{R[r]+2*kk}, v{R[r]+2*kk+1}")

    cnt = [0]

    def wpair(base, kk, c):
        d = sT + (cnt[0] & 3)
        cnt[0] += 1
        op = "s_pack_ll_b32_b16" if c % 2 == 0 else "s_pack_hh_b32_b16"
        a(f"{op} s{d}, s{base + 4*kk + c//2}, s{base + 4*kk + 2 + c//2}")
        return d

    def dotmat(dst, src, base, nk):
        for kk in range(nk):
            for c in range(4):
                w = wpair(base, kk, c)
                for r in range(2):
                    acc = "0" if kk == 0 else f"v{dst[r]+c}"
                    a(f"v_dot2_f32_bf16 v{dst[r]+c}, v{src[r]+kk}, s{w}, {acc}")

    dotmat(H, RP, WR, 4)
    dotmat(G, RP, WSB, 4)
    for r in range(2):
        rnd(H[r])
        rnd(H[r] + 2)
    a(f"""
s_or_b32 s{sT}, s{FL}, s{FL+1}
s_or_b32 s{sT+1}, s{FL+2}, s{FL+3}
s_or_b32 s{sT}, s{sT}, s{sT+1}
v_mov_b32 v{vT}, s3
s_cmp_lg_u32 s{sT}, 0
s_cbranch_scc1 k3_slow
s_waitcnt vmcnt(1)
""")
    for r in range(2):
        for c in range(4):
            reg = 2 * r + c // 2
            hi = c % 2
            d = S[r] + c
            a(f"v_fma_mix_f32 v{d}, v{PL+reg}, 1.0, v{PL+4+reg} op_sel:[{hi},0,{hi}] op_sel_hi:[1,0,1]")
            a(f"v_fma_mix_f32 v{d}, v{PL+8+reg}, 1.0, v{d} op_sel:[{hi},0,0] op_sel_hi:[1,0,0]")
            a(f"v_fma_mix_f32 v{d}, v{PL+12+reg}, 1.0, v{d} op_sel:[{hi},0,0] op_sel_hi:[1,0,0]")
    for r in range(2):
        for c in range(4):
            a(f"v_mul_f32 v{S[r]+c}, v{vT}, v{S[r]+c}")
    a("k3_join:")
    st_()
    AG = (36, 40)
    for j in range(4):
        for cp in range(2):
            d = sT + 2 * ((j * 2 + cp) & 1)
            a(s_unpack(d, WD, j * 4 + cp * 2))
            a(s_unpack(d + 1, WD, j * 4 + cp * 2 + 1))
            for r in range(2):
                sp = S[r] + (j & ~1)
                o = j & 1
                dd = AG[r] + 2 * cp
                if j == 0:
                    a(f"v_pk_mul_f32 v[{dd}:{dd+1}], v[{sp}:{sp+1}], s[{d}:{d+1}] op_sel:[{o},0] op_sel_hi:[{o},1]")
                else:
                    a(f"v_pk_fma_f32 v[{dd}:{dd+1}], v[{sp}:{sp+1}], s[{d}:{d+1}], v[{dd}:{dd+1}] op_sel:[{o},0,0] op_sel_hi:[{o},1,1]")
    for r in range(2):
        for c in range(4):
            a(f"v_mul_f32 v{AG[r]+c}, v{AG[r]+c}, v{G[r]+c}")
    for r in range(2):
        for kk in range(2):
            a(f"v_cvt_pk_bf16_f32 v{RP[r]+kk}, v{AG[r]+2*kk}, v{AG[r]+2*kk+1}")
    dotmat(G, RP, WU, 2)
    a("s_waitcnt vmcnt(0)")
    for r in range(2):
        for cp in range(2):
            a(f"v_lshlrev_b32 v{S[r]+2*cp}, 16, v{vM+2*r+cp}")
            a(f"v_and_b32 v{S[r]+2*cp+1}, v{vHi}, v{vM+2*r+cp}")
    for r in range(2):
        rnd(G[r])
        rnd(G[r] + 2)
    for r in range(2):
        for c in range(4):
            a(f"v_mul_f32 v{G[r]+c}, v{G[r]+c}, v{H[r]+c}")
    for r in range(2):
        rnd(G[r])
        rnd(G[r] + 2)
    for r in range(2):
        for c in range(4):
            a(f"v_add_f32 v{G[r]+c}, v{G[r]+c}, v{S[r]+c}")
    for r in range(2):
        for cp in range(2):
            a(f"v_cvt_pk_bf16_f32 v{vM+2*r+cp}, v{G[r]+2*cp}, v{G[r]+2*cp+1}")
    a(f"""
buffer_store_dwordx4 v[{vM}:{vM+3}], v{vO16}, s[{S_O}:{S_O+3}], 0 offen
""")
    st_()
    st_.flush(61)
    a(f"""
k3_done:
s_endpgm
k3_slow:
""")
    srd_off(a, S_D, sWs, None, P32_OFF, 4 * E * 16)
    a(f"v_lshlrev_b32 v{vT+1}, 1, v{vO16}")
    for i in range(8):
        a(f"v_mov_b32 v{S[0]+i}, 0")
    a("s_waitcnt vmcnt(0)")
    for c in range(4):
        a(f"""
s_cmp_lg_u32 s{FL+c}, 0
s_cbranch_scc1 k3_s32_{c}
""")
        for r in range(2):
            for cc in range(4):
                reg = 2 * r + cc // 2
                a(f"v_fma_mix_f32 v{S[r]+cc}, v{PL+4*c+reg}, v{vT}, v{S[r]+cc} op_sel:[{cc%2},0,0] op_sel_hi:[1,0,0]")
        a(f"""
s_branch k3_sn_{c}
k3_s32_{c}:
buffer_load_dwordx4 v[36:39], v{vT+1}, s[{S_D}:{S_D+3}], 0 offen
buffer_load_dwordx4 v[40:43], v{vT+1}, s[{S_D}:{S_D+3}], 0 offen offset:16
s_waitcnt vmcnt(0)
""")
        for i in range(8):
            a(f"v_add_f32 v{S[0]+i}, v{S[0]+i}, v{36+i}")
        a(f"k3_sn_{c}:")
        a(f"v_add_u32 v{vT+1}, {E*16}, v{vT+1}")
    a("s_branch k3_join")
    return a.s


out = HEADER
out += "; K1: 2-D fine binning of triplets (register-resident tile), K2: LDS gather + integer LDS accumulation, K3: finalize\n"
out += f"; @launch kernel=k1_kernel grid=({NT+NMX},1,1) block=(1024,1,1) lds={LDS_ALL}\n"
out += f"; @launch kernel=k2_kernel grid=(256,1,1) block=(1024,1,1) lds=141312\n"
out += "; @launch kernel=k3_kernel grid=(1600,1,1) block=(128,1,1) lds=0\n"
out += '.amdgcn_target "amdgcn-amd-amdhsa--gfx950"\n'
out += kernel_begin('k1_kernel') + gen_k1()
k2, k2v = gen_k2()
out += kernel_begin('k2_kernel') + k2
out += kernel_begin('k3_kernel') + gen_k3()
out += kernel_desc('k1_kernel', 128, 80) + kernel_desc('k2_kernel', k2v, 102) + kernel_desc('k3_kernel', 70, 102 if OPT['diag'] != '0' else 98)
open(sys.argv[1], 'w').write(out)
```

```python
import sys
sys.path.insert(0, 'dev')
from common import *
DIAG_OFF = 0xFC00000
src = open(sys.argv[1]).read()
items = [x.split(',') for x in sys.argv[3].split(';')]
c = kernel_begin('rep_kernel')
c += f"""    s_cmp_ge_u32 s2, 1
    s_cbranch_scc1 rep_done
    s_load_dwordx2 s[4:5], s[0:1], {KA['ws']}
    s_load_dwordx2 s[8:9], s[0:1], {KA['dbg']}
    v_lshlrev_b32 v1, 8, v0
    v_mov_b32 v10, 0
    s_waitcnt lgkmcnt(0)
    s_add_u32 s4, s4, {DIAG_OFF}
    s_addc_u32 s5, s5, 0
    s_mov_b32 s6, 0x400000
    s_mov_b32 s7, 0x20000
    s_mov_b32 s10, 64
    s_mov_b32 s11, 0x20000
"""
for n, (k, st, op, nwg) in enumerate(items):
    k, st, nwg = int(k), int(st), int(nwg)
    vop = 'v_min_u32' if op == 'min' else 'v_max_u32'
    c += f"    v_mov_b32 v2, {-1 if op == 'min' else 0}\n"
    for i in range((nwg + 63) // 64):
        c += f"    v_add_u32 v3, {i*64}, v0\n    v_min_u32 v3, {nwg-1}, v3\n    v_lshlrev_b32 v3, 8, v3\n    v_add_u32 v3, {k*0x100000 + st*4}, v3\n"
        c += f"    buffer_load_dword v4, v3, s[4:7], 0 offen\n    s_waitcnt vmcnt(0)\n    {vop} v2, v2, v4\n"
    c += "    s_nop 1\n"
    for sh in (1, 2, 4, 8):
        c += f"    {vop}_dpp v2, v2, v2 row_shr:{sh} row_mask:0xf bank_mask:0xf\n    s_nop 1\n"
    c += f"    {vop}_dpp v2, v2, v2 row_bcast:15 row_mask:0xa bank_mask:0xf\n    s_nop 1\n"
    c += f"    {vop}_dpp v2, v2, v2 row_bcast:31 row_mask:0xc bank_mask:0xf\n    s_nop 1\n"
    c += "    v_readlane_b32 s12, v2, 63\n"
    if n == 0:
        c += "    s_mov_b32 s13, s12\n"
    c += "    s_sub_u32 s12, s12, s13\n"
    c += f"    v_writelane_b32 v10, s12, {n}\n"
c += """    s_memrealtime s[14:15]
    s_waitcnt lgkmcnt(0)
    v_lshlrev_b32 v1, 2, v0
    buffer_store_dword v10, v1, s[8:11], 0 offen
rep_done:
    s_endpgm
"""
i = src.index('.amdgcn_target')
src = src[:i] + "; @launch kernel=rep_kernel grid=(1,1,1) block=(64,1,1) lds=0\n" + src[i:]
src = src.replace('.section .rodata,"a"', c + '.section .rodata,"a"', 1) + kernel_desc('rep_kernel', 16, 24)
open(sys.argv[2], 'w').write(src)
```

```python
import sys
sys.path.insert(0, 'dev')
from common import *

NT = 250
NMX = 6
TILE = 51200
RB = 6250
CB = 5000
NCB = 80
NPH = 20
F = 64 * NCB
TGB = 20544 * 16
TABS = (F + 4) * 4
CAPG = 6826
CAP8 = CAPG * 24
REC_OFF = 0
TAB_OFF = 0x5000000
MAX_OFF = 0x5500000
FLAG_OFF = 0x5501000
HF_OFF = 0x5504000
PART_OFF = 0x5600000
P32_OFF = 0x6400000
DIAG_OFF = 0xFC00000
LDS_ALL = 163840
assert NT * TGB <= TAB_OFF and TAB_OFF + NT * TABS <= MAX_OFF

OPT = dict(ld='nt', st='', k2ld='', pst='', pld='', diag='0', depth='3', ne='2', nm='1', abl='', rb='0', fuse='0', abl2='', clk='0', tid='0')
for a_ in sys.argv[2:]:
    k_, v_ = a_.split('=')
    OPT[k_] = v_.replace('+', ' ')

BFI = "bitop3:0xca"
ANDOR = "bitop3:0xea"


class A:
    def __init__(self):
        self.s = ""

    def __call__(self, txt):
        for l in txt.strip('\n').split('\n'):
            l = l.strip()
            if not l:
                continue
            self.s += ("" if l.endswith(':') else "    ") + l + "\n"


def srd_off(a, d, ptr, off_sgpr, off_imm, nbytes):
    if off_sgpr is not None:
        a(f"s_add_u32 s{d}, s{ptr}, s{off_sgpr}")
        a(f"s_addc_u32 s{d+1}, s{ptr+1}, 0")
        if off_imm:
            a(f"s_add_u32 s{d}, s{d}, {off_imm}")
            a(f"s_addc_u32 s{d+1}, s{d+1}, 0")
    else:
        a(f"s_add_u32 s{d}, s{ptr}, {off_imm}")
        a(f"s_addc_u32 s{d+1}, s{ptr+1}, 0")
    a(f"s_mov_b32 s{d+2}, {nbytes}")
    a(f"s_mov_b32 s{d+3}, 0x00020000")


class Stamper:
    def __init__(self, a, kidx, sbase, wsptr, vtmp, srd):
        self.a, self.k, self.sb, self.ws, self.v, self.srd = a, kidx, sbase, wsptr, vtmp, srd
        self.on = OPT['diag'] == '1'

    def start(self):
        if self.on:
            self.a(f"s_memrealtime s[{self.sb+2}:{self.sb+3}]")

    def init(self):
        if not self.on:
            return
        a, sb = self.a, self.sb
        a(f"s_mov_b64 s[{sb}:{sb+1}], exec")
        a(f"s_mov_b64 exec, -1")
        a(f"v_mov_b32 v{self.v}, 0")
        a(f"s_mov_b64 exec, s[{sb}:{sb+1}]")
        a(f"v_writelane_b32 v{self.v}, s{sb+2}, 0")
        a(f"s_mov_b32 s{sb+3}, 1")

    def __call__(self):
        if not self.on:
            return
        a, sb = self.a, self.sb
        a(f"s_memrealtime s[{sb}:{sb+1}]")
        a(f"s_mov_b32 s{sb+2}, m0")
        a(f"s_mov_b32 m0, s{sb+3}")
        a("s_waitcnt lgkmcnt(0)")
        a(f"v_writelane_b32 v{self.v}, s{sb}, m0")
        a(f"s_add_u32 s{sb+3}, s{sb+3}, 1")
        if OPT['clk'] == '1':
            a(f"s_memtime s[{sb}:{sb+1}]")
            a(f"s_add_u32 m0, s{sb+3}, 31")
            a("s_waitcnt lgkmcnt(0)")
            a(f"v_writelane_b32 v{self.v}, s{sb}, m0")
        a(f"s_mov_b32 m0, s{sb+2}")

    def flush(self, vt):
        if not self.on:
            return
        a, sb = self.a, self.sb
        a(f"s_lshl_b32 s{sb}, s2, 8")
        srd_off(a, self.srd, self.ws, sb, DIAG_OFF + self.k * 0x100000, 256)
        a(f"s_mov_b64 exec, -1")
        a(f"v_cmp_gt_u32 vcc, 64, v0")
        a(f"s_and_b64 exec, exec, vcc")
        a(f"v_lshlrev_b32 v{vt}, 2, v0")
        a(f"buffer_store_dword v{self.v}, v{vt}, s[{self.srd}:{self.srd+3}], 0 offen")
        a(f"s_mov_b64 exec, -1")


def scan(a, op, v, full=True):
    for sh in (1, 2, 4, 8):
        a(f"{op}_dpp v{v}, v{v}, v{v} row_shr:{sh} row_mask:0xf bank_mask:0xf")
        a("s_nop 1")
    if full:
        a(f"{op}_dpp v{v}, v{v}, v{v} row_bcast:15 row_mask:0xa bank_mask:0xf")
        a("s_nop 1")
        a(f"{op}_dpp v{v}, v{v}, v{v} row_bcast:31 row_mask:0xc bank_mask:0xf")
        a("s_nop 1")


EXEC63 = "s_mov_b32 exec_lo, 0\ns_mov_b32 exec_hi, 0x80000000"


def gen_k1():
    a = A()
    ld, st = OPT['ld'], OPT['st']
    D = int(OPT['depth'])
    WT = 20480
    ANG = 20736
    S_O, S_I, S_A, S_R, S_T, S_F = 4, 8, 12, 16, 20, 24
    P = 28
    sW, sMR, sMC, sNR, sNC, sG, sLo8, sT0, sT1, sCap8, sRem, sSo, sAngL = range(40, 53)
    vC, vAng, vT16, vDma = 1, 2, 3, 4
    vFq = 5
    T0 = 6
    RX = 28
    RQ = 32
    vA48 = 27
    vSt = 26

    def rec(slot):
        if slot >= 48:
            return RX + 2 * (slot - 48)
        q, k = divmod(slot, 4)
        return RQ + q * 8 + (0, 4, 2, 6)[k]

    st_ = Stamper(a, 0, 56, P + 10, vSt, S_O)
    st_.start()
    a(f"""
s_cmp_ge_u32 s2, {NT+NMX}
s_cbranch_scc1 k1_done
s_load_dwordx4 s[{P}:{P+3}], s[0:1], {KA['m']}
s_load_dwordx2 s[{P+4}:{P+5}], s[0:1], {KA['idx_out']}
s_load_dwordx2 s[{P+6}:{P+7}], s[0:1], {KA['angle']}
s_load_dwordx2 s[{P+8}:{P+9}], s[0:1], {KA['ang_freq']}
s_load_dwordx2 s[{P+10}:{P+11}], s[0:1], {KA['ws']}
v_lshrrev_b32 v{T0}, 6, v0
v_lshlrev_b32 v{vT16}, 4, v0
v_readfirstlane_b32 s{sW}, v{T0}
s_cmp_ge_u32 s2, {NT}
s_cbranch_scc1 k1_max
v_mov_b32 v{T0+4}, 0
v_mov_b32 v{T0+5}, 0
v_mov_b32 v{T0+6}, 0
v_mov_b32 v{T0+7}, 0
v_lshlrev_b32 v{T0+1}, 2, v0
ds_write_b128 v{vT16}, v[{T0+4}:{T0+7}]
ds_write_b32 v{T0+1}, v{T0+4} offset:16384
v_mov_b32 v{vC}, 1
s_mov_b32 s{sMR}, 687195
s_mov_b32 s{sMC}, 858994
s_mov_b32 s{sNR}, {-RB}
s_mov_b32 s{sNC}, {-CB}
s_mov_b32 s{sCap8}, {CAP8}
s_mul_i32 s{sT0}, s2, {TILE*4}
s_mul_i32 s{sT1}, s2, {TILE*2}
s_waitcnt lgkmcnt(0)
""")
    srd_off(a, S_O, P + 4, sT0, 0, TILE * 4)
    srd_off(a, S_I, P + 2, sT0, 0, TILE * 4)
    srd_off(a, S_A, P + 6, sT1, 0, TILE * 2)

    vm = []

    def issue_pair(q):
        if q < 12:
            b = RQ + q * 8
            a(f"s_mov_b32 s{sT0}, {q*16384}")
            a(f"buffer_load_dwordx4 v[{b}:{b+3}], v{vT16}, s[{S_O}:{S_O+3}], s{sT0} offen {ld}")
            a(f"buffer_load_dwordx4 v[{b+4}:{b+7}], v{vT16}, s[{S_I}:{S_I+3}], s{sT0} offen {ld}")
            vm.extend([('O', q), ('I', q)])
        elif q == 12:
            a(f"""
v_lshrrev_b32 v{vA48}, 1, v{vT16}
s_mov_b32 s{sT0}, {49152*4}
buffer_load_dwordx2 v[{RX}:{RX+1}], v{vA48}, s[{S_O}:{S_O+3}], s{sT0} offen {ld}
buffer_load_dwordx2 v[{RX+2}:{RX+3}], v{vA48}, s[{S_I}:{S_I+3}], s{sT0} offen {ld}
v_lshrrev_b32 v{vA48}, 2, v{vT16}
s_mov_b32 s{sT0}, {49152*2}
buffer_load_dword v{vA48}, v{vA48}, s[{S_A}:{S_A+3}], s{sT0} offen {ld}
""")
            vm.extend([('O', 12), ('I', 12), ('A', 48)])

    def issue_dma(j):
        if j < 6:
            a(f"s_add_u32 m0, s{sAngL}, {j*1024}")
            a(f"s_mov_b32 s{sT1}, {j*16384}")
            a(f"buffer_load_dwordx4 v{vDma}, s[{S_A}:{S_A+3}], s{sT1} offen {ld} lds")
            vm.append(('D', j))

    def wait_for(key):
        n = len(vm) - 1 - vm.index(key)
        a(f"s_waitcnt vmcnt({n})")

    for q in range(D):
        issue_pair(q)
    srd_off(a, S_F, P + 8, None, 0, 2)
    a(f"""
v_mov_b32 v{vFq}, 0
buffer_load_ushort v{vFq}, v{vFq}, s[{S_F}:{S_F+3}], 0 offen
""")
    vm.append(('F', 0))
    a(f"""
v_and_b32 v{vDma}, 31, v0
v_lshlrev_b32 v{vDma}, 4, v{vDma}
v_bfe_u32 v{T0+1}, v0, 5, 1
v_lshl_add_u32 v{vDma}, v{T0+1}, 13, v{vDma}
s_lshl_b32 s{sT0}, s{sW}, 9
v_add_u32 v{vDma}, s{sT0}, v{vDma}
s_mul_i32 s{sAngL}, s{sW}, 6144
s_add_u32 s{sAngL}, s{sAngL}, {ANG}
v_and_b32 v{vAng}, 63, v0
v_lshlrev_b32 v{vAng}, 3, v{vAng}
v_add_u32 v{vAng}, s{sAngL}, v{vAng}
s_mul_i32 s{sT0}, s2, {TGB}
""")
    srd_off(a, S_R, P + 10, sT0, REC_OFF, TGB)
    a(f"s_mul_i32 s{sT0}, s2, {TABS}")
    srd_off(a, S_T, P + 10, sT0, TAB_OFF, TABS)
    st_.init()
    a("s_barrier")
    st_()
    t1, t2, tR1, tR3 = T0, T0 + 1, T0 + 2, T0 + 3
    tb = T0 + 4

    def binning(ro, ri, dst_rl, tbk):
        a(f"""
v_mul_hi_u32_u24 v{t1}, s{sMR}, v{ro}
v_mul_hi_u32_u24 v{t2}, s{sMC}, v{ri}
v_mad_i32_i24 v{dst_rl}, v{t1}, s{sNR}, v{ro}
v_mul_u32_u24 v{t1}, {NCB*4}, v{t1}
v_mad_i32_i24 v{ri}, v{t2}, s{sNC}, v{ri}
v_lshl_add_u32 v{tbk}, v{t2}, 2, v{t1}
ds_add_u32 v{tbk}, v{vC}
""")

    def packpair(o0, o1, i0, i1, tR, b0, b1):
        a(f"""
v_lshrrev_b32 v{t1}, 10, v{i0}
v_lshrrev_b32 v{t2}, 10, v{i1}
v_lshl_or_b32 v{o0}, v{o0}, 3, v{t1}
v_lshl_or_b32 v{o1}, v{i0}, 22, v{b0}
v_lshl_or_b32 v{i0}, v{tR}, 3, v{t2}
v_lshl_or_b32 v{i1}, v{i1}, 22, v{b1}
""")

    for q in range(13):
        wait_for(('I', q))
        issue_pair(q + D)
        if q < 12:
            r = RQ + q * 8
            for k in range(4):
                binning(r + k, r + 4 + k, r + k if k % 2 == 0 else (tR1 if k == 1 else tR3), tb + k)
            packpair(r, r + 1, r + 4, r + 5, tR1, tb, tb + 1)
            packpair(r + 2, r + 3, r + 6, r + 7, tR3, tb + 2, tb + 3)
        else:
            binning(RX, RX + 2, RX, tb)
            binning(RX + 1, RX + 3, tR1, tb + 1)
            packpair(RX, RX + 1, RX + 2, RX + 3, tR1, tb, tb + 1)
    NE = int(OPT['ne'])
    for j in range(NE):
        issue_dma(j)
    a("""
s_waitcnt lgkmcnt(0)
s_barrier
""")
    st_()
    c = T0
    g = T0 + 5
    e = T0 + 10
    vA, vS, vI = T0 + 16, T0 + 17, T0 + 18
    assert e % 2 == 0 and vI + 1 < vSt
    a(f"v_mul_u32_u24 v{vA}, 20, v0")
    for i in range(5):
        a(f"ds_read_b32 v{c+i}, v{vA} offset:{4*i}")
    a(f"s_mov_b32 s{sT0}, 43691")
    a(f"v_lshlrev_b32 v{vFq}, 16, v{vFq}")
    a("s_waitcnt lgkmcnt(0)")
    for i in range(5):
        a(f"v_add_u32 v{g+i}, 2, v{c+i}")
        a(f"v_mul_u32_u24 v{g+i}, s{sT0}, v{g+i}")
        a(f"v_lshrrev_b32 v{g+i}, 17, v{g+i}")
    a(f"""
v_add3_u32 v{vS}, v{g}, v{g+1}, v{g+2}
v_add3_u32 v{vS}, v{vS}, v{g+3}, v{g+4}
v_mov_b32 v{vI}, v{vS}
s_lshl_b32 s{sT0}, s{sW}, 2
s_add_u32 s{sT0}, s{sT0}, {WT}
""")
    scan(a, "v_add_u32", vI)
    a(f"""
v_mov_b32 v{vI+1}, s{sT0}
{EXEC63}
ds_write_b32 v{vI+1}, v{vI}
s_mov_b64 exec, -1
""")
    for i in range(5):
        a(f"v_mul_u32_u24 v{e+i}, 3, v{g+i}")
        a(f"v_sub_u32 v{e+i}, v{e+i}, v{c+i}")
        a(f"v_min_u32 v{c+i}, 0x1fff, v{c+i}")
        a(f"v_lshl_or_b32 v{e+i}, v{c+i}, 19, v{e+i}")
    a(f"""
v_sub_u32 v{vI}, v{vI}, v{vS}
v_and_b32 v{vI+1}, 15, v0
v_lshlrev_b32 v{vI+1}, 2, v{vI+1}
""")
    NM = int(OPT['nm'])
    for j in range(NE, NE + NM):
        issue_dma(j)
    a(f"""
s_waitcnt lgkmcnt(0)
s_barrier
ds_read_b32 v{vI+1}, v{vI+1} offset:{WT}
s_waitcnt lgkmcnt(0)
v_mov_b32 v{vS}, v{vI+1}
""")
    scan(a, "v_add_u32", vI + 1, full=False)
    a(f"""
v_readlane_b32 s{sG}, v{vI+1}, 15
v_sub_u32 v{vS}, v{vI+1}, v{vS}
s_nop 0
v_readlane_b32 s{sT0}, v{vS}, s{sW}
s_nop 1
v_add_u32 v{vI}, s{sT0}, v{vI}
""")
    for i in range(5):
        a(f"v_mul_u32_u24 v{c+i}, 24, v{vI}")
        a(f"v_lshl_or_b32 v{e+i}, v{vI}, 4, v{e+i}")
        a(f"ds_write_b32 v{vA}, v{c+i} offset:{4*i}")
        a(f"v_add_u32 v{vI}, v{vI}, v{g+i}")
    a(f"""
v_lshlrev_b32 v{e+5}, 4, v{vI}
buffer_store_dwordx4 v[{e}:{e+3}], v{vA}, s[{S_T}:{S_T+3}], 0 offen
buffer_store_dword v{e+4}, v{vA}, s[{S_T}:{S_T+3}], 0 offen offset:16
v_mov_b32 v{vI}, 1023
v_cmp_eq_u32 s[{P}:{P+1}], v0, v{vI}
v_mov_b32 v{vC}, 8
v_mov_b32 v{vS}, 0xffff0000
v_cndmask_b32 v{vA}, v{vS}, v{vA}, s[{P}:{P+1}]
buffer_store_dword v{e+5}, v{vA}, s[{S_T}:{S_T+3}], 0 offen offset:20
s_waitcnt lgkmcnt(0)
s_barrier
""")
    vm.extend([('S', 0), ('S', 1), ('S', 2)])
    st_()
    pt = (T0, T0 + 4)
    an = (T0 + 8, T0 + 10)
    x = T0 + 12
    vM22, vMHi = T0 + 16, T0 + 17
    p48 = T0 + 18
    a(f"v_mov_b32 v{vM22}, 0x3fffff")
    a(f"v_mov_b32 v{vMHi}, 0xffff0000")

    def issue(q):
        s = q & 1
        if q % 2 == 0:
            wait_for(('D', q // 2))
            issue_dma(q // 2 + NE + NM)
        a(f"ds_read_b64 v[{an[s]}:{an[s]+1}], v{vAng} offset:{q*512}")
        for k in range(4):
            w = rec(q * 4 + k)
            a(f"v_and_b32 v{pt[s]+k}, v{vM22}, v{w+1}")
            a(f"ds_add_rtn_u32 v{pt[s]+k}, v{pt[s]+k}, v{vC}")

    def cospair(src, w_lo, w_hi, xx):
        a(f"""
v_lshlrev_b32 v{xx}, 16, v{src}
v_and_b32 v{xx+1}, v{vMHi}, v{src}
v_mul_f32 v{xx}, v{vFq}, v{xx}
v_mul_f32 v{xx+1}, v{vFq}, v{xx+1}
v_cvt_pk_bf16_f32 v{xx+1}, v{xx}, v{xx+1}
v_lshlrev_b32 v{xx}, 16, v{xx+1}
v_and_b32 v{xx+1}, v{vMHi}, v{xx+1}
v_mul_f32 v{xx}, 0.15915494, v{xx}
v_mul_f32 v{xx+1}, 0.15915494, v{xx+1}
v_fract_f32 v{xx}, v{xx}
v_fract_f32 v{xx+1}, v{xx+1}
v_cos_f32 v{xx}, v{xx}
v_cos_f32 v{xx+1}, v{xx+1}
s_nop 0
v_cvt_pk_bf16_f32 v{xx}, v{xx}, v{xx+1}
v_lshl_or_b32 v{w_lo}, v{xx}, 16, v{w_lo}
v_bitop3_b32 v{w_hi}, v{xx}, v{vMHi}, v{w_hi} {ANDOR}
""")

    def consume(q, pending):
        s = q & 1
        a(f"s_waitcnt lgkmcnt({pending + 4})")
        cospair(an[s], rec(q * 4), rec(q * 4 + 1), x)
        cospair(an[s] + 1, rec(q * 4 + 2), rec(q * 4 + 3), x + 2)
        a(f"s_waitcnt lgkmcnt({pending})")
        for k in range(4):
            w = rec(q * 4 + k)
            a(f"v_bitop3_b32 v{w+1}, v{vM22}, v{pt[s]+k}, v{w+1} {BFI}")

    for k in range(2):
        a(f"v_and_b32 v{p48+k}, v{vM22}, v{rec(48+k)+1}")
        a(f"ds_add_rtn_u32 v{p48+k}, v{p48+k}, v{vC}")
    issue(0)
    cospair(vA48, rec(48), rec(49), x)
    a("s_waitcnt lgkmcnt(5)")
    for k in range(2):
        a(f"v_bitop3_b32 v{rec(48+k)+1}, v{vM22}, v{p48+k}, v{rec(48+k)+1} {BFI}")
    for q in range(12):
        if q + 1 < 12:
            issue(q + 1)
            consume(q, 5)
        else:
            consume(q, 0)
    vLo, vT24, vMx, vB = vC, vAng, vDma, vFq
    a(f"""
s_min_u32 s{sG}, s{sG}, 20480
v_mov_b32 v{vLo}, 0
v_mul_u32_u24 v{vT24}, 24, v0
v_mov_b32 v{vMx}, 0xffc00000
s_mov_b32 s{sSo}, 0
s_lshl_b32 s{sW}, s{sW}, 6
s_barrier
k1_round:
""")
    st_()
    for sl in range(50):
        w = rec(sl)
        t = T0 + (sl & 3)
        a(f"""
v_sub_u32 v{t}, v{w+1}, v{vLo}
v_and_b32 v{t}, 0x3fffff, v{t}
v_cmpx_gt_u32 vcc, s{sCap8}, v{t}
ds_write_b64 v{t}, v[{w}:{w+1}]
s_mov_b64 exec, -1
""")
    a(f"""
s_min_u32 s{sRem}, s{sG}, {CAPG}
v_add_u32 v{vLo}, {CAP8}, v{vLo}
s_waitcnt lgkmcnt(0)
s_barrier
""")
    st_()
    qb = T0
    for grp in ((0, 1, 2), (3, 4), (5, 6)):
        a(f"s_add_u32 s{sT0}, s{sW}, {grp[0]*1024}")
        a(f"s_cmp_ge_u32 s{sT0}, s{sRem}")
        a(f"s_cbranch_scc1 k1_co_end")
        a(f"v_add_u32 v{vB}, {grp[0]*24576}, v{vT24}")
        for n, it in enumerate(grp):
            o = n * 24576
            q = qb + n * 6
            if it == 6:
                a(f"v_min_u32 v{vB}, {(CAPG-1)*24 - 24576}, v{vB}")
            a(f"ds_read_b64 v[{q}:{q+1}], v{vB} offset:{o}")
            a(f"ds_read_b64 v[{q+2}:{q+3}], v{vB} offset:{o+8}")
            a(f"ds_read_b64 v[{q+4}:{q+5}], v{vB} offset:{o+16}")
        for n, it in enumerate(grp):
            q = qb + n * 6
            a(f"s_sub_i32 s{sT0}, s{sRem}, {it*1024}")
            a(f"s_add_u32 s{sT1}, s{sSo}, {it*16384}")
            a(f"s_waitcnt lgkmcnt({3*(len(grp)-1-n)})")
            a(f"""
v_lshrrev_b32 v{q+5}, 10, v{q+5}
v_bitop3_b32 v{q+5}, v{vMx}, v{q+3}, v{q+5} {BFI}
v_mov_b32 v{q+3}, v{q+4}
v_lshrrev_b32 v{q+5}, 10, v{q+5}
v_bitop3_b32 v{q+1}, v{vMx}, v{q+1}, v{q+5} {BFI}
v_cmpx_gt_i32 vcc, s{sT0}, v0
buffer_store_dwordx4 v[{q}:{q+3}], v{vT16}, s[{S_R}:{S_R+3}], s{sT1} offen {st}
s_mov_b64 exec, -1
""")
    a(f"""
k1_co_end:
s_add_u32 s{sSo}, s{sSo}, {CAPG*16}
s_sub_u32 s{sG}, s{sG}, s{sRem}
s_cmp_eq_u32 s{sG}, 0
s_cbranch_scc1 k1_fin
s_barrier
s_branch k1_round
k1_fin:
""")
    st_()
    if st_.on:
        a("s_waitcnt vmcnt(0)")
    st_()
    st_.flush(T0)
    a("""
k1_done:
s_endpgm
""")
    S_M, S_X = 4, 8
    a(f"""
k1_max:
s_sub_u32 s3, s2, {NT}
s_mul_i32 s{sT0}, s3, {33*16384}
v_add_u32 v{vT16}, s{sT0}, v{vT16}
v_mov_b32 v{vC}, 0
v_mov_b32 v{vAng}, 0
ds_write_b32 v{vC}, v{vC}
s_waitcnt lgkmcnt(0)
""")
    srd_off(a, S_M, P, None, 0, E * 8)
    srd_off(a, S_X, P + 10, None, MAX_OFF, 64)
    srd_off(a, 12, P + 10, None, HF_OFF, 8192)
    a(f"""
v_lshlrev_b32 v{T0}, 3, v0
v_mov_b32 v{T0+2}, 0
v_mov_b32 v{T0+3}, 0
buffer_store_dwordx2 v[{T0+2}:{T0+3}], v{T0}, s[12:15], 0 offen
""")
    a(f"s_mov_b32 s{sT1}, 3")
    a("k1_mxl:")
    for i in range(11):
        a(f"buffer_load_dwordx4 v[{RQ+4*i}:{RQ+4*i+3}], v{vT16}, s[{S_M}:{S_M+3}], 0 offen")
        a(f"v_add_u32 v{vT16}, 16384, v{vT16}")
    for i in range(11):
        a(f"s_waitcnt vmcnt({10-i})")
        for k in range(4):
            a(f"v_and_b32 v{RQ+4*i+k}, 0x7fff7fff, v{RQ+4*i+k}")
            a(f"v_pk_max_u16 v{vAng}, v{vAng}, v{RQ+4*i+k}")
    a(f"""
s_sub_u32 s{sT1}, s{sT1}, 1
s_cmp_lg_u32 s{sT1}, 0
s_cbranch_scc1 k1_mxl
v_lshrrev_b32 v{T0}, 16, v{vAng}
v_and_b32 v{vAng}, 0xffff, v{vAng}
v_max_u32 v{vAng}, v{vAng}, v{T0}
s_barrier
s_nop 1
""")
    scan(a, "v_max_u32", vAng)
    a(f"""
{EXEC63}
ds_max_u32 v{vC}, v{vAng}
s_mov_b64 exec, -1
s_waitcnt lgkmcnt(0)
s_barrier
s_cmp_lg_u32 s{sW}, 0
s_cbranch_scc1 k1_done2
ds_read_b32 v{vAng}, v{vC}
s_lshl_b32 s3, s3, 2
v_mov_b32 v{T0}, s3
s_mov_b64 exec, 1
s_waitcnt lgkmcnt(0)
buffer_store_dword v{vAng}, v{T0}, s[{S_X}:{S_X+3}], 0 offen
k1_done2:
s_endpgm
""")
    return a.s


def gen_k2():
    a = A()
    o = A()
    ld, pst = OPT['k2ld'], OPT['pst']
    abl = OPT['abl']
    ACC = 40960
    ACCB = 50000
    NW = ACC + 2 * ACCB
    S_R, S_T, S_M, S_P = 4, 8, 12, 16
    P = 20
    MXS = 24
    sW, sRb, sCg, sJ, sMo, sMode, sPf, sT0, sT1, sT2, sCarry, sTot, sXw, sCo = range(32, 46)
    sNK = 46
    sA, sB, sC, sD = 48, 50, 52, 54
    MK = (56, 62)
    MN = (68, 74)
    MX = (80, 86)
    TOT = (92, 93)
    sRet = P
    MS = MXS
    vL16, vBase, vT16, vLW, vMagic, vMHi, vSt = 1, 2, 3, 4, 5, 6, 7
    HR = 8
    vC0 = 10
    vX0 = 12
    MP = 14
    GA = 24
    PT = 30
    HQ = 34
    XT = 42
    RS = 46
    GX = 50
    FT = 56
    EN = 64
    RC = (88, 92)
    RXW = (96, 100)
    TH = 104
    MP2 = 108
    MPS = (MP, MP2)
    AD = 118
    vO16, vD, vM = 121, 122, 124
    NVG = 128
    sTN = 100
    sWk = 101
    sMsc = 3
    TID = OPT['tid'] == '1'

    st_ = Stamper(a, 1, 96, P + 2, vSt, S_M if OPT['fuse'] == '1' else S_R)
    st_.start()
    a(f"""
s_cmp_ge_u32 s2, 256
s_cbranch_scc1 k2_done
s_load_dwordx2 s[{P}:{P+1}], s[0:1], {KA['m']}
s_load_dwordx2 s[{P+2}:{P+3}], s[0:1], {KA['ws']}
v_lshrrev_b32 v{FT}, 6, v0
v_and_b32 v{FT+1}, 63, v0
v_readfirstlane_b32 s{sW}, v{FT}
v_lshlrev_b32 v{vT16}, 4, v0
v_lshlrev_b32 v{vL16}, 4, v{FT+1}
s_and_b32 s{sT0}, s2, 7
s_lshr_b32 s{sCg}, s{sT0}, 1
s_lshr_b32 s{sRb}, s2, 3
s_lshl_b32 s{sRb}, s{sRb}, 1
s_and_b32 s{sT0}, s2, 1
s_add_u32 s{sRb}, s{sRb}, s{sT0}
s_lshl_b32 s{sCo}, s{sRb}, 2
s_add_u32 s{sCo}, s{sCo}, s{sCg}
v_lshrrev_b32 v{vLW}, 1, v{vT16}
v_add_u32 v{vLW}, 32768, v{vLW}
v_min_u32 v{vLW}, {CB*8-8}, v{vLW}
s_mul_i32 s{sMo}, s{sCg}, {NPH*CB*8}
s_mov_b32 s{sT2}, 0xffff0000
s_mov_b32 s{sT1}, {TGB}
v_mov_b32 v{vMHi}, 0xffff0000
v_mul_u32_u24 v{FT+2}, 43, v{FT+1}
v_lshrrev_b32 v{FT+2}, 7, v{FT+2}
v_mul_u32_u24 v{FT+3}, 3, v{FT+2}
v_sub_u32 v{FT+3}, v{FT+1}, v{FT+3}
s_cmp_lt_u32 s{sW}, 4
s_cbranch_scc1 k2_rl0
s_sub_u32 s{sT0}, s{sW}, 4
s_mul_i32 s{sT0}, s{sT0}, 21
v_add_u32 v{FT+2}, s{sT0}, v{FT+2}
s_branch k2_rl1
k2_rl0:
s_mul_i32 s{sT0}, s{sW}, 63
v_add_u32 v{FT+2}, s{sT0}, v{FT+1}
v_mov_b32 v{FT+3}, 3
k2_rl1:
s_mul_i32 s{sT0}, s{sCo}, {NPH*4}
v_mul_u32_u24 v{FT}, {TABS}, v{FT+2}
v_add_u32 v{FT}, s{sT0}, v{FT}
v_writelane_b32 v{FT}, s{sT2}, 63
v_mul_lo_u32 v{vBase}, v{FT+2}, s{sT1}
v_lshl_add_u32 v{vBase}, v{FT+3}, 4, v{vBase}
v_mul_u32_u24 v{TH}, 3, v{FT+3}
v_add_u32 v{TH}, 1, v{TH}
v_lshlrev_b32 v{TH}, 19, v{TH}
v_add_u32 v{TH+1}, 0x80000, v{TH}
v_add_u32 v{TH+2}, 0x100000, v{TH}
s_waitcnt lgkmcnt(0)
""")
    srd_off(a, S_R, P + 2, None, REC_OFF, NT * TGB)
    srd_off(a, S_T, P + 2, None, TAB_OFF, NT * TABS)
    srd_off(a, S_M, P, None, 0, E * 8)

    def m_load(MP=MP, a=a):
        if TID:
            for p in 'bca':
                m_piece(MP, p)
            return
        if 'm' in abl:
            for i in range(3):
                a(f"buffer_load_dword v{MP+i}, v{vL16}, s[{S_M}:{S_M+3}], 0 offen")
            return
        a(f"""
s_add_u32 s{sT0}, s{sMo}, 16384
buffer_load_dwordx4 v[{MP}:{MP+3}], v{vT16}, s[{S_M}:{S_M+3}], s{sMo} offen
buffer_load_dwordx4 v[{MP+4}:{MP+7}], v{vT16}, s[{S_M}:{S_M+3}], s{sT0} offen
buffer_load_dwordx2 v[{MP+8}:{MP+9}], v{vLW}, s[{S_M}:{S_M+3}], s{sMo} offen
s_add_u32 s{sMo}, s{sMo}, {CB*8}
s_min_u32 s{sMo}, s{sMo}, {E*8 - CB*8}
""")

    def m_piece(MP, p, a=a):
        if TID:
            for i in {'b': (0, 1, 2), 'c': (3, 4, 5), 'a': (6, 7, 8, 9)}[p]:
                a(f"buffer_load_dword v{MP+i}, v{vLW}, s[{S_M}:{S_M+3}], 0 offen offset:{256*i}")
            if p == 'a':
                a(f"v_add_u32 v{vLW}, {CB*8}, v{vLW}")
            return
        if p == 'b':
            a(f"s_add_u32 s{sT0}, s{sMo}, 16384")
            a(f"buffer_load_dwordx4 v[{MP+4}:{MP+7}], v{vT16}, s[{S_M}:{S_M+3}], s{sT0} offen")
        elif p == 'c':
            a(f"buffer_load_dwordx2 v[{MP+8}:{MP+9}], v{vLW}, s[{S_M}:{S_M+3}], s{sMo} offen")
        else:
            a(f"""
buffer_load_dwordx4 v[{MP}:{MP+3}], v{vT16}, s[{S_M}:{S_M+3}], s{sMo} offen
s_add_u32 s{sMo}, s{sMo}, {CB*8}
s_min_u32 s{sMo}, s{sMo}, {E*8 - CB*8}
""")

    def m_write(MP=MP):
        if TID:
            a(f"s_mov_b32 m0, s{sWk}")
            a("s_nop 0")
            for i in range(10):
                a(f"ds_write_addtid_b32 v{MP+i} offset:{256*i}")
            return
        if 'w' in abl:
            return
        a(f"""
ds_write_b128 v{vT16}, v[{MP}:{MP+3}]
ds_write_b128 v{vT16}, v[{MP+4}:{MP+7}] offset:16384
ds_write_b64 v{vLW}, v[{MP+8}:{MP+9}]
""")

    def batch(bank):
        for i in range(4):
            a(f"buffer_load_dwordx4 v[{bank+4*i}:{bank+4*i+3}], v{vL16 if 'r' in abl else vBase}, s[{S_R}:{S_R+3}], 0 offen offset:{16*i} {ld}")
        a(f"v_add_u32 v{vBase}, 64, v{vBase}")

    def common_init():
        z = PT
        a(f"""
s_add_u32 s{sA}, s{P+2}, {MAX_OFF}
s_addc_u32 s{sA+1}, s{P+3}, 0
s_load_dwordx8 s[{MXS}:{MXS+7}], s[{sA}:{sA+1}], 0
v_mov_b32 v{z}, 0
v_mov_b32 v{z+1}, 0
v_mov_b32 v{z+2}, 0
v_mov_b32 v{z+3}, 0
v_add_u32 v{FT+2}, {ACC}, v{vT16}
v_add_u32 v{FT+3}, {ACC+65536}, v{vT16}
ds_write_b128 v{FT+2}, v[{z}:{z+3}]
ds_write_b128 v{FT+2}, v[{z}:{z+3}] offset:16384
ds_write_b128 v{FT+2}, v[{z}:{z+3}] offset:32768
ds_write_b128 v{FT+2}, v[{z}:{z+3}] offset:49152
ds_write_b128 v{FT+3}, v[{z}:{z+3}]
ds_write_b128 v{FT+3}, v[{z}:{z+3}] offset:16384
v_cmp_gt_u32 vcc, {6250-6144}, v0
s_and_saveexec_b64 s[{sB}:{sB+1}], vcc
ds_write_b128 v{FT+3}, v[{z}:{z+3}] offset:32768
s_mov_b64 exec, s[{sB}:{sB+1}]
s_mov_b64 s[{MK[1]+2}:{MK[1]+3}], 0
s_mov_b64 s[{MK[1]+4}:{MK[1]+5}], 0
v_mov_b32 v{HR}, {ACC}
v_mov_b32 v{HR+1}, {ACC}
s_mov_b32 s{sJ}, 0
""")
        st_.init()

    AK = (0, 2, 3)

    def decode(rc, t, a=a):
        a(f"""
v_alignbit_b32 v{t}, v{rc}, v{rc+1}, 19
v_lshlrev_b32 v{t+1}, 10, v{rc+1}
v_and_b32 v{t}, 0xfff8, v{t}
v_lshlrev_b32 v{t+2}, 20, v{rc+1}
v_alignbit_b32 v{t+1}, v{rc+2}, v{t+1}, 19
v_alignbit_b32 v{t+2}, v{rc+3}, v{t+2}, 19
v_and_b32 v{t+1}, 0xfff8, v{t+1}
v_and_b32 v{t+2}, 0xfff8, v{t+2}
""")

    def gissue(mk, t, ga, a=a):
        a(f"""
s_mov_b64 exec, s[{mk}:{mk+1}]
ds_read_b64 v[{ga}:{ga+1}], v{t}
s_mov_b64 exec, s[{mk+2}:{mk+3}]
ds_read_b64 v[{ga+2}:{ga+3}], v{t+1}
s_mov_b64 exec, s[{mk+4}:{mk+5}]
ds_read_b64 v[{ga+4}:{ga+5}], v{t+2}
""")

    def gathers(mk, rc, ga, a=a):
        decode(rc, PT, a)
        gissue(mk, PT, ga, a)

    def qcalc(t, g, ak, row, a=a):
        c = row
        a(f"""
v_and_b32 v{c}, v{vMHi}, v{ak}
v_lshlrev_b32 v{t}, 16, v{g}
v_and_b32 v{t+1}, v{vMHi}, v{g}
v_lshlrev_b32 v{t+2}, 16, v{g+1}
v_and_b32 v{t+3}, v{vMHi}, v{g+1}
v_fma_f32 v{t}, v{t}, v{c}, v{vMagic}
v_fma_f32 v{t+1}, v{t+1}, v{c}, v{vMagic}
v_fma_f32 v{t+2}, v{t+2}, v{c}, v{vMagic}
v_fma_f32 v{t+3}, v{t+3}, v{c}, v{vMagic}
v_and_b32 v{row}, 0xfff8, v{ak}
v_lshl_add_u64 v[{t}:{t+1}], v[{t}:{t+1}], 0, s[{sNK}:{sNK+1}]
v_add_u32 v{row}, {ACC}, v{row}
v_lshl_add_u64 v[{t+2}:{t+3}], v[{t+2}:{t+3}], 0, s[{sNK}:{sNK+1}]
""")

    def adds(mkp, row, t, a=a):
        a(f"""
s_mov_b64 exec, {"1" if 'a' in abl else "s[%d:%d]" % (mkp, mkp+1)}
ds_add_u64 v{row}, v[{t}:{t+1}]
ds_add_u64 v{row}, v[{t+2}:{t+3}] offset:{ACCB}
""")

    def held(h):
        adds(MK[h] + 4, HR + 1, HQ + 4)
        a("s_mov_b64 exec, -1")

    def f32_one(mkp, g, ak, a):
        t = XT
        a(f"""
v_and_b32 v{vX0}, v{vMHi}, v{ak}
v_and_b32 v{vX0+1}, 0xfff8, v{ak}
v_add_u32 v{vX0+1}, {ACC}, v{vX0+1}
v_lshlrev_b32 v{t}, 16, v{g}
v_and_b32 v{t+1}, v{vMHi}, v{g}
v_lshlrev_b32 v{t+2}, 16, v{g+1}
v_and_b32 v{t+3}, v{vMHi}, v{g+1}
v_mul_f32 v{t}, v{t}, v{vX0}
v_mul_f32 v{t+1}, v{t+1}, v{vX0}
v_mul_f32 v{t+2}, v{t+2}, v{vX0}
v_mul_f32 v{t+3}, v{t+3}, v{vX0}
s_mov_b64 exec, s[{mkp}:{mkp+1}]
ds_add_f32 v{vX0+1}, v{t}
ds_add_f32 v{vX0+1}, v{t+1} offset:4
ds_add_f32 v{vX0+1}, v{t+2} offset:{ACCB}
ds_add_f32 v{vX0+1}, v{t+3} offset:{ACCB+4}
s_mov_b64 exec, -1
s_waitcnt lgkmcnt(0)
""")

    def accum_main(h, rc, tag):
        mk = MK[h]
        a(f"s_cmp_lg_u32 s{sMode}, 0")
        a(f"s_cbranch_scc1 k2_accf_{tag}")
        qcalc(PT, GA, rc + AK[0], vC0)
        adds(mk, vC0, PT)
        a("s_mov_b64 exec, -1")
        m_piece(MPS[h ^ 1], 'b')
        qcalc(HQ, GA + 2, rc + AK[1], HR)
        adds(mk + 2, HR, HQ)
        a("s_mov_b64 exec, -1")
        m_piece(MPS[h ^ 1], 'c')
        qcalc(HQ + 4, GA + 4, rc + AK[2], HR + 1)
        a(f"k2_acce_{tag}:")
        o(f"k2_accf_{tag}:")
        m_piece(MPS[h ^ 1], 'b', o)
        m_piece(MPS[h ^ 1], 'c', o)
        for k in range(3):
            f32_one(mk + 2 * k, GA + 2 * k, rc + AK[k], o)
        o(f"""
s_mov_b64 s[{mk+2}:{mk+3}], 0
s_mov_b64 s[{mk+4}:{mk+5}], 0
s_branch k2_acce_{tag}
""")

    def window_now(mk, rc, tag):
        gathers(mk, rc, GX, o)
        o(f"""
s_mov_b64 exec, -1
s_cmp_lg_u32 s{sMode}, 0
s_waitcnt lgkmcnt(0)
s_cbranch_scc1 k2_wf_{tag}
""")
        for k in range(3):
            qcalc(XT, GX + 2 * k, rc + AK[k], vX0, o)
            adds(mk + 2 * k, vX0, XT, o)
            o("s_mov_b64 exec, -1")
        o(f"s_branch k2_we_{tag}")
        o(f"k2_wf_{tag}:")
        for k in range(3):
            f32_one(mk + 2 * k, GX + 2 * k, rc + AK[k], o)
        o(f"k2_we_{tag}:")

    def scale_setup():
        a(f"""
v_mov_b32 v{XT}, {NW}
ds_read_b128 v[{XT}:{XT+3}], v{XT}
s_max_u32 s{MXS}, s{MXS}, s{MXS+1}
s_max_u32 s{MXS+2}, s{MXS+2}, s{MXS+3}
s_max_u32 s{MXS+4}, s{MXS+4}, s{MXS+5}
s_max_u32 s{MXS}, s{MXS}, s{MXS+2}
s_max_u32 s{MXS}, s{MXS}, s{MXS+4}
s_lshl_b32 s{sT2}, s{MXS}, 16
s_waitcnt lgkmcnt(0)
v_add_u32 v{XT}, v{XT}, v{XT+1}
v_add_u32 v{XT+2}, v{XT+2}, v{XT+3}
v_add_u32 v{XT}, v{XT}, v{XT+2}
v_lshrrev_b32 v{XT}, 4, v{XT}
v_mul_u32_u24 v{XT}, 3, v{XT}
v_max_u32 v{XT}, 1024, v{XT}
s_nop 0
v_readfirstlane_b32 s{sT0}, v{XT}
v_cvt_f32_u32 v{XT}, v{XT}
v_mul_f32 v{XT}, s{sT2}, v{XT}
v_mul_f32 v{XT}, 0x3f802000, v{XT}
s_nop 0
v_readfirstlane_b32 s{sT1}, v{XT}
s_mov_b32 s{sMode}, 0
s_cmp_gt_u32 s{sT0}, 65536
s_cselect_b32 s{sMode}, 1, s{sMode}
s_cmp_gt_u32 s{sT2}, 0x70000000
s_cselect_b32 s{sMode}, 1, s{sMode}
s_cmp_lt_u32 s{sT2}, 0x18000000
s_cselect_b32 s{sMode}, 1, s{sMode}
s_and_b32 s{sT1}, s{sT1}, 0x7f800000
s_and_b32 s{sT2}, s{sT2}, 0x7f800000
s_sub_u32 s{sPf}, s{sT1}, s{sT2}
s_add_u32 s{sMsc}, s{sT2}, {2 << 23}
s_add_u32 s{sPf}, s{sPf}, {(125 - 30) << 23}
s_sub_u32 s{sT1}, s{sT1}, {(7 << 23) - 0x400000}
v_mov_b32 v{vMagic}, s{sT1}
s_sub_u32 s{sNK}, 0, s{sT1}
s_not_b32 s{sNK+1}, s{sT1}
""")

    def early():
        if OPT['fuse'] != '1':
            return
        QP = 782
        a(f"""
s_load_dwordx2 s[{S_P}:{S_P+1}], s[0:1], {KA['dist']}
s_load_dwordx2 s[{sA}:{sA+1}], s[0:1], {KA['centers']}
s_load_dwordx4 s[{MX[0]}:{MX[0]+3}], s[0:1], {KA['w_rbf']}
s_load_dwordx4 s[{MX[0]+4}:{MX[0]+7}], s[0:1], {KA['w_down']}
s_mul_i32 s{sT1}, s{sRb}, {RB*8}
s_mul_i32 s{sT2}, s{sCg}, {QP*16}
s_add_u32 s{sT1}, s{sT1}, s{sT2}
v_add_u32 v{vO16}, s{sT1}, v{vT16}
s_sub_u32 s{sT2}, {RB*8}, s{sT2}
s_min_u32 s{sT2}, s{sT2}, {QP*16}
v_cmp_gt_u32 s[{sB}:{sB+1}], s{sT2}, v{vT16}
s_mov_b32 s{S_P+2}, {E*2}
s_mov_b32 s{S_P+3}, 0x00020000
v_cndmask_b32 v{vO16}, v{vMHi}, v{vO16}, s[{sB}:{sB+1}]
v_lshrrev_b32 v{vD}, 2, v{vO16}
s_waitcnt lgkmcnt(0)
s_load_dword s{sT0}, s[{sA}:{sA+1}], 0
s_load_dword s{sT1}, s[{MX[0]}:{MX[0]+1}], 0
s_load_dword s{sT2}, s[{MX[0]+2}:{MX[0]+3}], 0
s_load_dword s{sCarry}, s[{MX[0]+4}:{MX[0]+5}], 0
s_load_dword s{sTot}, s[{MX[0]+6}:{MX[0]+7}], 0
buffer_load_dword v{vD}, v{vD}, s[{S_P}:{S_P+3}], 0 offen
buffer_load_dwordx4 v[{vM}:{vM+3}], v{vO16}, s[{S_M}:{S_M+3}], 0 offen
""")

    def wait_bar(mkp, n, tag):
        a(f"""
s_cmp_eq_u64 s[{mkp}:{mkp+1}], 0
s_cbranch_scc1 k2_wz_{tag}
k2_w_{tag}:
s_waitcnt lgkmcnt({n})
s_barrier
""")
        o(f"""
k2_wz_{tag}:
s_waitcnt lgkmcnt(0)
s_branch k2_w_{tag}
""")

    if TID:
        a(f"""
s_mul_i32 s{sWk}, s{sW}, 2560
s_add_u32 s{sT0}, s{sWk}, s{sMo}
v_lshrrev_b32 v{vLW}, 2, v{vL16}
v_add_u32 v{vLW}, s{sT0}, v{vLW}
""")
    a(f"buffer_load_dwordx4 v[{EN}:{EN+3}], v{FT}, s[{S_T}:{S_T+3}], 0 offen")
    m_load()
    a(f"buffer_load_dword v{EN+20}, v{FT}, s[{S_T}:{S_T+3}], 0 offen offset:80")
    for i in range(1, 5):
        a(f"buffer_load_dwordx4 v[{EN+4*i}:{EN+4*i+3}], v{FT}, s[{S_T}:{S_T+3}], 0 offen offset:{16*i}")
    a(f"v_mov_b32 v{EN+21}, 0")
    a(f"v_mov_b32 v{EN+22}, 0")
    a(f"v_mov_b32 v{EN+23}, 0")
    early()
    common_init()
    NE = 2 if OPT['fuse'] == '1' else 0
    if NE:
        a("s_waitcnt lgkmcnt(0)")
    a(f"""
s_cmp_lt_u32 s{sW}, 4
s_cbranch_scc1 k2_rem
""")
    def d_load(e, rc):
        a(f"""
v_and_b32 v{FT}, 0x7fff0, v{e}
v_add_u32 v{FT}, v{FT}, v{vBase}
buffer_load_dwordx4 v[{rc}:{rc+3}], v{vL16 if 'r' in abl else FT}, s[{S_R}:{S_R+3}], 0 offen {ld}
""")

    NM = 10 if TID else 3
    a(f"s_waitcnt vmcnt({5+NM+NE})")
    d_load(EN, RC[0])
    m_load(MP2)
    a(f"s_waitcnt vmcnt({6+NM+NE})")
    m_write()
    m_piece(MP, 'b')
    m_piece(MP, 'c')
    d_load(EN + 1, RC[1])
    a("s_waitcnt lgkmcnt(0)")
    a("s_barrier")
    scale_setup()
    def d_prep(h, off):
        mk = MK[h]
        a(f"""
s_set_gpr_idx_on s{sJ}, 0x1
v_mov_b32 v{FT+1}, v{EN+off}
v_mov_b32 v{FT+2}, v{EN+off+2}
s_set_gpr_idx_off
v_cmp_le_u32 s[{mk}:{mk+1}], v{TH}, v{FT+1}
v_cmp_le_u32 s[{mk+2}:{mk+3}], v{TH+1}, v{FT+1}
v_cmp_le_u32 s[{mk+4}:{mk+5}], v{TH+2}, v{FT+1}
s_waitcnt vmcnt({NM+1})
""")
        decode(RC[h], AD)

    d_prep(0, 0)
    a("k2_dloop:")
    for h in range(2):
        mk = MK[h]
        gissue(mk, AD, GA)
        held(h ^ 1)
        m_piece(MPS[h], 'a')
        wait_bar(MK[h ^ 1] + 4, 2, f"da{h}")
        a(f"s_waitcnt vmcnt({NM+1})")
        m_write(MPS[h ^ 1])
        accum_main(h, RC[h], f"d{h}")
        d_load(FT + 2, RC[h])
        d_prep(h ^ 1, h + 1)
        if h == 1:
            a(f"s_add_u32 s{sJ}, s{sJ}, 2")
        wait_bar(mk + 2, 4, f"db{h}")
    a(f"""
s_cmp_lt_u32 s{sJ}, {NPH}
s_cbranch_scc1 k2_dloop
s_branch k2_epi
""")

    nr, inc, pre, V, tg, val, e0 = FT, FT + 1, FT + 2, FT + 3, FT + 4, FT + 5, FT + 6
    dpp = "row_mask:0xf bank_mask:0xf"

    def flat_scan(ea, eb, stot, a=a):
        a(f"""
v_and_b32 v{nr}, 0x7fff0, v{eb}
v_and_b32 v{pre}, 0x7fff0, v{ea}
v_sub_u32 v{nr}, v{nr}, v{pre}
v_and_b32 v{V}, 0x7fff3, v{ea}
v_add_u32 v{nr}, -48, v{nr}
v_max_i32 v{nr}, 0, v{nr}
v_mov_b32 v{inc}, v{nr}
v_add_u32 v{V}, v{V}, v{vBase}
v_cmp_ne_u32 s[{sD}:{sD+1}], 0, v{nr}
""")
        scan(a, "v_add_u32", inc)
        a(f"""
v_sub_u32 v{pre}, v{inc}, v{nr}
v_readlane_b32 s{stot}, v{inc}, 63
v_sub_u32 v{V}, v{V}, v{pre}
""")

    def flat_push(swb, a=a):
        a(f"""
s_add_u32 s{sT1}, {swb}, 1024
v_cmp_ge_u32 s[{sA}:{sA+1}], {swb}, v{pre}
v_subrev_u32 v{tg}, {swb}, v{pre}
v_cmp_eq_u32 s[{sC}:{sC+1}], s{sT1}, v{inc}
s_bcnt1_i32_b64 s{sT0}, s[{sA}:{sA+1}]
v_add_u32 v{val}, -16, v{tg}
s_sub_u32 s{sT0}, s{sT0}, 1
v_cmp_gt_u32 vcc, 1008, v{val}
v_readlane_b32 s{sCarry}, v{V}, s{sT0}
v_lshrrev_b32 v{tg}, 2, v{tg}
s_and_b64 s[{sB}:{sB+1}], vcc, s[{sD}:{sD+1}]
v_cndmask_b32 v{tg}, 0, v{tg}, s[{sB}:{sB+1}]
v_cndmask_b32 v{val}, 0, v{V}, s[{sB}:{sB+1}]
ds_permute_b32 v{val}, v{tg}, v{val}
""")

    def flat_fin(swb, stot, mk, rc, a=a):
        a(f"""
v_cmp_ne_u32 s[{sA}:{sA+1}], 0, v{val}
v_add_u32 v{tg}, {swb}, v{vL16}
s_cmp_lg_u64 s[{sC}:{sC+1}], 0
v_max_u32_dpp v{val}, v{val}, v{val} row_shr:1 {dpp}
v_cmp_gt_u32 s[{mk}:{mk+1}], s{stot}, v{tg}
s_cselect_b32 s{sC+1}, 0x80000000, 0
v_max_u32_dpp v{val}, v{val}, v{val} row_shr:2 {dpp}
s_mov_b32 s{sC}, 0
s_lshr_b64 s[{sA}:{sA+1}], s[{sA}:{sA+1}], 1
v_max_u32_dpp v{val}, v{val}, v{val} row_shr:4 {dpp}
s_or_b64 s[{sC}:{sC+1}], s[{sC}:{sC+1}], s[{sA}:{sA+1}]
s_lshr_b64 s[{sA}:{sA+1}], s[{mk}:{mk+1}], 1
v_max_u32_dpp v{val}, v{val}, v{val} row_shr:8 {dpp}
s_andn2_b64 s[{sA}:{sA+1}], s[{mk}:{mk+1}], s[{sA}:{sA+1}]
s_bitset0_b64 s[{sA}:{sA+1}], 63
v_max_u32_dpp v{val}, v{val}, v{val} row_bcast:15 row_mask:0xa bank_mask:0xf
s_or_b64 s[{sC}:{sC+1}], s[{sC}:{sC+1}], s[{sA}:{sA+1}]
s_nop 0
v_max_u32_dpp v{val}, v{val}, v{val} row_bcast:31 row_mask:0xc bank_mask:0xf
v_max_u32 v{val}, s{sCarry}, v{val}
v_add_u32 v{tg}, v{tg}, v{val}
v_and_b32 v{val}, 3, v{val}
v_and_b32 v{tg}, -16, v{tg}
v_cmp_eq_u32 s[{sA}:{sA+1}], 2, v{val}
v_cmp_ne_u32 s[{sB}:{sB+1}], 0, v{val}
v_cndmask_b32 v{tg}, v{vMHi}, v{tg}, s[{mk}:{mk+1}]
buffer_load_dwordx4 v[{rc}:{rc+3}], v{vL16 if 'r' in abl else tg}, s[{S_R}:{S_R+3}], 0 offen {ld}
s_and_b64 s[{sA}:{sA+1}], s[{sA}:{sA+1}], s[{sC}:{sC+1}]
s_and_b64 s[{sB}:{sB+1}], s[{sB}:{sB+1}], s[{sC}:{sC+1}]
s_andn2_b64 s[{mk+2}:{mk+3}], s[{mk}:{mk+1}], s[{sA}:{sA+1}]
s_andn2_b64 s[{mk+4}:{mk+5}], s[{mk}:{mk+1}], s[{sB}:{sB+1}]
""")

    def second(h, tag):
        a(f"""
s_cmp_gt_u32 s{TOT[h]}, 1024
s_cbranch_scc1 k2_sy_{tag}
k2_ns_{tag}:
""")
        o(f"k2_sy_{tag}:")
        o(f"s_movk_i32 s{sXw}, 1024")
        flat_push(f"s{sXw}", o)
        o("s_waitcnt lgkmcnt(0)")
        flat_fin(f"s{sXw}", TOT[h], MX[h], RXW[h], o)
        o(f"s_branch k2_ns_{tag}")

    a("k2_rem:")
    a("s_setprio 1")
    a(f"s_waitcnt vmcnt({5+NM+NE})")
    for h in range(2):
        flat_scan(EN + h, EN + h + 1, TOT[h])
        flat_push("0")
        a("s_waitcnt lgkmcnt(0)")
        flat_fin("0", TOT[h], MN[h], RC[h])
        second(h, f"p{h}")
        if h == 0:
            m_load(MP2)
            a(f"s_waitcnt vmcnt({5+NM+NE})")
            m_write()
            m_piece(MP, 'b')
            m_piece(MP, 'c')
            a(f"""
v_and_b32 v{FT}, 0x7fff0, v{EN+20}
v_and_b32 v{FT+1}, 0x7fff0, v{EN}
v_sub_u32 v{FT}, v{FT}, v{FT+1}
s_lshl_b32 s{sT0}, s{sW}, 2
s_add_u32 s{sT0}, s{sT0}, {NW}
""")
            scan(a, "v_add_u32", FT)
            a(f"""
v_mov_b32 v{FT+3}, s{sT0}
{EXEC63}
ds_write_b32 v{FT+3}, v{FT}
s_mov_b64 exec, -1
s_waitcnt lgkmcnt(0)
s_barrier
""")
            st_()
    scale_setup()
    st_()
    def r_prep(h, off):
        mk = MK[h]
        a(f"""
s_set_gpr_idx_on s{sJ}, 0x1
v_mov_b32 v{e0}, v{EN+off+2}
v_mov_b32 v{e0+1}, v{EN+off+3}
s_set_gpr_idx_off
""")
        flat_scan(e0, e0 + 1, sTN)
        a(f"s_waitcnt vmcnt({NM+1})")
        for i in range(0, 6, 2):
            a(f"s_mov_b64 s[{mk+i}:{mk+i+1}], s[{MN[h]+i}:{MN[h]+i+1}]")
        decode(RC[h], AD)

    r_prep(0, 0)
    a("k2_rloop:")
    for h in range(2):
        mk = MK[h]
        gissue(mk, AD, GA)
        held(h ^ 1)
        a(f"""
s_cmp_gt_u32 s{TOT[h]}, 1024
s_cbranch_scc1 k2_xy_{h}
k2_nx_{h}:
""")
        o(f"k2_xy_{h}:")
        window_now(MX[h], RXW[h], f"x{h}")
        o(f"""
s_waitcnt lgkmcnt(0)
s_cmp_le_u32 s{TOT[h]}, 2048
s_cbranch_scc1 k2_nx_{h}
s_movk_i32 s{sXw}, 2048
s_add_u32 s{sT2}, s{sJ}, {h}
s_call_b64 s[{sRet}:{sRet+1}], k2_slow
s_waitcnt lgkmcnt(0)
s_set_gpr_idx_on s{sJ}, 0x1
v_mov_b32 v{e0}, v{EN+h+2}
v_mov_b32 v{e0+1}, v{EN+h+3}
s_set_gpr_idx_off
""")
        flat_scan(e0, e0 + 1, sTN, o)
        o(f"s_branch k2_nx_{h}")
        flat_push("0")
        m_piece(MPS[h], 'a')
        a(f"s_mov_b32 s{TOT[h]}, s{sTN}")
        a("s_waitcnt lgkmcnt(0)")
        a("s_barrier")
        a(f"s_waitcnt vmcnt({NM+1})")
        m_write(MPS[h ^ 1])
        accum_main(h, RC[h], f"r{h}")
        flat_fin("0", TOT[h], MN[h], RC[h])
        second(h, f"l{h}")
        r_prep(h ^ 1, h + 1)
        if h == 1:
            a(f"s_add_u32 s{sJ}, s{sJ}, 2")
        wait_bar(mk + 2, 4, f"rb{h}")
    a(f"""
s_cmp_lt_u32 s{sJ}, {NPH}
s_cbranch_scc1 k2_rloop
""")
    def fused_epilogue():
        QP = 782
        EB = 64
        S_D, S_O, S_G = 4, 8, 24
        WR, WSB, WD, WU = 48, 64, 80, 88
        CE = 28
        CF = 80
        PP, PP2 = 20, 42
        tS = 40
        sSc, sFl = 44, 45
        vT = 9
        R = (16, 24)
        G = (32, 36)
        H = (40, 44)
        RP = (48, 52)
        S = (16, 20)
        AG = (24, 28)
        PL = 96
        a("k2_epi:")
        held(1)
        a(f"""
s_load_dwordx2 s[{S_O}:{S_O+1}], s[0:1], {KA['out']}
s_load_dwordx2 s[{PP}:{PP+1}], s[0:1], {KA['centers']}
s_load_dwordx4 s[{WU}:{WU+3}], s[0:1], {KA['w_rbf']}
s_load_dwordx4 s[{WU+4}:{WU+7}], s[0:1], {KA['w_down']}
v_add_u32 v{vLW}, {ACC}, v{vT16}
v_add_u32 v{vBase}, {ACC+ACCB}, v{vT16}
v_mov_b32 v{vMagic}, s{sPf}
s_mul_i32 s{sT0}, s{sCg}, {E*8}
s_mul_i32 s{sT1}, s{sRb}, {RB*8}
s_add_u32 s{sT0}, s{sT0}, s{sT1}
v_cmp_ne_u32 s[{sNK}:{sNK+1}], v{vO16}, v{vMHi}
s_mov_b32 s{sJ}, s{sT0}
""")
        srd_off(a, S_P, P + 2, sT0, PART_OFF, RB * 8)
        srd_off(a, S_G, P + 2, None, HF_OFF, 8192)
        a(f"""
s_waitcnt vmcnt(0) lgkmcnt(0)
s_load_dwordx4 s[{CE}:{CE+3}], s[{PP}:{PP+1}], 0
s_load_dwordx16 s[{WR}:{WR+15}], s[{WU}:{WU+1}], 0
s_load_dwordx16 s[{WSB}:{WSB+15}], s[{WU+2}:{WU+3}], 0
s_mov_b64 s[{PP}:{PP+1}], s[{WU+4}:{WU+5}]
s_mov_b64 s[{PP2}:{PP2+1}], s[{WU+6}:{WU+7}]
s_barrier
""")
        st_()
        for it in range(4):
            b = EB + it * 8
            if it == 3:
                a(f"v_min_u32 v{vLW}, {ACC + 52*16}, v{vLW}")
                a(f"v_min_u32 v{vBase}, {ACC + ACCB + 52*16}, v{vBase}")
            a(f"ds_read_b128 v[{b}:{b+3}], v{vLW} offset:{it*16384}")
            a(f"ds_read_b128 v[{b+4}:{b+7}], v{vBase} offset:{it*16384}")
        a(f"""
s_mov_b32 s{S_O+2}, {E*8}
s_mov_b32 s{S_O+3}, 0x00020000
s_cmp_lg_u32 s{sMode}, 0
s_waitcnt lgkmcnt(0)
s_cbranch_scc1 k2_epf
""")
        for it in range(4):
            b = EB + it * 8
            for p in range(4):
                a(f"v_ashrrev_i32 v{FT+2+p}, 31, v{b+2*p}")
            for p in range(4):
                a(f"v_sub_u32 v{b+2*p+1}, v{b+2*p+1}, v{FT+2+p}")
            for p in range(8):
                a(f"v_cvt_f32_i32 v{b+p}, v{b+p}")
            for p in range(8):
                a(f"v_mul_f32 v{b+p}, v{vMagic}, v{b+p}")
            a(f"""
v_cvt_pk_f16_f32 v{b}, v{b}, v{b+1}
v_cvt_pk_f16_f32 v{b+1}, v{b+4}, v{b+5}
v_cvt_pk_f16_f32 v{b+2}, v{b+2}, v{b+3}
v_cvt_pk_f16_f32 v{b+3}, v{b+6}, v{b+7}
buffer_store_dwordx4 v[{b}:{b+3}], v{vT16}, s[{S_P}:{S_P+3}], 0 offen sc1
""")
            if it < 3:
                a(f"v_add_u32 v{vT16}, 16384, v{vT16}")
        a("k2_epj:")
        o("k2_epf:")
        o(f"s_lshl_b32 s{sT0}, s{sJ}, 1")
        srd_off(o, S_P, P + 2, sT0, P32_OFF, RB * 16)
        o(f"v_lshlrev_b32 v{vT16}, 1, v{vT16}")
        for it in range(4):
            b = EB + it * 8
            o(f"""
buffer_store_dwordx2 v[{b}:{b+1}], v{vT16}, s[{S_P}:{S_P+3}], 0 offen sc1
buffer_store_dwordx2 v[{b+4}:{b+5}], v{vT16}, s[{S_P}:{S_P+3}], 0 offen offset:8 sc1
buffer_store_dwordx2 v[{b+2}:{b+3}], v{vT16}, s[{S_P}:{S_P+3}], 0 offen offset:16 sc1
buffer_store_dwordx2 v[{b+6}:{b+7}], v{vT16}, s[{S_P}:{S_P+3}], 0 offen offset:24 sc1
v_add_u32 v{vT16}, 32768, v{vT16}
""")
        o("s_waitcnt vmcnt(0)")
        o("s_branch k2_epj")

        def rnd(x):
            a(f"v_cvt_pk_bf16_f32 v{x+1}, v{x}, v{x+1}")
            a(f"v_lshlrev_b32 v{x}, 16, v{x+1}")
            a(f"v_and_b32 v{x+1}, v{vMHi}, v{x+1}")

        a(f"""
s_cmp_gt_u32 s{sW}, 12
s_cbranch_scc1 k2_sig
""")
        for k in range(8):
            a(s_unpack(CF + k, CE, k))
        a(f"""
v_and_b32 v{vD+1}, v{vMHi}, v{vD}
v_lshlrev_b32 v{vD}, 16, v{vD}
""")
        for r in range(2):
            for k in range(0, 8, 2):
                a(f"v_pk_add_f32 v[{R[r]+k}:{R[r]+k+1}], v[{vD}:{vD+1}], s[{CF+k}:{CF+k+1}] op_sel:[{r},0] op_sel_hi:[{r},1] neg_lo:[0,1] neg_hi:[0,1]")
        a(f"s_load_dwordx8 s[{WD}:{WD+7}], s[{PP}:{PP+1}], 0")
        a(f"s_load_dwordx8 s[{WU}:{WU+7}], s[{PP2}:{PP2+1}], 0")
        allr = [R[r] + k for r in range(2) for k in range(8)]
        for x in allr[::2]:
            rnd(x)
        for x in allr:
            a(f"v_mul_f32 v{x}, v{x}, v{x}")
        for x in allr[::2]:
            rnd(x)
        for x in allr:
            a(f"v_mul_f32 v{x}, 0xc1200000, v{x}")
        for x in allr[::2]:
            rnd(x)
        st_()
        a("""
s_waitcnt vmcnt(0)
s_barrier
""")
        st_()
        for x in allr:
            a(f"v_mul_f32 v{x}, 0x3fb8aa3b, v{x}")
        for x in allr:
            a(f"v_exp_f32 v{x}, v{x}")
        a("s_nop 0")
        for r in range(2):
            for kk in range(4):
                a(f"v_cvt_pk_bf16_f32 v{RP[r]+kk}, v{R[r]+2*kk}, v{R[r]+2*kk+1}")
        cnt = [0]

        def wpair(base, kk, c):
            d = tS + (cnt[0] & 3)
            cnt[0] += 1
            op = "s_pack_ll_b32_b16" if c % 2 == 0 else "s_pack_hh_b32_b16"
            a(f"{op} s{d}, s{base + 4*kk + c//2}, s{base + 4*kk + 2 + c//2}")
            return d

        def dotmat(dst, src, base, nk):
            for kk in range(nk):
                for c in range(4):
                    w = wpair(base, kk, c)
                    for r in range(2):
                        acc = "0" if kk == 0 else f"v{dst[r]+c}"
                        a(f"v_dot2_f32_bf16 v{dst[r]+c}, v{src[r]+kk}, s{w}, {acc}")

        dotmat(H, RP, WR, 4)
        dotmat(G, RP, WSB, 4)
        for r in range(2):
            rnd(H[r])
            rnd(H[r] + 2)
        srd_off(a, S_P, P + 2, None, PART_OFF, 4 * E * 8)
        st_()
        a(f"""
v_mov_b32 v{vT}, {NW}
s_waitcnt lgkmcnt(0)
s_barrier
ds_read_b32 v{vT}, v{vT}
v_add_u32 v{FT}, {E*8}, v{vO16}
v_add_u32 v{FT+1}, {2*E*8}, v{vO16}
v_add_u32 v{FT+2}, {3*E*8}, v{vO16}
s_mov_b64 exec, s[{sNK}:{sNK+1}]
buffer_load_dwordx4 v[{PL}:{PL+3}], v{vO16}, s[{S_P}:{S_P+3}], 0 offen sc1
buffer_load_dwordx4 v[{PL+4}:{PL+7}], v{FT}, s[{S_P}:{S_P+3}], 0 offen sc1
buffer_load_dwordx4 v[{PL+8}:{PL+11}], v{FT+1}, s[{S_P}:{S_P+3}], 0 offen sc1
buffer_load_dwordx4 v[{PL+12}:{PL+15}], v{FT+2}, s[{S_P}:{S_P+3}], 0 offen sc1
s_waitcnt lgkmcnt(0)
v_readfirstlane_b32 s{sFl}, v{vT}
v_mov_b32 v{vT}, s{sMsc}
""")
        st_()
        a(f"""
s_cmp_gt_u32 s{sFl}, 255
s_cbranch_scc1 k2_fslow
s_waitcnt vmcnt(0)
""")
        for r in range(2):
            for c in range(4):
                reg = 2 * r + c // 2
                hi = c % 2
                d = S[r] + c
                a(f"v_fma_mix_f32 v{d}, v{PL+reg}, 1.0, v{PL+4+reg} op_sel:[{hi},0,{hi}] op_sel_hi:[1,0,1]")
                a(f"v_fma_mix_f32 v{d}, v{PL+8+reg}, 1.0, v{d} op_sel:[{hi},0,0] op_sel_hi:[1,0,0]")
                a(f"v_fma_mix_f32 v{d}, v{PL+12+reg}, 1.0, v{d} op_sel:[{hi},0,0] op_sel_hi:[1,0,0]")
        for r in range(2):
            for c in range(4):
                a(f"v_mul_f32 v{S[r]+c}, v{vT}, v{S[r]+c}")
        a("k2_fjoin:")
        for jj in range(4):
            for cp in range(2):
                d = tS + 2 * ((jj * 2 + cp) & 1)
                a(s_unpack(d, WD, jj * 4 + cp * 2))
                a(s_unpack(d + 1, WD, jj * 4 + cp * 2 + 1))
                for r in range(2):
                    sp = S[r] + (jj & ~1)
                    oo = jj & 1
                    dd = AG[r] + 2 * cp
                    if jj == 0:
                        a(f"v_pk_mul_f32 v[{dd}:{dd+1}], v[{sp}:{sp+1}], s[{d}:{d+1}] op_sel:[{oo},0] op_sel_hi:[{oo},1]")
                    else:
                        a(f"v_pk_fma_f32 v[{dd}:{dd+1}], v[{sp}:{sp+1}], s[{d}:{d+1}], v[{dd}:{dd+1}] op_sel:[{oo},0,0] op_sel_hi:[{oo},1,1]")
        for r in range(2):
            for c in range(4):
                a(f"v_mul_f32 v{AG[r]+c}, v{AG[r]+c}, v{G[r]+c}")
        for r in range(2):
            for kk in range(2):
                a(f"v_cvt_pk_bf16_f32 v{RP[r]+kk}, v{AG[r]+2*kk}, v{AG[r]+2*kk+1}")
        dotmat(G, RP, WU, 2)
        for r in range(2):
            for cp in range(2):
                a(f"v_lshlrev_b32 v{S[r]+2*cp}, 16, v{vM+2*r+cp}")
                a(f"v_and_b32 v{S[r]+2*cp+1}, v{vMHi}, v{vM+2*r+cp}")
        for r in range(2):
            rnd(G[r])
            rnd(G[r] + 2)
        for r in range(2):
            for c in range(4):
                a(f"v_mul_f32 v{G[r]+c}, v{G[r]+c}, v{H[r]+c}")
        for r in range(2):
            rnd(G[r])
            rnd(G[r] + 2)
        for r in range(2):
            for c in range(4):
                a(f"v_add_f32 v{G[r]+c}, v{G[r]+c}, v{S[r]+c}")
        for r in range(2):
            for cp in range(2):
                a(f"v_cvt_pk_bf16_f32 v{vM+2*r+cp}, v{G[r]+2*cp}, v{G[r]+2*cp+1}")
        a(f"buffer_store_dwordx4 v[{vM}:{vM+3}], v{vO16}, s[{S_O}:{S_O+3}], 0 offen")
        st_()
        st_.flush(FT)
        a("""
k2_done:
s_endpgm
""")
        a(f"""
k2_sig:
s_waitcnt vmcnt(0)
s_barrier
s_cmp_lg_u32 s{sW}, 15
s_cbranch_scc1 k2_sig_e
s_add_u32 s{sT0}, s{sCg}, 8
s_lshl_b32 s{sT0}, s{sMode}, s{sT0}
s_add_u32 s{sT0}, s{sT0}, 1
s_lshl_b32 s{sT1}, s{sRb}, 7
s_lshl_b32 s{sT2}, s{sCg}, 2
s_add_u32 s{sT2}, s{sT2}, s{sT1}
s_mov_b64 exec, 1
v_mov_b32 v{FT}, s{sT1}
v_mov_b32 v{FT+1}, s{sT0}
v_mov_b32 v{FT+2}, s{sT2}
buffer_store_dword v{FT+1}, v{FT+2}, s[{S_G}:{S_G+3}], 0 offen sc1
s_mov_b32 s{sT2}, 0x100000
k2_poll:
buffer_load_dwordx4 v[{FT+4}:{FT+7}], v{FT}, s[{S_G}:{S_G+3}], 0 offen sc1
s_waitcnt vmcnt(0)
v_add_u32 v{FT+1}, v{FT+4}, v{FT+5}
v_add3_u32 v{FT+1}, v{FT+1}, v{FT+6}, v{FT+7}
s_nop 0
v_readfirstlane_b32 s{sT1}, v{FT+1}
s_and_b32 s{sT1}, s{sT1}, 255
s_cmp_ge_u32 s{sT1}, 4
s_cbranch_scc1 k2_poll_e
s_sub_u32 s{sT2}, s{sT2}, 1
s_cbranch_scc1 k2_poll_e
s_sleep 1
s_branch k2_poll
k2_poll_e:
v_mov_b32 v{FT}, {NW}
ds_write_b32 v{FT}, v{FT+1}
s_waitcnt lgkmcnt(0)
k2_sig_e:
s_barrier
s_endpgm
""")
        o("k2_fslow:")
        srd_off(o, S_D, P + 2, None, P32_OFF, 4 * E * 16)
        o(f"v_lshlrev_b32 v{FT}, 1, v{vO16}")
        for i2 in range(8):
            o(f"v_mov_b32 v{S[0]+i2}, 0")
        o("s_waitcnt vmcnt(0)")
        for c in range(4):
            o(f"""
s_bitcmp1_b32 s{sFl}, {8+c}
s_cbranch_scc1 k2_s32_{c}
""")
            for r in range(2):
                for cc in range(4):
                    reg = 2 * r + cc // 2
                    o(f"v_fma_mix_f32 v{S[r]+cc}, v{PL+4*c+reg}, v{vT}, v{S[r]+cc} op_sel:[{cc%2},0,0] op_sel_hi:[1,0,0]")
            o(f"""
s_branch k2_sn_{c}
k2_s32_{c}:
buffer_load_dwordx4 v[24:27], v{FT}, s[{S_D}:{S_D+3}], 0 offen sc1
buffer_load_dwordx4 v[28:31], v{FT}, s[{S_D}:{S_D+3}], 0 offen offset:16 sc1
s_waitcnt vmcnt(0)
""")
            for i2 in range(8):
                o(f"v_add_f32 v{S[0]+i2}, v{S[0]+i2}, v{24+i2}")
            o(f"k2_sn_{c}:")
            o(f"v_add_u32 v{FT}, {E*16}, v{FT}")
        o("s_branch k2_fjoin")

    def plain_epilogue():
        a("k2_epi:")
        held(1)
        EB = 64
        a(f"""
v_add_u32 v{vLW}, {ACC}, v{vT16}
v_add_u32 v{vBase}, {ACC+ACCB}, v{vT16}
v_mov_b32 v{vMagic}, s{sPf}
s_lshl_b32 s{sT0}, s{sCo}, 2
v_mov_b32 v{FT}, s{sT0}
v_mov_b32 v{FT+1}, s{sMode}
""")
        srd_off(a, S_T, P + 2, None, FLAG_OFF, 1024)
        a(f"""
s_mul_i32 s{sT0}, s{sCg}, {E*8}
s_mul_i32 s{sT1}, s{sRb}, {RB*8}
s_add_u32 s{sT0}, s{sT0}, s{sT1}
""")
        srd_off(a, S_P, P + 2, sT0, PART_OFF, RB * 8)
        a(f"s_lshl_b32 s{sT0}, s{sT0}, 1")
        srd_off(a, S_M, P + 2, sT0, P32_OFF, RB * 16)
        a(f"""
s_waitcnt vmcnt(0) lgkmcnt(0)
s_barrier
""")
        st_()
        for it in range(4):
            b = EB + it * 8
            if it == 3:
                a(f"v_min_u32 v{vLW}, {ACC + 52*16}, v{vLW}")
                a(f"v_min_u32 v{vBase}, {ACC + ACCB + 52*16}, v{vBase}")
            a(f"ds_read_b128 v[{b}:{b+3}], v{vLW} offset:{it*16384}")
            a(f"ds_read_b128 v[{b+4}:{b+7}], v{vBase} offset:{it*16384}")
        a(f"""
v_cmp_eq_u32 vcc, 0, v0
s_and_saveexec_b64 s[{sA}:{sA+1}], vcc
buffer_store_dword v{FT+1}, v{FT}, s[{S_T}:{S_T+3}], 0 offen
s_mov_b64 exec, s[{sA}:{sA+1}]
s_cmp_lg_u32 s{sMode}, 0
s_cbranch_scc1 k2_epf
""")
        for it in range(4):
            b = EB + it * 8
            a(f"s_waitcnt lgkmcnt({2*(3-it)})")
            for p in range(4):
                a(f"v_ashrrev_i32 v{FT+2+p}, 31, v{b+2*p}")
            for p in range(4):
                a(f"v_sub_u32 v{b+2*p+1}, v{b+2*p+1}, v{FT+2+p}")
            for p in range(8):
                a(f"v_cvt_f32_i32 v{b+p}, v{b+p}")
            for p in range(8):
                a(f"v_mul_f32 v{b+p}, v{vMagic}, v{b+p}")
            a(f"""
v_cvt_pk_f16_f32 v{b}, v{b}, v{b+1}
v_cvt_pk_f16_f32 v{b+1}, v{b+4}, v{b+5}
v_cvt_pk_f16_f32 v{b+2}, v{b+2}, v{b+3}
v_cvt_pk_f16_f32 v{b+3}, v{b+6}, v{b+7}
buffer_store_dwordx4 v[{b}:{b+3}], v{vT16}, s[{S_P}:{S_P+3}], 0 offen {pst}
""")
            if it < 3:
                a(f"v_add_u32 v{vT16}, 16384, v{vT16}")
        st_()
        if st_.on:
            a("s_waitcnt vmcnt(0)")
        st_()
        st_.flush(FT)
        a("""
k2_done:
s_endpgm
k2_epf:
s_waitcnt lgkmcnt(0)
""")
        a(f"v_lshlrev_b32 v{vT16}, 1, v{vT16}")
        for it in range(4):
            b = EB + it * 8
            a(f"""
buffer_store_dwordx2 v[{b}:{b+1}], v{vT16}, s[{S_M}:{S_M+3}], 0 offen
buffer_store_dwordx2 v[{b+4}:{b+5}], v{vT16}, s[{S_M}:{S_M+3}], 0 offen offset:8
buffer_store_dwordx2 v[{b+2}:{b+3}], v{vT16}, s[{S_M}:{S_M+3}], 0 offen offset:16
buffer_store_dwordx2 v[{b+6}:{b+7}], v{vT16}, s[{S_M}:{S_M+3}], 0 offen offset:24
v_add_u32 v{vT16}, 32768, v{vT16}
""")
        a("s_endpgm")

    if OPT['fuse'] == '1':
        fused_epilogue()
    else:
        plain_epilogue()
    o("k2_slow:")
    o(f"""
s_set_gpr_idx_on s{sT2}, 0x1
v_mov_b32 v{e0}, v{EN}
v_mov_b32 v{e0+1}, v{EN+1}
s_set_gpr_idx_off
""")
    flat_scan(e0, e0 + 1, sTot, o)
    o("k2_slow_l:")
    flat_push(f"s{sXw}", o)
    o("s_waitcnt lgkmcnt(0)")
    flat_fin(f"s{sXw}", sTot, MS, RS, o)
    o("s_waitcnt vmcnt(0)")
    window_now(MS, RS, "slow")
    o(f"""
s_add_u32 s{sXw}, s{sXw}, 1024
s_cmp_lt_u32 s{sXw}, s{sTot}
s_cbranch_scc1 k2_slow_l
s_setpc_b64 s[{sRet}:{sRet+1}]
""")
    txt = a.s
    if OPT['abl2']:
        i0 = txt.index('k2_dloop:'); i1 = txt.index('k2_rem:'); i2 = txt.index('k2_rloop:'); i3 = txt.index('k2_epi:')
        def filt(t):
            out = []
            for l in t.split('\n'):
                x = l.strip()
                f = OPT['abl2']
                if 'v' in f and (x.startswith('buffer_') or x.startswith('s_waitcnt vmcnt')): continue
                if 'd' in f and x.startswith('ds_add'): continue
                if 'g' in f and x.startswith('ds_read'): continue
                if 'q' in f and (x.startswith('v_fma') or x.startswith('v_lshl_add_u64') or x.startswith('v_lshlrev_b32') or x.startswith('v_alignbit')): continue
                if 'p' in f and ('_dpp' in x or x.startswith('s_nop') or x.startswith('v_readlane') or x.startswith('v_cndmask') or x.startswith('ds_permute')): continue
                if 'e' in f and x.startswith('s_mov_b64 exec'): continue
                if 'b' in f and x.startswith('s_barrier'): continue
                if 'x' in f and (x.startswith('s_set_gpr')): continue
                out.append(l)
            return '\n'.join(out)
        txt = txt[:i0] + filt(txt[i0:i1]) + txt[i1:i2] + filt(txt[i2:i3]) + txt[i3:]
    return txt + o.s, NVG, NW + 64


def gen_k3():
    a = A()
    pld = OPT['pld']
    S_M, S_D, S_O, S_P = 4, 8, 12, 16
    WR, WSB, WD, WU, CE = 20, 36, 52, 60, 68
    CF = 72
    PP = 72
    FL = 84
    MXS = 88
    sT = 80
    sWs = 96
    st_ = Stamper(a, 2, 98, sWs, 60, S_P)
    st_.start()
    vO16, vD, vM, vHi = 1, 2, 4, 8
    PL = 12
    R = (28, 36)
    G = (44, 48)
    H = (52, 56)
    S = (28, 32)
    RP = (62, 66)
    vT = 9
    a(f"""
s_cmp_ge_u32 s2, 1600
s_cbranch_scc1 k3_done
s_load_dwordx2 s[{S_M}:{S_M+1}], s[0:1], {KA['m']}
s_load_dwordx2 s[{S_D}:{S_D+1}], s[0:1], {KA['dist']}
s_load_dwordx2 s[{S_O}:{S_O+1}], s[0:1], {KA['out']}
s_load_dwordx2 s[{sWs}:{sWs+1}], s[0:1], {KA['ws']}
s_load_dwordx2 s[{PP}:{PP+1}], s[0:1], {KA['centers']}
s_load_dwordx4 s[{PP+4}:{PP+7}], s[0:1], {KA['w_rbf']}
s_load_dwordx4 s[{PP+8}:{PP+11}], s[0:1], {KA['w_down']}
s_mul_i32 s3, s2, 2000
v_lshlrev_b32 v{vO16}, 4, v0
v_add_u32 v{vO16}, s3, v{vO16}
v_mov_b32 v{vHi}, 0xffff0000
v_cmp_gt_u32 vcc, 125, v0
s_and_b64 exec, exec, vcc
v_lshrrev_b32 v{vT}, 2, v{vO16}
s_mul_i32 s3, s2, 5243
s_lshr_b32 s3, s3, 17
s_lshl_b32 s3, s3, 4
s_waitcnt lgkmcnt(0)
""")
    a(srd(S_D, S_D, E * 2))
    a(f"buffer_load_dword v{vD}, v{vT}, s[{S_D}:{S_D+3}], 0 offen")
    a(f"""
s_load_dwordx4 s[{CE}:{CE+3}], s[{PP}:{PP+1}], 0
s_load_dwordx16 s[{WR}:{WR+15}], s[{PP+4}:{PP+5}], 0
s_load_dwordx16 s[{WSB}:{WSB+15}], s[{PP+6}:{PP+7}], 0
s_load_dwordx8 s[{WD}:{WD+7}], s[{PP+8}:{PP+9}], 0
s_load_dwordx8 s[{WU}:{WU+7}], s[{PP+10}:{PP+11}], 0
s_add_u32 s{PP+2}, s{sWs}, {MAX_OFF}
s_addc_u32 s{PP+3}, s{sWs+1}, 0
s_load_dwordx8 s[{MXS}:{MXS+7}], s[{PP+2}:{PP+3}], 0
s_add_u32 s{PP+2}, s{PP+2}, s3
s_addc_u32 s{PP+3}, s{PP+3}, 0
s_load_dwordx4 s[{FL}:{FL+3}], s[{PP+2}:{PP+3}], {FLAG_OFF-MAX_OFF}
""")
    srd_off(a, S_P, sWs, None, PART_OFF, 4 * E * 8)
    for c in range(4):
        if c:
            a(f"s_mov_b32 s3, {c*E*8}")
        a(f"buffer_load_dwordx4 v[{PL+4*c}:{PL+4*c+3}], v{vO16}, s[{S_P}:{S_P+3}], {'s3' if c else '0'} offen {pld}")
    a(srd(S_M, S_M, E * 8) + srd(S_O, S_O, E * 8))
    a(f"buffer_load_dwordx4 v[{vM}:{vM+3}], v{vO16}, s[{S_M}:{S_M+3}], 0 offen")
    a("s_waitcnt lgkmcnt(0)")
    for k in range(8):
        a(s_unpack(CF + k, CE, k))
    a(f"""
s_max_u32 s{MXS}, s{MXS}, s{MXS+1}
s_max_u32 s{MXS+2}, s{MXS+2}, s{MXS+3}
s_max_u32 s{MXS+4}, s{MXS+4}, s{MXS+5}
s_max_u32 s{MXS}, s{MXS}, s{MXS+2}
s_max_u32 s{MXS}, s{MXS}, s{MXS+4}
s_lshl_b32 s3, s{MXS}, 16
s_and_b32 s3, s3, 0x7f800000
s_add_u32 s3, s3, {2 << 23}
s_waitcnt vmcnt(5)
v_and_b32 v{vD+1}, v{vHi}, v{vD}
v_lshlrev_b32 v{vD}, 16, v{vD}
""")

    st_.init()
    st_()

    def rnd(x):
        a(f"v_cvt_pk_bf16_f32 v{x+1}, v{x}, v{x+1}")
        a(f"v_lshlrev_b32 v{x}, 16, v{x+1}")
        a(f"v_and_b32 v{x+1}, v{vHi}, v{x+1}")

    for r in range(2):
        for k in range(0, 8, 2):
            a(f"v_pk_add_f32 v[{R[r]+k}:{R[r]+k+1}], v[{vD}:{vD+1}], s[{CF+k}:{CF+k+1}] op_sel:[{r},0] op_sel_hi:[{r},1] neg_lo:[0,1] neg_hi:[0,1]")
    allr = [R[r] + k for r in range(2) for k in range(8)]
    for x in allr[::2]:
        rnd(x)
    for x in allr:
        a(f"v_mul_f32 v{x}, v{x}, v{x}")
    for x in allr[::2]:
        rnd(x)
    for x in allr:
        a(f"v_mul_f32 v{x}, 0xc1200000, v{x}")
    for x in allr[::2]:
        rnd(x)
    for x in allr:
        a(f"v_mul_f32 v{x}, 0x3fb8aa3b, v{x}")
    for x in allr:
        a(f"v_exp_f32 v{x}, v{x}")
    a("s_nop 0")
    for r in range(2):
        for kk in range(4):
            a(f"v_cvt_pk_bf16_f32 v{RP[r]+kk}, v{R[r]+2*kk}, v{R[r]+2*kk+1}")

    cnt = [0]

    def wpair(base, kk, c):
        d = sT + (cnt[0] & 3)
        cnt[0] += 1
        op = "s_pack_ll_b32_b16" if c % 2 == 0 else "s_pack_hh_b32_b16"
        a(f"{op} s{d}, s{base + 4*kk + c//2}, s{base + 4*kk + 2 + c//2}")
        return d

    def dotmat(dst, src, base, nk):
        for kk in range(nk):
            for c in range(4):
                w = wpair(base, kk, c)
                for r in range(2):
                    acc = "0" if kk == 0 else f"v{dst[r]+c}"
                    a(f"v_dot2_f32_bf16 v{dst[r]+c}, v{src[r]+kk}, s{w}, {acc}")

    dotmat(H, RP, WR, 4)
    dotmat(G, RP, WSB, 4)
    for r in range(2):
        rnd(H[r])
        rnd(H[r] + 2)
    a(f"""
s_or_b32 s{sT}, s{FL}, s{FL+1}
s_or_b32 s{sT+1}, s{FL+2}, s{FL+3}
s_or_b32 s{sT}, s{sT}, s{sT+1}
v_mov_b32 v{vT}, s3
s_cmp_lg_u32 s{sT}, 0
s_cbranch_scc1 k3_slow
s_waitcnt vmcnt(1)
""")
    for r in range(2):
        for c in range(4):
            reg = 2 * r + c // 2
            hi = c % 2
            d = S[r] + c
            a(f"v_fma_mix_f32 v{d}, v{PL+reg}, 1.0, v{PL+4+reg} op_sel:[{hi},0,{hi}] op_sel_hi:[1,0,1]")
            a(f"v_fma_mix_f32 v{d}, v{PL+8+reg}, 1.0, v{d} op_sel:[{hi},0,0] op_sel_hi:[1,0,0]")
            a(f"v_fma_mix_f32 v{d}, v{PL+12+reg}, 1.0, v{d} op_sel:[{hi},0,0] op_sel_hi:[1,0,0]")
    for r in range(2):
        for c in range(4):
            a(f"v_mul_f32 v{S[r]+c}, v{vT}, v{S[r]+c}")
    a("k3_join:")
    st_()
    AG = (36, 40)
    for j in range(4):
        for cp in range(2):
            d = sT + 2 * ((j * 2 + cp) & 1)
            a(s_unpack(d, WD, j * 4 + cp * 2))
            a(s_unpack(d + 1, WD, j * 4 + cp * 2 + 1))
            for r in range(2):
                sp = S[r] + (j & ~1)
                o = j & 1
                dd = AG[r] + 2 * cp
                if j == 0:
                    a(f"v_pk_mul_f32 v[{dd}:{dd+1}], v[{sp}:{sp+1}], s[{d}:{d+1}] op_sel:[{o},0] op_sel_hi:[{o},1]")
                else:
                    a(f"v_pk_fma_f32 v[{dd}:{dd+1}], v[{sp}:{sp+1}], s[{d}:{d+1}], v[{dd}:{dd+1}] op_sel:[{o},0,0] op_sel_hi:[{o},1,1]")
    for r in range(2):
        for c in range(4):
            a(f"v_mul_f32 v{AG[r]+c}, v{AG[r]+c}, v{G[r]+c}")
    for r in range(2):
        for kk in range(2):
            a(f"v_cvt_pk_bf16_f32 v{RP[r]+kk}, v{AG[r]+2*kk}, v{AG[r]+2*kk+1}")
    dotmat(G, RP, WU, 2)
    a("s_waitcnt vmcnt(0)")
    for r in range(2):
        for cp in range(2):
            a(f"v_lshlrev_b32 v{S[r]+2*cp}, 16, v{vM+2*r+cp}")
            a(f"v_and_b32 v{S[r]+2*cp+1}, v{vHi}, v{vM+2*r+cp}")
    for r in range(2):
        rnd(G[r])
        rnd(G[r] + 2)
    for r in range(2):
        for c in range(4):
            a(f"v_mul_f32 v{G[r]+c}, v{G[r]+c}, v{H[r]+c}")
    for r in range(2):
        rnd(G[r])
        rnd(G[r] + 2)
    for r in range(2):
        for c in range(4):
            a(f"v_add_f32 v{G[r]+c}, v{G[r]+c}, v{S[r]+c}")
    for r in range(2):
        for cp in range(2):
            a(f"v_cvt_pk_bf16_f32 v{vM+2*r+cp}, v{G[r]+2*cp}, v{G[r]+2*cp+1}")
    a(f"""
buffer_store_dwordx4 v[{vM}:{vM+3}], v{vO16}, s[{S_O}:{S_O+3}], 0 offen
""")
    st_()
    st_.flush(61)
    a(f"""
k3_done:
s_endpgm
k3_slow:
""")
    srd_off(a, S_D, sWs, None, P32_OFF, 4 * E * 16)
    a(f"v_lshlrev_b32 v{vT+1}, 1, v{vO16}")
    for i in range(8):
        a(f"v_mov_b32 v{S[0]+i}, 0")
    a("s_waitcnt vmcnt(0)")
    for c in range(4):
        a(f"""
s_cmp_lg_u32 s{FL+c}, 0
s_cbranch_scc1 k3_s32_{c}
""")
        for r in range(2):
            for cc in range(4):
                reg = 2 * r + cc // 2
                a(f"v_fma_mix_f32 v{S[r]+cc}, v{PL+4*c+reg}, v{vT}, v{S[r]+cc} op_sel:[{cc%2},0,0] op_sel_hi:[1,0,0]")
        a(f"""
s_branch k3_sn_{c}
k3_s32_{c}:
buffer_load_dwordx4 v[36:39], v{vT+1}, s[{S_D}:{S_D+3}], 0 offen
buffer_load_dwordx4 v[40:43], v{vT+1}, s[{S_D}:{S_D+3}], 0 offen offset:16
s_waitcnt vmcnt(0)
""")
        for i in range(8):
            a(f"v_add_f32 v{S[0]+i}, v{S[0]+i}, v{36+i}")
        a(f"k3_sn_{c}:")
        a(f"v_add_u32 v{vT+1}, {E*16}, v{vT+1}")
    a("s_branch k3_join")
    return a.s


k2, k2v, k2lds = gen_k2()
out = HEADER
out += "; K1: 2-D fine binning of triplets (register-resident tile), K2: LDS gather + integer LDS accumulation + finalize\n"
out += f"; @launch kernel=k1_kernel grid=({NT+NMX},1,1) block=(1024,1,1) lds={LDS_ALL}\n"
out += f"; @launch kernel=k2_kernel grid=(256,1,1) block=(1024,1,1) lds={k2lds}\n"
if OPT['fuse'] == '0':
    out += "; @launch kernel=k3_kernel grid=(1600,1,1) block=(128,1,1) lds=0\n"
out += '.amdgcn_target "amdgcn-amd-amdhsa--gfx950"\n'
out += kernel_begin('k1_kernel') + gen_k1()
out += kernel_begin('k2_kernel') + k2
if OPT['fuse'] == '0':
    out += kernel_begin('k3_kernel') + gen_k3()
out += kernel_desc('k1_kernel', 128, 80) + kernel_desc('k2_kernel', k2v, 102)
if OPT['fuse'] == '0':
    out += kernel_desc('k3_kernel', 70, 102 if OPT['diag'] == '1' else 98)
open(sys.argv[1], 'w').write(out)
```

```python
import sys
sys.path.insert(0, 'dev')
from common import *

NT = 250
NMX = 6
TILE = 51200
RB = 6250
CB = 5000
NCB = 80
NPH = 20
F = 64 * NCB
TGB = 20544 * 16
TABS = (F + 4) * 4
CAPG = 6826
CAP8 = CAPG * 24
REC_OFF = 0
TAB_OFF = 0x5000000
MAX_OFF = 0x5500000
FLAG_OFF = 0x5501000
HF_OFF = 0x5504000
PART_OFF = 0x5600000
P32_OFF = 0x6400000
DIAG_OFF = 0xFC00000
LDS_ALL = 163840
assert NT * TGB <= TAB_OFF and TAB_OFF + NT * TABS <= MAX_OFF

OPT = dict(ld='nt', st='', k2ld='', pst='', pld='', diag='0', depth='3', ne='2', nm='1', abl='', rb='0', fuse='1', abl2='', clk='0', tid='1', wb='0', fine='0', fr='2', fn='12', gs='10', vf='0', pst2='0')
for a_ in sys.argv[2:]:
    k_, v_ = a_.split('=')
    OPT[k_] = v_.replace('+', ' ')

BFI = "bitop3:0xca"
ANDOR = "bitop3:0xea"


class A:
    def __init__(self):
        self.s = ""

    def __call__(self, txt):
        for l in txt.strip('\n').split('\n'):
            l = l.strip()
            if not l:
                continue
            self.s += ("" if l.endswith(':') else "    ") + l + "\n"


def srd_off(a, d, ptr, off_sgpr, off_imm, nbytes):
    if off_sgpr is not None:
        a(f"s_add_u32 s{d}, s{ptr}, s{off_sgpr}")
        a(f"s_addc_u32 s{d+1}, s{ptr+1}, 0")
        if off_imm:
            a(f"s_add_u32 s{d}, s{d}, {off_imm}")
            a(f"s_addc_u32 s{d+1}, s{d+1}, 0")
    else:
        a(f"s_add_u32 s{d}, s{ptr}, {off_imm}")
        a(f"s_addc_u32 s{d+1}, s{ptr+1}, 0")
    a(f"s_mov_b32 s{d+2}, {nbytes}")
    a(f"s_mov_b32 s{d+3}, 0x00020000")


class Stamper:
    def __init__(self, a, kidx, sbase, wsptr, vtmp, srd):
        self.a, self.k, self.sb, self.ws, self.v, self.srd = a, kidx, sbase, wsptr, vtmp, srd
        self.on = OPT['diag'] == '1'

    def start(self):
        if self.on:
            self.a(f"s_memrealtime s[{self.sb+2}:{self.sb+3}]")

    def init(self):
        if not self.on:
            return
        a, sb = self.a, self.sb
        a(f"s_mov_b64 s[{sb}:{sb+1}], exec")
        a(f"s_mov_b64 exec, -1")
        a(f"v_mov_b32 v{self.v}, 0")
        a(f"s_mov_b64 exec, s[{sb}:{sb+1}]")
        a(f"v_writelane_b32 v{self.v}, s{sb+2}, 0")
        a(f"s_mov_b32 s{sb+3}, 1")

    def __call__(self):
        if not self.on:
            return
        a, sb = self.a, self.sb
        a(f"s_memrealtime s[{sb}:{sb+1}]")
        a(f"s_mov_b32 s{sb+2}, m0")
        a(f"s_mov_b32 m0, s{sb+3}")
        a("s_waitcnt lgkmcnt(0)")
        a(f"v_writelane_b32 v{self.v}, s{sb}, m0")
        a(f"s_add_u32 s{sb+3}, s{sb+3}, 1")
        if OPT['clk'] == '1':
            a(f"s_memtime s[{sb}:{sb+1}]")
            a(f"s_add_u32 m0, s{sb+3}, 31")
            a("s_waitcnt lgkmcnt(0)")
            a(f"v_writelane_b32 v{self.v}, s{sb}, m0")
        a(f"s_mov_b32 m0, s{sb+2}")

    def flush(self, vt):
        if not self.on:
            return
        a, sb = self.a, self.sb
        a(f"s_lshl_b32 s{sb}, s2, 8")
        srd_off(a, self.srd, self.ws, sb, DIAG_OFF + self.k * 0x100000, 256)
        a(f"s_mov_b64 exec, -1")
        a(f"v_cmp_gt_u32 vcc, 64, v0")
        a(f"s_and_b64 exec, exec, vcc")
        a(f"v_lshlrev_b32 v{vt}, 2, v0")
        a(f"buffer_store_dword v{self.v}, v{vt}, s[{self.srd}:{self.srd+3}], 0 offen")
        a(f"s_mov_b64 exec, -1")


def scan(a, op, v, full=True):
    for sh in (1, 2, 4, 8):
        a(f"{op}_dpp v{v}, v{v}, v{v} row_shr:{sh} row_mask:0xf bank_mask:0xf")
        a("s_nop 1")
    if full:
        a(f"{op}_dpp v{v}, v{v}, v{v} row_bcast:15 row_mask:0xa bank_mask:0xf")
        a("s_nop 1")
        a(f"{op}_dpp v{v}, v{v}, v{v} row_bcast:31 row_mask:0xc bank_mask:0xf")
        a("s_nop 1")


EXEC63 = "s_mov_b32 exec_lo, 0\ns_mov_b32 exec_hi, 0x80000000"


def gen_k1():
    a = A()
    ld, st = OPT['ld'], OPT['st']
    D = int(OPT['depth'])
    WT = 20480
    ANG = 20736
    S_O, S_I, S_A, S_R, S_T, S_F = 4, 8, 12, 16, 20, 24
    P = 28
    sW, sMR, sMC, sNR, sNC, sG, sLo8, sT0, sT1, sCap8, sRem, sSo, sAngL, sCGK = range(40, 54)
    vC, vAng, vT16, vDma = 1, 2, 3, 4
    vFq = 5
    T0 = 6
    RX = 28
    RQ = 32
    vA48 = 27
    vSt = 26

    def rec(slot):
        if slot >= 48:
            return RX + 2 * (slot - 48)
        q, k = divmod(slot, 4)
        return RQ + q * 8 + (0, 4, 2, 6)[k]

    st_ = Stamper(a, 0, 56, P + 10, vSt, S_O)
    st_.start()
    a(f"""
s_cmp_ge_u32 s2, {NT+NMX}
s_cbranch_scc1 k1_done
s_load_dwordx4 s[{P}:{P+3}], s[0:1], {KA['m']}
s_load_dwordx2 s[{P+4}:{P+5}], s[0:1], {KA['idx_out']}
s_load_dwordx2 s[{P+6}:{P+7}], s[0:1], {KA['angle']}
s_load_dwordx2 s[{P+8}:{P+9}], s[0:1], {KA['ang_freq']}
s_load_dwordx2 s[{P+10}:{P+11}], s[0:1], {KA['ws']}
v_lshrrev_b32 v{T0}, 6, v0
v_lshlrev_b32 v{vT16}, 4, v0
v_readfirstlane_b32 s{sW}, v{T0}
s_cmp_ge_u32 s2, {NT}
s_cbranch_scc1 k1_max
v_mov_b32 v{T0+4}, 0
v_mov_b32 v{T0+5}, 0
v_mov_b32 v{T0+6}, 0
v_mov_b32 v{T0+7}, 0
v_lshlrev_b32 v{T0+1}, 2, v0
ds_write_b128 v{vT16}, v[{T0+4}:{T0+7}]
ds_write_b32 v{T0+1}, v{T0+4} offset:16384
v_mov_b32 v{vC}, 1
s_mov_b32 s{sMR}, 687195
s_mov_b32 s{sMC}, 858994
s_mov_b32 s{sNR}, {-RB}
s_mov_b32 s{sNC}, {-CB}
s_mov_b32 s{sCap8}, {CAP8}
s_mov_b32 s{sCGK}, {63*NPH*4}
s_mul_i32 s{sT0}, s2, {TILE*4}
s_mul_i32 s{sT1}, s2, {TILE*2}
s_waitcnt lgkmcnt(0)
""")
    srd_off(a, S_O, P + 4, sT0, 0, TILE * 4)
    srd_off(a, S_I, P + 2, sT0, 0, TILE * 4)
    srd_off(a, S_A, P + 6, sT1, 0, TILE * 2)

    vm = []

    def issue_pair(q):
        if q < 12:
            b = RQ + q * 8
            a(f"s_mov_b32 s{sT0}, {q*16384}")
            a(f"buffer_load_dwordx4 v[{b}:{b+3}], v{vT16}, s[{S_O}:{S_O+3}], s{sT0} offen {ld}")
            a(f"buffer_load_dwordx4 v[{b+4}:{b+7}], v{vT16}, s[{S_I}:{S_I+3}], s{sT0} offen {ld}")
            vm.extend([('O', q), ('I', q)])
        elif q == 12:
            a(f"""
v_lshrrev_b32 v{vA48}, 1, v{vT16}
s_mov_b32 s{sT0}, {49152*4}
buffer_load_dwordx2 v[{RX}:{RX+1}], v{vA48}, s[{S_O}:{S_O+3}], s{sT0} offen {ld}
buffer_load_dwordx2 v[{RX+2}:{RX+3}], v{vA48}, s[{S_I}:{S_I+3}], s{sT0} offen {ld}
v_lshrrev_b32 v{vA48}, 2, v{vT16}
s_mov_b32 s{sT0}, {49152*2}
buffer_load_dword v{vA48}, v{vA48}, s[{S_A}:{S_A+3}], s{sT0} offen {ld}
""")
            vm.extend([('O', 12), ('I', 12), ('A', 48)])

    def issue_dma(j):
        if j < 6:
            a(f"s_add_u32 m0, s{sAngL}, {j*1024}")
            a(f"s_mov_b32 s{sT1}, {j*16384}")
            a(f"buffer_load_dwordx4 v{vDma}, s[{S_A}:{S_A+3}], s{sT1} offen {ld} lds")
            vm.append(('D', j))

    def wait_for(key):
        n = len(vm) - 1 - vm.index(key)
        a(f"s_waitcnt vmcnt({n})")

    for q in range(D):
        issue_pair(q)
    srd_off(a, S_F, P + 8, None, 0, 2)
    a(f"""
v_mov_b32 v{vFq}, 0
buffer_load_ushort v{vFq}, v{vFq}, s[{S_F}:{S_F+3}], 0 offen
""")
    vm.append(('F', 0))
    a(f"""
v_and_b32 v{vDma}, 31, v0
v_lshlrev_b32 v{vDma}, 4, v{vDma}
v_bfe_u32 v{T0+1}, v0, 5, 1
v_lshl_add_u32 v{vDma}, v{T0+1}, 13, v{vDma}
s_lshl_b32 s{sT0}, s{sW}, 9
v_add_u32 v{vDma}, s{sT0}, v{vDma}
s_mul_i32 s{sAngL}, s{sW}, 6144
s_add_u32 s{sAngL}, s{sAngL}, {ANG}
v_and_b32 v{vAng}, 63, v0
v_lshlrev_b32 v{vAng}, 3, v{vAng}
v_add_u32 v{vAng}, s{sAngL}, v{vAng}
s_mul_i32 s{sT0}, s2, {TGB}
""")
    srd_off(a, S_R, P + 10, sT0, REC_OFF, TGB)
    a(f"s_mul_i32 s{sT0}, s2, {TABS}")
    srd_off(a, S_T, P + 10, sT0, TAB_OFF, TABS)
    st_.init()
    a("s_barrier")
    st_()
    t1, t2, tR1, tR3 = T0, T0 + 1, T0 + 2, T0 + 3
    tb = T0 + 4

    def binning(ro, ri, dst_rl, tbk):
        a(f"""
v_mul_hi_u32_u24 v{t1}, s{sMR}, v{ro}
v_mul_hi_u32_u24 v{t2}, s{sMC}, v{ri}
v_mad_i32_i24 v{dst_rl}, v{t1}, s{sNR}, v{ro}
v_mul_u32_u24 v{t1}, {NPH*4}, v{t1}
v_mad_i32_i24 v{ri}, v{t2}, s{sNC}, v{ri}
v_lshl_add_u32 v{tbk}, v{t2}, 2, v{t1}
v_mul_u32_u24 v{t2}, 205, v{t2}
v_lshrrev_b32 v{t2}, 12, v{t2}
v_mad_u32_u24 v{tbk}, v{t2}, s{sCGK}, v{tbk}
ds_add_u32 v{tbk}, v{vC}
""")

    def packpair(o0, o1, i0, i1, tR, b0, b1):
        a(f"""
v_lshrrev_b32 v{t1}, 10, v{i0}
v_lshrrev_b32 v{t2}, 10, v{i1}
v_lshl_or_b32 v{o0}, v{o0}, 3, v{t1}
v_lshl_or_b32 v{o1}, v{i0}, 22, v{b0}
v_lshl_or_b32 v{i0}, v{tR}, 3, v{t2}
v_lshl_or_b32 v{i1}, v{i1}, 22, v{b1}
""")

    for q in range(13):
        wait_for(('I', q))
        issue_pair(q + D)
        if q < 12:
            r = RQ + q * 8
            for k in range(4):
                binning(r + k, r + 4 + k, r + k if k % 2 == 0 else (tR1 if k == 1 else tR3), tb + k)
            packpair(r, r + 1, r + 4, r + 5, tR1, tb, tb + 1)
            packpair(r + 2, r + 3, r + 6, r + 7, tR3, tb + 2, tb + 3)
        else:
            binning(RX, RX + 2, RX, tb)
            binning(RX + 1, RX + 3, tR1, tb + 1)
            packpair(RX, RX + 1, RX + 2, RX + 3, tR1, tb, tb + 1)
    NE = int(OPT['ne'])
    for j in range(NE):
        issue_dma(j)
    a("""
s_waitcnt lgkmcnt(0)
s_barrier
""")
    st_()
    c = T0
    g = T0 + 5
    e = T0 + 10
    vA, vS, vI = T0 + 16, T0 + 17, T0 + 18
    assert e % 2 == 0 and vI + 1 < vSt
    a(f"v_mul_u32_u24 v{vA}, 20, v0")
    for i in range(5):
        a(f"ds_read_b32 v{c+i}, v{vA} offset:{4*i}")
    a(f"s_mov_b32 s{sT0}, 43691")
    a(f"v_lshlrev_b32 v{vFq}, 16, v{vFq}")
    a("s_waitcnt lgkmcnt(0)")
    for i in range(5):
        a(f"v_add_u32 v{g+i}, 2, v{c+i}")
        a(f"v_mul_u32_u24 v{g+i}, s{sT0}, v{g+i}")
        a(f"v_lshrrev_b32 v{g+i}, 17, v{g+i}")
    a(f"""
v_add3_u32 v{vS}, v{g}, v{g+1}, v{g+2}
v_add3_u32 v{vS}, v{vS}, v{g+3}, v{g+4}
v_mov_b32 v{vI}, v{vS}
s_lshl_b32 s{sT0}, s{sW}, 2
s_add_u32 s{sT0}, s{sT0}, {WT}
""")
    scan(a, "v_add_u32", vI)
    a(f"""
v_mov_b32 v{vI+1}, s{sT0}
{EXEC63}
ds_write_b32 v{vI+1}, v{vI}
s_mov_b64 exec, -1
""")
    for i in range(5):
        a(f"v_mul_u32_u24 v{e+i}, 3, v{g+i}")
        a(f"v_sub_u32 v{e+i}, v{e+i}, v{c+i}")
        a(f"v_min_u32 v{c+i}, 0x1fff, v{c+i}")
        a(f"v_lshl_or_b32 v{e+i}, v{c+i}, 19, v{e+i}")
    a(f"""
v_sub_u32 v{vI}, v{vI}, v{vS}
v_and_b32 v{vI+1}, 15, v0
v_lshlrev_b32 v{vI+1}, 2, v{vI+1}
""")
    NM = int(OPT['nm'])
    for j in range(NE, NE + NM):
        issue_dma(j)
    a(f"""
s_waitcnt lgkmcnt(0)
s_barrier
ds_read_b32 v{vI+1}, v{vI+1} offset:{WT}
s_waitcnt lgkmcnt(0)
v_mov_b32 v{vS}, v{vI+1}
""")
    scan(a, "v_add_u32", vI + 1, full=False)
    a(f"""
v_readlane_b32 s{sG}, v{vI+1}, 15
v_sub_u32 v{vS}, v{vI+1}, v{vS}
s_nop 0
v_readlane_b32 s{sT0}, v{vS}, s{sW}
s_nop 1
v_add_u32 v{vI}, s{sT0}, v{vI}
""")
    for i in range(5):
        a(f"v_mul_u32_u24 v{c+i}, 24, v{vI}")
        a(f"v_lshl_or_b32 v{e+i}, v{vI}, 4, v{e+i}")
        a(f"ds_write_b32 v{vA}, v{c+i} offset:{4*i}")
        a(f"v_add_u32 v{vI}, v{vI}, v{g+i}")
    a(f"""
v_lshlrev_b32 v{e+5}, 4, v{vI}
buffer_store_dwordx4 v[{e}:{e+3}], v{vA}, s[{S_T}:{S_T+3}], 0 offen
buffer_store_dword v{e+4}, v{vA}, s[{S_T}:{S_T+3}], 0 offen offset:16
v_mov_b32 v{vI}, 1023
v_cmp_eq_u32 s[{P}:{P+1}], v0, v{vI}
v_mov_b32 v{vC}, 8
v_mov_b32 v{vS}, 0xffff0000
v_cndmask_b32 v{vA}, v{vS}, v{vA}, s[{P}:{P+1}]
buffer_store_dword v{e+5}, v{vA}, s[{S_T}:{S_T+3}], 0 offen offset:20
s_waitcnt lgkmcnt(0)
s_barrier
""")
    vm.extend([('S', 0), ('S', 1), ('S', 2)])
    st_()
    pt = (T0, T0 + 4)
    an = (T0 + 8, T0 + 10)
    x = T0 + 12
    vM22, vMHi = T0 + 16, T0 + 17
    p48 = T0 + 18
    a(f"v_mov_b32 v{vM22}, 0x3fffff")
    a(f"v_mov_b32 v{vMHi}, 0xffff0000")

    def issue(q):
        s = q & 1
        if q % 2 == 0:
            wait_for(('D', q // 2))
            issue_dma(q // 2 + NE + NM)
        a(f"ds_read_b64 v[{an[s]}:{an[s]+1}], v{vAng} offset:{q*512}")
        for k in range(4):
            w = rec(q * 4 + k)
            a(f"v_and_b32 v{pt[s]+k}, v{vM22}, v{w+1}")
            a(f"ds_add_rtn_u32 v{pt[s]+k}, v{pt[s]+k}, v{vC}")

    def cospair(src, w_lo, w_hi, xx):
        a(f"""
v_lshlrev_b32 v{xx}, 16, v{src}
v_and_b32 v{xx+1}, v{vMHi}, v{src}
v_mul_f32 v{xx}, v{vFq}, v{xx}
v_mul_f32 v{xx+1}, v{vFq}, v{xx+1}
v_cvt_pk_bf16_f32 v{xx+1}, v{xx}, v{xx+1}
v_lshlrev_b32 v{xx}, 16, v{xx+1}
v_and_b32 v{xx+1}, v{vMHi}, v{xx+1}
v_mul_f32 v{xx}, 0.15915494, v{xx}
v_mul_f32 v{xx+1}, 0.15915494, v{xx+1}
v_fract_f32 v{xx}, v{xx}
v_fract_f32 v{xx+1}, v{xx+1}
v_cos_f32 v{xx}, v{xx}
v_cos_f32 v{xx+1}, v{xx+1}
s_nop 0
v_cvt_pk_bf16_f32 v{xx}, v{xx}, v{xx+1}
v_lshl_or_b32 v{w_lo}, v{xx}, 16, v{w_lo}
v_bitop3_b32 v{w_hi}, v{xx}, v{vMHi}, v{w_hi} {ANDOR}
""")

    def consume(q, pending):
        s = q & 1
        a(f"s_waitcnt lgkmcnt({pending + 4})")
        cospair(an[s], rec(q * 4), rec(q * 4 + 1), x)
        cospair(an[s] + 1, rec(q * 4 + 2), rec(q * 4 + 3), x + 2)
        a(f"s_waitcnt lgkmcnt({pending})")
        for k in range(4):
            w = rec(q * 4 + k)
            a(f"v_bitop3_b32 v{w+1}, v{vM22}, v{pt[s]+k}, v{w+1} {BFI}")

    for k in range(2):
        a(f"v_and_b32 v{p48+k}, v{vM22}, v{rec(48+k)+1}")
        a(f"ds_add_rtn_u32 v{p48+k}, v{p48+k}, v{vC}")
    issue(0)
    cospair(vA48, rec(48), rec(49), x)
    a("s_waitcnt lgkmcnt(5)")
    for k in range(2):
        a(f"v_bitop3_b32 v{rec(48+k)+1}, v{vM22}, v{p48+k}, v{rec(48+k)+1} {BFI}")
    for q in range(12):
        if q + 1 < 12:
            issue(q + 1)
            consume(q, 5)
        else:
            consume(q, 0)
    vLo, vT24, vMx, vB = vC, vAng, vDma, vFq
    a(f"""
s_min_u32 s{sG}, s{sG}, 20480
v_mov_b32 v{vLo}, 0
v_mul_u32_u24 v{vT24}, 24, v0
v_mov_b32 v{vMx}, 0xffc00000
s_mov_b32 s{sSo}, 0
s_lshl_b32 s{sW}, s{sW}, 6
s_barrier
k1_round:
""")
    st_()
    for sl in range(50):
        w = rec(sl)
        t = T0 + (sl & 3)
        a(f"""
v_sub_u32 v{t}, v{w+1}, v{vLo}
v_and_b32 v{t}, 0x3fffff, v{t}
v_cmpx_gt_u32 vcc, s{sCap8}, v{t}
ds_write_b64 v{t}, v[{w}:{w+1}]
s_mov_b64 exec, -1
""")
    a(f"""
s_min_u32 s{sRem}, s{sG}, {CAPG}
v_add_u32 v{vLo}, {CAP8}, v{vLo}
s_waitcnt lgkmcnt(0)
s_barrier
""")
    st_()
    qb = T0
    for grp in ((0, 1, 2), (3, 4), (5, 6)):
        a(f"s_add_u32 s{sT0}, s{sW}, {grp[0]*1024}")
        a(f"s_cmp_ge_u32 s{sT0}, s{sRem}")
        a(f"s_cbranch_scc1 k1_co_end")
        a(f"v_add_u32 v{vB}, {grp[0]*24576}, v{vT24}")
        for n, it in enumerate(grp):
            o = n * 24576
            q = qb + n * 6
            if it == 6:
                a(f"v_min_u32 v{vB}, {(CAPG-1)*24 - 24576}, v{vB}")
            a(f"ds_read_b64 v[{q}:{q+1}], v{vB} offset:{o}")
            a(f"ds_read_b64 v[{q+2}:{q+3}], v{vB} offset:{o+8}")
            a(f"ds_read_b64 v[{q+4}:{q+5}], v{vB} offset:{o+16}")
        for n, it in enumerate(grp):
            q = qb + n * 6
            a(f"s_sub_i32 s{sT0}, s{sRem}, {it*1024}")
            a(f"s_add_u32 s{sT1}, s{sSo}, {it*16384}")
            a(f"s_waitcnt lgkmcnt({3*(len(grp)-1-n)})")
            a(f"""
v_lshrrev_b32 v{q+5}, 10, v{q+5}
v_bitop3_b32 v{q+5}, v{vMx}, v{q+3}, v{q+5} {BFI}
v_mov_b32 v{q+3}, v{q+4}
v_lshrrev_b32 v{q+5}, 10, v{q+5}
v_bitop3_b32 v{q+1}, v{vMx}, v{q+1}, v{q+5} {BFI}
v_cmpx_gt_i32 vcc, s{sT0}, v0
buffer_store_dwordx4 v[{q}:{q+3}], v{vT16}, s[{S_R}:{S_R+3}], s{sT1} offen {st}
s_mov_b64 exec, -1
""")
    a(f"""
k1_co_end:
s_add_u32 s{sSo}, s{sSo}, {CAPG*16}
s_sub_u32 s{sG}, s{sG}, s{sRem}
s_cmp_eq_u32 s{sG}, 0
s_cbranch_scc1 k1_fin
s_barrier
""")
    if OPT['wb'] != '0':
        a(f"""
s_lshr_b32 s{sT0}, s2, 3
s_and_b32 s{sT0}, s{sT0}, {int(OPT['wb'])-1}
s_or_b32 s{sT0}, s{sT0}, s{sW}
s_cmp_lg_u32 s{sT0}, 0
s_cbranch_scc1 k1_round
buffer_wbl2 sc1
""")
    a(f"""
s_branch k1_round
k1_fin:
""")
    st_()
    if st_.on:
        a("s_waitcnt vmcnt(0)")
    st_()
    st_.flush(T0)
    a("""
k1_done:
s_endpgm
""")
    S_M, S_X = 4, 8
    a(f"""
k1_max:
s_sub_u32 s3, s2, {NT}
s_mul_i32 s{sT0}, s3, {33*16384}
v_add_u32 v{vT16}, s{sT0}, v{vT16}
v_mov_b32 v{vC}, 0
v_mov_b32 v{vAng}, 0
ds_write_b32 v{vC}, v{vC}
s_waitcnt lgkmcnt(0)
""")
    srd_off(a, S_M, P, None, 0, E * 8)
    srd_off(a, S_X, P + 10, None, MAX_OFF, 64)
    srd_off(a, 12, P + 10, None, HF_OFF, 8192)
    a(f"""
v_lshlrev_b32 v{T0}, 3, v0
v_mov_b32 v{T0+2}, 0
v_mov_b32 v{T0+3}, 0
buffer_store_dwordx2 v[{T0+2}:{T0+3}], v{T0}, s[12:15], 0 offen
""")
    a(f"""
s_load_dwordx2 s[16:17], s[0:1], {KA['dist']}
s_lshl_b32 s{sT1}, s3, 10
v_add_u32 v{T0}, s{sT1}, v0
v_lshlrev_b32 v{T0}, 7, v{T0}
v_add_u32 v{T0+1}, {6144*128}, v{T0}
s_mov_b32 s18, {E*2}
s_mov_b32 s19, 0x00020000
s_waitcnt lgkmcnt(0)
buffer_load_dword v{T0+4}, v{T0}, s[16:19], 0 offen
buffer_load_dword v{T0+5}, v{T0+1}, s[16:19], 0 offen
""")
    a(f"s_mov_b32 s{sT1}, 3")
    a("k1_mxl:")
    for i in range(11):
        a(f"buffer_load_dwordx4 v[{RQ+4*i}:{RQ+4*i+3}], v{vT16}, s[{S_M}:{S_M+3}], 0 offen")
        a(f"v_add_u32 v{vT16}, 16384, v{vT16}")
    for i in range(11):
        a(f"s_waitcnt vmcnt({10-i})")
        for k in range(4):
            a(f"v_and_b32 v{RQ+4*i+k}, 0x7fff7fff, v{RQ+4*i+k}")
            a(f"v_pk_max_u16 v{vAng}, v{vAng}, v{RQ+4*i+k}")
    a(f"""
s_sub_u32 s{sT1}, s{sT1}, 1
s_cmp_lg_u32 s{sT1}, 0
s_cbranch_scc1 k1_mxl
v_lshrrev_b32 v{T0}, 16, v{vAng}
v_and_b32 v{vAng}, 0xffff, v{vAng}
v_max_u32 v{vAng}, v{vAng}, v{T0}
s_barrier
s_nop 1
""")
    scan(a, "v_max_u32", vAng)
    a(f"""
{EXEC63}
ds_max_u32 v{vC}, v{vAng}
s_mov_b64 exec, -1
s_waitcnt lgkmcnt(0)
s_barrier
s_cmp_lg_u32 s{sW}, 0
s_cbranch_scc1 k1_done2
ds_read_b32 v{vAng}, v{vC}
s_lshl_b32 s3, s3, 2
v_mov_b32 v{T0}, s3
s_mov_b64 exec, 1
s_waitcnt lgkmcnt(0)
buffer_store_dword v{vAng}, v{T0}, s[{S_X}:{S_X+3}], 0 offen
k1_done2:
s_endpgm
""")
    return a.s


def gen_k2():
    a = A()
    o = A()
    ld, pst = OPT['k2ld'], OPT['pst']
    abl = OPT['abl']
    ACC = 40960
    ACCB = 50000
    NW = ACC + 2 * ACCB
    S_R, S_T, S_M, S_P = 4, 8, 12, 16
    P = 20
    MXS = 24
    sW, sRb, sCg, sJ, sMo, sMode, sPf, sT0, sT1, sT2, sCarry, sTot, sXw, sCo = range(32, 46)
    sNK = 46
    sA, sB, sC, sD = 48, 50, 52, 54
    MK = (56, 62)
    MN = (68, 74)
    MX = (80, 86)
    TOT = (92, 93)
    sRet = P
    MS = MXS
    vL16, vBase, vT16, vLW, vMagic, vMHi, vSt = 1, 2, 3, 4, 5, 6, 7
    HR = 8
    vC0 = 10
    vX0 = 12
    MP = 14
    GA = 24
    PT = 30
    HQ = 34
    XT = 42
    RS = 46
    GX = 50
    FT = 56
    EN = 64
    RC = (88, 92)
    RXW = (96, 100)
    TH = 104
    MP2 = 108
    MPS = (MP, MP2)
    AD = 118
    vO16, vD, vM = 121, 122, 124
    NVG = 128
    sTN = 100
    sWk = 101
    sMsc = 3
    TID = OPT['tid'] == '1'

    st_ = Stamper(a, 1, 96, P + 2, vSt, S_M if OPT['fuse'] == '1' else S_R)
    st_.start()
    a(f"""
s_cmp_ge_u32 s2, 256
s_cbranch_scc1 k2_done
s_load_dwordx2 s[{P}:{P+1}], s[0:1], {KA['m']}
s_load_dwordx2 s[{P+2}:{P+3}], s[0:1], {KA['ws']}
s_load_dwordx2 s[{S_P}:{S_P+1}], s[0:1], {KA['dist']}
s_load_dwordx2 s[{MN[0]}:{MN[0]+1}], s[0:1], {KA['centers']}
s_load_dwordx4 s[{MX[0]}:{MX[0]+3}], s[0:1], {KA['w_rbf']}
s_load_dwordx4 s[{MX[0]+4}:{MX[0]+7}], s[0:1], {KA['w_down']}
v_lshrrev_b32 v{FT}, 6, v0
v_and_b32 v{FT+1}, 63, v0
v_readfirstlane_b32 s{sW}, v{FT}
v_lshlrev_b32 v{vT16}, 4, v0
v_lshlrev_b32 v{vL16}, 4, v{FT+1}
s_and_b32 s{sT0}, s2, 7
s_lshr_b32 s{sCg}, s{sT0}, 1
s_lshr_b32 s{sRb}, s2, 3
s_and_b32 s{sT0}, s2, 1
s_lshl_b32 s{sT0}, s{sT0}, 5
s_add_u32 s{sRb}, s{sRb}, s{sT0}
s_lshl_b32 s{sCo}, s{sCg}, 6
s_add_u32 s{sCo}, s{sCo}, s{sRb}
v_lshrrev_b32 v{vLW}, 1, v{vT16}
v_add_u32 v{vLW}, 32768, v{vLW}
v_min_u32 v{vLW}, {CB*8-8}, v{vLW}
s_mul_i32 s{sMo}, s{sCg}, {NPH*CB*8}
s_mov_b32 s{sT2}, 0xffff0000
s_mov_b32 s{sT1}, {TGB}
v_mov_b32 v{vMHi}, 0xffff0000
v_mul_u32_u24 v{FT+2}, 43, v{FT+1}
v_lshrrev_b32 v{FT+2}, 7, v{FT+2}
v_mul_u32_u24 v{FT+3}, 3, v{FT+2}
v_sub_u32 v{FT+3}, v{FT+1}, v{FT+3}
s_cmp_lt_u32 s{sW}, 4
s_cbranch_scc1 k2_rl0
s_sub_u32 s{sT0}, s{sW}, 4
s_mul_i32 s{sT0}, s{sT0}, 21
v_add_u32 v{FT+2}, s{sT0}, v{FT+2}
s_branch k2_rl1
k2_rl0:
s_mul_i32 s{sT0}, s{sW}, 63
v_add_u32 v{FT+2}, s{sT0}, v{FT+1}
v_mov_b32 v{FT+3}, 3
k2_rl1:
v_mul_u32_u24 v{FT}, 96, v{FT+2}
v_add_u32 v{FT}, {ACC}, v{FT}
s_mov_b32 s{sT2}, {ACC + 252*96}
v_writelane_b32 v{FT}, s{sT2}, 63
s_mul_i32 s{sT0}, s{sCo}, {NPH*4}
s_mov_b32 s{sT2}, 43691
v_add_u32 v{GA+1}, 1024, v0
v_mul_u32_u24 v{GA+2}, s{sT2}, v0
v_mul_u32_u24 v{GA+3}, s{sT2}, v{GA+1}
v_lshrrev_b32 v{GA+2}, 18, v{GA+2}
v_lshrrev_b32 v{GA+3}, 18, v{GA+3}
v_mul_u32_u24 v{GA+4}, {TABS-96}, v{GA+2}
v_mul_u32_u24 v{GA+5}, {TABS-96}, v{GA+3}
v_add3_u32 v{GA}, v{GA+4}, v{vT16}, s{sT0}
v_add3_u32 v{GA+1}, v{GA+5}, v{vT16}, s{sT0}
v_add_u32 v{GA+1}, 16384, v{GA+1}
v_mov_b32 v{GA+2}, {253*6-1024}
v_cmp_lt_u32 s[{sC}:{sC+1}], v0, v{GA+2}
v_mul_lo_u32 v{vBase}, v{FT+2}, s{sT1}
v_lshl_add_u32 v{vBase}, v{FT+3}, 4, v{vBase}
v_mul_u32_u24 v{TH}, 3, v{FT+3}
v_add_u32 v{TH}, 1, v{TH}
v_lshlrev_b32 v{TH}, 19, v{TH}
v_add_u32 v{TH+1}, 0x80000, v{TH}
v_add_u32 v{TH+2}, 0x100000, v{TH}
s_waitcnt lgkmcnt(0)
""")
    srd_off(a, S_R, P + 2, None, REC_OFF, NT * TGB)
    srd_off(a, S_T, P + 2, None, TAB_OFF, NT * TABS)
    srd_off(a, S_M, P, None, 0, E * 8)

    def m_load(MP=MP, a=a):
        if TID:
            for p in 'bca':
                m_piece(MP, p)
            return
        if 'm' in abl:
            for i in range(3):
                a(f"buffer_load_dword v{MP+i}, v{vL16}, s[{S_M}:{S_M+3}], 0 offen")
            return
        a(f"""
s_add_u32 s{sT0}, s{sMo}, 16384
buffer_load_dwordx4 v[{MP}:{MP+3}], v{vT16}, s[{S_M}:{S_M+3}], s{sMo} offen
buffer_load_dwordx4 v[{MP+4}:{MP+7}], v{vT16}, s[{S_M}:{S_M+3}], s{sT0} offen
buffer_load_dwordx2 v[{MP+8}:{MP+9}], v{vLW}, s[{S_M}:{S_M+3}], s{sMo} offen
s_add_u32 s{sMo}, s{sMo}, {CB*8}
s_min_u32 s{sMo}, s{sMo}, {E*8 - CB*8}
""")

    def m_piece(MP, p, a=a):
        if TID:
            for i in {'b': (0, 1, 2, 3), 'c': (4, 5), 'a': (6, 7, 8, 9)}[p]:
                a(f"buffer_load_dword v{MP+i}, v{vLW}, s[{S_M}:{S_M+3}], 0 offen offset:{256*i}")
            if p == 'a':
                a(f"v_add_u32 v{vLW}, {CB*8}, v{vLW}")
            return
        if p == 'b':
            a(f"s_add_u32 s{sT0}, s{sMo}, 16384")
            a(f"buffer_load_dwordx4 v[{MP+4}:{MP+7}], v{vT16}, s[{S_M}:{S_M+3}], s{sT0} offen")
        elif p == 'c':
            a(f"buffer_load_dwordx2 v[{MP+8}:{MP+9}], v{vLW}, s[{S_M}:{S_M+3}], s{sMo} offen")
        else:
            a(f"""
buffer_load_dwordx4 v[{MP}:{MP+3}], v{vT16}, s[{S_M}:{S_M+3}], s{sMo} offen
s_add_u32 s{sMo}, s{sMo}, {CB*8}
s_min_u32 s{sMo}, s{sMo}, {E*8 - CB*8}
""")

    def m_write(MP=MP):
        if TID:
            a(f"s_mov_b32 m0, s{sWk}")
            a("s_nop 0")
            for i in range(10):
                a(f"ds_write_addtid_b32 v{MP+i} offset:{256*i}")
            return
        if 'w' in abl:
            return
        a(f"""
ds_write_b128 v{vT16}, v[{MP}:{MP+3}]
ds_write_b128 v{vT16}, v[{MP+4}:{MP+7}] offset:16384
ds_write_b64 v{vLW}, v[{MP+8}:{MP+9}]
""")

    def batch(bank):
        for i in range(4):
            a(f"buffer_load_dwordx4 v[{bank+4*i}:{bank+4*i+3}], v{vL16 if 'r' in abl else vBase}, s[{S_R}:{S_R+3}], 0 offen offset:{16*i} {ld}")
        a(f"v_add_u32 v{vBase}, 64, v{vBase}")

    def common_init():
        a(f"""
s_add_u32 s{sA}, s{P+2}, {MAX_OFF}
s_addc_u32 s{sA+1}, s{P+3}, 0
s_load_dwordx8 s[{MXS}:{MXS+7}], s[{sA}:{sA+1}], 0
s_mov_b64 s[{MK[1]+2}:{MK[1]+3}], 0
s_mov_b64 s[{MK[1]+4}:{MK[1]+5}], 0
v_mov_b32 v{HR}, {ACC}
v_mov_b32 v{HR+1}, {ACC}
v_mov_b32 v{vC0}, {ACC}
s_mov_b32 s{sJ}, 0
""")
        st_.init()

    def zero_acc():
        z = PT
        a(f"""
v_mov_b32 v{z}, 0
v_mov_b32 v{z+1}, 0
v_mov_b32 v{z+2}, 0
v_mov_b32 v{z+3}, 0
v_add_u32 v{FT+4}, {ACC}, v{vT16}
v_add_u32 v{FT+5}, {ACC+65536}, v{vT16}
ds_write_b128 v{FT+4}, v[{z}:{z+3}] offset:32768
ds_write_b128 v{FT+4}, v[{z}:{z+3}] offset:49152
ds_write_b128 v{FT+5}, v[{z}:{z+3}]
ds_write_b128 v{FT+5}, v[{z}:{z+3}] offset:16384
v_cmp_gt_u32 vcc, {6250-6144}, v0
s_and_saveexec_b64 s[{sB}:{sB+1}], vcc
ds_write_b128 v{FT+5}, v[{z}:{z+3}] offset:32768
s_mov_b64 exec, s[{sB}:{sB+1}]
""")

    def zero_acc2():
        z = PT
        a(f"""
v_add_u32 v{XT}, {ACC}, v{vT16}
ds_write_b128 v{XT}, v[{z}:{z+3}]
ds_write_b128 v{XT}, v[{z}:{z+3}] offset:16384
""")

    AK = (0, 2, 3)

    def decode(rc, t, a=a):
        a(f"""
v_alignbit_b32 v{t}, v{rc}, v{rc+1}, 19
v_lshlrev_b32 v{t+1}, 10, v{rc+1}
v_and_b32 v{t}, 0xfff8, v{t}
v_lshlrev_b32 v{t+2}, 20, v{rc+1}
v_alignbit_b32 v{t+1}, v{rc+2}, v{t+1}, 19
v_alignbit_b32 v{t+2}, v{rc+3}, v{t+2}, 19
v_and_b32 v{t+1}, 0xfff8, v{t+1}
v_and_b32 v{t+2}, 0xfff8, v{t+2}
""")

    def gissue(mk, t, ga, a=a):
        a(f"""
s_mov_b64 exec, s[{mk}:{mk+1}]
ds_read_b64 v[{ga}:{ga+1}], v{t}
s_mov_b64 exec, s[{mk+2}:{mk+3}]
ds_read_b64 v[{ga+2}:{ga+3}], v{t+1}
s_mov_b64 exec, s[{mk+4}:{mk+5}]
ds_read_b64 v[{ga+4}:{ga+5}], v{t+2}
""")

    def gathers(mk, rc, ga, a=a):
        decode(rc, PT, a)
        gissue(mk, PT, ga, a)

    def qcalc(t, g, ak, row, a=a):
        c = row
        a(f"""
v_and_b32 v{c}, v{vMHi}, v{ak}
v_lshlrev_b32 v{t}, 16, v{g}
v_and_b32 v{t+1}, v{vMHi}, v{g}
v_lshlrev_b32 v{t+2}, 16, v{g+1}
v_and_b32 v{t+3}, v{vMHi}, v{g+1}
v_fma_f32 v{t}, v{t}, v{c}, v{vMagic}
v_fma_f32 v{t+1}, v{t+1}, v{c}, v{vMagic}
v_fma_f32 v{t+2}, v{t+2}, v{c}, v{vMagic}
v_fma_f32 v{t+3}, v{t+3}, v{c}, v{vMagic}
v_and_b32 v{row}, 0xfff8, v{ak}
v_lshl_add_u64 v[{t}:{t+1}], v[{t}:{t+1}], 0, s[{sNK}:{sNK+1}]
v_add_u32 v{row}, {ACC}, v{row}
v_lshl_add_u64 v[{t+2}:{t+3}], v[{t+2}:{t+3}], 0, s[{sNK}:{sNK+1}]
""")

    def adds(mkp, row, t, a=a):
        a(f"""
s_mov_b64 exec, {"1" if 'a' in abl else "s[%d:%d]" % (mkp, mkp+1)}
ds_add_u64 v{row}, v[{t}:{t+1}]
ds_add_u64 v{row}, v[{t+2}:{t+3}] offset:{ACCB}
""")

    def held(h):
        adds(MK[h] + 4, HR + 1, HQ + 4)
        a("s_mov_b64 exec, -1")

    def f32_one(mkp, g, ak, a):
        t = XT
        a(f"""
v_and_b32 v{vX0}, v{vMHi}, v{ak}
v_and_b32 v{vX0+1}, 0xfff8, v{ak}
v_add_u32 v{vX0+1}, {ACC}, v{vX0+1}
v_lshlrev_b32 v{t}, 16, v{g}
v_and_b32 v{t+1}, v{vMHi}, v{g}
v_lshlrev_b32 v{t+2}, 16, v{g+1}
v_and_b32 v{t+3}, v{vMHi}, v{g+1}
v_mul_f32 v{t}, v{t}, v{vX0}
v_mul_f32 v{t+1}, v{t+1}, v{vX0}
v_mul_f32 v{t+2}, v{t+2}, v{vX0}
v_mul_f32 v{t+3}, v{t+3}, v{vX0}
s_mov_b64 exec, s[{mkp}:{mkp+1}]
ds_add_f32 v{vX0+1}, v{t}
ds_add_f32 v{vX0+1}, v{t+1} offset:4
ds_add_f32 v{vX0+1}, v{t+2} offset:{ACCB}
ds_add_f32 v{vX0+1}, v{t+3} offset:{ACCB+4}
s_mov_b64 exec, -1
s_waitcnt lgkmcnt(0)
""")

    def accum_main(h, rc, tag, vf=False):
        mk = MK[h]
        a(f"s_cmp_lg_u32 s{sMode}, 0")
        a(f"s_cbranch_scc1 k2_accf_{tag}")
        qcalc(PT, GA, rc + AK[0], vC0)
        if not vf:
            adds(mk, vC0, PT)
            a("s_mov_b64 exec, -1")
        m_piece(MPS[h ^ 1], 'b')
        qcalc(HQ, GA + 2, rc + AK[1], HR)
        qcalc(HQ + 4, GA + 4, rc + AK[2], HR + 1)
        a(f"k2_acce_{tag}:")
        o(f"k2_accf_{tag}:")
        m_piece(MPS[h ^ 1], 'b', o)
        for k in range(3):
            f32_one(mk + 2 * k, GA + 2 * k, rc + AK[k], o)
        o(f"""
s_mov_b64 s[{mk}:{mk+1}], 0
s_mov_b64 s[{mk+2}:{mk+3}], 0
s_mov_b64 s[{mk+4}:{mk+5}], 0
s_branch k2_acce_{tag}
""")

    def last_adds(h, vf=False):
        if vf:
            adds(MK[h], vC0, PT)
        adds(MK[h] + 2, HR, HQ)
        a("s_mov_b64 exec, -1")

    def window_now(mk, rc, tag):
        gathers(mk, rc, GX, o)
        o(f"""
s_mov_b64 exec, -1
s_cmp_lg_u32 s{sMode}, 0
s_waitcnt lgkmcnt(0)
s_cbranch_scc1 k2_wf_{tag}
""")
        for k in range(3):
            qcalc(XT, GX + 2 * k, rc + AK[k], vX0, o)
            adds(mk + 2 * k, vX0, XT, o)
            o("s_mov_b64 exec, -1")
        o(f"s_branch k2_we_{tag}")
        o(f"k2_wf_{tag}:")
        for k in range(3):
            f32_one(mk + 2 * k, GX + 2 * k, rc + AK[k], o)
        o(f"k2_we_{tag}:")

    def scale_setup():
        a(f"""
v_mov_b32 v{XT}, {NW}
ds_read_b128 v[{XT}:{XT+3}], v{XT}
s_max_u32 s{MXS}, s{MXS}, s{MXS+1}
s_max_u32 s{MXS+2}, s{MXS+2}, s{MXS+3}
s_max_u32 s{MXS+4}, s{MXS+4}, s{MXS+5}
s_max_u32 s{MXS}, s{MXS}, s{MXS+2}
s_max_u32 s{MXS}, s{MXS}, s{MXS+4}
s_lshl_b32 s{sT2}, s{MXS}, 16
s_waitcnt lgkmcnt(0)
v_add_u32 v{XT}, v{XT}, v{XT+1}
v_add_u32 v{XT+2}, v{XT+2}, v{XT+3}
v_add_u32 v{XT}, v{XT}, v{XT+2}
v_lshrrev_b32 v{XT}, 4, v{XT}
v_mul_u32_u24 v{XT}, 3, v{XT}
v_max_u32 v{XT}, 1024, v{XT}
s_nop 0
v_readfirstlane_b32 s{sT0}, v{XT}
v_cvt_f32_u32 v{XT}, v{XT}
v_mul_f32 v{XT}, s{sT2}, v{XT}
v_mul_f32 v{XT}, 0x3f802000, v{XT}
s_nop 0
v_readfirstlane_b32 s{sT1}, v{XT}
s_mov_b32 s{sMode}, 0
s_cmp_gt_u32 s{sT0}, 65536
s_cselect_b32 s{sMode}, 1, s{sMode}
s_cmp_gt_u32 s{sT2}, 0x70000000
s_cselect_b32 s{sMode}, 1, s{sMode}
s_cmp_lt_u32 s{sT2}, 0x18000000
s_cselect_b32 s{sMode}, 1, s{sMode}
s_and_b32 s{sT1}, s{sT1}, 0x7f800000
s_and_b32 s{sT2}, s{sT2}, 0x7f800000
s_sub_u32 s{sPf}, s{sT1}, s{sT2}
s_add_u32 s{sMsc}, s{sT2}, {2 << 23}
s_add_u32 s{sPf}, s{sPf}, {(125 - 30) << 23}
s_sub_u32 s{sT1}, s{sT1}, {(7 << 23) - 0x400000}
v_mov_b32 v{vMagic}, s{sT1}
s_sub_u32 s{sNK}, 0, s{sT1}
s_not_b32 s{sNK+1}, s{sT1}
s_barrier
""")

    def early_setup():
        QP = 782
        a(f"""
s_load_dword s{MN[1]}, s[{MN[0]}:{MN[0]+1}], 0
s_load_dword s{MN[1]+1}, s[{MX[0]}:{MX[0]+1}], 0
s_load_dword s{MN[1]+2}, s[{MX[0]+2}:{MX[0]+3}], 0
s_load_dword s{MN[1]+3}, s[{MX[0]+4}:{MX[0]+5}], 0
s_load_dword s{MN[1]+4}, s[{MX[0]+6}:{MX[0]+7}], 0
s_mul_i32 s{sT1}, s{sRb}, {RB*8}
s_mul_i32 s{sT2}, s{sCg}, {QP*16}
s_add_u32 s{sT1}, s{sT1}, s{sT2}
v_add_u32 v{vO16}, s{sT1}, v{vT16}
s_sub_u32 s{sT2}, {RB*8}, s{sT2}
s_min_u32 s{sT2}, s{sT2}, {QP*16}
v_cmp_gt_u32 s[{sB}:{sB+1}], s{sT2}, v{vT16}
s_mov_b32 s{S_P+2}, {E*2}
s_mov_b32 s{S_P+3}, 0x00020000
v_cndmask_b32 v{vO16}, v{vMHi}, v{vO16}, s[{sB}:{sB+1}]
v_lshrrev_b32 v{vD}, 2, v{vO16}
""")

    def early():
        a(f"""
buffer_load_dword v{vD}, v{vD}, s[{S_P}:{S_P+3}], 0 offen
buffer_load_dwordx4 v[{vM}:{vM+3}], v{vO16}, s[{S_M}:{S_M+3}], 0 offen
""")

    def wait_bar(mkp, n, tag):
        a(f"""
s_cmp_eq_u64 s[{mkp}:{mkp+1}], 0
s_cbranch_scc1 k2_wz_{tag}
k2_w_{tag}:
s_setprio 3
s_waitcnt lgkmcnt({n})
s_barrier
""")
        o(f"""
k2_wz_{tag}:
s_waitcnt lgkmcnt(0)
s_branch k2_w_{tag}
""")

    NM = 10 if TID else 3
    NBC = 4 if TID else 1
    NA = 4 if TID else 1
    if TID:
        a(f"""
s_mul_i32 s{sWk}, s{sW}, 2560
s_add_u32 s{sT0}, s{sWk}, s{sMo}
v_lshrrev_b32 v{vLW}, 2, v{vL16}
v_add_u32 v{vLW}, s{sT0}, v{vLW}
""")
    RD = (RC[0], RC[1], RXW[0], RXW[1])
    FINE = OPT['fine'] == '1'
    FS = [80, 82, 84, 86, 88, 90, 16, 18, 24, 26]

    def fs(i, on=True):
        if FINE and on:
            a(f"s_memtime s[{FS[i]}:{FS[i]+1}]")

    a(f"""
s_lshl_b32 s{sT0}, s{sW}, 10
s_add_u32 m0, s{sT0}, {ACC}
s_nop 0
buffer_load_dwordx4 v{GA}, s[{S_T}:{S_T+3}], 0 offen lds
s_add_u32 m0, s{sT0}, {ACC+16384}
s_mov_b64 exec, s[{sC}:{sC+1}]
buffer_load_dwordx4 v{GA+1}, s[{S_T}:{S_T+3}], 0 offen lds
s_mov_b64 exec, -1
""")
    m_load()
    a(f"v_mov_b32 v{EN+21}, 0")
    a(f"v_mov_b32 v{EN+22}, 0")
    a(f"v_mov_b32 v{EN+23}, 0")
    common_init()
    early_setup()
    zero_acc()
    a(f"s_waitcnt vmcnt({NM})")
    a("s_barrier")
    for i in range(5):
        a(f"ds_read_b128 v[{EN+4*i}:{EN+4*i+3}], v{FT} offset:{16*i}")
    a(f"ds_read_b32 v{EN+20}, v{FT} offset:80")
    if OPT['pst2'] == '1':
        st_()
    a(f"""
s_cmp_lt_u32 s{sW}, 4
s_waitcnt lgkmcnt(0)
s_cbranch_scc1 k2_rem
""")
    def d_load(e, rc, t):
        a(f"""
v_and_b32 v{t}, 0x7fff0, v{e}
v_add_u32 v{t}, v{t}, v{vBase}
buffer_load_dwordx4 v[{rc}:{rc+3}], v{t}, s[{S_R}:{S_R+3}], 0 offen {ld}
""")

    d_load(EN, RD[0], FT)
    a(f"s_cmp_lt_u32 s{sW}, {OPT['gs']}")
    a("s_cbranch_scc1 k2_n2")
    d_load(EN + 1, RD[1], FT + 1)
    a("s_waitcnt vmcnt(2)")
    a("s_branch k2_n3")
    a("k2_n2:")
    a("s_waitcnt vmcnt(1)")
    a("k2_n3:")
    m_write()
    a("s_waitcnt lgkmcnt(0)")
    a("s_barrier")
    zero_acc2()
    scale_setup()
    m_load(MP2)

    def d_prep(r, off, par, n):
        mk = MK[r & 1]
        ldp = (r & 1) == par
        a(f"""
s_set_gpr_idx_on s{sJ}, 0x1
v_mov_b32 v{FT+1}, v{EN+off}
""")
        if ldp:
            a(f"v_mov_b32 v{FT+2}, v{EN+off+2}")
            a(f"v_mov_b32 v{FT+3}, v{EN+off+3}")
        a(f"""
s_set_gpr_idx_off
v_cmp_le_u32 s[{mk}:{mk+1}], v{TH}, v{FT+1}
v_cmp_le_u32 s[{mk+2}:{mk+3}], v{TH+1}, v{FT+1}
v_cmp_le_u32 s[{mk+4}:{mk+5}], v{TH+2}, v{FT+1}
""")
        if ldp:
            for t in (FT + 2, FT + 3):
                a(f"v_and_b32 v{t}, 0x7fff0, v{t}")
                a(f"v_add_u32 v{t}, v{t}, v{vBase}")
        if n is not None:
            a(f"s_waitcnt vmcnt({n})")
        decode(RD[r], AD)

    a(f"s_cmp_lt_u32 s{sW}, {OPT['gs']}")
    a("s_cbranch_scc1 k2_dv1")
    for par in (0, 1):
        if par == 1:
            a("k2_dv1:")
        if par == 1:
            d_load(EN + 1, RD[1], FT)
            d_load(EN + 2, RD[2], FT + 1)
        m_piece(MP, 'b')
        d_prep(0, 0, par, 1 + par + NM + NBC)
        a(f"k2_dloop{par}:")
        for r in range(4):
            h = r & 1
            mk = MK[h]
            on = r == int(OPT['fr'])
            fs(0, on)
            gissue(mk, AD, GA)
            a("s_setprio 0")
            a("s_mov_b64 exec, -1")
            fs(1, on)
            m_piece(MPS[h], 'c')
            m_piece(MPS[h], 'a')
            held(h ^ 1)
            fs(2, on)
            wait_bar(MK[h ^ 1] + 4, 2, f"da{par}{r}")
            fs(3, on)
            a(f"s_waitcnt vmcnt({NM if h == par else NM+2})")
            if h == par:
                a(f"buffer_load_dwordx4 v[{RD[(r+2)&3]}:{RD[(r+2)&3]+3}], v{FT+2}, s[{S_R}:{S_R+3}], 0 offen {ld}")
                a(f"buffer_load_dwordx4 v[{RD[(r+3)&3]}:{RD[(r+3)&3]+3}], v{FT+3}, s[{S_R}:{S_R+3}], 0 offen {ld}")
            fs(4, on)
            m_write(MPS[h ^ 1])
            a("s_setprio 0")
            fs(5, on)
            vf = OPT['vf'] == '1' and par == 0
            accum_main(h, RD[r], f"d{par}{r}", vf)
            fs(6, on)
            fs(7, on)
            d_prep((r + 1) & 3, r + 1, par, None if h == par else 1 + NM + NBC)
            if r == 3:
                a(f"s_add_u32 s{sJ}, s{sJ}, 4")
            last_adds(h, vf)
            fs(8, on)
            wait_bar(mk + 2, 4, f"db{par}{r}")
            fs(9, on)
        a(f"""
s_cmp_lt_u32 s{sJ}, {NPH if not FINE else int(OPT['fn'])}
s_cbranch_scc0 k2_epi
s_cmp_lg_u32 s{sJ}, 8
s_cbranch_scc1 k2_dloop{par}
""")
        early()
        a(f"s_branch k2_dloop{par}")

    nr, inc, pre, V, tg, val, e0 = FT, FT + 1, FT + 2, FT + 3, FT + 4, FT + 5, FT + 6
    dpp = "row_mask:0xf bank_mask:0xf"

    def flat_scan(ea, eb, stot, a=a):
        a(f"""
v_and_b32 v{nr}, 0x7fff0, v{eb}
v_and_b32 v{pre}, 0x7fff0, v{ea}
v_sub_u32 v{nr}, v{nr}, v{pre}
v_and_b32 v{V}, 0x7fff3, v{ea}
v_add_u32 v{nr}, -48, v{nr}
v_max_i32 v{nr}, 0, v{nr}
v_mov_b32 v{inc}, v{nr}
v_add_u32 v{V}, v{V}, v{vBase}
v_cmp_ne_u32 s[{sD}:{sD+1}], 0, v{nr}
""")
        scan(a, "v_add_u32", inc)
        a(f"""
v_sub_u32 v{pre}, v{inc}, v{nr}
v_readlane_b32 s{stot}, v{inc}, 63
v_sub_u32 v{V}, v{V}, v{pre}
""")

    def flat_push(swb, a=a):
        a(f"""
s_add_u32 s{sT1}, {swb}, 1024
v_cmp_ge_u32 s[{sA}:{sA+1}], {swb}, v{pre}
v_subrev_u32 v{tg}, {swb}, v{pre}
v_cmp_eq_u32 s[{sC}:{sC+1}], s{sT1}, v{inc}
s_bcnt1_i32_b64 s{sT0}, s[{sA}:{sA+1}]
v_add_u32 v{val}, -16, v{tg}
s_sub_u32 s{sT0}, s{sT0}, 1
v_cmp_gt_u32 vcc, 1008, v{val}
v_readlane_b32 s{sCarry}, v{V}, s{sT0}
v_lshrrev_b32 v{tg}, 2, v{tg}
s_and_b64 s[{sB}:{sB+1}], vcc, s[{sD}:{sD+1}]
v_cndmask_b32 v{tg}, 0, v{tg}, s[{sB}:{sB+1}]
v_cndmask_b32 v{val}, 0, v{V}, s[{sB}:{sB+1}]
ds_permute_b32 v{val}, v{tg}, v{val}
""")

    def flat_fin(swb, stot, mk, rc, a=a):
        a(f"""
v_cmp_ne_u32 s[{sA}:{sA+1}], 0, v{val}
v_add_u32 v{tg}, {swb}, v{vL16}
s_cmp_lg_u64 s[{sC}:{sC+1}], 0
v_max_u32_dpp v{val}, v{val}, v{val} row_shr:1 {dpp}
v_cmp_gt_u32 s[{mk}:{mk+1}], s{stot}, v{tg}
s_cselect_b32 s{sC+1}, 0x80000000, 0
v_max_u32_dpp v{val}, v{val}, v{val} row_shr:2 {dpp}
s_mov_b32 s{sC}, 0
s_lshr_b64 s[{sA}:{sA+1}], s[{sA}:{sA+1}], 1
v_max_u32_dpp v{val}, v{val}, v{val} row_shr:4 {dpp}
s_or_b64 s[{sC}:{sC+1}], s[{sC}:{sC+1}], s[{sA}:{sA+1}]
s_lshr_b64 s[{sA}:{sA+1}], s[{mk}:{mk+1}], 1
v_max_u32_dpp v{val}, v{val}, v{val} row_shr:8 {dpp}
s_andn2_b64 s[{sA}:{sA+1}], s[{mk}:{mk+1}], s[{sA}:{sA+1}]
s_bitset0_b64 s[{sA}:{sA+1}], 63
v_max_u32_dpp v{val}, v{val}, v{val} row_bcast:15 row_mask:0xa bank_mask:0xf
s_or_b64 s[{sC}:{sC+1}], s[{sC}:{sC+1}], s[{sA}:{sA+1}]
s_nop 0
v_max_u32_dpp v{val}, v{val}, v{val} row_bcast:31 row_mask:0xc bank_mask:0xf
v_max_u32 v{val}, s{sCarry}, v{val}
v_add_u32 v{tg}, v{tg}, v{val}
v_and_b32 v{val}, 3, v{val}
v_and_b32 v{tg}, -16, v{tg}
v_cmp_eq_u32 s[{sA}:{sA+1}], 2, v{val}
v_cmp_ne_u32 s[{sB}:{sB+1}], 0, v{val}
v_cndmask_b32 v{tg}, v{vMHi}, v{tg}, s[{mk}:{mk+1}]
buffer_load_dwordx4 v[{rc}:{rc+3}], v{vL16 if 'r' in abl else tg}, s[{S_R}:{S_R+3}], 0 offen {ld}
s_and_b64 s[{sA}:{sA+1}], s[{sA}:{sA+1}], s[{sC}:{sC+1}]
s_and_b64 s[{sB}:{sB+1}], s[{sB}:{sB+1}], s[{sC}:{sC+1}]
s_andn2_b64 s[{mk+2}:{mk+3}], s[{mk}:{mk+1}], s[{sA}:{sA+1}]
s_andn2_b64 s[{mk+4}:{mk+5}], s[{mk}:{mk+1}], s[{sB}:{sB+1}]
""")

    def second(h, tag):
        a(f"""
s_cmp_gt_u32 s{TOT[h]}, 1024
s_cbranch_scc1 k2_sy_{tag}
k2_ns_{tag}:
""")
        o(f"k2_sy_{tag}:")
        o(f"s_movk_i32 s{sXw}, 1024")
        flat_push(f"s{sXw}", o)
        o("s_waitcnt lgkmcnt(0)")
        flat_fin(f"s{sXw}", TOT[h], MX[h], RXW[h], o)
        o(f"s_branch k2_ns_{tag}")

    a("k2_rem:")
    a("s_setprio 1")
    flat_scan(EN, EN + 1, TOT[0])
    flat_push("0")
    a("s_waitcnt lgkmcnt(0)")
    flat_fin("0", TOT[0], MN[0], RC[0])
    second(0, "p0")
    if OPT['pst2'] == '1':
        st_()
    a(f"s_waitcnt vmcnt(1)")
    if OPT['pst2'] == '1':
        st_()
    m_write()
    a(f"""
v_and_b32 v{FT}, 0x7fff0, v{EN+20}
v_and_b32 v{FT+1}, 0x7fff0, v{EN}
v_sub_u32 v{FT}, v{FT}, v{FT+1}
s_lshl_b32 s{sT0}, s{sW}, 2
s_add_u32 s{sT0}, s{sT0}, {NW}
""")
    scan(a, "v_add_u32", FT)
    a(f"""
v_mov_b32 v{FT+3}, s{sT0}
{EXEC63}
ds_write_b32 v{FT+3}, v{FT}
s_mov_b64 exec, -1
s_waitcnt lgkmcnt(0)
s_barrier
""")
    st_()
    zero_acc2()
    scale_setup()
    st_()
    flat_scan(EN + 1, EN + 2, TOT[1])
    flat_push("0")
    m_load(MP2)
    m_piece(MP, 'b')
    a("s_waitcnt lgkmcnt(0)")
    flat_fin("0", TOT[1], MN[1], RC[1])
    second(1, "p1")

    def r_prep(h, off, n=NM+1):
        mk = MK[h]
        a(f"""
s_set_gpr_idx_on s{sJ}, 0x1
v_mov_b32 v{e0}, v{EN+off+2}
v_mov_b32 v{e0+1}, v{EN+off+3}
s_set_gpr_idx_off
""")
        flat_scan(e0, e0 + 1, sTN)
        a(f"s_waitcnt vmcnt({n})")
        for i in range(0, 6, 2):
            a(f"s_mov_b64 s[{mk+i}:{mk+i+1}], s[{MN[h]+i}:{MN[h]+i+1}]")
        decode(RC[h], AD)

    r_prep(0, 0, 1 + NM + NBC)
    if OPT['pst2'] == '1':
        st_()
    a("k2_rloop:")
    for h in range(2):
        mk = MK[h]
        on = h == (int(OPT['fr']) & 1)
        fs(0, on)
        gissue(mk, AD, GA)
        a("s_mov_b64 exec, -1")
        a(f"""
s_cmp_gt_u32 s{TOT[h]}, {1024 if not FINE else 0x7fffffff}
s_cbranch_scc1 k2_xy_{h}
k2_nx_{h}:
""")
        o(f"k2_xy_{h}:")
        window_now(MX[h], RXW[h], f"x{h}")
        o(f"""
s_waitcnt lgkmcnt(0)
s_cmp_le_u32 s{TOT[h]}, 2048
s_cbranch_scc1 k2_nx_{h}
s_movk_i32 s{sXw}, 2048
s_add_u32 s{sT2}, s{sJ}, {h}
s_call_b64 s[{sRet}:{sRet+1}], k2_slow
s_waitcnt lgkmcnt(0)
s_set_gpr_idx_on s{sJ}, 0x1
v_mov_b32 v{e0}, v{EN+h+2}
v_mov_b32 v{e0+1}, v{EN+h+3}
s_set_gpr_idx_off
""")
        flat_scan(e0, e0 + 1, sTN, o)
        o(f"s_branch k2_nx_{h}")
        flat_push("0")
        a("s_setprio 1")
        fs(1, on)
        m_piece(MPS[h], 'c')
        m_piece(MPS[h], 'a')
        a(f"s_mov_b32 s{TOT[h]}, s{sTN}")
        held(h ^ 1)
        fs(2, on)
        wait_bar(MK[h ^ 1] + 4, 2, f"ra{h}")
        fs(3, on)
        a(f"s_waitcnt vmcnt({NM+1})")
        fs(4, on)
        m_write(MPS[h ^ 1])
        a("s_setprio 1")
        fs(5, on)
        accum_main(h, RC[h], f"r{h}")
        fs(6, on)
        flat_fin("0", TOT[h], MN[h], RC[h])
        if not FINE:
            second(h, f"l{h}")
        fs(7, on)
        r_prep(h ^ 1, h + 1)
        last_adds(h)
        fs(8, on)
        if h == 1:
            a(f"s_add_u32 s{sJ}, s{sJ}, 2")
        wait_bar(mk + 2, 4, f"rb{h}")
        fs(9, on)
        if OPT['pst2'] == '1':
            st_()
    a(f"""
s_cmp_lt_u32 s{sJ}, {NPH if not FINE else int(OPT['fn'])}
s_cbranch_scc0 k2_epi
s_cmp_lg_u32 s{sJ}, 8
s_cbranch_scc1 k2_rloop
""")
    early()
    a("s_branch k2_rloop")
    def fused_epilogue():
        QP = 782
        EB = 64
        S_D, S_O, S_G = 4, 8, 24
        WR, WSB, WD, WU = 48, 64, 80, 88
        CE = 28
        CF = 80
        PP, PP2 = 20, 42
        tS = 40
        sSc, sFl = 44, 45
        vT = 9
        R = (16, 24)
        G = (32, 36)
        H = (40, 44)
        RP = (48, 52)
        S = (16, 20)
        AG = (24, 28)
        PL = 96
        a("k2_epi:")
        held(1)
        if FINE:
            a("s_waitcnt lgkmcnt(0)")
            for i2 in range(10):
                a(f"v_writelane_b32 v{FT}, s{FS[i2]}, {i2}")
            a(f"s_lshl_b32 s{sT0}, s2, 10")
            a(f"s_lshl_b32 s{sT1}, s{sW}, 6")
            a(f"s_add_u32 s{sT0}, s{sT0}, s{sT1}")
            srd_off(a, 28, P + 2, sT0, DIAG_OFF + 0x200000, 40)
            a(f"v_lshrrev_b32 v{FT+1}, 2, v{vL16}")
            a(f"buffer_store_dword v{FT}, v{FT+1}, s[28:31], 0 offen")
        a(f"""
s_load_dwordx2 s[{S_O}:{S_O+1}], s[0:1], {KA['out']}
s_load_dwordx2 s[{PP}:{PP+1}], s[0:1], {KA['centers']}
s_load_dwordx4 s[{WU}:{WU+3}], s[0:1], {KA['w_rbf']}
s_load_dwordx4 s[{WU+4}:{WU+7}], s[0:1], {KA['w_down']}
v_add_u32 v{vLW}, {ACC}, v{vT16}
v_add_u32 v{vBase}, {ACC+ACCB}, v{vT16}
v_mov_b32 v{vMagic}, s{sPf}
s_mul_i32 s{sT0}, s{sCg}, {E*8}
s_mul_i32 s{sT1}, s{sRb}, {RB*8}
s_add_u32 s{sT0}, s{sT0}, s{sT1}
v_cmp_ne_u32 s[{sNK}:{sNK+1}], v{vO16}, v{vMHi}
s_mov_b32 s{sJ}, s{sT0}
""")
        srd_off(a, S_P, P + 2, sT0, PART_OFF, RB * 8)
        srd_off(a, S_G, P + 2, None, HF_OFF, 8192)
        a(f"""
s_waitcnt vmcnt(0) lgkmcnt(0)
s_load_dwordx4 s[{CE}:{CE+3}], s[{PP}:{PP+1}], 0
s_load_dwordx16 s[{WR}:{WR+15}], s[{WU}:{WU+1}], 0
s_load_dwordx16 s[{WSB}:{WSB+15}], s[{WU+2}:{WU+3}], 0
s_mov_b64 s[{PP}:{PP+1}], s[{WU+4}:{WU+5}]
s_mov_b64 s[{PP2}:{PP2+1}], s[{WU+6}:{WU+7}]
s_barrier
""")
        st_()
        for it in range(4):
            b = EB + it * 8
            if it == 3:
                a(f"v_min_u32 v{vLW}, {ACC + 52*16}, v{vLW}")
                a(f"v_min_u32 v{vBase}, {ACC + ACCB + 52*16}, v{vBase}")
            a(f"ds_read_b128 v[{b}:{b+3}], v{vLW} offset:{it*16384}")
            a(f"ds_read_b128 v[{b+4}:{b+7}], v{vBase} offset:{it*16384}")
        a(f"""
s_mov_b32 s{S_O+2}, {E*8}
s_mov_b32 s{S_O+3}, 0x00020000
s_cmp_lg_u32 s{sMode}, 0
s_waitcnt lgkmcnt(0)
s_cbranch_scc1 k2_epf
""")
        for it in range(4):
            b = EB + it * 8
            for p in range(4):
                a(f"v_ashrrev_i32 v{FT+2+p}, 31, v{b+2*p}")
            for p in range(4):
                a(f"v_sub_u32 v{b+2*p+1}, v{b+2*p+1}, v{FT+2+p}")
            for p in range(8):
                a(f"v_cvt_f32_i32 v{b+p}, v{b+p}")
            for p in range(8):
                a(f"v_mul_f32 v{b+p}, v{vMagic}, v{b+p}")
            a(f"""
v_cvt_pk_f16_f32 v{b}, v{b}, v{b+1}
v_cvt_pk_f16_f32 v{b+1}, v{b+4}, v{b+5}
v_cvt_pk_f16_f32 v{b+2}, v{b+2}, v{b+3}
v_cvt_pk_f16_f32 v{b+3}, v{b+6}, v{b+7}
buffer_store_dwordx4 v[{b}:{b+3}], v{vT16}, s[{S_P}:{S_P+3}], 0 offen sc1
""")
            if it < 3:
                a(f"v_add_u32 v{vT16}, 16384, v{vT16}")
        a("k2_epj:")
        o("k2_epf:")
        o(f"s_lshl_b32 s{sT0}, s{sJ}, 1")
        srd_off(o, S_P, P + 2, sT0, P32_OFF, RB * 16)
        o(f"v_lshlrev_b32 v{vT16}, 1, v{vT16}")
        for it in range(4):
            b = EB + it * 8
            o(f"""
buffer_store_dwordx2 v[{b}:{b+1}], v{vT16}, s[{S_P}:{S_P+3}], 0 offen sc1
buffer_store_dwordx2 v[{b+4}:{b+5}], v{vT16}, s[{S_P}:{S_P+3}], 0 offen offset:8 sc1
buffer_store_dwordx2 v[{b+2}:{b+3}], v{vT16}, s[{S_P}:{S_P+3}], 0 offen offset:16 sc1
buffer_store_dwordx2 v[{b+6}:{b+7}], v{vT16}, s[{S_P}:{S_P+3}], 0 offen offset:24 sc1
v_add_u32 v{vT16}, 32768, v{vT16}
""")
        o("s_waitcnt vmcnt(0)")
        o("s_branch k2_epj")

        def rnd(x):
            a(f"v_cvt_pk_bf16_f32 v{x+1}, v{x}, v{x+1}")
            a(f"v_lshlrev_b32 v{x}, 16, v{x+1}")
            a(f"v_and_b32 v{x+1}, v{vMHi}, v{x+1}")

        a(f"""
s_cmp_gt_u32 s{sW}, 12
s_cbranch_scc1 k2_sig
""")
        for k in range(8):
            a(s_unpack(CF + k, CE, k))
        a(f"""
v_and_b32 v{vD+1}, v{vMHi}, v{vD}
v_lshlrev_b32 v{vD}, 16, v{vD}
""")
        for r in range(2):
            for k in range(0, 8, 2):
                a(f"v_pk_add_f32 v[{R[r]+k}:{R[r]+k+1}], v[{vD}:{vD+1}], s[{CF+k}:{CF+k+1}] op_sel:[{r},0] op_sel_hi:[{r},1] neg_lo:[0,1] neg_hi:[0,1]")
        a(f"s_load_dwordx8 s[{WD}:{WD+7}], s[{PP}:{PP+1}], 0")
        a(f"s_load_dwordx8 s[{WU}:{WU+7}], s[{PP2}:{PP2+1}], 0")
        allr = [R[r] + k for r in range(2) for k in range(8)]
        for x in allr[::2]:
            rnd(x)
        for x in allr:
            a(f"v_mul_f32 v{x}, v{x}, v{x}")
        for x in allr[::2]:
            rnd(x)
        for x in allr:
            a(f"v_mul_f32 v{x}, 0xc1200000, v{x}")
        for x in allr[::2]:
            rnd(x)
        st_()
        a("""
s_waitcnt vmcnt(0)
s_barrier
""")
        st_()
        for x in allr:
            a(f"v_mul_f32 v{x}, 0x3fb8aa3b, v{x}")
        for x in allr:
            a(f"v_exp_f32 v{x}, v{x}")
        a("s_nop 0")
        for r in range(2):
            for kk in range(4):
                a(f"v_cvt_pk_bf16_f32 v{RP[r]+kk}, v{R[r]+2*kk}, v{R[r]+2*kk+1}")
        cnt = [0]

        def wpair(base, kk, c):
            d = tS + (cnt[0] & 3)
            cnt[0] += 1
            op = "s_pack_ll_b32_b16" if c % 2 == 0 else "s_pack_hh_b32_b16"
            a(f"{op} s{d}, s{base + 4*kk + c//2}, s{base + 4*kk + 2 + c//2}")
            return d

        def dotmat(dst, src, base, nk):
            for kk in range(nk):
                for c in range(4):
                    w = wpair(base, kk, c)
                    for r in range(2):
                        acc = "0" if kk == 0 else f"v{dst[r]+c}"
                        a(f"v_dot2_f32_bf16 v{dst[r]+c}, v{src[r]+kk}, s{w}, {acc}")

        dotmat(H, RP, WR, 4)
        dotmat(G, RP, WSB, 4)
        for r in range(2):
            rnd(H[r])
            rnd(H[r] + 2)
        srd_off(a, S_P, P + 2, None, PART_OFF, 4 * E * 8)
        st_()
        a(f"""
v_mov_b32 v{vT}, {NW}
s_waitcnt lgkmcnt(0)
s_barrier
ds_read_b32 v{vT}, v{vT}
v_add_u32 v{FT}, {E*8}, v{vO16}
v_add_u32 v{FT+1}, {2*E*8}, v{vO16}
v_add_u32 v{FT+2}, {3*E*8}, v{vO16}
s_mov_b64 exec, s[{sNK}:{sNK+1}]
buffer_load_dwordx4 v[{PL}:{PL+3}], v{vO16}, s[{S_P}:{S_P+3}], 0 offen sc1
buffer_load_dwordx4 v[{PL+4}:{PL+7}], v{FT}, s[{S_P}:{S_P+3}], 0 offen sc1
buffer_load_dwordx4 v[{PL+8}:{PL+11}], v{FT+1}, s[{S_P}:{S_P+3}], 0 offen sc1
buffer_load_dwordx4 v[{PL+12}:{PL+15}], v{FT+2}, s[{S_P}:{S_P+3}], 0 offen sc1
s_waitcnt lgkmcnt(0)
v_readfirstlane_b32 s{sFl}, v{vT}
v_mov_b32 v{vT}, s{sMsc}
""")
        st_()
        a(f"""
s_cmp_gt_u32 s{sFl}, 255
s_cbranch_scc1 k2_fslow
s_waitcnt vmcnt(0)
""")
        for r in range(2):
            for c in range(4):
                reg = 2 * r + c // 2
                hi = c % 2
                d = S[r] + c
                a(f"v_fma_mix_f32 v{d}, v{PL+reg}, 1.0, v{PL+4+reg} op_sel:[{hi},0,{hi}] op_sel_hi:[1,0,1]")
                a(f"v_fma_mix_f32 v{d}, v{PL+8+reg}, 1.0, v{d} op_sel:[{hi},0,0] op_sel_hi:[1,0,0]")
                a(f"v_fma_mix_f32 v{d}, v{PL+12+reg}, 1.0, v{d} op_sel:[{hi},0,0] op_sel_hi:[1,0,0]")
        for r in range(2):
            for c in range(4):
                a(f"v_mul_f32 v{S[r]+c}, v{vT}, v{S[r]+c}")
        a("k2_fjoin:")
        for jj in range(4):
            for cp in range(2):
                d = tS + 2 * ((jj * 2 + cp) & 1)
                a(s_unpack(d, WD, jj * 4 + cp * 2))
                a(s_unpack(d + 1, WD, jj * 4 + cp * 2 + 1))
                for r in range(2):
                    sp = S[r] + (jj & ~1)
                    oo = jj & 1
                    dd = AG[r] + 2 * cp
                    if jj == 0:
                        a(f"v_pk_mul_f32 v[{dd}:{dd+1}], v[{sp}:{sp+1}], s[{d}:{d+1}] op_sel:[{oo},0] op_sel_hi:[{oo},1]")
                    else:
                        a(f"v_pk_fma_f32 v[{dd}:{dd+1}], v[{sp}:{sp+1}], s[{d}:{d+1}], v[{dd}:{dd+1}] op_sel:[{oo},0,0] op_sel_hi:[{oo},1,1]")
        for r in range(2):
            for c in range(4):
                a(f"v_mul_f32 v{AG[r]+c}, v{AG[r]+c}, v{G[r]+c}")
        for r in range(2):
            for kk in range(2):
                a(f"v_cvt_pk_bf16_f32 v{RP[r]+kk}, v{AG[r]+2*kk}, v{AG[r]+2*kk+1}")
        dotmat(G, RP, WU, 2)
        for r in range(2):
            for cp in range(2):
                a(f"v_lshlrev_b32 v{S[r]+2*cp}, 16, v{vM+2*r+cp}")
                a(f"v_and_b32 v{S[r]+2*cp+1}, v{vMHi}, v{vM+2*r+cp}")
        for r in range(2):
            rnd(G[r])
            rnd(G[r] + 2)
        for r in range(2):
            for c in range(4):
                a(f"v_mul_f32 v{G[r]+c}, v{G[r]+c}, v{H[r]+c}")
        for r in range(2):
            rnd(G[r])
            rnd(G[r] + 2)
        for r in range(2):
            for c in range(4):
                a(f"v_add_f32 v{G[r]+c}, v{G[r]+c}, v{S[r]+c}")
        for r in range(2):
            for cp in range(2):
                a(f"v_cvt_pk_bf16_f32 v{vM+2*r+cp}, v{G[r]+2*cp}, v{G[r]+2*cp+1}")
        a(f"buffer_store_dwordx4 v[{vM}:{vM+3}], v{vO16}, s[{S_O}:{S_O+3}], 0 offen")
        st_()
        st_.flush(FT)
        a("""
k2_done:
s_endpgm
""")
        a(f"""
k2_sig:
s_waitcnt vmcnt(0)
s_barrier
s_cmp_lg_u32 s{sW}, 15
s_cbranch_scc1 k2_sig_e
s_add_u32 s{sT0}, s{sCg}, 8
s_lshl_b32 s{sT0}, s{sMode}, s{sT0}
s_add_u32 s{sT0}, s{sT0}, 1
s_lshl_b32 s{sT1}, s{sRb}, 7
s_lshl_b32 s{sT2}, s{sCg}, 2
s_add_u32 s{sT2}, s{sT2}, s{sT1}
s_mov_b64 exec, 1
v_mov_b32 v{FT}, s{sT1}
v_mov_b32 v{FT+1}, s{sT0}
v_mov_b32 v{FT+2}, s{sT2}
buffer_store_dword v{FT+1}, v{FT+2}, s[{S_G}:{S_G+3}], 0 offen sc1
s_mov_b32 s{sT2}, 0x100000
k2_poll:
buffer_load_dwordx4 v[{FT+4}:{FT+7}], v{FT}, s[{S_G}:{S_G+3}], 0 offen sc1
s_waitcnt vmcnt(0)
v_add_u32 v{FT+1}, v{FT+4}, v{FT+5}
v_add3_u32 v{FT+1}, v{FT+1}, v{FT+6}, v{FT+7}
s_nop 0
v_readfirstlane_b32 s{sT1}, v{FT+1}
s_and_b32 s{sT1}, s{sT1}, 255
s_cmp_ge_u32 s{sT1}, 4
s_cbranch_scc1 k2_poll_e
s_sub_u32 s{sT2}, s{sT2}, 1
s_cbranch_scc1 k2_poll_e
s_sleep 1
s_branch k2_poll
k2_poll_e:
v_mov_b32 v{FT}, {NW}
ds_write_b32 v{FT}, v{FT+1}
s_waitcnt lgkmcnt(0)
k2_sig_e:
s_barrier
s_endpgm
""")
        o("k2_fslow:")
        srd_off(o, S_D, P + 2, None, P32_OFF, 4 * E * 16)
        o(f"v_lshlrev_b32 v{FT}, 1, v{vO16}")
        for i2 in range(8):
            o(f"v_mov_b32 v{S[0]+i2}, 0")
        o("s_waitcnt vmcnt(0)")
        for c in range(4):
            o(f"""
s_bitcmp1_b32 s{sFl}, {8+c}
s_cbranch_scc1 k2_s32_{c}
""")
            for r in range(2):
                for cc in range(4):
                    reg = 2 * r + cc // 2
                    o(f"v_fma_mix_f32 v{S[r]+cc}, v{PL+4*c+reg}, v{vT}, v{S[r]+cc} op_sel:[{cc%2},0,0] op_sel_hi:[1,0,0]")
            o(f"""
s_branch k2_sn_{c}
k2_s32_{c}:
buffer_load_dwordx4 v[24:27], v{FT}, s[{S_D}:{S_D+3}], 0 offen sc1
buffer_load_dwordx4 v[28:31], v{FT}, s[{S_D}:{S_D+3}], 0 offen offset:16 sc1
s_waitcnt vmcnt(0)
""")
            for i2 in range(8):
                o(f"v_add_f32 v{S[0]+i2}, v{S[0]+i2}, v{24+i2}")
            o(f"k2_sn_{c}:")
            o(f"v_add_u32 v{FT}, {E*16}, v{FT}")
        o("s_branch k2_fjoin")

    def plain_epilogue():
        a("k2_epi:")
        held(1)
        if FINE:
            a("s_waitcnt lgkmcnt(0)")
            for i2 in range(10):
                a(f"v_writelane_b32 v{FT}, s{FS[i2]}, {i2}")
            a(f"s_lshl_b32 s{sT0}, s2, 10")
            a(f"s_lshl_b32 s{sT1}, s{sW}, 6")
            a(f"s_add_u32 s{sT0}, s{sT0}, s{sT1}")
            srd_off(a, 28, P + 2, sT0, DIAG_OFF + 0x200000, 40)
            a(f"v_lshrrev_b32 v{FT+1}, 2, v{vL16}")
            a(f"buffer_store_dword v{FT}, v{FT+1}, s[28:31], 0 offen")
        EB = 64
        a(f"""
v_add_u32 v{vLW}, {ACC}, v{vT16}
v_add_u32 v{vBase}, {ACC+ACCB}, v{vT16}
v_mov_b32 v{vMagic}, s{sPf}
s_lshl_b32 s{sT0}, s{sCo}, 2
v_mov_b32 v{FT}, s{sT0}
v_mov_b32 v{FT+1}, s{sMode}
""")
        srd_off(a, S_T, P + 2, None, FLAG_OFF, 1024)
        a(f"""
s_mul_i32 s{sT0}, s{sCg}, {E*8}
s_mul_i32 s{sT1}, s{sRb}, {RB*8}
s_add_u32 s{sT0}, s{sT0}, s{sT1}
""")
        srd_off(a, S_P, P + 2, sT0, PART_OFF, RB * 8)
        a(f"s_lshl_b32 s{sT0}, s{sT0}, 1")
        srd_off(a, S_M, P + 2, sT0, P32_OFF, RB * 16)
        a(f"""
s_waitcnt vmcnt(0) lgkmcnt(0)
s_barrier
""")
        st_()
        for it in range(4):
            b = EB + it * 8
            if it == 3:
                a(f"v_min_u32 v{vLW}, {ACC + 52*16}, v{vLW}")
                a(f"v_min_u32 v{vBase}, {ACC + ACCB + 52*16}, v{vBase}")
            a(f"ds_read_b128 v[{b}:{b+3}], v{vLW} offset:{it*16384}")
            a(f"ds_read_b128 v[{b+4}:{b+7}], v{vBase} offset:{it*16384}")
        a(f"""
v_cmp_eq_u32 vcc, 0, v0
s_and_saveexec_b64 s[{sA}:{sA+1}], vcc
buffer_store_dword v{FT+1}, v{FT}, s[{S_T}:{S_T+3}], 0 offen
s_mov_b64 exec, s[{sA}:{sA+1}]
s_cmp_lg_u32 s{sMode}, 0
s_cbranch_scc1 k2_epf
""")
        for it in range(4):
            b = EB + it * 8
            a(f"s_waitcnt lgkmcnt({2*(3-it)})")
            for p in range(4):
                a(f"v_ashrrev_i32 v{FT+2+p}, 31, v{b+2*p}")
            for p in range(4):
                a(f"v_sub_u32 v{b+2*p+1}, v{b+2*p+1}, v{FT+2+p}")
            for p in range(8):
                a(f"v_cvt_f32_i32 v{b+p}, v{b+p}")
            for p in range(8):
                a(f"v_mul_f32 v{b+p}, v{vMagic}, v{b+p}")
            a(f"""
v_cvt_pk_f16_f32 v{b}, v{b}, v{b+1}
v_cvt_pk_f16_f32 v{b+1}, v{b+4}, v{b+5}
v_cvt_pk_f16_f32 v{b+2}, v{b+2}, v{b+3}
v_cvt_pk_f16_f32 v{b+3}, v{b+6}, v{b+7}
buffer_store_dwordx4 v[{b}:{b+3}], v{vT16}, s[{S_P}:{S_P+3}], 0 offen {pst}
""")
            if it < 3:
                a(f"v_add_u32 v{vT16}, 16384, v{vT16}")
        st_()
        if st_.on:
            a("s_waitcnt vmcnt(0)")
        st_()
        st_.flush(FT)
        a("""
k2_done:
s_endpgm
k2_epf:
s_waitcnt lgkmcnt(0)
""")
        a(f"v_lshlrev_b32 v{vT16}, 1, v{vT16}")
        for it in range(4):
            b = EB + it * 8
            a(f"""
buffer_store_dwordx2 v[{b}:{b+1}], v{vT16}, s[{S_M}:{S_M+3}], 0 offen
buffer_store_dwordx2 v[{b+4}:{b+5}], v{vT16}, s[{S_M}:{S_M+3}], 0 offen offset:8
buffer_store_dwordx2 v[{b+2}:{b+3}], v{vT16}, s[{S_M}:{S_M+3}], 0 offen offset:16
buffer_store_dwordx2 v[{b+6}:{b+7}], v{vT16}, s[{S_M}:{S_M+3}], 0 offen offset:24
v_add_u32 v{vT16}, 32768, v{vT16}
""")
        a("s_endpgm")

    if OPT['fuse'] == '1':
        fused_epilogue()
    else:
        plain_epilogue()
    o("k2_slow:")
    o(f"""
s_set_gpr_idx_on s{sT2}, 0x1
v_mov_b32 v{e0}, v{EN}
v_mov_b32 v{e0+1}, v{EN+1}
s_set_gpr_idx_off
""")
    flat_scan(e0, e0 + 1, sTot, o)
    o("k2_slow_l:")
    flat_push(f"s{sXw}", o)
    o("s_waitcnt lgkmcnt(0)")
    flat_fin(f"s{sXw}", sTot, MS, RS, o)
    o("s_waitcnt vmcnt(0)")
    window_now(MS, RS, "slow")
    o(f"""
s_add_u32 s{sXw}, s{sXw}, 1024
s_cmp_lt_u32 s{sXw}, s{sTot}
s_cbranch_scc1 k2_slow_l
s_setpc_b64 s[{sRet}:{sRet+1}]
""")
    txt = a.s
    if OPT['abl2']:
        i0 = txt.index('k2_dloop0:'); i1 = txt.index('k2_rem:'); i2 = txt.index('k2_rloop:'); i3 = txt.index('k2_epi:')
        def filt(t):
            out = []
            for l in t.split('\n'):
                x = l.strip()
                f = OPT['abl2']
                if 'v' in f and (x.startswith('buffer_') or x.startswith('s_waitcnt vmcnt')): continue
                if 'd' in f and x.startswith('ds_add'): continue
                if 'g' in f and x.startswith('ds_read'): continue
                if 'q' in f and (x.startswith('v_fma') or x.startswith('v_lshl_add_u64') or x.startswith('v_lshlrev_b32') or x.startswith('v_alignbit')): continue
                if 'p' in f and ('_dpp' in x or x.startswith('s_nop') or x.startswith('v_readlane') or x.startswith('v_cndmask') or x.startswith('ds_permute')): continue
                if 'e' in f and x.startswith('s_mov_b64 exec'): continue
                if 'b' in f and x.startswith('s_barrier'): continue
                if 'x' in f and (x.startswith('s_set_gpr')): continue
                out.append(l)
            return '\n'.join(out)
        txt = txt[:i0] + filt(txt[i0:i1]) + txt[i1:i2] + filt(txt[i2:i3]) + txt[i3:]
    return txt + o.s, NVG, NW + 64


def gen_k3():
    a = A()
    pld = OPT['pld']
    S_M, S_D, S_O, S_P = 4, 8, 12, 16
    WR, WSB, WD, WU, CE = 20, 36, 52, 60, 68
    CF = 72
    PP = 72
    FL = 84
    MXS = 88
    sT = 80
    sWs = 96
    st_ = Stamper(a, 2, 98, sWs, 60, S_P)
    st_.start()
    vO16, vD, vM, vHi = 1, 2, 4, 8
    PL = 12
    R = (28, 36)
    G = (44, 48)
    H = (52, 56)
    S = (28, 32)
    RP = (62, 66)
    vT = 9
    a(f"""
s_cmp_ge_u32 s2, 1600
s_cbranch_scc1 k3_done
s_load_dwordx2 s[{S_M}:{S_M+1}], s[0:1], {KA['m']}
s_load_dwordx2 s[{S_D}:{S_D+1}], s[0:1], {KA['dist']}
s_load_dwordx2 s[{S_O}:{S_O+1}], s[0:1], {KA['out']}
s_load_dwordx2 s[{sWs}:{sWs+1}], s[0:1], {KA['ws']}
s_load_dwordx2 s[{PP}:{PP+1}], s[0:1], {KA['centers']}
s_load_dwordx4 s[{PP+4}:{PP+7}], s[0:1], {KA['w_rbf']}
s_load_dwordx4 s[{PP+8}:{PP+11}], s[0:1], {KA['w_down']}
s_mul_i32 s3, s2, 2000
v_lshlrev_b32 v{vO16}, 4, v0
v_add_u32 v{vO16}, s3, v{vO16}
v_mov_b32 v{vHi}, 0xffff0000
v_cmp_gt_u32 vcc, 125, v0
s_and_b64 exec, exec, vcc
v_lshrrev_b32 v{vT}, 2, v{vO16}
s_mul_i32 s3, s2, 5243
s_lshr_b32 s3, s3, 17
s_lshl_b32 s3, s3, 4
s_waitcnt lgkmcnt(0)
""")
    a(srd(S_D, S_D, E * 2))
    a(f"buffer_load_dword v{vD}, v{vT}, s[{S_D}:{S_D+3}], 0 offen")
    a(f"""
s_load_dwordx4 s[{CE}:{CE+3}], s[{PP}:{PP+1}], 0
s_load_dwordx16 s[{WR}:{WR+15}], s[{PP+4}:{PP+5}], 0
s_load_dwordx16 s[{WSB}:{WSB+15}], s[{PP+6}:{PP+7}], 0
s_load_dwordx8 s[{WD}:{WD+7}], s[{PP+8}:{PP+9}], 0
s_load_dwordx8 s[{WU}:{WU+7}], s[{PP+10}:{PP+11}], 0
s_add_u32 s{PP+2}, s{sWs}, {MAX_OFF}
s_addc_u32 s{PP+3}, s{sWs+1}, 0
s_load_dwordx8 s[{MXS}:{MXS+7}], s[{PP+2}:{PP+3}], 0
s_add_u32 s{PP+2}, s{PP+2}, s3
s_addc_u32 s{PP+3}, s{PP+3}, 0
s_load_dwordx4 s[{FL}:{FL+3}], s[{PP+2}:{PP+3}], {FLAG_OFF-MAX_OFF}
""")
    srd_off(a, S_P, sWs, None, PART_OFF, 4 * E * 8)
    for c in range(4):
        if c:
            a(f"s_mov_b32 s3, {c*E*8}")
        a(f"buffer_load_dwordx4 v[{PL+4*c}:{PL+4*c+3}], v{vO16}, s[{S_P}:{S_P+3}], {'s3' if c else '0'} offen {pld}")
    a(srd(S_M, S_M, E * 8) + srd(S_O, S_O, E * 8))
    a(f"buffer_load_dwordx4 v[{vM}:{vM+3}], v{vO16}, s[{S_M}:{S_M+3}], 0 offen")
    a("s_waitcnt lgkmcnt(0)")
    for k in range(8):
        a(s_unpack(CF + k, CE, k))
    a(f"""
s_max_u32 s{MXS}, s{MXS}, s{MXS+1}
s_max_u32 s{MXS+2}, s{MXS+2}, s{MXS+3}
s_max_u32 s{MXS+4}, s{MXS+4}, s{MXS+5}
s_max_u32 s{MXS}, s{MXS}, s{MXS+2}
s_max_u32 s{MXS}, s{MXS}, s{MXS+4}
s_lshl_b32 s3, s{MXS}, 16
s_and_b32 s3, s3, 0x7f800000
s_add_u32 s3, s3, {2 << 23}
s_waitcnt vmcnt(5)
v_and_b32 v{vD+1}, v{vHi}, v{vD}
v_lshlrev_b32 v{vD}, 16, v{vD}
""")

    st_.init()
    st_()

    def rnd(x):
        a(f"v_cvt_pk_bf16_f32 v{x+1}, v{x}, v{x+1}")
        a(f"v_lshlrev_b32 v{x}, 16, v{x+1}")
        a(f"v_and_b32 v{x+1}, v{vHi}, v{x+1}")

    for r in range(2):
        for k in range(0, 8, 2):
            a(f"v_pk_add_f32 v[{R[r]+k}:{R[r]+k+1}], v[{vD}:{vD+1}], s[{CF+k}:{CF+k+1}] op_sel:[{r},0] op_sel_hi:[{r},1] neg_lo:[0,1] neg_hi:[0,1]")
    allr = [R[r] + k for r in range(2) for k in range(8)]
    for x in allr[::2]:
        rnd(x)
    for x in allr:
        a(f"v_mul_f32 v{x}, v{x}, v{x}")
    for x in allr[::2]:
        rnd(x)
    for x in allr:
        a(f"v_mul_f32 v{x}, 0xc1200000, v{x}")
    for x in allr[::2]:
        rnd(x)
    for x in allr:
        a(f"v_mul_f32 v{x}, 0x3fb8aa3b, v{x}")
    for x in allr:
        a(f"v_exp_f32 v{x}, v{x}")
    a("s_nop 0")
    for r in range(2):
        for kk in range(4):
            a(f"v_cvt_pk_bf16_f32 v{RP[r]+kk}, v{R[r]+2*kk}, v{R[r]+2*kk+1}")

    cnt = [0]

    def wpair(base, kk, c):
        d = sT + (cnt[0] & 3)
        cnt[0] += 1
        op = "s_pack_ll_b32_b16" if c % 2 == 0 else "s_pack_hh_b32_b16"
        a(f"{op} s{d}, s{base + 4*kk + c//2}, s{base + 4*kk + 2 + c//2}")
        return d

    def dotmat(dst, src, base, nk):
        for kk in range(nk):
            for c in range(4):
                w = wpair(base, kk, c)
                for r in range(2):
                    acc = "0" if kk == 0 else f"v{dst[r]+c}"
                    a(f"v_dot2_f32_bf16 v{dst[r]+c}, v{src[r]+kk}, s{w}, {acc}")

    dotmat(H, RP, WR, 4)
    dotmat(G, RP, WSB, 4)
    for r in range(2):
        rnd(H[r])
        rnd(H[r] + 2)
    a(f"""
s_or_b32 s{sT}, s{FL}, s{FL+1}
s_or_b32 s{sT+1}, s{FL+2}, s{FL+3}
s_or_b32 s{sT}, s{sT}, s{sT+1}
v_mov_b32 v{vT}, s3
s_cmp_lg_u32 s{sT}, 0
s_cbranch_scc1 k3_slow
s_waitcnt vmcnt(1)
""")
    for r in range(2):
        for c in range(4):
            reg = 2 * r + c // 2
            hi = c % 2
            d = S[r] + c
            a(f"v_fma_mix_f32 v{d}, v{PL+reg}, 1.0, v{PL+4+reg} op_sel:[{hi},0,{hi}] op_sel_hi:[1,0,1]")
            a(f"v_fma_mix_f32 v{d}, v{PL+8+reg}, 1.0, v{d} op_sel:[{hi},0,0] op_sel_hi:[1,0,0]")
            a(f"v_fma_mix_f32 v{d}, v{PL+12+reg}, 1.0, v{d} op_sel:[{hi},0,0] op_sel_hi:[1,0,0]")
    for r in range(2):
        for c in range(4):
            a(f"v_mul_f32 v{S[r]+c}, v{vT}, v{S[r]+c}")
    a("k3_join:")
    st_()
    AG = (36, 40)
    for j in range(4):
        for cp in range(2):
            d = sT + 2 * ((j * 2 + cp) & 1)
            a(s_unpack(d, WD, j * 4 + cp * 2))
            a(s_unpack(d + 1, WD, j * 4 + cp * 2 + 1))
            for r in range(2):
                sp = S[r] + (j & ~1)
                o = j & 1
                dd = AG[r] + 2 * cp
                if j == 0:
                    a(f"v_pk_mul_f32 v[{dd}:{dd+1}], v[{sp}:{sp+1}], s[{d}:{d+1}] op_sel:[{o},0] op_sel_hi:[{o},1]")
                else:
                    a(f"v_pk_fma_f32 v[{dd}:{dd+1}], v[{sp}:{sp+1}], s[{d}:{d+1}], v[{dd}:{dd+1}] op_sel:[{o},0,0] op_sel_hi:[{o},1,1]")
    for r in range(2):
        for c in range(4):
            a(f"v_mul_f32 v{AG[r]+c}, v{AG[r]+c}, v{G[r]+c}")
    for r in range(2):
        for kk in range(2):
            a(f"v_cvt_pk_bf16_f32 v{RP[r]+kk}, v{AG[r]+2*kk}, v{AG[r]+2*kk+1}")
    dotmat(G, RP, WU, 2)
    a("s_waitcnt vmcnt(0)")
    for r in range(2):
        for cp in range(2):
            a(f"v_lshlrev_b32 v{S[r]+2*cp}, 16, v{vM+2*r+cp}")
            a(f"v_and_b32 v{S[r]+2*cp+1}, v{vHi}, v{vM+2*r+cp}")
    for r in range(2):
        rnd(G[r])
        rnd(G[r] + 2)
    for r in range(2):
        for c in range(4):
            a(f"v_mul_f32 v{G[r]+c}, v{G[r]+c}, v{H[r]+c}")
    for r in range(2):
        rnd(G[r])
        rnd(G[r] + 2)
    for r in range(2):
        for c in range(4):
            a(f"v_add_f32 v{G[r]+c}, v{G[r]+c}, v{S[r]+c}")
    for r in range(2):
        for cp in range(2):
            a(f"v_cvt_pk_bf16_f32 v{vM+2*r+cp}, v{G[r]+2*cp}, v{G[r]+2*cp+1}")
    a(f"""
buffer_store_dwordx4 v[{vM}:{vM+3}], v{vO16}, s[{S_O}:{S_O+3}], 0 offen
""")
    st_()
    st_.flush(61)
    a(f"""
k3_done:
s_endpgm
k3_slow:
""")
    srd_off(a, S_D, sWs, None, P32_OFF, 4 * E * 16)
    a(f"v_lshlrev_b32 v{vT+1}, 1, v{vO16}")
    for i in range(8):
        a(f"v_mov_b32 v{S[0]+i}, 0")
    a("s_waitcnt vmcnt(0)")
    for c in range(4):
        a(f"""
s_cmp_lg_u32 s{FL+c}, 0
s_cbranch_scc1 k3_s32_{c}
""")
        for r in range(2):
            for cc in range(4):
                reg = 2 * r + cc // 2
                a(f"v_fma_mix_f32 v{S[r]+cc}, v{PL+4*c+reg}, v{vT}, v{S[r]+cc} op_sel:[{cc%2},0,0] op_sel_hi:[1,0,0]")
        a(f"""
s_branch k3_sn_{c}
k3_s32_{c}:
buffer_load_dwordx4 v[36:39], v{vT+1}, s[{S_D}:{S_D+3}], 0 offen
buffer_load_dwordx4 v[40:43], v{vT+1}, s[{S_D}:{S_D+3}], 0 offen offset:16
s_waitcnt vmcnt(0)
""")
        for i in range(8):
            a(f"v_add_f32 v{S[0]+i}, v{S[0]+i}, v{36+i}")
        a(f"k3_sn_{c}:")
        a(f"v_add_u32 v{vT+1}, {E*16}, v{vT+1}")
    a("s_branch k3_join")
    return a.s


k2, k2v, k2lds = gen_k2()
out = HEADER
out += "; K1: 2-D fine binning of triplets (register-resident tile), K2: LDS gather + integer LDS accumulation + finalize\n"
out += f"; @launch kernel=k1_kernel grid=({NT+NMX},1,1) block=(1024,1,1) lds={LDS_ALL}\n"
out += f"; @launch kernel=k2_kernel grid=(256,1,1) block=(1024,1,1) lds={k2lds}\n"
if OPT['fuse'] == '0':
    out += "; @launch kernel=k3_kernel grid=(1600,1,1) block=(128,1,1) lds=0\n"
out += '.amdgcn_target "amdgcn-amd-amdhsa--gfx950"\n'
out += kernel_begin('k1_kernel') + gen_k1()
out += kernel_begin('k2_kernel') + k2
if OPT['fuse'] == '0':
    out += kernel_begin('k3_kernel') + gen_k3()
out += kernel_desc('k1_kernel', 128, 80) + kernel_desc('k2_kernel', k2v, 102)
if OPT['fuse'] == '0':
    out += kernel_desc('k3_kernel', 70, 102 if OPT['diag'] == '1' else 98)
open(sys.argv[1], 'w').write(out)
```

```python
import sys
sys.path.insert(0, 'dev')
from common import *

NT = 250
NMX = 6
TILE = 51200
RB = 6250
CB = 5000
NCB = 80
NPH = 20
F = 64 * NCB
TGB = 20544 * 16
TABS = (F + 4) * 4
CAPG = 6826
CAP8 = CAPG * 24
REC_OFF = 0
TAB_OFF = 0x5000000
MAX_OFF = 0x5500000
FLAG_OFF = 0x5501000
HF_OFF = 0x5504000
PART_OFF = 0x5600000
P32_OFF = 0x6400000
DIAG_OFF = 0xFC00000
LDS_ALL = 163840
assert NT * TGB <= TAB_OFF and TAB_OFF + NT * TABS <= MAX_OFF

OPT = dict(ld='nt', st='', k2ld='', pst='', pld='', diag='0', depth='3', ne='4', nm='1', abl='', rb='0', fuse='1', abl2='', clk='0', tid='1', wb='0', fine='0', fr='2', fn='12', gs='10', vf='0', pst2='0', ff='1')
for a_ in sys.argv[2:]:
    k_, v_ = a_.split('=')
    OPT[k_] = v_.replace('+', ' ')

BFI = "bitop3:0xca"
ANDOR = "bitop3:0xea"


class A:
    def __init__(self):
        self.s = ""

    def __call__(self, txt):
        for l in txt.strip('\n').split('\n'):
            l = l.strip()
            if not l:
                continue
            self.s += ("" if l.endswith(':') else "    ") + l + "\n"


def srd_off(a, d, ptr, off_sgpr, off_imm, nbytes):
    if off_sgpr is not None:
        a(f"s_add_u32 s{d}, s{ptr}, s{off_sgpr}")
        a(f"s_addc_u32 s{d+1}, s{ptr+1}, 0")
        if off_imm:
            a(f"s_add_u32 s{d}, s{d}, {off_imm}")
            a(f"s_addc_u32 s{d+1}, s{d+1}, 0")
    else:
        a(f"s_add_u32 s{d}, s{ptr}, {off_imm}")
        a(f"s_addc_u32 s{d+1}, s{ptr+1}, 0")
    a(f"s_mov_b32 s{d+2}, {nbytes}")
    a(f"s_mov_b32 s{d+3}, 0x00020000")


class Stamper:
    def __init__(self, a, kidx, sbase, wsptr, vtmp, srd):
        self.a, self.k, self.sb, self.ws, self.v, self.srd = a, kidx, sbase, wsptr, vtmp, srd
        self.on = OPT['diag'] == '1'

    def start(self):
        if self.on:
            self.a(f"s_memrealtime s[{self.sb+2}:{self.sb+3}]")

    def init(self):
        if not self.on:
            return
        a, sb = self.a, self.sb
        a(f"s_mov_b64 s[{sb}:{sb+1}], exec")
        a(f"s_mov_b64 exec, -1")
        a(f"v_mov_b32 v{self.v}, 0")
        a(f"s_mov_b64 exec, s[{sb}:{sb+1}]")
        a(f"v_writelane_b32 v{self.v}, s{sb+2}, 0")
        a(f"s_mov_b32 s{sb+3}, 1")

    def __call__(self):
        if not self.on:
            return
        a, sb = self.a, self.sb
        a(f"s_memrealtime s[{sb}:{sb+1}]")
        a(f"s_mov_b32 s{sb+2}, m0")
        a(f"s_mov_b32 m0, s{sb+3}")
        a("s_waitcnt lgkmcnt(0)")
        a(f"v_writelane_b32 v{self.v}, s{sb}, m0")
        a(f"s_add_u32 s{sb+3}, s{sb+3}, 1")
        if OPT['clk'] == '1':
            a(f"s_memtime s[{sb}:{sb+1}]")
            a(f"s_add_u32 m0, s{sb+3}, 31")
            a("s_waitcnt lgkmcnt(0)")
            a(f"v_writelane_b32 v{self.v}, s{sb}, m0")
        a(f"s_mov_b32 m0, s{sb+2}")

    def flush(self, vt):
        if not self.on:
            return
        a, sb = self.a, self.sb
        a(f"s_lshl_b32 s{sb}, s2, 8")
        srd_off(a, self.srd, self.ws, sb, DIAG_OFF + self.k * 0x100000, 256)
        a(f"s_mov_b64 exec, -1")
        a(f"v_cmp_gt_u32 vcc, 64, v0")
        a(f"s_and_b64 exec, exec, vcc")
        a(f"v_lshlrev_b32 v{vt}, 2, v0")
        a(f"buffer_store_dword v{self.v}, v{vt}, s[{self.srd}:{self.srd+3}], 0 offen")
        a(f"s_mov_b64 exec, -1")


def scan(a, op, v, full=True):
    for sh in (1, 2, 4, 8):
        a(f"{op}_dpp v{v}, v{v}, v{v} row_shr:{sh} row_mask:0xf bank_mask:0xf")
        a("s_nop 1")
    if full:
        a(f"{op}_dpp v{v}, v{v}, v{v} row_bcast:15 row_mask:0xa bank_mask:0xf")
        a("s_nop 1")
        a(f"{op}_dpp v{v}, v{v}, v{v} row_bcast:31 row_mask:0xc bank_mask:0xf")
        a("s_nop 1")


EXEC63 = "s_mov_b32 exec_lo, 0\ns_mov_b32 exec_hi, 0x80000000"


def gen_k1():
    a = A()
    ld, st = OPT['ld'], OPT['st']
    D = int(OPT['depth'])
    WT = 20480
    STG0 = 20736
    CAPG0 = (LDS_ALL - STG0) // 24
    AN = 18
    S_O, S_I, S_A, S_R, S_T, S_F = 4, 8, 12, 16, 20, 24
    P = 28
    sW, sMR, sMC, sNR, sNC, sG, sLo8, sT0, sT1, sCap8, sRem, sSo, sHi, sCGK, sCapG = range(40, 55)
    vC, vAng, vT16, vDma = 1, 2, 3, 4
    vFq = 5
    T0 = 6
    RX = 28
    RQ = 32
    vA48 = 27
    vSt = 26

    def rec(slot):
        if slot >= 48:
            return RX + 2 * (slot - 48)
        q, k = divmod(slot, 4)
        return RQ + q * 8 + (0, 4, 2, 6)[k]

    st_ = Stamper(a, 0, 56, P + 10, vSt, S_O)
    st_.start()
    a(f"""
s_cmp_ge_u32 s2, {NT+NMX}
s_cbranch_scc1 k1_done
s_load_dwordx4 s[{P}:{P+3}], s[0:1], {KA['m']}
s_load_dwordx2 s[{P+4}:{P+5}], s[0:1], {KA['idx_out']}
s_load_dwordx2 s[{P+6}:{P+7}], s[0:1], {KA['angle']}
s_load_dwordx2 s[{P+8}:{P+9}], s[0:1], {KA['ang_freq']}
s_load_dwordx2 s[{P+10}:{P+11}], s[0:1], {KA['ws']}
v_lshrrev_b32 v{T0}, 6, v0
v_lshlrev_b32 v{vT16}, 4, v0
v_readfirstlane_b32 s{sW}, v{T0}
s_cmp_ge_u32 s2, {NT}
s_cbranch_scc1 k1_max
v_mov_b32 v{T0+4}, 0
v_mov_b32 v{T0+5}, 0
v_mov_b32 v{T0+6}, 0
v_mov_b32 v{T0+7}, 0
v_lshlrev_b32 v{T0+1}, 2, v0
ds_write_b128 v{vT16}, v[{T0+4}:{T0+7}]
ds_write_b32 v{T0+1}, v{T0+4} offset:16384
v_mov_b32 v{vC}, 1
s_mov_b32 s{sMR}, 687195
s_mov_b32 s{sMC}, 858994
s_mov_b32 s{sNR}, {-RB}
s_mov_b32 s{sNC}, {-CB}
s_mov_b32 s{sCap8}, {CAP8}
s_mov_b32 s{sCGK}, {63*NPH*4}
s_mul_i32 s{sT0}, s2, {TILE*4}
s_mul_i32 s{sT1}, s2, {TILE*2}
s_waitcnt lgkmcnt(0)
""")
    srd_off(a, S_O, P + 4, sT0, 0, TILE * 4)
    srd_off(a, S_I, P + 2, sT0, 0, TILE * 4)
    srd_off(a, S_A, P + 6, sT1, 0, TILE * 2)

    vm = []

    def issue_pair(q):
        if q < 12:
            b = RQ + q * 8
            a(f"s_mov_b32 s{sT0}, {q*16384}")
            a(f"buffer_load_dwordx4 v[{b}:{b+3}], v{vT16}, s[{S_O}:{S_O+3}], s{sT0} offen {ld}")
            a(f"buffer_load_dwordx4 v[{b+4}:{b+7}], v{vT16}, s[{S_I}:{S_I+3}], s{sT0} offen {ld}")
            vm.extend([('O', q), ('I', q)])
        elif q == 12:
            a(f"""
v_lshrrev_b32 v{vA48}, 1, v{vT16}
s_mov_b32 s{sT0}, {49152*4}
buffer_load_dwordx2 v[{RX}:{RX+1}], v{vA48}, s[{S_O}:{S_O+3}], s{sT0} offen {ld}
buffer_load_dwordx2 v[{RX+2}:{RX+3}], v{vA48}, s[{S_I}:{S_I+3}], s{sT0} offen {ld}
v_lshrrev_b32 v{vA48}, 2, v{vT16}
s_mov_b32 s{sT0}, {49152*2}
buffer_load_dword v{vA48}, v{vA48}, s[{S_A}:{S_A+3}], s{sT0} offen {ld}
""")
            vm.extend([('O', 12), ('I', 12), ('A', 48)])

    def issue_ang(q):
        if q < 12:
            an = AN + 2 * (q % 4)
            a(f"s_mov_b32 s{sT1}, {q*8192}")
            a(f"buffer_load_dwordx2 v[{an}:{an+1}], v{vAng}, s[{S_A}:{S_A+3}], s{sT1} offen {ld}")
            vm.append(('D', q))

    def wait_for(key):
        n = len(vm) - 1 - vm.index(key)
        a(f"s_waitcnt vmcnt({n})")

    srd_off(a, S_F, P + 8, None, 0, 2)
    a(f"""
v_mov_b32 v{vFq}, 0
v_lshrrev_b32 v{vAng}, 1, v{vT16}
buffer_load_ushort v{vFq}, v{vFq}, s[{S_F}:{S_F+3}], 0 offen
""")
    vm.append(('F', 0))
    for q in range(D):
        issue_pair(q)
        if q < int(OPT['ne']):
            issue_ang(q)
    a(f"""
s_mov_b32 s{sHi}, 0xffff0000
s_mul_i32 s{sT0}, s2, {TGB}
""")
    srd_off(a, S_R, P + 10, sT0, REC_OFF, TGB)
    a(f"s_mul_i32 s{sT0}, s2, {TABS}")
    srd_off(a, S_T, P + 10, sT0, TAB_OFF, TABS)
    st_.init()
    a("s_barrier")
    st_()
    t1, t2, tR1, tR3 = T0, T0 + 1, T0 + 2, T0 + 3
    tb = T0 + 4

    def binning(ro, ri, dst_rl, tbk):
        a(f"""
v_mul_hi_u32_u24 v{t1}, s{sMR}, v{ro}
v_mul_hi_u32_u24 v{t2}, s{sMC}, v{ri}
v_mad_i32_i24 v{dst_rl}, v{t1}, s{sNR}, v{ro}
v_mul_u32_u24 v{t1}, {NPH*4}, v{t1}
v_mad_i32_i24 v{ri}, v{t2}, s{sNC}, v{ri}
v_lshl_add_u32 v{tbk}, v{t2}, 2, v{t1}
v_mul_u32_u24 v{t2}, 205, v{t2}
v_lshrrev_b32 v{t2}, 12, v{t2}
v_mad_u32_u24 v{tbk}, v{t2}, s{sCGK}, v{tbk}
ds_add_u32 v{tbk}, v{vC}
""")

    def packpair(o0, o1, i0, i1, tR, b0, b1):
        a(f"""
v_lshrrev_b32 v{t1}, 10, v{i0}
v_lshrrev_b32 v{t2}, 10, v{i1}
v_lshl_or_b32 v{o0}, v{o0}, 3, v{t1}
v_lshl_or_b32 v{o1}, v{i0}, 22, v{b0}
v_lshl_or_b32 v{i0}, v{tR}, 3, v{t2}
v_lshl_or_b32 v{i1}, v{i1}, 22, v{b1}
""")

    def cospair(src, w_lo, w_hi, xx, one):
        a(f"""
v_lshlrev_b32 v{xx}, 16, v{src}
v_and_b32 v{xx+1}, 0xffff0000, v{src}
""")
        if not one:
            a(f"""
v_mul_f32 v{xx}, v{vFq}, v{xx}
v_mul_f32 v{xx+1}, v{vFq}, v{xx+1}
v_cvt_pk_bf16_f32 v{xx+1}, v{xx}, v{xx+1}
v_lshlrev_b32 v{xx}, 16, v{xx+1}
v_and_b32 v{xx+1}, 0xffff0000, v{xx+1}
""")
        a(f"""
v_mul_f32 v{xx}, 0.15915494, v{xx}
v_mul_f32 v{xx+1}, 0.15915494, v{xx+1}
v_fract_f32 v{xx}, v{xx}
v_fract_f32 v{xx+1}, v{xx+1}
v_cos_f32 v{xx}, v{xx}
v_cos_f32 v{xx+1}, v{xx+1}
s_nop 0
v_cvt_pk_bf16_f32 v{xx}, v{xx}, v{xx+1}
v_lshl_or_b32 v{w_lo}, v{xx}, 16, v{w_lo}
v_and_or_b32 v{w_hi}, v{xx}, s{sHi}, v{w_hi}
""")

    NE = int(OPT['ne'])
    for q in range(13):
        wait_for(('I', q))
        issue_pair(q + D)
        if q + D < NE:
            issue_ang(q + D)
        if q < 12:
            r = RQ + q * 8
            for k in range(4):
                binning(r + k, r + 4 + k, r + k if k % 2 == 0 else (tR1 if k == 1 else tR3), tb + k)
            packpair(r, r + 1, r + 4, r + 5, tR1, tb, tb + 1)
            packpair(r + 2, r + 3, r + 6, r + 7, tR3, tb + 2, tb + 3)
            if q < NE:
                wait_for(('D', q))
                if q == 0:
                    a(f"v_lshlrev_b32 v{vFq}, 16, v{vFq}")
                an = AN + 2 * (q % 4)
                cospair(an, rec(q * 4), rec(q * 4 + 1), T0 + 8, False)
                cospair(an + 1, rec(q * 4 + 2), rec(q * 4 + 3), T0 + 10, False)
        else:
            binning(RX, RX + 2, RX, tb)
            binning(RX + 1, RX + 3, tR1, tb + 1)
            packpair(RX, RX + 1, RX + 2, RX + 3, tR1, tb, tb + 1)
    for q in range(NE, NE + 4):
        issue_ang(q)
    a("""
s_waitcnt lgkmcnt(0)
s_barrier
""")
    st_()
    c = T0
    g = T0 + 6
    tm = T0 + 11
    vA, vS, vI = vAng, vDma, vC
    a(f"v_mul_u32_u24 v{vA}, 20, v0")
    for i in range(5):
        a(f"ds_read_b32 v{c+i}, v{vA} offset:{4*i}")
    a(f"s_mov_b32 s{sT0}, 43691")
    if NE == 0:
        a(f"v_lshlrev_b32 v{vFq}, 16, v{vFq}")
    a("s_waitcnt lgkmcnt(0)")
    for i in range(5):
        a(f"v_add_u32 v{g+i}, 2, v{c+i}")
        a(f"v_mul_u32_u24 v{g+i}, s{sT0}, v{g+i}")
        a(f"v_lshrrev_b32 v{g+i}, 17, v{g+i}")
    a(f"""
v_add3_u32 v{vS}, v{g}, v{g+1}, v{g+2}
v_add3_u32 v{vS}, v{vS}, v{g+3}, v{g+4}
v_mov_b32 v{vI}, v{vS}
s_lshl_b32 s{sT0}, s{sW}, 2
s_add_u32 s{sT0}, s{sT0}, {WT}
""")
    scan(a, "v_add_u32", vI)
    a(f"""
v_mov_b32 v{tm}, s{sT0}
{EXEC63}
ds_write_b32 v{tm}, v{vI}
s_mov_b64 exec, -1
""")
    for i in range(5):
        a(f"v_mul_u32_u24 v{c+5}, 3, v{g+i}")
        a(f"v_sub_u32 v{c+5}, v{c+5}, v{c+i}")
        a(f"v_min_u32 v{c+i}, 0x1fff, v{c+i}")
        a(f"v_lshl_or_b32 v{c+i}, v{c+i}, 19, v{c+5}")
    a(f"""
v_sub_u32 v{vI}, v{vI}, v{vS}
v_and_b32 v{tm}, 15, v0
v_lshlrev_b32 v{tm}, 2, v{tm}
v_readfirstlane_b32 s{sLo8}, v{vFq}
s_waitcnt lgkmcnt(0)
s_barrier
ds_read_b32 v{tm}, v{tm} offset:{WT}
s_waitcnt lgkmcnt(0)
v_mov_b32 v{vS}, v{tm}
""")
    scan(a, "v_add_u32", tm, full=False)
    a(f"""
v_readlane_b32 s{sG}, v{tm}, 15
v_sub_u32 v{vS}, v{tm}, v{vS}
s_nop 0
v_readlane_b32 s{sT0}, v{vS}, s{sW}
s_nop 1
v_add_u32 v{vI}, s{sT0}, v{vI}
""")
    for i in range(5):
        t = (tm, vS)[i & 1]
        a(f"v_mul_u32_u24 v{t}, 24, v{vI}")
        a(f"v_lshl_or_b32 v{c+i}, v{vI}, 4, v{c+i}")
        a(f"ds_write_b32 v{vA}, v{t} offset:{4*i}")
        a(f"v_add_u32 v{vI}, v{vI}, v{g+i}")
    vM22 = vDma
    a(f"""
v_lshlrev_b32 v{c+5}, 4, v{vI}
buffer_store_dwordx4 v[{c}:{c+3}], v{vA}, s[{S_T}:{S_T+3}], 0 offen
buffer_store_dword v{c+4}, v{vA}, s[{S_T}:{S_T+3}], 0 offen offset:16
v_mov_b32 v{tm}, 1023
v_cmp_eq_u32 s[{P}:{P+1}], v0, v{tm}
v_mov_b32 v{vC}, 8
v_mov_b32 v{tm}, 0xffff0000
v_cndmask_b32 v{vA}, v{tm}, v{vA}, s[{P}:{P+1}]
buffer_store_dword v{c+5}, v{vA}, s[{S_T}:{S_T+3}], 0 offen offset:20
v_mov_b32 v{vM22}, 0x3fffff
v_lshrrev_b32 v{vAng}, 1, v{vT16}
s_mov_b32 s{sRem}, {CAPG0*24}
s_min_u32 s{sG}, s{sG}, 20480
s_waitcnt lgkmcnt(0)
s_barrier
""")
    vm.extend([('S', 0), ('S', 1), ('S', 2)])
    st_()
    pt = (T0, T0 + 4)
    x = T0 + 8

    def slots(q):
        return range(4 * q, 4 * q + (4 if q < 12 else 2))

    def issue(q, s):
        for k, sl in enumerate(slots(q)):
            a(f"v_and_b32 v{pt[s]+k}, v{vM22}, v{rec(sl)+1}")
            a(f"ds_add_rtn_u32 v{pt[s]+k}, v{pt[s]+k}, v{vC}")

    def consume(q, s, pending, one):
        if q < NE:
            pass
        elif q < 12:
            an = AN + 2 * (q % 4)
            wait_for(('D', q))
            cospair(an, rec(q * 4), rec(q * 4 + 1), x, one)
            cospair(an + 1, rec(q * 4 + 2), rec(q * 4 + 3), x + 2, one)
            issue_ang(q + 4)
        else:
            wait_for(('A', 48))
            cospair(vA48, rec(48), rec(49), x, one)
        a(f"s_waitcnt lgkmcnt({pending})")
        for k, sl in enumerate(slots(q)):
            w = rec(sl)
            a(f"v_bitop3_b32 v{w+1}, v{vM22}, v{pt[s]+k}, v{w+1} {BFI}")
        for k, sl in enumerate(slots(q)):
            w = rec(sl)
            a(f"""
v_cmpx_gt_u32 vcc, s{sRem}, v{pt[s]+k}
ds_write_b64 v{pt[s]+k}, v[{w}:{w+1}] offset:{STG0}
s_mov_b64 exec, -1
""")

    def merged(one):
        late = list(range(NE, 12))
        order = [12] + late[:4] + list(range(NE)) + late[4:]
        issue(order[0], 0)
        for n, q in enumerate(order):
            if n + 1 < len(order):
                issue(order[n + 1], (n + 1) & 1)
                consume(q, n & 1, 4, one)
            else:
                consume(q, n & 1, 0, one)

    if OPT['ff'] == '1':
        a(f"s_cmp_lg_u32 s{sLo8}, 0x3f800000")
        a("s_cbranch_scc1 k1_gen")
        save = list(vm)
        merged(True)
        a("k1_mj:")
        done = a.s
        a.s = ""
        vm[:] = save
        a("k1_gen:")
        merged(False)
        a("s_branch k1_mj")
        gen_code = a.s
        a.s = done
    else:
        merged(False)
        gen_code = ""
    vLo, vT24, vMx, vB = vC, vAng, vDma, vFq
    a(f"""
v_mov_b32 v{vLo}, {CAPG0*24}
v_mul_u32_u24 v{vT24}, 24, v0
v_add_u32 v{vT24}, {STG0}, v{vT24}
v_mov_b32 v{vMx}, 0xffc00000
s_mov_b32 s{sSo}, 0
s_mov_b32 s{sCapG}, {CAPG0}
k1_co:
s_min_u32 s{sRem}, s{sG}, s{sCapG}
s_waitcnt lgkmcnt(0)
s_barrier
""")
    st_()
    qb = T0

    def rd(q3, addr, o):
        for n2, r2 in enumerate(q3):
            a(f"ds_read_b64 v[{r2}:{r2+1}], v{addr} offset:{o+8*n2}")

    def pk(q, r4):
        a(f"""
v_lshrrev_b32 v{r4+1}, 10, v{r4+1}
v_bitop3_b32 v{r4+1}, v{vMx}, v{q+3}, v{r4+1} {BFI}
v_mov_b32 v{q+3}, v{r4}
v_lshrrev_b32 v{r4+1}, 10, v{r4+1}
v_bitop3_b32 v{q+1}, v{vMx}, v{q+1}, v{r4+1} {BFI}
""")

    def stq(q, it):
        a(f"""
s_sub_i32 s{sT0}, s{sRem}, {it*1024}
s_add_u32 s{sT1}, s{sSo}, {it*16384}
v_cmpx_gt_i32 vcc, s{sT0}, v0
buffer_store_dwordx4 v[{q}:{q+3}], v{vT16}, s[{S_R}:{S_R+3}], s{sT1} offen {st}
s_mov_b64 exec, -1
""")

    Q = (qb, qb + 6, qb + 12)
    Q6 = qb + 18 if not st_.on else None
    for n2 in range(3):
        rd((Q[n2], Q[n2] + 2, Q[n2] + 4), vT24, n2 * 24576)
    a(f"v_add_u32 v{vB}, {3*24576}, v{vT24}")
    for n2 in range(3):
        a(f"s_waitcnt lgkmcnt({3*(2-n2)})")
        pk(Q[n2], Q[n2] + 4)
        stq(Q[n2], n2)
    if Q6 is None:
        a(f"v_add_u32 v{vA48}, {6*24576}, v{vT24}")
        a(f"v_min_u32 v{vA48}, {LDS_ALL-24}, v{vA48}")
        rd((Q[0], Q[0] + 2, Q[0] + 4), vA48, 0)
        a("s_waitcnt lgkmcnt(0)")
        pk(Q[0], Q[0] + 4)
        stq(Q[0], 6)
    rd((Q[0], Q[0] + 2, Q[0] + 4), vB, 0)
    rd((Q[1], Q[1] + 2, Q[1] + 4), vB, 24576)
    a(f"v_min_u32 v{vB}, {LDS_ALL-24-49152}, v{vB}")
    rd((Q[2], Q[2] + 2, Q[2] + 4), vB, 49152)
    a(f"v_add_u32 v{vB}, {6*24576}, v{vT24}")
    a(f"v_min_u32 v{vB}, {LDS_ALL-24}, v{vB}")
    a("s_waitcnt lgkmcnt(6)")
    pk(Q[0], Q[0] + 4)
    deferred = [(Q[0], 3), (Q[1], 4), (Q[2], 5)]
    if Q6 is not None:
        rd((Q6, Q6 + 2, Q[0] + 4), vB, 0)
        a("s_waitcnt lgkmcnt(6)")
        pk(Q[1], Q[1] + 4)
        a("s_waitcnt lgkmcnt(3)")
        pk(Q[2], Q[2] + 4)
        a("s_waitcnt lgkmcnt(0)")
        pk(Q6, Q[0] + 4)
        deferred.append((Q6, 6))
    else:
        a("s_waitcnt lgkmcnt(3)")
        pk(Q[1], Q[1] + 4)
        a("s_waitcnt lgkmcnt(0)")
        pk(Q[2], Q[2] + 4)
    a(f"""
s_sub_u32 s{sG}, s{sG}, s{sRem}
s_cmp_eq_u32 s{sG}, 0
s_cbranch_scc1 k1_fin
s_barrier
""")
    st_()
    tmps = (Q[0] + 4, Q[0] + 5, Q[1] + 4, Q[1] + 5)
    for sl in range(50):
        w = rec(sl)
        t = tmps[sl & 3]
        a(f"""
v_sub_u32 v{t}, v{w+1}, v{vLo}
v_and_b32 v{t}, 0x3fffff, v{t}
v_cmpx_gt_u32 vcc, s{sCap8}, v{t}
ds_write_b64 v{t}, v[{w}:{w+1}]
s_mov_b64 exec, -1
""")
        if sl % 10 == 4 and sl // 10 < len(deferred):
            stq(*deferred[sl // 10])
    a(f"""
v_add_u32 v{vLo}, {CAP8}, v{vLo}
v_mul_u32_u24 v{vT24}, 24, v0
s_lshl_b32 s{sT0}, s{sRem}, 4
s_add_u32 s{sSo}, s{sSo}, s{sT0}
s_mov_b32 s{sCapG}, {CAPG}
s_branch k1_co
k1_fin:
""")
    for d in deferred:
        stq(*d)
    st_()
    if st_.on:
        a("s_waitcnt vmcnt(0)")
    st_()
    st_.flush(T0)
    a("""
k1_done:
s_endpgm
""")
    a.s += gen_code
    S_M, S_X = 4, 8
    a(f"""
k1_max:
s_sub_u32 s3, s2, {NT}
s_mul_i32 s{sT0}, s3, {33*16384}
v_add_u32 v{vT16}, s{sT0}, v{vT16}
v_mov_b32 v{vC}, 0
v_mov_b32 v{vAng}, 0
ds_write_b32 v{vC}, v{vC}
s_waitcnt lgkmcnt(0)
""")
    srd_off(a, S_M, P, None, 0, E * 8)
    srd_off(a, S_X, P + 10, None, MAX_OFF, 64)
    srd_off(a, 12, P + 10, None, HF_OFF, 8192)
    a(f"""
v_lshlrev_b32 v{T0}, 3, v0
v_mov_b32 v{T0+2}, 0
v_mov_b32 v{T0+3}, 0
buffer_store_dwordx2 v[{T0+2}:{T0+3}], v{T0}, s[12:15], 0 offen
""")
    a(f"""
s_load_dwordx2 s[16:17], s[0:1], {KA['dist']}
s_load_dwordx2 s[20:21], s[0:1], {KA['centers']}
s_load_dwordx8 s[60:67], s[0:1], {KA['w_rbf']}
s_lshl_b32 s{sT1}, s3, 10
v_add_u32 v{T0}, s{sT1}, v0
v_lshlrev_b32 v{T0}, 7, v{T0}
v_add_u32 v{T0+1}, {6144*128}, v{T0}
s_mov_b32 s18, {E*2}
s_mov_b32 s19, 0x00020000
s_waitcnt lgkmcnt(0)
buffer_load_dword v{T0+4}, v{T0}, s[16:19], 0 offen
buffer_load_dword v{T0+5}, v{T0+1}, s[16:19], 0 offen
s_load_dword s22, s[20:21], 0
s_load_dword s23, s[60:61], 0
s_load_dword s24, s[62:63], 0
s_load_dword s25, s[64:65], 0
s_load_dword s26, s[66:67], 0
""")
    a(f"s_mov_b32 s{sT1}, 3")
    a("k1_mxl:")
    for i in range(11):
        a(f"buffer_load_dwordx4 v[{RQ+4*i}:{RQ+4*i+3}], v{vT16}, s[{S_M}:{S_M+3}], 0 offen")
        a(f"v_add_u32 v{vT16}, 16384, v{vT16}")
    for i in range(11):
        a(f"s_waitcnt vmcnt({10-i})")
        for k in range(4):
            a(f"v_and_b32 v{RQ+4*i+k}, 0x7fff7fff, v{RQ+4*i+k}")
            a(f"v_pk_max_u16 v{vAng}, v{vAng}, v{RQ+4*i+k}")
    a(f"""
s_sub_u32 s{sT1}, s{sT1}, 1
s_cmp_lg_u32 s{sT1}, 0
s_cbranch_scc1 k1_mxl
v_lshrrev_b32 v{T0}, 16, v{vAng}
v_and_b32 v{vAng}, 0xffff, v{vAng}
v_max_u32 v{vAng}, v{vAng}, v{T0}
s_barrier
s_nop 1
""")
    scan(a, "v_max_u32", vAng)
    a(f"""
{EXEC63}
ds_max_u32 v{vC}, v{vAng}
s_mov_b64 exec, -1
s_waitcnt lgkmcnt(0)
s_barrier
s_cmp_lg_u32 s{sW}, 0
s_cbranch_scc1 k1_done2
ds_read_b32 v{vAng}, v{vC}
s_lshl_b32 s3, s3, 2
v_mov_b32 v{T0}, s3
s_mov_b64 exec, 1
s_waitcnt lgkmcnt(0)
buffer_store_dword v{vAng}, v{T0}, s[{S_X}:{S_X+3}], 0 offen
k1_done2:
s_endpgm
""")
    return a.s


def gen_k2():
    a = A()
    o = A()
    ld, pst = OPT['k2ld'], OPT['pst']
    abl = OPT['abl']
    ACC = 40960
    ACCB = 50000
    NW = ACC + 2 * ACCB
    S_R, S_T, S_M, S_P = 4, 8, 12, 16
    P = 20
    MXS = 24
    sW, sRb, sCg, sJ, sMo, sMode, sPf, sT0, sT1, sT2, sCarry, sTot, sXw, sCo = range(32, 46)
    sNK = 46
    sA, sB, sC, sD = 48, 50, 52, 54
    MK = (56, 62)
    MN = (68, 74)
    MX = (80, 86)
    TOT = (92, 93)
    sRet = P
    MS = MXS
    vL16, vBase, vT16, vLW, vMagic, vMHi, vSt = 1, 2, 3, 4, 5, 6, 7
    HR = 8
    vC0 = 10
    vX0 = 12
    MP = 14
    GA = 24
    PT = 30
    HQ = 34
    XT = 42
    RS = 46
    GX = 50
    FT = 56
    EN = 64
    RC = (88, 92)
    RXW = (96, 100)
    TH = 104
    MP2 = 108
    MPS = (MP, MP2)
    AD = 118
    vO16, vD, vM = 121, 122, 124
    NVG = 128
    sTN = 100
    sWk = 101
    sMsc = 3
    TID = OPT['tid'] == '1'

    st_ = Stamper(a, 1, 96, P + 2, vSt, S_M if OPT['fuse'] == '1' else S_R)
    st_.start()
    a(f"""
s_cmp_ge_u32 s2, 256
s_cbranch_scc1 k2_done
s_load_dwordx2 s[{P}:{P+1}], s[0:1], {KA['m']}
s_load_dwordx2 s[{P+2}:{P+3}], s[0:1], {KA['ws']}
s_load_dwordx2 s[{S_P}:{S_P+1}], s[0:1], {KA['dist']}
s_load_dwordx2 s[{MN[0]}:{MN[0]+1}], s[0:1], {KA['centers']}
s_load_dwordx4 s[{MX[0]}:{MX[0]+3}], s[0:1], {KA['w_rbf']}
s_load_dwordx4 s[{MX[0]+4}:{MX[0]+7}], s[0:1], {KA['w_down']}
v_lshrrev_b32 v{FT}, 6, v0
v_and_b32 v{FT+1}, 63, v0
v_readfirstlane_b32 s{sW}, v{FT}
v_lshlrev_b32 v{vT16}, 4, v0
v_lshlrev_b32 v{vL16}, 4, v{FT+1}
s_and_b32 s{sT0}, s2, 7
s_lshr_b32 s{sCg}, s{sT0}, 1
s_lshr_b32 s{sRb}, s2, 3
s_and_b32 s{sT0}, s2, 1
s_lshl_b32 s{sT0}, s{sT0}, 5
s_add_u32 s{sRb}, s{sRb}, s{sT0}
s_lshl_b32 s{sCo}, s{sCg}, 6
s_add_u32 s{sCo}, s{sCo}, s{sRb}
v_lshrrev_b32 v{vLW}, 1, v{vT16}
v_add_u32 v{vLW}, 32768, v{vLW}
v_min_u32 v{vLW}, {CB*8-8}, v{vLW}
s_mul_i32 s{sMo}, s{sCg}, {NPH*CB*8}
s_mov_b32 s{sT2}, 0xffff0000
s_mov_b32 s{sT1}, {TGB}
v_mov_b32 v{vMHi}, 0xffff0000
v_mul_u32_u24 v{FT+2}, 43, v{FT+1}
v_lshrrev_b32 v{FT+2}, 7, v{FT+2}
v_mul_u32_u24 v{FT+3}, 3, v{FT+2}
v_sub_u32 v{FT+3}, v{FT+1}, v{FT+3}
s_cmp_lt_u32 s{sW}, 4
s_cbranch_scc1 k2_rl0
s_sub_u32 s{sT0}, s{sW}, 4
s_mul_i32 s{sT0}, s{sT0}, 21
v_add_u32 v{FT+2}, s{sT0}, v{FT+2}
s_branch k2_rl1
k2_rl0:
s_mul_i32 s{sT0}, s{sW}, 63
v_add_u32 v{FT+2}, s{sT0}, v{FT+1}
v_mov_b32 v{FT+3}, 3
k2_rl1:
v_mul_u32_u24 v{FT}, 96, v{FT+2}
v_add_u32 v{FT}, {ACC}, v{FT}
s_mov_b32 s{sT2}, {ACC + 252*96}
v_writelane_b32 v{FT}, s{sT2}, 63
s_mul_i32 s{sT0}, s{sCo}, {NPH*4}
s_mov_b32 s{sT2}, 43691
v_add_u32 v{GA+1}, 1024, v0
v_mul_u32_u24 v{GA+2}, s{sT2}, v0
v_mul_u32_u24 v{GA+3}, s{sT2}, v{GA+1}
v_lshrrev_b32 v{GA+2}, 18, v{GA+2}
v_lshrrev_b32 v{GA+3}, 18, v{GA+3}
v_mul_u32_u24 v{GA+4}, {TABS-96}, v{GA+2}
v_mul_u32_u24 v{GA+5}, {TABS-96}, v{GA+3}
v_add3_u32 v{GA}, v{GA+4}, v{vT16}, s{sT0}
v_add3_u32 v{GA+1}, v{GA+5}, v{vT16}, s{sT0}
v_add_u32 v{GA+1}, 16384, v{GA+1}
v_mov_b32 v{GA+2}, {253*6-1024}
v_cmp_lt_u32 s[{sC}:{sC+1}], v0, v{GA+2}
v_mul_lo_u32 v{vBase}, v{FT+2}, s{sT1}
v_lshl_add_u32 v{vBase}, v{FT+3}, 4, v{vBase}
v_mul_u32_u24 v{TH}, 3, v{FT+3}
v_add_u32 v{TH}, 1, v{TH}
v_lshlrev_b32 v{TH}, 19, v{TH}
v_add_u32 v{TH+1}, 0x80000, v{TH}
v_add_u32 v{TH+2}, 0x100000, v{TH}
s_waitcnt lgkmcnt(0)
""")
    srd_off(a, S_R, P + 2, None, REC_OFF, NT * TGB)
    srd_off(a, S_T, P + 2, None, TAB_OFF, NT * TABS)
    srd_off(a, S_M, P, None, 0, E * 8)

    def m_load(MP=MP, a=a):
        if TID:
            for p in 'bca':
                m_piece(MP, p)
            return
        if 'm' in abl:
            for i in range(3):
                a(f"buffer_load_dword v{MP+i}, v{vL16}, s[{S_M}:{S_M+3}], 0 offen")
            return
        a(f"""
s_add_u32 s{sT0}, s{sMo}, 16384
buffer_load_dwordx4 v[{MP}:{MP+3}], v{vT16}, s[{S_M}:{S_M+3}], s{sMo} offen
buffer_load_dwordx4 v[{MP+4}:{MP+7}], v{vT16}, s[{S_M}:{S_M+3}], s{sT0} offen
buffer_load_dwordx2 v[{MP+8}:{MP+9}], v{vLW}, s[{S_M}:{S_M+3}], s{sMo} offen
s_add_u32 s{sMo}, s{sMo}, {CB*8}
s_min_u32 s{sMo}, s{sMo}, {E*8 - CB*8}
""")

    def m_piece(MP, p, a=a):
        if TID:
            for i in {'b': (0, 1, 2, 3), 'c': (4, 5), 'a': (6, 7, 8, 9)}[p]:
                a(f"buffer_load_dword v{MP+i}, v{vLW}, s[{S_M}:{S_M+3}], 0 offen offset:{256*i}")
            if p == 'a':
                a(f"v_add_u32 v{vLW}, {CB*8}, v{vLW}")
            return
        if p == 'b':
            a(f"s_add_u32 s{sT0}, s{sMo}, 16384")
            a(f"buffer_load_dwordx4 v[{MP+4}:{MP+7}], v{vT16}, s[{S_M}:{S_M+3}], s{sT0} offen")
        elif p == 'c':
            a(f"buffer_load_dwordx2 v[{MP+8}:{MP+9}], v{vLW}, s[{S_M}:{S_M+3}], s{sMo} offen")
        else:
            a(f"""
buffer_load_dwordx4 v[{MP}:{MP+3}], v{vT16}, s[{S_M}:{S_M+3}], s{sMo} offen
s_add_u32 s{sMo}, s{sMo}, {CB*8}
s_min_u32 s{sMo}, s{sMo}, {E*8 - CB*8}
""")

    def m_write(MP=MP):
        if TID:
            a(f"s_mov_b32 m0, s{sWk}")
            a("s_nop 0")
            for i in range(10):
                a(f"ds_write_addtid_b32 v{MP+i} offset:{256*i}")
            return
        if 'w' in abl:
            return
        a(f"""
ds_write_b128 v{vT16}, v[{MP}:{MP+3}]
ds_write_b128 v{vT16}, v[{MP+4}:{MP+7}] offset:16384
ds_write_b64 v{vLW}, v[{MP+8}:{MP+9}]
""")

    def batch(bank):
        for i in range(4):
            a(f"buffer_load_dwordx4 v[{bank+4*i}:{bank+4*i+3}], v{vL16 if 'r' in abl else vBase}, s[{S_R}:{S_R+3}], 0 offen offset:{16*i} {ld}")
        a(f"v_add_u32 v{vBase}, 64, v{vBase}")

    def common_init():
        a(f"""
s_add_u32 s{sA}, s{P+2}, {MAX_OFF}
s_addc_u32 s{sA+1}, s{P+3}, 0
s_load_dwordx8 s[{MXS}:{MXS+7}], s[{sA}:{sA+1}], 0
s_mov_b64 s[{MK[1]+2}:{MK[1]+3}], 0
s_mov_b64 s[{MK[1]+4}:{MK[1]+5}], 0
v_mov_b32 v{HR}, {ACC}
v_mov_b32 v{HR+1}, {ACC}
v_mov_b32 v{vC0}, {ACC}
s_mov_b32 s{sJ}, 0
""")
        st_.init()

    def zero_acc():
        z = PT
        a(f"""
v_mov_b32 v{z}, 0
v_mov_b32 v{z+1}, 0
v_mov_b32 v{z+2}, 0
v_mov_b32 v{z+3}, 0
v_add_u32 v{FT+4}, {ACC}, v{vT16}
v_add_u32 v{FT+5}, {ACC+65536}, v{vT16}
ds_write_b128 v{FT+4}, v[{z}:{z+3}] offset:32768
ds_write_b128 v{FT+4}, v[{z}:{z+3}] offset:49152
ds_write_b128 v{FT+5}, v[{z}:{z+3}]
ds_write_b128 v{FT+5}, v[{z}:{z+3}] offset:16384
v_cmp_gt_u32 vcc, {6250-6144}, v0
s_and_saveexec_b64 s[{sB}:{sB+1}], vcc
ds_write_b128 v{FT+5}, v[{z}:{z+3}] offset:32768
s_mov_b64 exec, s[{sB}:{sB+1}]
""")

    def zero_acc2():
        z = PT
        a(f"""
v_add_u32 v{XT}, {ACC}, v{vT16}
ds_write_b128 v{XT}, v[{z}:{z+3}]
ds_write_b128 v{XT}, v[{z}:{z+3}] offset:16384
""")

    AK = (0, 2, 3)

    def decode(rc, t, a=a):
        a(f"""
v_alignbit_b32 v{t}, v{rc}, v{rc+1}, 19
v_lshlrev_b32 v{t+1}, 10, v{rc+1}
v_and_b32 v{t}, 0xfff8, v{t}
v_lshlrev_b32 v{t+2}, 20, v{rc+1}
v_alignbit_b32 v{t+1}, v{rc+2}, v{t+1}, 19
v_alignbit_b32 v{t+2}, v{rc+3}, v{t+2}, 19
v_and_b32 v{t+1}, 0xfff8, v{t+1}
v_and_b32 v{t+2}, 0xfff8, v{t+2}
""")

    def gissue(mk, t, ga, a=a):
        a(f"""
s_mov_b64 exec, s[{mk}:{mk+1}]
ds_read_b64 v[{ga}:{ga+1}], v{t}
s_mov_b64 exec, s[{mk+2}:{mk+3}]
ds_read_b64 v[{ga+2}:{ga+3}], v{t+1}
s_mov_b64 exec, s[{mk+4}:{mk+5}]
ds_read_b64 v[{ga+4}:{ga+5}], v{t+2}
""")

    def gathers(mk, rc, ga, a=a):
        decode(rc, PT, a)
        gissue(mk, PT, ga, a)

    def qcalc(t, g, ak, row, a=a):
        c = row
        a(f"""
v_and_b32 v{c}, v{vMHi}, v{ak}
v_lshlrev_b32 v{t}, 16, v{g}
v_and_b32 v{t+1}, v{vMHi}, v{g}
v_lshlrev_b32 v{t+2}, 16, v{g+1}
v_and_b32 v{t+3}, v{vMHi}, v{g+1}
v_fma_f32 v{t}, v{t}, v{c}, v{vMagic}
v_fma_f32 v{t+1}, v{t+1}, v{c}, v{vMagic}
v_fma_f32 v{t+2}, v{t+2}, v{c}, v{vMagic}
v_fma_f32 v{t+3}, v{t+3}, v{c}, v{vMagic}
v_and_b32 v{row}, 0xfff8, v{ak}
v_lshl_add_u64 v[{t}:{t+1}], v[{t}:{t+1}], 0, s[{sNK}:{sNK+1}]
v_add_u32 v{row}, {ACC}, v{row}
v_lshl_add_u64 v[{t+2}:{t+3}], v[{t+2}:{t+3}], 0, s[{sNK}:{sNK+1}]
""")

    def adds(mkp, row, t, a=a):
        a(f"""
s_mov_b64 exec, {"1" if 'a' in abl else "s[%d:%d]" % (mkp, mkp+1)}
ds_add_u64 v{row}, v[{t}:{t+1}]
ds_add_u64 v{row}, v[{t+2}:{t+3}] offset:{ACCB}
""")

    def held(h):
        adds(MK[h] + 4, HR + 1, HQ + 4)
        a("s_mov_b64 exec, -1")

    def f32_one(mkp, g, ak, a):
        t = XT
        a(f"""
v_and_b32 v{vX0}, v{vMHi}, v{ak}
v_and_b32 v{vX0+1}, 0xfff8, v{ak}
v_add_u32 v{vX0+1}, {ACC}, v{vX0+1}
v_lshlrev_b32 v{t}, 16, v{g}
v_and_b32 v{t+1}, v{vMHi}, v{g}
v_lshlrev_b32 v{t+2}, 16, v{g+1}
v_and_b32 v{t+3}, v{vMHi}, v{g+1}
v_mul_f32 v{t}, v{t}, v{vX0}
v_mul_f32 v{t+1}, v{t+1}, v{vX0}
v_mul_f32 v{t+2}, v{t+2}, v{vX0}
v_mul_f32 v{t+3}, v{t+3}, v{vX0}
s_mov_b64 exec, s[{mkp}:{mkp+1}]
ds_add_f32 v{vX0+1}, v{t}
ds_add_f32 v{vX0+1}, v{t+1} offset:4
ds_add_f32 v{vX0+1}, v{t+2} offset:{ACCB}
ds_add_f32 v{vX0+1}, v{t+3} offset:{ACCB+4}
s_mov_b64 exec, -1
s_waitcnt lgkmcnt(0)
""")

    def accum_main(h, rc, tag, vf=False):
        mk = MK[h]
        a(f"s_cmp_lg_u32 s{sMode}, 0")
        a(f"s_cbranch_scc1 k2_accf_{tag}")
        qcalc(PT, GA, rc + AK[0], vC0)
        if not vf:
            adds(mk, vC0, PT)
            a("s_mov_b64 exec, -1")
        m_piece(MPS[h ^ 1], 'b')
        qcalc(HQ, GA + 2, rc + AK[1], HR)
        qcalc(HQ + 4, GA + 4, rc + AK[2], HR + 1)
        a(f"k2_acce_{tag}:")
        o(f"k2_accf_{tag}:")
        m_piece(MPS[h ^ 1], 'b', o)
        for k in range(3):
            f32_one(mk + 2 * k, GA + 2 * k, rc + AK[k], o)
        o(f"""
s_mov_b64 s[{mk}:{mk+1}], 0
s_mov_b64 s[{mk+2}:{mk+3}], 0
s_mov_b64 s[{mk+4}:{mk+5}], 0
s_branch k2_acce_{tag}
""")

    def last_adds(h, vf=False):
        if vf:
            adds(MK[h], vC0, PT)
        adds(MK[h] + 2, HR, HQ)
        a("s_mov_b64 exec, -1")

    def window_now(mk, rc, tag):
        gathers(mk, rc, GX, o)
        o(f"""
s_mov_b64 exec, -1
s_cmp_lg_u32 s{sMode}, 0
s_waitcnt lgkmcnt(0)
s_cbranch_scc1 k2_wf_{tag}
""")
        for k in range(3):
            qcalc(XT, GX + 2 * k, rc + AK[k], vX0, o)
            adds(mk + 2 * k, vX0, XT, o)
            o("s_mov_b64 exec, -1")
        o(f"s_branch k2_we_{tag}")
        o(f"k2_wf_{tag}:")
        for k in range(3):
            f32_one(mk + 2 * k, GX + 2 * k, rc + AK[k], o)
        o(f"k2_we_{tag}:")

    def scale_setup():
        a(f"""
v_mov_b32 v{XT}, {NW}
ds_read_b128 v[{XT}:{XT+3}], v{XT}
s_max_u32 s{MXS}, s{MXS}, s{MXS+1}
s_max_u32 s{MXS+2}, s{MXS+2}, s{MXS+3}
s_max_u32 s{MXS+4}, s{MXS+4}, s{MXS+5}
s_max_u32 s{MXS}, s{MXS}, s{MXS+2}
s_max_u32 s{MXS}, s{MXS}, s{MXS+4}
s_lshl_b32 s{sT2}, s{MXS}, 16
s_waitcnt lgkmcnt(0)
v_add_u32 v{XT}, v{XT}, v{XT+1}
v_add_u32 v{XT+2}, v{XT+2}, v{XT+3}
v_add_u32 v{XT}, v{XT}, v{XT+2}
v_lshrrev_b32 v{XT}, 4, v{XT}
v_mul_u32_u24 v{XT}, 3, v{XT}
v_max_u32 v{XT}, 1024, v{XT}
s_nop 0
v_readfirstlane_b32 s{sT0}, v{XT}
v_cvt_f32_u32 v{XT}, v{XT}
v_mul_f32 v{XT}, s{sT2}, v{XT}
v_mul_f32 v{XT}, 0x3f802000, v{XT}
s_nop 0
v_readfirstlane_b32 s{sT1}, v{XT}
s_mov_b32 s{sMode}, 0
s_cmp_gt_u32 s{sT0}, 65536
s_cselect_b32 s{sMode}, 1, s{sMode}
s_cmp_gt_u32 s{sT2}, 0x70000000
s_cselect_b32 s{sMode}, 1, s{sMode}
s_cmp_lt_u32 s{sT2}, 0x18000000
s_cselect_b32 s{sMode}, 1, s{sMode}
s_and_b32 s{sT1}, s{sT1}, 0x7f800000
s_and_b32 s{sT2}, s{sT2}, 0x7f800000
s_sub_u32 s{sPf}, s{sT1}, s{sT2}
s_add_u32 s{sMsc}, s{sT2}, {2 << 23}
s_add_u32 s{sPf}, s{sPf}, {(125 - 30) << 23}
s_sub_u32 s{sT1}, s{sT1}, {(7 << 23) - 0x400000}
v_mov_b32 v{vMagic}, s{sT1}
s_sub_u32 s{sNK}, 0, s{sT1}
s_not_b32 s{sNK+1}, s{sT1}
s_barrier
""")

    def early_setup():
        QP = 782
        a(f"""
s_load_dword s{MN[1]}, s[{MN[0]}:{MN[0]+1}], 0
s_load_dword s{MN[1]+1}, s[{MX[0]}:{MX[0]+1}], 0
s_load_dword s{MN[1]+2}, s[{MX[0]+2}:{MX[0]+3}], 0
s_load_dword s{MN[1]+3}, s[{MX[0]+4}:{MX[0]+5}], 0
s_load_dword s{MN[1]+4}, s[{MX[0]+6}:{MX[0]+7}], 0
s_mul_i32 s{sT1}, s{sRb}, {RB*8}
s_mul_i32 s{sT2}, s{sCg}, {QP*16}
s_add_u32 s{sT1}, s{sT1}, s{sT2}
v_add_u32 v{vO16}, s{sT1}, v{vT16}
s_sub_u32 s{sT2}, {RB*8}, s{sT2}
s_min_u32 s{sT2}, s{sT2}, {QP*16}
v_cmp_gt_u32 s[{sB}:{sB+1}], s{sT2}, v{vT16}
s_mov_b32 s{S_P+2}, {E*2}
s_mov_b32 s{S_P+3}, 0x00020000
v_cndmask_b32 v{vO16}, v{vMHi}, v{vO16}, s[{sB}:{sB+1}]
v_lshrrev_b32 v{vD}, 2, v{vO16}
""")

    def early():
        a(f"""
buffer_load_dword v{vD}, v{vD}, s[{S_P}:{S_P+3}], 0 offen
buffer_load_dwordx4 v[{vM}:{vM+3}], v{vO16}, s[{S_M}:{S_M+3}], 0 offen
""")

    def wait_bar(mkp, n, tag):
        a(f"""
s_cmp_eq_u64 s[{mkp}:{mkp+1}], 0
s_cbranch_scc1 k2_wz_{tag}
k2_w_{tag}:
s_setprio 3
s_waitcnt lgkmcnt({n})
s_barrier
""")
        o(f"""
k2_wz_{tag}:
s_waitcnt lgkmcnt(0)
s_branch k2_w_{tag}
""")

    NM = 10 if TID else 3
    NBC = 4 if TID else 1
    NA = 4 if TID else 1
    if TID:
        a(f"""
s_mul_i32 s{sWk}, s{sW}, 2560
s_add_u32 s{sT0}, s{sWk}, s{sMo}
v_lshrrev_b32 v{vLW}, 2, v{vL16}
v_add_u32 v{vLW}, s{sT0}, v{vLW}
""")
    RD = (RC[0], RC[1], RXW[0], RXW[1])
    FINE = OPT['fine'] == '1'
    FS = [80, 82, 84, 86, 88, 90, 16, 18, 24, 26]

    def fs(i, on=True):
        if FINE and on:
            a(f"s_memtime s[{FS[i]}:{FS[i]+1}]")

    a(f"""
s_lshl_b32 s{sT0}, s{sW}, 10
s_add_u32 m0, s{sT0}, {ACC}
s_nop 0
buffer_load_dwordx4 v{GA}, s[{S_T}:{S_T+3}], 0 offen lds
s_add_u32 m0, s{sT0}, {ACC+16384}
s_mov_b64 exec, s[{sC}:{sC+1}]
buffer_load_dwordx4 v{GA+1}, s[{S_T}:{S_T+3}], 0 offen lds
s_mov_b64 exec, -1
""")
    m_load()
    a(f"v_mov_b32 v{EN+21}, 0")
    a(f"v_mov_b32 v{EN+22}, 0")
    a(f"v_mov_b32 v{EN+23}, 0")
    common_init()
    early_setup()
    zero_acc()
    a(f"s_waitcnt vmcnt({NM})")
    a("s_barrier")
    for i in range(5):
        a(f"ds_read_b128 v[{EN+4*i}:{EN+4*i+3}], v{FT} offset:{16*i}")
    a(f"ds_read_b32 v{EN+20}, v{FT} offset:80")
    if OPT['pst2'] == '1':
        st_()
    a(f"""
s_cmp_lt_u32 s{sW}, 4
s_waitcnt lgkmcnt(0)
s_cbranch_scc1 k2_rem
""")
    def d_load(e, rc, t):
        a(f"""
v_and_b32 v{t}, 0x7fff0, v{e}
v_add_u32 v{t}, v{t}, v{vBase}
buffer_load_dwordx4 v[{rc}:{rc+3}], v{t}, s[{S_R}:{S_R+3}], 0 offen {ld}
""")

    d_load(EN, RD[0], FT)
    a(f"s_cmp_lt_u32 s{sW}, {OPT['gs']}")
    a("s_cbranch_scc1 k2_n2")
    d_load(EN + 1, RD[1], FT + 1)
    a("s_waitcnt vmcnt(2)")
    a("s_branch k2_n3")
    a("k2_n2:")
    a("s_waitcnt vmcnt(1)")
    a("k2_n3:")
    m_write()
    a("s_waitcnt lgkmcnt(0)")
    a("s_barrier")
    zero_acc2()
    scale_setup()
    m_load(MP2)

    def d_prep(r, off, par, n):
        mk = MK[r & 1]
        ldp = (r & 1) == par
        a(f"""
s_set_gpr_idx_on s{sJ}, 0x1
v_mov_b32 v{FT+1}, v{EN+off}
""")
        if ldp:
            a(f"v_mov_b32 v{FT+2}, v{EN+off+2}")
            a(f"v_mov_b32 v{FT+3}, v{EN+off+3}")
        a(f"""
s_set_gpr_idx_off
v_cmp_le_u32 s[{mk}:{mk+1}], v{TH}, v{FT+1}
v_cmp_le_u32 s[{mk+2}:{mk+3}], v{TH+1}, v{FT+1}
v_cmp_le_u32 s[{mk+4}:{mk+5}], v{TH+2}, v{FT+1}
""")
        if ldp:
            for t in (FT + 2, FT + 3):
                a(f"v_and_b32 v{t}, 0x7fff0, v{t}")
                a(f"v_add_u32 v{t}, v{t}, v{vBase}")
        if n is not None:
            a(f"s_waitcnt vmcnt({n})")
        decode(RD[r], AD)

    a(f"s_cmp_lt_u32 s{sW}, {OPT['gs']}")
    a("s_cbranch_scc1 k2_dv1")
    for par in (0, 1):
        if par == 1:
            a("k2_dv1:")
        if par == 1:
            d_load(EN + 1, RD[1], FT)
            d_load(EN + 2, RD[2], FT + 1)
        m_piece(MP, 'b')
        d_prep(0, 0, par, 1 + par + NM + NBC)
        a(f"k2_dloop{par}:")
        for r in range(4):
            h = r & 1
            mk = MK[h]
            on = r == int(OPT['fr'])
            fs(0, on)
            gissue(mk, AD, GA)
            a("s_setprio 0")
            a("s_mov_b64 exec, -1")
            fs(1, on)
            m_piece(MPS[h], 'c')
            m_piece(MPS[h], 'a')
            held(h ^ 1)
            fs(2, on)
            wait_bar(MK[h ^ 1] + 4, 2, f"da{par}{r}")
            fs(3, on)
            a(f"s_waitcnt vmcnt({NM if h == par else NM+2})")
            if h == par:
                a(f"buffer_load_dwordx4 v[{RD[(r+2)&3]}:{RD[(r+2)&3]+3}], v{FT+2}, s[{S_R}:{S_R+3}], 0 offen {ld}")
                a(f"buffer_load_dwordx4 v[{RD[(r+3)&3]}:{RD[(r+3)&3]+3}], v{FT+3}, s[{S_R}:{S_R+3}], 0 offen {ld}")
            fs(4, on)
            m_write(MPS[h ^ 1])
            a("s_setprio 0")
            fs(5, on)
            vf = OPT['vf'] == '1' and par == 0
            accum_main(h, RD[r], f"d{par}{r}", vf)
            fs(6, on)
            fs(7, on)
            d_prep((r + 1) & 3, r + 1, par, None if h == par else 1 + NM + NBC)
            if r == 3:
                a(f"s_add_u32 s{sJ}, s{sJ}, 4")
            last_adds(h, vf)
            fs(8, on)
            wait_bar(mk + 2, 4, f"db{par}{r}")
            fs(9, on)
        a(f"""
s_cmp_lt_u32 s{sJ}, {NPH if not FINE else int(OPT['fn'])}
s_cbranch_scc0 k2_epi
s_cmp_lg_u32 s{sJ}, 8
s_cbranch_scc1 k2_dloop{par}
""")
        early()
        a(f"s_branch k2_dloop{par}")

    nr, inc, pre, V, tg, val, e0 = FT, FT + 1, FT + 2, FT + 3, FT + 4, FT + 5, FT + 6
    dpp = "row_mask:0xf bank_mask:0xf"

    def flat_scan(ea, eb, stot, a=a):
        a(f"""
v_and_b32 v{nr}, 0x7fff0, v{eb}
v_and_b32 v{pre}, 0x7fff0, v{ea}
v_sub_u32 v{nr}, v{nr}, v{pre}
v_and_b32 v{V}, 0x7fff3, v{ea}
v_add_u32 v{nr}, -48, v{nr}
v_max_i32 v{nr}, 0, v{nr}
v_mov_b32 v{inc}, v{nr}
v_add_u32 v{V}, v{V}, v{vBase}
v_cmp_ne_u32 s[{sD}:{sD+1}], 0, v{nr}
""")
        scan(a, "v_add_u32", inc)
        a(f"""
v_sub_u32 v{pre}, v{inc}, v{nr}
v_readlane_b32 s{stot}, v{inc}, 63
v_sub_u32 v{V}, v{V}, v{pre}
""")

    def flat_push(swb, a=a):
        a(f"""
s_add_u32 s{sT1}, {swb}, 1024
v_cmp_ge_u32 s[{sA}:{sA+1}], {swb}, v{pre}
v_subrev_u32 v{tg}, {swb}, v{pre}
v_cmp_eq_u32 s[{sC}:{sC+1}], s{sT1}, v{inc}
s_bcnt1_i32_b64 s{sT0}, s[{sA}:{sA+1}]
v_add_u32 v{val}, -16, v{tg}
s_sub_u32 s{sT0}, s{sT0}, 1
v_cmp_gt_u32 vcc, 1008, v{val}
v_readlane_b32 s{sCarry}, v{V}, s{sT0}
v_lshrrev_b32 v{tg}, 2, v{tg}
s_and_b64 s[{sB}:{sB+1}], vcc, s[{sD}:{sD+1}]
v_cndmask_b32 v{tg}, 0, v{tg}, s[{sB}:{sB+1}]
v_cndmask_b32 v{val}, 0, v{V}, s[{sB}:{sB+1}]
ds_permute_b32 v{val}, v{tg}, v{val}
""")

    def flat_fin(swb, stot, mk, rc, a=a):
        a(f"""
v_cmp_ne_u32 s[{sA}:{sA+1}], 0, v{val}
v_add_u32 v{tg}, {swb}, v{vL16}
s_cmp_lg_u64 s[{sC}:{sC+1}], 0
v_max_u32_dpp v{val}, v{val}, v{val} row_shr:1 {dpp}
v_cmp_gt_u32 s[{mk}:{mk+1}], s{stot}, v{tg}
s_cselect_b32 s{sC+1}, 0x80000000, 0
v_max_u32_dpp v{val}, v{val}, v{val} row_shr:2 {dpp}
s_mov_b32 s{sC}, 0
s_lshr_b64 s[{sA}:{sA+1}], s[{sA}:{sA+1}], 1
v_max_u32_dpp v{val}, v{val}, v{val} row_shr:4 {dpp}
s_or_b64 s[{sC}:{sC+1}], s[{sC}:{sC+1}], s[{sA}:{sA+1}]
s_lshr_b64 s[{sA}:{sA+1}], s[{mk}:{mk+1}], 1
v_max_u32_dpp v{val}, v{val}, v{val} row_shr:8 {dpp}
s_andn2_b64 s[{sA}:{sA+1}], s[{mk}:{mk+1}], s[{sA}:{sA+1}]
s_bitset0_b64 s[{sA}:{sA+1}], 63
v_max_u32_dpp v{val}, v{val}, v{val} row_bcast:15 row_mask:0xa bank_mask:0xf
s_or_b64 s[{sC}:{sC+1}], s[{sC}:{sC+1}], s[{sA}:{sA+1}]
s_nop 0
v_max_u32_dpp v{val}, v{val}, v{val} row_bcast:31 row_mask:0xc bank_mask:0xf
v_max_u32 v{val}, s{sCarry}, v{val}
v_add_u32 v{tg}, v{tg}, v{val}
v_and_b32 v{val}, 3, v{val}
v_and_b32 v{tg}, -16, v{tg}
v_cmp_eq_u32 s[{sA}:{sA+1}], 2, v{val}
v_cmp_ne_u32 s[{sB}:{sB+1}], 0, v{val}
v_cndmask_b32 v{tg}, v{vMHi}, v{tg}, s[{mk}:{mk+1}]
buffer_load_dwordx4 v[{rc}:{rc+3}], v{vL16 if 'r' in abl else tg}, s[{S_R}:{S_R+3}], 0 offen {ld}
s_and_b64 s[{sA}:{sA+1}], s[{sA}:{sA+1}], s[{sC}:{sC+1}]
s_and_b64 s[{sB}:{sB+1}], s[{sB}:{sB+1}], s[{sC}:{sC+1}]
s_andn2_b64 s[{mk+2}:{mk+3}], s[{mk}:{mk+1}], s[{sA}:{sA+1}]
s_andn2_b64 s[{mk+4}:{mk+5}], s[{mk}:{mk+1}], s[{sB}:{sB+1}]
""")

    def second(h, tag):
        a(f"""
s_cmp_gt_u32 s{TOT[h]}, 1024
s_cbranch_scc1 k2_sy_{tag}
k2_ns_{tag}:
""")
        o(f"k2_sy_{tag}:")
        o(f"s_movk_i32 s{sXw}, 1024")
        flat_push(f"s{sXw}", o)
        o("s_waitcnt lgkmcnt(0)")
        flat_fin(f"s{sXw}", TOT[h], MX[h], RXW[h], o)
        o(f"s_branch k2_ns_{tag}")

    a("k2_rem:")
    a("s_setprio 1")
    flat_scan(EN, EN + 1, TOT[0])
    flat_push("0")
    a("s_waitcnt lgkmcnt(0)")
    flat_fin("0", TOT[0], MN[0], RC[0])
    second(0, "p0")
    if OPT['pst2'] == '1':
        st_()
    a(f"s_waitcnt vmcnt(1)")
    if OPT['pst2'] == '1':
        st_()
    m_write()
    a(f"""
v_and_b32 v{FT}, 0x7fff0, v{EN+20}
v_and_b32 v{FT+1}, 0x7fff0, v{EN}
v_sub_u32 v{FT}, v{FT}, v{FT+1}
s_lshl_b32 s{sT0}, s{sW}, 2
s_add_u32 s{sT0}, s{sT0}, {NW}
""")
    scan(a, "v_add_u32", FT)
    a(f"""
v_mov_b32 v{FT+3}, s{sT0}
{EXEC63}
ds_write_b32 v{FT+3}, v{FT}
s_mov_b64 exec, -1
s_waitcnt lgkmcnt(0)
s_barrier
""")
    st_()
    zero_acc2()
    scale_setup()
    st_()
    flat_scan(EN + 1, EN + 2, TOT[1])
    flat_push("0")
    m_load(MP2)
    m_piece(MP, 'b')
    a("s_waitcnt lgkmcnt(0)")
    flat_fin("0", TOT[1], MN[1], RC[1])
    second(1, "p1")

    def r_prep(h, off, n=NM+1):
        mk = MK[h]
        a(f"""
s_set_gpr_idx_on s{sJ}, 0x1
v_mov_b32 v{e0}, v{EN+off+2}
v_mov_b32 v{e0+1}, v{EN+off+3}
s_set_gpr_idx_off
""")
        flat_scan(e0, e0 + 1, sTN)
        a(f"s_waitcnt vmcnt({n})")
        for i in range(0, 6, 2):
            a(f"s_mov_b64 s[{mk+i}:{mk+i+1}], s[{MN[h]+i}:{MN[h]+i+1}]")
        decode(RC[h], AD)

    r_prep(0, 0, 1 + NM + NBC)
    if OPT['pst2'] == '1':
        st_()
    a("k2_rloop:")
    for h in range(2):
        mk = MK[h]
        on = h == (int(OPT['fr']) & 1)
        fs(0, on)
        gissue(mk, AD, GA)
        a("s_mov_b64 exec, -1")
        a(f"""
s_cmp_gt_u32 s{TOT[h]}, {1024 if not FINE else 0x7fffffff}
s_cbranch_scc1 k2_xy_{h}
k2_nx_{h}:
""")
        o(f"k2_xy_{h}:")
        window_now(MX[h], RXW[h], f"x{h}")
        o(f"""
s_waitcnt lgkmcnt(0)
s_cmp_le_u32 s{TOT[h]}, 2048
s_cbranch_scc1 k2_nx_{h}
s_movk_i32 s{sXw}, 2048
s_add_u32 s{sT2}, s{sJ}, {h}
s_call_b64 s[{sRet}:{sRet+1}], k2_slow
s_waitcnt lgkmcnt(0)
s_set_gpr_idx_on s{sJ}, 0x1
v_mov_b32 v{e0}, v{EN+h+2}
v_mov_b32 v{e0+1}, v{EN+h+3}
s_set_gpr_idx_off
""")
        flat_scan(e0, e0 + 1, sTN, o)
        o(f"s_branch k2_nx_{h}")
        flat_push("0")
        a("s_setprio 1")
        fs(1, on)
        m_piece(MPS[h], 'c')
        m_piece(MPS[h], 'a')
        a(f"s_mov_b32 s{TOT[h]}, s{sTN}")
        held(h ^ 1)
        fs(2, on)
        wait_bar(MK[h ^ 1] + 4, 2, f"ra{h}")
        fs(3, on)
        a(f"s_waitcnt vmcnt({NM+1})")
        fs(4, on)
        m_write(MPS[h ^ 1])
        a("s_setprio 1")
        fs(5, on)
        accum_main(h, RC[h], f"r{h}")
        fs(6, on)
        flat_fin("0", TOT[h], MN[h], RC[h])
        if not FINE:
            second(h, f"l{h}")
        fs(7, on)
        r_prep(h ^ 1, h + 1)
        last_adds(h)
        fs(8, on)
        if h == 1:
            a(f"s_add_u32 s{sJ}, s{sJ}, 2")
        wait_bar(mk + 2, 4, f"rb{h}")
        fs(9, on)
        if OPT['pst2'] == '1':
            st_()
    a(f"""
s_cmp_lt_u32 s{sJ}, {NPH if not FINE else int(OPT['fn'])}
s_cbranch_scc0 k2_epi
s_cmp_lg_u32 s{sJ}, 8
s_cbranch_scc1 k2_rloop
""")
    early()
    a("s_branch k2_rloop")
    def fused_epilogue():
        QP = 782
        EB = 64
        S_D, S_O, S_G = 4, 8, 24
        WR, WSB, WD, WU = 48, 64, 80, 88
        CE = 28
        CF = 80
        PP, PP2 = 20, 42
        tS = 40
        sSc, sFl = 44, 45
        vT = 9
        R = (16, 24)
        G = (32, 36)
        H = (40, 44)
        RP = (48, 52)
        S = (16, 20)
        AG = (24, 28)
        PL = 96
        a("k2_epi:")
        held(1)
        if FINE:
            a("s_waitcnt lgkmcnt(0)")
            for i2 in range(10):
                a(f"v_writelane_b32 v{FT}, s{FS[i2]}, {i2}")
            a(f"s_lshl_b32 s{sT0}, s2, 10")
            a(f"s_lshl_b32 s{sT1}, s{sW}, 6")
            a(f"s_add_u32 s{sT0}, s{sT0}, s{sT1}")
            srd_off(a, 28, P + 2, sT0, DIAG_OFF + 0x200000, 40)
            a(f"v_lshrrev_b32 v{FT+1}, 2, v{vL16}")
            a(f"buffer_store_dword v{FT}, v{FT+1}, s[28:31], 0 offen")
        a(f"""
s_load_dwordx2 s[{S_O}:{S_O+1}], s[0:1], {KA['out']}
s_load_dwordx2 s[{PP}:{PP+1}], s[0:1], {KA['centers']}
s_load_dwordx4 s[{WU}:{WU+3}], s[0:1], {KA['w_rbf']}
s_load_dwordx4 s[{WU+4}:{WU+7}], s[0:1], {KA['w_down']}
v_add_u32 v{vLW}, {ACC}, v{vT16}
v_add_u32 v{vBase}, {ACC+ACCB}, v{vT16}
v_mov_b32 v{vMagic}, s{sPf}
s_mul_i32 s{sT0}, s{sCg}, {E*8}
s_mul_i32 s{sT1}, s{sRb}, {RB*8}
s_add_u32 s{sT0}, s{sT0}, s{sT1}
v_cmp_ne_u32 s[{sNK}:{sNK+1}], v{vO16}, v{vMHi}
s_mov_b32 s{sJ}, s{sT0}
""")
        srd_off(a, S_P, P + 2, sT0, PART_OFF, RB * 8)
        srd_off(a, S_G, P + 2, None, HF_OFF, 8192)
        a(f"""
s_waitcnt vmcnt(0) lgkmcnt(0)
s_load_dwordx4 s[{CE}:{CE+3}], s[{PP}:{PP+1}], 0
s_load_dwordx16 s[{WR}:{WR+15}], s[{WU}:{WU+1}], 0
s_load_dwordx16 s[{WSB}:{WSB+15}], s[{WU+2}:{WU+3}], 0
s_mov_b64 s[{PP}:{PP+1}], s[{WU+4}:{WU+5}]
s_mov_b64 s[{PP2}:{PP2+1}], s[{WU+6}:{WU+7}]
s_barrier
""")
        st_()
        for it in range(4):
            b = EB + it * 8
            if it == 3:
                a(f"v_min_u32 v{vLW}, {ACC + 52*16}, v{vLW}")
                a(f"v_min_u32 v{vBase}, {ACC + ACCB + 52*16}, v{vBase}")
            a(f"ds_read_b128 v[{b}:{b+3}], v{vLW} offset:{it*16384}")
            a(f"ds_read_b128 v[{b+4}:{b+7}], v{vBase} offset:{it*16384}")
        a(f"""
s_mov_b32 s{S_O+2}, {E*8}
s_mov_b32 s{S_O+3}, 0x00020000
s_cmp_lg_u32 s{sMode}, 0
s_waitcnt lgkmcnt(0)
s_cbranch_scc1 k2_epf
""")
        for it in range(4):
            b = EB + it * 8
            for p in range(4):
                a(f"v_ashrrev_i32 v{FT+2+p}, 31, v{b+2*p}")
            for p in range(4):
                a(f"v_sub_u32 v{b+2*p+1}, v{b+2*p+1}, v{FT+2+p}")
            for p in range(8):
                a(f"v_cvt_f32_i32 v{b+p}, v{b+p}")
            for p in range(8):
                a(f"v_mul_f32 v{b+p}, v{vMagic}, v{b+p}")
            a(f"""
v_cvt_pk_f16_f32 v{b}, v{b}, v{b+1}
v_cvt_pk_f16_f32 v{b+1}, v{b+4}, v{b+5}
v_cvt_pk_f16_f32 v{b+2}, v{b+2}, v{b+3}
v_cvt_pk_f16_f32 v{b+3}, v{b+6}, v{b+7}
buffer_store_dwordx4 v[{b}:{b+3}], v{vT16}, s[{S_P}:{S_P+3}], 0 offen sc1
""")
            if it < 3:
                a(f"v_add_u32 v{vT16}, 16384, v{vT16}")
        a("k2_epj:")
        o("k2_epf:")
        o(f"s_lshl_b32 s{sT0}, s{sJ}, 1")
        srd_off(o, S_P, P + 2, sT0, P32_OFF, RB * 16)
        o(f"v_lshlrev_b32 v{vT16}, 1, v{vT16}")
        for it in range(4):
            b = EB + it * 8
            o(f"""
buffer_store_dwordx2 v[{b}:{b+1}], v{vT16}, s[{S_P}:{S_P+3}], 0 offen sc1
buffer_store_dwordx2 v[{b+4}:{b+5}], v{vT16}, s[{S_P}:{S_P+3}], 0 offen offset:8 sc1
buffer_store_dwordx2 v[{b+2}:{b+3}], v{vT16}, s[{S_P}:{S_P+3}], 0 offen offset:16 sc1
buffer_store_dwordx2 v[{b+6}:{b+7}], v{vT16}, s[{S_P}:{S_P+3}], 0 offen offset:24 sc1
v_add_u32 v{vT16}, 32768, v{vT16}
""")
        o("s_waitcnt vmcnt(0)")
        o("s_branch k2_epj")

        def rnd(x):
            a(f"v_cvt_pk_bf16_f32 v{x+1}, v{x}, v{x+1}")
            a(f"v_lshlrev_b32 v{x}, 16, v{x+1}")
            a(f"v_and_b32 v{x+1}, v{vMHi}, v{x+1}")

        a(f"""
s_cmp_gt_u32 s{sW}, 12
s_cbranch_scc1 k2_sig
""")
        for k in range(8):
            a(s_unpack(CF + k, CE, k))
        a(f"""
v_and_b32 v{vD+1}, v{vMHi}, v{vD}
v_lshlrev_b32 v{vD}, 16, v{vD}
""")
        for r in range(2):
            for k in range(0, 8, 2):
                a(f"v_pk_add_f32 v[{R[r]+k}:{R[r]+k+1}], v[{vD}:{vD+1}], s[{CF+k}:{CF+k+1}] op_sel:[{r},0] op_sel_hi:[{r},1] neg_lo:[0,1] neg_hi:[0,1]")
        a(f"s_load_dwordx8 s[{WD}:{WD+7}], s[{PP}:{PP+1}], 0")
        a(f"s_load_dwordx8 s[{WU}:{WU+7}], s[{PP2}:{PP2+1}], 0")
        allr = [R[r] + k for r in range(2) for k in range(8)]
        for x in allr[::2]:
            rnd(x)
        for x in allr:
            a(f"v_mul_f32 v{x}, v{x}, v{x}")
        for x in allr[::2]:
            rnd(x)
        for x in allr:
            a(f"v_mul_f32 v{x}, 0xc1200000, v{x}")
        for x in allr[::2]:
            rnd(x)
        st_()
        a("""
s_waitcnt vmcnt(0)
s_barrier
""")
        st_()
        for x in allr:
            a(f"v_mul_f32 v{x}, 0x3fb8aa3b, v{x}")
        for x in allr:
            a(f"v_exp_f32 v{x}, v{x}")
        a("s_nop 0")
        for r in range(2):
            for kk in range(4):
                a(f"v_cvt_pk_bf16_f32 v{RP[r]+kk}, v{R[r]+2*kk}, v{R[r]+2*kk+1}")
        cnt = [0]

        def wpair(base, kk, c):
            d = tS + (cnt[0] & 3)
            cnt[0] += 1
            op = "s_pack_ll_b32_b16" if c % 2 == 0 else "s_pack_hh_b32_b16"
            a(f"{op} s{d}, s{base + 4*kk + c//2}, s{base + 4*kk + 2 + c//2}")
            return d

        def dotmat(dst, src, base, nk):
            for kk in range(nk):
                for c in range(4):
                    w = wpair(base, kk, c)
                    for r in range(2):
                        acc = "0" if kk == 0 else f"v{dst[r]+c}"
                        a(f"v_dot2_f32_bf16 v{dst[r]+c}, v{src[r]+kk}, s{w}, {acc}")

        dotmat(H, RP, WR, 4)
        dotmat(G, RP, WSB, 4)
        for r in range(2):
            rnd(H[r])
            rnd(H[r] + 2)
        srd_off(a, S_P, P + 2, None, PART_OFF, 4 * E * 8)
        st_()
        a(f"""
v_mov_b32 v{vT}, {NW}
s_waitcnt lgkmcnt(0)
s_barrier
ds_read_b32 v{vT}, v{vT}
v_add_u32 v{FT}, {E*8}, v{vO16}
v_add_u32 v{FT+1}, {2*E*8}, v{vO16}
v_add_u32 v{FT+2}, {3*E*8}, v{vO16}
s_mov_b64 exec, s[{sNK}:{sNK+1}]
buffer_load_dwordx4 v[{PL}:{PL+3}], v{vO16}, s[{S_P}:{S_P+3}], 0 offen sc1
buffer_load_dwordx4 v[{PL+4}:{PL+7}], v{FT}, s[{S_P}:{S_P+3}], 0 offen sc1
buffer_load_dwordx4 v[{PL+8}:{PL+11}], v{FT+1}, s[{S_P}:{S_P+3}], 0 offen sc1
buffer_load_dwordx4 v[{PL+12}:{PL+15}], v{FT+2}, s[{S_P}:{S_P+3}], 0 offen sc1
s_waitcnt lgkmcnt(0)
v_readfirstlane_b32 s{sFl}, v{vT}
v_mov_b32 v{vT}, s{sMsc}
""")
        st_()
        a(f"""
s_cmp_gt_u32 s{sFl}, 255
s_cbranch_scc1 k2_fslow
s_waitcnt vmcnt(0)
""")
        for r in range(2):
            for c in range(4):
                reg = 2 * r + c // 2
                hi = c % 2
                d = S[r] + c
                a(f"v_fma_mix_f32 v{d}, v{PL+reg}, 1.0, v{PL+4+reg} op_sel:[{hi},0,{hi}] op_sel_hi:[1,0,1]")
                a(f"v_fma_mix_f32 v{d}, v{PL+8+reg}, 1.0, v{d} op_sel:[{hi},0,0] op_sel_hi:[1,0,0]")
                a(f"v_fma_mix_f32 v{d}, v{PL+12+reg}, 1.0, v{d} op_sel:[{hi},0,0] op_sel_hi:[1,0,0]")
        for r in range(2):
            for c in range(4):
                a(f"v_mul_f32 v{S[r]+c}, v{vT}, v{S[r]+c}")
        a("k2_fjoin:")
        for jj in range(4):
            for cp in range(2):
                d = tS + 2 * ((jj * 2 + cp) & 1)
                a(s_unpack(d, WD, jj * 4 + cp * 2))
                a(s_unpack(d + 1, WD, jj * 4 + cp * 2 + 1))
                for r in range(2):
                    sp = S[r] + (jj & ~1)
                    oo = jj & 1
                    dd = AG[r] + 2 * cp
                    if jj == 0:
                        a(f"v_pk_mul_f32 v[{dd}:{dd+1}], v[{sp}:{sp+1}], s[{d}:{d+1}] op_sel:[{oo},0] op_sel_hi:[{oo},1]")
                    else:
                        a(f"v_pk_fma_f32 v[{dd}:{dd+1}], v[{sp}:{sp+1}], s[{d}:{d+1}], v[{dd}:{dd+1}] op_sel:[{oo},0,0] op_sel_hi:[{oo},1,1]")
        for r in range(2):
            for c in range(4):
                a(f"v_mul_f32 v{AG[r]+c}, v{AG[r]+c}, v{G[r]+c}")
        for r in range(2):
            for kk in range(2):
                a(f"v_cvt_pk_bf16_f32 v{RP[r]+kk}, v{AG[r]+2*kk}, v{AG[r]+2*kk+1}")
        dotmat(G, RP, WU, 2)
        for r in range(2):
            for cp in range(2):
                a(f"v_lshlrev_b32 v{S[r]+2*cp}, 16, v{vM+2*r+cp}")
                a(f"v_and_b32 v{S[r]+2*cp+1}, v{vMHi}, v{vM+2*r+cp}")
        for r in range(2):
            rnd(G[r])
            rnd(G[r] + 2)
        for r in range(2):
            for c in range(4):
                a(f"v_mul_f32 v{G[r]+c}, v{G[r]+c}, v{H[r]+c}")
        for r in range(2):
            rnd(G[r])
            rnd(G[r] + 2)
        for r in range(2):
            for c in range(4):
                a(f"v_add_f32 v{G[r]+c}, v{G[r]+c}, v{S[r]+c}")
        for r in range(2):
            for cp in range(2):
                a(f"v_cvt_pk_bf16_f32 v{vM+2*r+cp}, v{G[r]+2*cp}, v{G[r]+2*cp+1}")
        a(f"buffer_store_dwordx4 v[{vM}:{vM+3}], v{vO16}, s[{S_O}:{S_O+3}], 0 offen")
        st_()
        st_.flush(FT)
        a("""
k2_done:
s_endpgm
""")
        a(f"""
k2_sig:
s_waitcnt vmcnt(0)
s_barrier
s_cmp_lg_u32 s{sW}, 15
s_cbranch_scc1 k2_sig_e
s_add_u32 s{sT0}, s{sCg}, 8
s_lshl_b32 s{sT0}, s{sMode}, s{sT0}
s_add_u32 s{sT0}, s{sT0}, 1
s_lshl_b32 s{sT1}, s{sRb}, 7
s_lshl_b32 s{sT2}, s{sCg}, 2
s_add_u32 s{sT2}, s{sT2}, s{sT1}
s_mov_b64 exec, 1
v_mov_b32 v{FT}, s{sT1}
v_mov_b32 v{FT+1}, s{sT0}
v_mov_b32 v{FT+2}, s{sT2}
buffer_store_dword v{FT+1}, v{FT+2}, s[{S_G}:{S_G+3}], 0 offen sc1
s_mov_b32 s{sT2}, 0x100000
k2_poll:
buffer_load_dwordx4 v[{FT+4}:{FT+7}], v{FT}, s[{S_G}:{S_G+3}], 0 offen sc1
s_waitcnt vmcnt(0)
v_add_u32 v{FT+1}, v{FT+4}, v{FT+5}
v_add3_u32 v{FT+1}, v{FT+1}, v{FT+6}, v{FT+7}
s_nop 0
v_readfirstlane_b32 s{sT1}, v{FT+1}
s_and_b32 s{sT1}, s{sT1}, 255
s_cmp_ge_u32 s{sT1}, 4
s_cbranch_scc1 k2_poll_e
s_sub_u32 s{sT2}, s{sT2}, 1
s_cbranch_scc1 k2_poll_e
s_sleep 1
s_branch k2_poll
k2_poll_e:
v_mov_b32 v{FT}, {NW}
ds_write_b32 v{FT}, v{FT+1}
s_waitcnt lgkmcnt(0)
k2_sig_e:
s_barrier
s_endpgm
""")
        o("k2_fslow:")
        srd_off(o, S_D, P + 2, None, P32_OFF, 4 * E * 16)
        o(f"v_lshlrev_b32 v{FT}, 1, v{vO16}")
        for i2 in range(8):
            o(f"v_mov_b32 v{S[0]+i2}, 0")
        o("s_waitcnt vmcnt(0)")
        for c in range(4):
            o(f"""
s_bitcmp1_b32 s{sFl}, {8+c}
s_cbranch_scc1 k2_s32_{c}
""")
            for r in range(2):
                for cc in range(4):
                    reg = 2 * r + cc // 2
                    o(f"v_fma_mix_f32 v{S[r]+cc}, v{PL+4*c+reg}, v{vT}, v{S[r]+cc} op_sel:[{cc%2},0,0] op_sel_hi:[1,0,0]")
            o(f"""
s_branch k2_sn_{c}
k2_s32_{c}:
buffer_load_dwordx4 v[24:27], v{FT}, s[{S_D}:{S_D+3}], 0 offen sc1
buffer_load_dwordx4 v[28:31], v{FT}, s[{S_D}:{S_D+3}], 0 offen offset:16 sc1
s_waitcnt vmcnt(0)
""")
            for i2 in range(8):
                o(f"v_add_f32 v{S[0]+i2}, v{S[0]+i2}, v{24+i2}")
            o(f"k2_sn_{c}:")
            o(f"v_add_u32 v{FT}, {E*16}, v{FT}")
        o("s_branch k2_fjoin")

    def plain_epilogue():
        a("k2_epi:")
        held(1)
        if FINE:
            a("s_waitcnt lgkmcnt(0)")
            for i2 in range(10):
                a(f"v_writelane_b32 v{FT}, s{FS[i2]}, {i2}")
            a(f"s_lshl_b32 s{sT0}, s2, 10")
            a(f"s_lshl_b32 s{sT1}, s{sW}, 6")
            a(f"s_add_u32 s{sT0}, s{sT0}, s{sT1}")
            srd_off(a, 28, P + 2, sT0, DIAG_OFF + 0x200000, 40)
            a(f"v_lshrrev_b32 v{FT+1}, 2, v{vL16}")
            a(f"buffer_store_dword v{FT}, v{FT+1}, s[28:31], 0 offen")
        EB = 64
        a(f"""
v_add_u32 v{vLW}, {ACC}, v{vT16}
v_add_u32 v{vBase}, {ACC+ACCB}, v{vT16}
v_mov_b32 v{vMagic}, s{sPf}
s_lshl_b32 s{sT0}, s{sCo}, 2
v_mov_b32 v{FT}, s{sT0}
v_mov_b32 v{FT+1}, s{sMode}
""")
        srd_off(a, S_T, P + 2, None, FLAG_OFF, 1024)
        a(f"""
s_mul_i32 s{sT0}, s{sCg}, {E*8}
s_mul_i32 s{sT1}, s{sRb}, {RB*8}
s_add_u32 s{sT0}, s{sT0}, s{sT1}
""")
        srd_off(a, S_P, P + 2, sT0, PART_OFF, RB * 8)
        a(f"s_lshl_b32 s{sT0}, s{sT0}, 1")
        srd_off(a, S_M, P + 2, sT0, P32_OFF, RB * 16)
        a(f"""
s_waitcnt vmcnt(0) lgkmcnt(0)
s_barrier
""")
        st_()
        for it in range(4):
            b = EB + it * 8
            if it == 3:
                a(f"v_min_u32 v{vLW}, {ACC + 52*16}, v{vLW}")
                a(f"v_min_u32 v{vBase}, {ACC + ACCB + 52*16}, v{vBase}")
            a(f"ds_read_b128 v[{b}:{b+3}], v{vLW} offset:{it*16384}")
            a(f"ds_read_b128 v[{b+4}:{b+7}], v{vBase} offset:{it*16384}")
        a(f"""
v_cmp_eq_u32 vcc, 0, v0
s_and_saveexec_b64 s[{sA}:{sA+1}], vcc
buffer_store_dword v{FT+1}, v{FT}, s[{S_T}:{S_T+3}], 0 offen
s_mov_b64 exec, s[{sA}:{sA+1}]
s_cmp_lg_u32 s{sMode}, 0
s_cbranch_scc1 k2_epf
""")
        for it in range(4):
            b = EB + it * 8
            a(f"s_waitcnt lgkmcnt({2*(3-it)})")
            for p in range(4):
                a(f"v_ashrrev_i32 v{FT+2+p}, 31, v{b+2*p}")
            for p in range(4):
                a(f"v_sub_u32 v{b+2*p+1}, v{b+2*p+1}, v{FT+2+p}")
            for p in range(8):
                a(f"v_cvt_f32_i32 v{b+p}, v{b+p}")
            for p in range(8):
                a(f"v_mul_f32 v{b+p}, v{vMagic}, v{b+p}")
            a(f"""
v_cvt_pk_f16_f32 v{b}, v{b}, v{b+1}
v_cvt_pk_f16_f32 v{b+1}, v{b+4}, v{b+5}
v_cvt_pk_f16_f32 v{b+2}, v{b+2}, v{b+3}
v_cvt_pk_f16_f32 v{b+3}, v{b+6}, v{b+7}
buffer_store_dwordx4 v[{b}:{b+3}], v{vT16}, s[{S_P}:{S_P+3}], 0 offen {pst}
""")
            if it < 3:
                a(f"v_add_u32 v{vT16}, 16384, v{vT16}")
        st_()
        if st_.on:
            a("s_waitcnt vmcnt(0)")
        st_()
        st_.flush(FT)
        a("""
k2_done:
s_endpgm
k2_epf:
s_waitcnt lgkmcnt(0)
""")
        a(f"v_lshlrev_b32 v{vT16}, 1, v{vT16}")
        for it in range(4):
            b = EB + it * 8
            a(f"""
buffer_store_dwordx2 v[{b}:{b+1}], v{vT16}, s[{S_M}:{S_M+3}], 0 offen
buffer_store_dwordx2 v[{b+4}:{b+5}], v{vT16}, s[{S_M}:{S_M+3}], 0 offen offset:8
buffer_store_dwordx2 v[{b+2}:{b+3}], v{vT16}, s[{S_M}:{S_M+3}], 0 offen offset:16
buffer_store_dwordx2 v[{b+6}:{b+7}], v{vT16}, s[{S_M}:{S_M+3}], 0 offen offset:24
v_add_u32 v{vT16}, 32768, v{vT16}
""")
        a("s_endpgm")

    if OPT['fuse'] == '1':
        fused_epilogue()
    else:
        plain_epilogue()
    o("k2_slow:")
    o(f"""
s_set_gpr_idx_on s{sT2}, 0x1
v_mov_b32 v{e0}, v{EN}
v_mov_b32 v{e0+1}, v{EN+1}
s_set_gpr_idx_off
""")
    flat_scan(e0, e0 + 1, sTot, o)
    o("k2_slow_l:")
    flat_push(f"s{sXw}", o)
    o("s_waitcnt lgkmcnt(0)")
    flat_fin(f"s{sXw}", sTot, MS, RS, o)
    o("s_waitcnt vmcnt(0)")
    window_now(MS, RS, "slow")
    o(f"""
s_add_u32 s{sXw}, s{sXw}, 1024
s_cmp_lt_u32 s{sXw}, s{sTot}
s_cbranch_scc1 k2_slow_l
s_setpc_b64 s[{sRet}:{sRet+1}]
""")
    txt = a.s
    if OPT['abl2']:
        i0 = txt.index('k2_dloop0:'); i1 = txt.index('k2_rem:'); i2 = txt.index('k2_rloop:'); i3 = txt.index('k2_epi:')
        def filt(t):
            out = []
            for l in t.split('\n'):
                x = l.strip()
                f = OPT['abl2']
                if 'v' in f and (x.startswith('buffer_') or x.startswith('s_waitcnt vmcnt')): continue
                if 'd' in f and x.startswith('ds_add'): continue
                if 'g' in f and x.startswith('ds_read'): continue
                if 'q' in f and (x.startswith('v_fma') or x.startswith('v_lshl_add_u64') or x.startswith('v_lshlrev_b32') or x.startswith('v_alignbit')): continue
                if 'p' in f and ('_dpp' in x or x.startswith('s_nop') or x.startswith('v_readlane') or x.startswith('v_cndmask') or x.startswith('ds_permute')): continue
                if 'e' in f and x.startswith('s_mov_b64 exec'): continue
                if 'b' in f and x.startswith('s_barrier'): continue
                if 'x' in f and (x.startswith('s_set_gpr')): continue
                out.append(l)
            return '\n'.join(out)
        txt = txt[:i0] + filt(txt[i0:i1]) + txt[i1:i2] + filt(txt[i2:i3]) + txt[i3:]
    return txt + o.s, NVG, NW + 64


def gen_k3():
    a = A()
    pld = OPT['pld']
    S_M, S_D, S_O, S_P = 4, 8, 12, 16
    WR, WSB, WD, WU, CE = 20, 36, 52, 60, 68
    CF = 72
    PP = 72
    FL = 84
    MXS = 88
    sT = 80
    sWs = 96
    st_ = Stamper(a, 2, 98, sWs, 60, S_P)
    st_.start()
    vO16, vD, vM, vHi = 1, 2, 4, 8
    PL = 12
    R = (28, 36)
    G = (44, 48)
    H = (52, 56)
    S = (28, 32)
    RP = (62, 66)
    vT = 9
    a(f"""
s_cmp_ge_u32 s2, 1600
s_cbranch_scc1 k3_done
s_load_dwordx2 s[{S_M}:{S_M+1}], s[0:1], {KA['m']}
s_load_dwordx2 s[{S_D}:{S_D+1}], s[0:1], {KA['dist']}
s_load_dwordx2 s[{S_O}:{S_O+1}], s[0:1], {KA['out']}
s_load_dwordx2 s[{sWs}:{sWs+1}], s[0:1], {KA['ws']}
s_load_dwordx2 s[{PP}:{PP+1}], s[0:1], {KA['centers']}
s_load_dwordx4 s[{PP+4}:{PP+7}], s[0:1], {KA['w_rbf']}
s_load_dwordx4 s[{PP+8}:{PP+11}], s[0:1], {KA['w_down']}
s_mul_i32 s3, s2, 2000
v_lshlrev_b32 v{vO16}, 4, v0
v_add_u32 v{vO16}, s3, v{vO16}
v_mov_b32 v{vHi}, 0xffff0000
v_cmp_gt_u32 vcc, 125, v0
s_and_b64 exec, exec, vcc
v_lshrrev_b32 v{vT}, 2, v{vO16}
s_mul_i32 s3, s2, 5243
s_lshr_b32 s3, s3, 17
s_lshl_b32 s3, s3, 4
s_waitcnt lgkmcnt(0)
""")
    a(srd(S_D, S_D, E * 2))
    a(f"buffer_load_dword v{vD}, v{vT}, s[{S_D}:{S_D+3}], 0 offen")
    a(f"""
s_load_dwordx4 s[{CE}:{CE+3}], s[{PP}:{PP+1}], 0
s_load_dwordx16 s[{WR}:{WR+15}], s[{PP+4}:{PP+5}], 0
s_load_dwordx16 s[{WSB}:{WSB+15}], s[{PP+6}:{PP+7}], 0
s_load_dwordx8 s[{WD}:{WD+7}], s[{PP+8}:{PP+9}], 0
s_load_dwordx8 s[{WU}:{WU+7}], s[{PP+10}:{PP+11}], 0
s_add_u32 s{PP+2}, s{sWs}, {MAX_OFF}
s_addc_u32 s{PP+3}, s{sWs+1}, 0
s_load_dwordx8 s[{MXS}:{MXS+7}], s[{PP+2}:{PP+3}], 0
s_add_u32 s{PP+2}, s{PP+2}, s3
s_addc_u32 s{PP+3}, s{PP+3}, 0
s_load_dwordx4 s[{FL}:{FL+3}], s[{PP+2}:{PP+3}], {FLAG_OFF-MAX_OFF}
""")
    srd_off(a, S_P, sWs, None, PART_OFF, 4 * E * 8)
    for c in range(4):
        if c:
            a(f"s_mov_b32 s3, {c*E*8}")
        a(f"buffer_load_dwordx4 v[{PL+4*c}:{PL+4*c+3}], v{vO16}, s[{S_P}:{S_P+3}], {'s3' if c else '0'} offen {pld}")
    a(srd(S_M, S_M, E * 8) + srd(S_O, S_O, E * 8))
    a(f"buffer_load_dwordx4 v[{vM}:{vM+3}], v{vO16}, s[{S_M}:{S_M+3}], 0 offen")
    a("s_waitcnt lgkmcnt(0)")
    for k in range(8):
        a(s_unpack(CF + k, CE, k))
    a(f"""
s_max_u32 s{MXS}, s{MXS}, s{MXS+1}
s_max_u32 s{MXS+2}, s{MXS+2}, s{MXS+3}
s_max_u32 s{MXS+4}, s{MXS+4}, s{MXS+5}
s_max_u32 s{MXS}, s{MXS}, s{MXS+2}
s_max_u32 s{MXS}, s{MXS}, s{MXS+4}
s_lshl_b32 s3, s{MXS}, 16
s_and_b32 s3, s3, 0x7f800000
s_add_u32 s3, s3, {2 << 23}
s_waitcnt vmcnt(5)
v_and_b32 v{vD+1}, v{vHi}, v{vD}
v_lshlrev_b32 v{vD}, 16, v{vD}
""")

    st_.init()
    st_()

    def rnd(x):
        a(f"v_cvt_pk_bf16_f32 v{x+1}, v{x}, v{x+1}")
        a(f"v_lshlrev_b32 v{x}, 16, v{x+1}")
        a(f"v_and_b32 v{x+1}, v{vHi}, v{x+1}")

    for r in range(2):
        for k in range(0, 8, 2):
            a(f"v_pk_add_f32 v[{R[r]+k}:{R[r]+k+1}], v[{vD}:{vD+1}], s[{CF+k}:{CF+k+1}] op_sel:[{r},0] op_sel_hi:[{r},1] neg_lo:[0,1] neg_hi:[0,1]")
    allr = [R[r] + k for r in range(2) for k in range(8)]
    for x in allr[::2]:
        rnd(x)
    for x in allr:
        a(f"v_mul_f32 v{x}, v{x}, v{x}")
    for x in allr[::2]:
        rnd(x)
    for x in allr:
        a(f"v_mul_f32 v{x}, 0xc1200000, v{x}")
    for x in allr[::2]:
        rnd(x)
    for x in allr:
        a(f"v_mul_f32 v{x}, 0x3fb8aa3b, v{x}")
    for x in allr:
        a(f"v_exp_f32 v{x}, v{x}")
    a("s_nop 0")
    for r in range(2):
        for kk in range(4):
            a(f"v_cvt_pk_bf16_f32 v{RP[r]+kk}, v{R[r]+2*kk}, v{R[r]+2*kk+1}")

    cnt = [0]

    def wpair(base, kk, c):
        d = sT + (cnt[0] & 3)
        cnt[0] += 1
        op = "s_pack_ll_b32_b16" if c % 2 == 0 else "s_pack_hh_b32_b16"
        a(f"{op} s{d}, s{base + 4*kk + c//2}, s{base + 4*kk + 2 + c//2}")
        return d

    def dotmat(dst, src, base, nk):
        for kk in range(nk):
            for c in range(4):
                w = wpair(base, kk, c)
                for r in range(2):
                    acc = "0" if kk == 0 else f"v{dst[r]+c}"
                    a(f"v_dot2_f32_bf16 v{dst[r]+c}, v{src[r]+kk}, s{w}, {acc}")

    dotmat(H, RP, WR, 4)
    dotmat(G, RP, WSB, 4)
    for r in range(2):
        rnd(H[r])
        rnd(H[r] + 2)
    a(f"""
s_or_b32 s{sT}, s{FL}, s{FL+1}
s_or_b32 s{sT+1}, s{FL+2}, s{FL+3}
s_or_b32 s{sT}, s{sT}, s{sT+1}
v_mov_b32 v{vT}, s3
s_cmp_lg_u32 s{sT}, 0
s_cbranch_scc1 k3_slow
s_waitcnt vmcnt(1)
""")
    for r in range(2):
        for c in range(4):
            reg = 2 * r + c // 2
            hi = c % 2
            d = S[r] + c
            a(f"v_fma_mix_f32 v{d}, v{PL+reg}, 1.0, v{PL+4+reg} op_sel:[{hi},0,{hi}] op_sel_hi:[1,0,1]")
            a(f"v_fma_mix_f32 v{d}, v{PL+8+reg}, 1.0, v{d} op_sel:[{hi},0,0] op_sel_hi:[1,0,0]")
            a(f"v_fma_mix_f32 v{d}, v{PL+12+reg}, 1.0, v{d} op_sel:[{hi},0,0] op_sel_hi:[1,0,0]")
    for r in range(2):
        for c in range(4):
            a(f"v_mul_f32 v{S[r]+c}, v{vT}, v{S[r]+c}")
    a("k3_join:")
    st_()
    AG = (36, 40)
    for j in range(4):
        for cp in range(2):
            d = sT + 2 * ((j * 2 + cp) & 1)
            a(s_unpack(d, WD, j * 4 + cp * 2))
            a(s_unpack(d + 1, WD, j * 4 + cp * 2 + 1))
            for r in range(2):
                sp = S[r] + (j & ~1)
                o = j & 1
                dd = AG[r] + 2 * cp
                if j == 0:
                    a(f"v_pk_mul_f32 v[{dd}:{dd+1}], v[{sp}:{sp+1}], s[{d}:{d+1}] op_sel:[{o},0] op_sel_hi:[{o},1]")
                else:
                    a(f"v_pk_fma_f32 v[{dd}:{dd+1}], v[{sp}:{sp+1}], s[{d}:{d+1}], v[{dd}:{dd+1}] op_sel:[{o},0,0] op_sel_hi:[{o},1,1]")
    for r in range(2):
        for c in range(4):
            a(f"v_mul_f32 v{AG[r]+c}, v{AG[r]+c}, v{G[r]+c}")
    for r in range(2):
        for kk in range(2):
            a(f"v_cvt_pk_bf16_f32 v{RP[r]+kk}, v{AG[r]+2*kk}, v{AG[r]+2*kk+1}")
    dotmat(G, RP, WU, 2)
    a("s_waitcnt vmcnt(0)")
    for r in range(2):
        for cp in range(2):
            a(f"v_lshlrev_b32 v{S[r]+2*cp}, 16, v{vM+2*r+cp}")
            a(f"v_and_b32 v{S[r]+2*cp+1}, v{vHi}, v{vM+2*r+cp}")
    for r in range(2):
        rnd(G[r])
        rnd(G[r] + 2)
    for r in range(2):
        for c in range(4):
            a(f"v_mul_f32 v{G[r]+c}, v{G[r]+c}, v{H[r]+c}")
    for r in range(2):
        rnd(G[r])
        rnd(G[r] + 2)
    for r in range(2):
        for c in range(4):
            a(f"v_add_f32 v{G[r]+c}, v{G[r]+c}, v{S[r]+c}")
    for r in range(2):
        for cp in range(2):
            a(f"v_cvt_pk_bf16_f32 v{vM+2*r+cp}, v{G[r]+2*cp}, v{G[r]+2*cp+1}")
    a(f"""
buffer_store_dwordx4 v[{vM}:{vM+3}], v{vO16}, s[{S_O}:{S_O+3}], 0 offen
""")
    st_()
    st_.flush(61)
    a(f"""
k3_done:
s_endpgm
k3_slow:
""")
    srd_off(a, S_D, sWs, None, P32_OFF, 4 * E * 16)
    a(f"v_lshlrev_b32 v{vT+1}, 1, v{vO16}")
    for i in range(8):
        a(f"v_mov_b32 v{S[0]+i}, 0")
    a("s_waitcnt vmcnt(0)")
    for c in range(4):
        a(f"""
s_cmp_lg_u32 s{FL+c}, 0
s_cbranch_scc1 k3_s32_{c}
""")
        for r in range(2):
            for cc in range(4):
                reg = 2 * r + cc // 2
                a(f"v_fma_mix_f32 v{S[r]+cc}, v{PL+4*c+reg}, v{vT}, v{S[r]+cc} op_sel:[{cc%2},0,0] op_sel_hi:[1,0,0]")
        a(f"""
s_branch k3_sn_{c}
k3_s32_{c}:
buffer_load_dwordx4 v[36:39], v{vT+1}, s[{S_D}:{S_D+3}], 0 offen
buffer_load_dwordx4 v[40:43], v{vT+1}, s[{S_D}:{S_D+3}], 0 offen offset:16
s_waitcnt vmcnt(0)
""")
        for i in range(8):
            a(f"v_add_f32 v{S[0]+i}, v{S[0]+i}, v{36+i}")
        a(f"k3_sn_{c}:")
        a(f"v_add_u32 v{vT+1}, {E*16}, v{vT+1}")
    a("s_branch k3_join")
    return a.s


k2, k2v, k2lds = gen_k2()
out = HEADER
out += "; K1: 2-D fine binning of triplets (register-resident tile), K2: LDS gather + integer LDS accumulation + finalize\n"
out += f"; @launch kernel=k1_kernel grid=({NT+NMX},1,1) block=(1024,1,1) lds={LDS_ALL}\n"
out += f"; @launch kernel=k2_kernel grid=(256,1,1) block=(1024,1,1) lds={k2lds}\n"
if OPT['fuse'] == '0':
    out += "; @launch kernel=k3_kernel grid=(1600,1,1) block=(128,1,1) lds=0\n"
out += '.amdgcn_target "amdgcn-amd-amdhsa--gfx950"\n'
out += kernel_begin('k1_kernel') + gen_k1()
out += kernel_begin('k2_kernel') + k2
if OPT['fuse'] == '0':
    out += kernel_begin('k3_kernel') + gen_k3()
out += kernel_desc('k1_kernel', 128, 80) + kernel_desc('k2_kernel', k2v, 102)
if OPT['fuse'] == '0':
    out += kernel_desc('k3_kernel', 70, 102 if OPT['diag'] == '1' else 98)
open(sys.argv[1], 'w').write(out)
```

```python
import sys
sys.path.insert(0, 'dev')
from common import *

NT = 250
NMX = 6
TILE = 51200
RB = 6250
CB = 5000
NCB = 80
NPH = 20
F = 64 * NCB
TGB = 20544 * 16
TABS = (F + 4) * 4
CAPG = 6826
CAP8 = CAPG * 24
REC_OFF = 0
TAB_OFF = 0x5000000
MAX_OFF = 0x5500000
FLAG_OFF = 0x5501000
HF_OFF = 0x5504000
PART_OFF = 0x5600000
P32_OFF = 0x6400000
DIAG_OFF = 0xFC00000
LDS_ALL = 163840
assert NT * TGB <= TAB_OFF and TAB_OFF + NT * TABS <= MAX_OFF

OPT = dict(ld='nt', st='', k2ld='', pst='', pld='', diag='0', depth='3', ne='4', nm='1', abl='', rb='0', fuse='1', abl2='', clk='0', tid='1', wb='0', fine='0', fr='2', fn='12', gs='10', vf='0', pst2='0', ff='1', q0a='1', cp='1')
for a_ in sys.argv[2:]:
    k_, v_ = a_.split('=')
    OPT[k_] = v_.replace('+', ' ')

BFI = "bitop3:0xca"
ANDOR = "bitop3:0xea"


class A:
    def __init__(self):
        self.s = ""

    def __call__(self, txt):
        for l in txt.strip('\n').split('\n'):
            l = l.strip()
            if not l:
                continue
            self.s += ("" if l.endswith(':') else "    ") + l + "\n"


def srd_off(a, d, ptr, off_sgpr, off_imm, nbytes):
    if off_sgpr is not None:
        a(f"s_add_u32 s{d}, s{ptr}, s{off_sgpr}")
        a(f"s_addc_u32 s{d+1}, s{ptr+1}, 0")
        if off_imm:
            a(f"s_add_u32 s{d}, s{d}, {off_imm}")
            a(f"s_addc_u32 s{d+1}, s{d+1}, 0")
    else:
        a(f"s_add_u32 s{d}, s{ptr}, {off_imm}")
        a(f"s_addc_u32 s{d+1}, s{ptr+1}, 0")
    a(f"s_mov_b32 s{d+2}, {nbytes}")
    a(f"s_mov_b32 s{d+3}, 0x00020000")


class Stamper:
    def __init__(self, a, kidx, sbase, wsptr, vtmp, srd):
        self.a, self.k, self.sb, self.ws, self.v, self.srd = a, kidx, sbase, wsptr, vtmp, srd
        self.on = OPT['diag'] == '1'

    def start(self):
        if self.on:
            self.a(f"s_memrealtime s[{self.sb+2}:{self.sb+3}]")

    def init(self):
        if not self.on:
            return
        a, sb = self.a, self.sb
        a(f"s_mov_b64 s[{sb}:{sb+1}], exec")
        a(f"s_mov_b64 exec, -1")
        a(f"v_mov_b32 v{self.v}, 0")
        a(f"s_mov_b64 exec, s[{sb}:{sb+1}]")
        a(f"v_writelane_b32 v{self.v}, s{sb+2}, 0")
        a(f"s_mov_b32 s{sb+3}, 1")

    def __call__(self):
        if not self.on:
            return
        a, sb = self.a, self.sb
        a(f"s_memrealtime s[{sb}:{sb+1}]")
        a(f"s_mov_b32 s{sb+2}, m0")
        a(f"s_mov_b32 m0, s{sb+3}")
        a("s_waitcnt lgkmcnt(0)")
        a(f"v_writelane_b32 v{self.v}, s{sb}, m0")
        a(f"s_add_u32 s{sb+3}, s{sb+3}, 1")
        if OPT['clk'] == '1':
            a(f"s_memtime s[{sb}:{sb+1}]")
            a(f"s_add_u32 m0, s{sb+3}, 31")
            a("s_waitcnt lgkmcnt(0)")
            a(f"v_writelane_b32 v{self.v}, s{sb}, m0")
        a(f"s_mov_b32 m0, s{sb+2}")

    def flush(self, vt):
        if not self.on:
            return
        a, sb = self.a, self.sb
        a(f"s_lshl_b32 s{sb}, s2, 8")
        srd_off(a, self.srd, self.ws, sb, DIAG_OFF + self.k * 0x100000, 256)
        a(f"s_mov_b64 exec, -1")
        a(f"v_cmp_gt_u32 vcc, 64, v0")
        a(f"s_and_b64 exec, exec, vcc")
        a(f"v_lshlrev_b32 v{vt}, 2, v0")
        a(f"buffer_store_dword v{self.v}, v{vt}, s[{self.srd}:{self.srd+3}], 0 offen")
        a(f"s_mov_b64 exec, -1")


def scan(a, op, v, full=True):
    for sh in (1, 2, 4, 8):
        a(f"{op}_dpp v{v}, v{v}, v{v} row_shr:{sh} row_mask:0xf bank_mask:0xf")
        a("s_nop 1")
    if full:
        a(f"{op}_dpp v{v}, v{v}, v{v} row_bcast:15 row_mask:0xa bank_mask:0xf")
        a("s_nop 1")
        a(f"{op}_dpp v{v}, v{v}, v{v} row_bcast:31 row_mask:0xc bank_mask:0xf")
        a("s_nop 1")


def code_touch(a, sp, vt, end_label, tag):
    if OPT['cp'] != '1':
        return 0
    a(f"""
s_getpc_b64 s[{sp}:{sp+1}]
{tag}_pc:
v_lshlrev_b32 v{vt}, 6, v0
v_min_u32 v{vt}, {end_label}-{tag}_pc-4, v{vt}
global_load_dword v{vt}, v{vt}, s[{sp}:{sp+1}]
""")
    return 1


EXEC63 = "s_mov_b32 exec_lo, 0\ns_mov_b32 exec_hi, 0x80000000"


def gen_k1():
    a = A()
    ld, st = OPT['ld'], OPT['st']
    D = int(OPT['depth'])
    WT = 20480
    STG0 = 20736
    CAPG0 = (LDS_ALL - STG0) // 24
    AN = 18
    S_O, S_I, S_A, S_R, S_T, S_F = 4, 8, 12, 16, 20, 24
    P = 28
    sW, sMR, sMC, sNR, sNC, sG, sLo8, sT0, sT1, sCap8, sRem, sSo, sHi, sCGK, sCapG = range(40, 55)
    vC, vAng, vT16, vDma = 1, 2, 3, 4
    vFq = 5
    T0 = 6
    RX = 28
    RQ = 32
    vA48 = 27
    vSt = 26

    def rec(slot):
        if slot >= 48:
            return RX + 2 * (slot - 48)
        q, k = divmod(slot, 4)
        return RQ + q * 8 + (0, 4, 2, 6)[k]

    st_ = Stamper(a, 0, 56, P + 10, vSt, S_O)
    st_.start()
    a(f"""
s_cmp_ge_u32 s2, {NT+NMX}
s_cbranch_scc1 k1_done
s_load_dwordx4 s[{P}:{P+3}], s[0:1], {KA['m']}
s_load_dwordx2 s[{P+4}:{P+5}], s[0:1], {KA['idx_out']}
s_load_dwordx2 s[{P+6}:{P+7}], s[0:1], {KA['angle']}
s_load_dwordx2 s[{P+8}:{P+9}], s[0:1], {KA['ang_freq']}
s_load_dwordx2 s[{P+10}:{P+11}], s[0:1], {KA['ws']}
v_lshrrev_b32 v{T0}, 6, v0
v_lshlrev_b32 v{vT16}, 4, v0
v_readfirstlane_b32 s{sW}, v{T0}
s_cmp_ge_u32 s2, {NT}
s_cbranch_scc1 k1_max
v_mov_b32 v{T0+4}, 0
v_mov_b32 v{T0+5}, 0
v_mov_b32 v{T0+6}, 0
v_mov_b32 v{T0+7}, 0
v_lshlrev_b32 v{T0+1}, 2, v0
ds_write_b128 v{vT16}, v[{T0+4}:{T0+7}]
ds_write_b32 v{T0+1}, v{T0+4} offset:16384
v_mov_b32 v{vC}, 1
s_mov_b32 s{sMR}, 687195
s_mov_b32 s{sMC}, 858994
s_mov_b32 s{sNR}, {-RB}
s_mov_b32 s{sNC}, {-CB}
s_mov_b32 s{sCap8}, {CAP8}
s_mov_b32 s{sCGK}, {63*NPH*4}
s_mul_i32 s{sT0}, s2, {TILE*4}
s_mul_i32 s{sT1}, s2, {TILE*2}
s_waitcnt lgkmcnt(0)
""")
    srd_off(a, S_O, P + 4, sT0, 0, TILE * 4)
    srd_off(a, S_I, P + 2, sT0, 0, TILE * 4)
    srd_off(a, S_A, P + 6, sT1, 0, TILE * 2)

    vm = []

    def issue_pair(q):
        if q < 12:
            b = RQ + q * 8
            a(f"s_mov_b32 s{sT0}, {q*16384}")
            a(f"buffer_load_dwordx4 v[{b}:{b+3}], v{vT16}, s[{S_O}:{S_O+3}], s{sT0} offen {ld}")
            a(f"buffer_load_dwordx4 v[{b+4}:{b+7}], v{vT16}, s[{S_I}:{S_I+3}], s{sT0} offen {ld}")
            vm.extend([('O', q), ('I', q)])
        elif q == 12:
            a(f"""
v_lshrrev_b32 v{vA48}, 1, v{vT16}
s_mov_b32 s{sT0}, {49152*4}
buffer_load_dwordx2 v[{RX}:{RX+1}], v{vA48}, s[{S_O}:{S_O+3}], s{sT0} offen {ld}
buffer_load_dwordx2 v[{RX+2}:{RX+3}], v{vA48}, s[{S_I}:{S_I+3}], s{sT0} offen {ld}
v_lshrrev_b32 v{vA48}, 2, v{vT16}
s_mov_b32 s{sT0}, {49152*2}
buffer_load_dword v{vA48}, v{vA48}, s[{S_A}:{S_A+3}], s{sT0} offen {ld}
""")
            vm.extend([('O', 12), ('I', 12), ('A', 48)])

    def issue_ang(q):
        if q < 12:
            an = AN + 2 * (q % 4)
            a(f"s_mov_b32 s{sT1}, {q*8192}")
            a(f"buffer_load_dwordx2 v[{an}:{an+1}], v{vAng}, s[{S_A}:{S_A+3}], s{sT1} offen {ld}")
            vm.append(('D', q))

    def wait_for(key):
        n = len(vm) - 1 - vm.index(key)
        a(f"s_waitcnt vmcnt({n})")

    code_touch(a, 60, T0 + 8, "k2_code_end", "k1ct")
    srd_off(a, S_F, P + 8, None, 0, 2)
    a(f"""
v_mov_b32 v{vFq}, 0
v_lshrrev_b32 v{vAng}, 1, v{vT16}
buffer_load_ushort v{vFq}, v{vFq}, s[{S_F}:{S_F+3}], 0 offen
""")
    vm.append(('F', 0))
    for q in range(D):
        issue_pair(q)
        if q < int(OPT['ne']):
            issue_ang(q)
    a(f"""
s_mov_b32 s{sHi}, 0xffff0000
s_mul_i32 s{sT0}, s2, {TGB}
""")
    srd_off(a, S_R, P + 10, sT0, REC_OFF, TGB)
    a(f"s_mul_i32 s{sT0}, s2, {TABS}")
    srd_off(a, S_T, P + 10, sT0, TAB_OFF, TABS)
    st_.init()
    a("s_barrier")
    st_()
    t1, t2, tR1, tR3 = T0, T0 + 1, T0 + 2, T0 + 3
    tb = T0 + 4

    def binning(ro, ri, dst_rl, tbk):
        a(f"""
v_mul_hi_u32_u24 v{t1}, s{sMR}, v{ro}
v_mul_hi_u32_u24 v{t2}, s{sMC}, v{ri}
v_mad_i32_i24 v{dst_rl}, v{t1}, s{sNR}, v{ro}
v_mul_u32_u24 v{t1}, {NPH*4}, v{t1}
v_mad_i32_i24 v{ri}, v{t2}, s{sNC}, v{ri}
v_lshl_add_u32 v{tbk}, v{t2}, 2, v{t1}
v_mul_u32_u24 v{t2}, 205, v{t2}
v_lshrrev_b32 v{t2}, 12, v{t2}
v_mad_u32_u24 v{tbk}, v{t2}, s{sCGK}, v{tbk}
ds_add_u32 v{tbk}, v{vC}
""")

    def packpair(o0, o1, i0, i1, tR, b0, b1):
        a(f"""
v_lshrrev_b32 v{t1}, 10, v{i0}
v_lshrrev_b32 v{t2}, 10, v{i1}
v_lshl_or_b32 v{o0}, v{o0}, 3, v{t1}
v_lshl_or_b32 v{o1}, v{i0}, 22, v{b0}
v_lshl_or_b32 v{i0}, v{tR}, 3, v{t2}
v_lshl_or_b32 v{i1}, v{i1}, 22, v{b1}
""")

    def cospair(src, w_lo, w_hi, xx, one):
        a(f"""
v_lshlrev_b32 v{xx}, 16, v{src}
v_and_b32 v{xx+1}, 0xffff0000, v{src}
""")
        if not one:
            a(f"""
v_mul_f32 v{xx}, v{vFq}, v{xx}
v_mul_f32 v{xx+1}, v{vFq}, v{xx+1}
v_cvt_pk_bf16_f32 v{xx+1}, v{xx}, v{xx+1}
v_lshlrev_b32 v{xx}, 16, v{xx+1}
v_and_b32 v{xx+1}, 0xffff0000, v{xx+1}
""")
        a(f"""
v_mul_f32 v{xx}, 0.15915494, v{xx}
v_mul_f32 v{xx+1}, 0.15915494, v{xx+1}
v_fract_f32 v{xx}, v{xx}
v_fract_f32 v{xx+1}, v{xx+1}
v_cos_f32 v{xx}, v{xx}
v_cos_f32 v{xx+1}, v{xx+1}
s_nop 0
v_cvt_pk_bf16_f32 v{xx}, v{xx}, v{xx+1}
v_lshl_or_b32 v{w_lo}, v{xx}, 16, v{w_lo}
v_and_or_b32 v{w_hi}, v{xx}, s{sHi}, v{w_hi}
""")

    NE = int(OPT['ne'])
    for q in range(13):
        wait_for(('I', q))
        issue_pair(q + D)
        if q + D < NE:
            issue_ang(q + D)
        if q < 12:
            r = RQ + q * 8
            for k in range(4):
                binning(r + k, r + 4 + k, r + k if k % 2 == 0 else (tR1 if k == 1 else tR3), tb + k)
            packpair(r, r + 1, r + 4, r + 5, tR1, tb, tb + 1)
            packpair(r + 2, r + 3, r + 6, r + 7, tR3, tb + 2, tb + 3)
            if q < NE:
                wait_for(('D', q))
                if q == 0:
                    a(f"v_lshlrev_b32 v{vFq}, 16, v{vFq}")
                an = AN + 2 * (q % 4)
                cospair(an, rec(q * 4), rec(q * 4 + 1), T0 + 8, False)
                cospair(an + 1, rec(q * 4 + 2), rec(q * 4 + 3), T0 + 10, False)
        else:
            binning(RX, RX + 2, RX, tb)
            binning(RX + 1, RX + 3, tR1, tb + 1)
            packpair(RX, RX + 1, RX + 2, RX + 3, tR1, tb, tb + 1)
    for q in range(NE, NE + 4):
        issue_ang(q)
    a("""
s_waitcnt lgkmcnt(0)
s_barrier
""")
    st_()
    c = T0
    g = T0 + 6
    tm = T0 + 11
    vA, vS, vI = vAng, vDma, vC
    a(f"v_mul_u32_u24 v{vA}, 20, v0")
    for i in range(5):
        a(f"ds_read_b32 v{c+i}, v{vA} offset:{4*i}")
    a(f"s_mov_b32 s{sT0}, 43691")
    if NE == 0:
        a(f"v_lshlrev_b32 v{vFq}, 16, v{vFq}")
    a("s_waitcnt lgkmcnt(0)")
    for i in range(5):
        a(f"v_add_u32 v{g+i}, 2, v{c+i}")
        a(f"v_mul_u32_u24 v{g+i}, s{sT0}, v{g+i}")
        a(f"v_lshrrev_b32 v{g+i}, 17, v{g+i}")
    a(f"""
v_add3_u32 v{vS}, v{g}, v{g+1}, v{g+2}
v_add3_u32 v{vS}, v{vS}, v{g+3}, v{g+4}
v_mov_b32 v{vI}, v{vS}
s_lshl_b32 s{sT0}, s{sW}, 2
s_add_u32 s{sT0}, s{sT0}, {WT}
""")
    scan(a, "v_add_u32", vI)
    a(f"""
v_mov_b32 v{tm}, s{sT0}
{EXEC63}
ds_write_b32 v{tm}, v{vI}
s_mov_b64 exec, -1
""")
    for i in range(5):
        a(f"v_mul_u32_u24 v{c+5}, 3, v{g+i}")
        a(f"v_sub_u32 v{c+5}, v{c+5}, v{c+i}")
        a(f"v_min_u32 v{c+i}, 0x1fff, v{c+i}")
        a(f"v_lshl_or_b32 v{c+i}, v{c+i}, 19, v{c+5}")
    a(f"""
v_sub_u32 v{vI}, v{vI}, v{vS}
v_and_b32 v{tm}, 15, v0
v_lshlrev_b32 v{tm}, 2, v{tm}
v_readfirstlane_b32 s{sLo8}, v{vFq}
s_waitcnt lgkmcnt(0)
s_barrier
ds_read_b32 v{tm}, v{tm} offset:{WT}
s_waitcnt lgkmcnt(0)
v_mov_b32 v{vS}, v{tm}
""")
    scan(a, "v_add_u32", tm, full=False)
    a(f"""
v_readlane_b32 s{sG}, v{tm}, 15
v_sub_u32 v{vS}, v{tm}, v{vS}
s_nop 0
v_readlane_b32 s{sT0}, v{vS}, s{sW}
s_nop 1
v_add_u32 v{vI}, s{sT0}, v{vI}
""")
    for i in range(5):
        t = (tm, vS)[i & 1]
        a(f"v_mul_u32_u24 v{t}, 24, v{vI}")
        a(f"v_lshl_or_b32 v{c+i}, v{vI}, 4, v{c+i}")
        a(f"ds_write_b32 v{vA}, v{t} offset:{4*i}")
        a(f"v_add_u32 v{vI}, v{vI}, v{g+i}")
    vM22 = vDma
    a(f"""
v_lshlrev_b32 v{c+5}, 4, v{vI}
buffer_store_dwordx4 v[{c}:{c+3}], v{vA}, s[{S_T}:{S_T+3}], 0 offen
buffer_store_dword v{c+4}, v{vA}, s[{S_T}:{S_T+3}], 0 offen offset:16
v_mov_b32 v{tm}, 1023
v_cmp_eq_u32 s[{P}:{P+1}], v0, v{tm}
v_mov_b32 v{vC}, 8
v_mov_b32 v{tm}, 0xffff0000
v_cndmask_b32 v{vA}, v{tm}, v{vA}, s[{P}:{P+1}]
buffer_store_dword v{c+5}, v{vA}, s[{S_T}:{S_T+3}], 0 offen offset:20
v_mov_b32 v{vM22}, 0x3fffff
v_lshrrev_b32 v{vAng}, 1, v{vT16}
s_mov_b32 s{sRem}, {CAPG0*24}
s_min_u32 s{sG}, s{sG}, 20480
s_waitcnt lgkmcnt(0)
s_barrier
""")
    vm.extend([('S', 0), ('S', 1), ('S', 2)])
    st_()
    pt = (T0, T0 + 4)
    x = T0 + 8

    def slots(q):
        return range(4 * q, 4 * q + (4 if q < 12 else 2))

    def issue(q, s):
        for k, sl in enumerate(slots(q)):
            a(f"v_and_b32 v{pt[s]+k}, v{vM22}, v{rec(sl)+1}")
            a(f"ds_add_rtn_u32 v{pt[s]+k}, v{pt[s]+k}, v{vC}")

    def consume(q, s, pending, one):
        if q < NE:
            pass
        elif q < 12:
            an = AN + 2 * (q % 4)
            wait_for(('D', q))
            cospair(an, rec(q * 4), rec(q * 4 + 1), x, one)
            cospair(an + 1, rec(q * 4 + 2), rec(q * 4 + 3), x + 2, one)
            issue_ang(q + 4)
        else:
            wait_for(('A', 48))
            cospair(vA48, rec(48), rec(49), x, one)
        a(f"s_waitcnt lgkmcnt({pending})")
        for k, sl in enumerate(slots(q)):
            w = rec(sl)
            a(f"v_bitop3_b32 v{w+1}, v{vM22}, v{pt[s]+k}, v{w+1} {BFI}")
        for k, sl in enumerate(slots(q)):
            w = rec(sl)
            a(f"""
v_cmpx_gt_u32 vcc, s{sRem}, v{pt[s]+k}
ds_write_b64 v{pt[s]+k}, v[{w}:{w+1}] offset:{STG0}
s_mov_b64 exec, -1
""")

    def merged(one):
        late = list(range(NE, 12))
        order = [12] + late[:4] + list(range(NE)) + late[4:]
        issue(order[0], 0)
        for n, q in enumerate(order):
            if n + 1 < len(order):
                issue(order[n + 1], (n + 1) & 1)
                consume(q, n & 1, 4, one)
            else:
                consume(q, n & 1, 0, one)

    if OPT['ff'] == '1':
        a(f"s_cmp_lg_u32 s{sLo8}, 0x3f800000")
        a("s_cbranch_scc1 k1_gen")
        save = list(vm)
        merged(True)
        a("k1_mj:")
        done = a.s
        a.s = ""
        vm[:] = save
        a("k1_gen:")
        merged(False)
        a("s_branch k1_mj")
        gen_code = a.s
        a.s = done
    else:
        merged(False)
        gen_code = ""
    vLo, vT24, vMx, vB = vC, vAng, vDma, vFq
    a(f"""
v_mov_b32 v{vLo}, {CAPG0*24}
v_mul_u32_u24 v{vT24}, 24, v0
v_add_u32 v{vT24}, {STG0}, v{vT24}
v_mov_b32 v{vMx}, 0xffc00000
s_mov_b32 s{sSo}, 0
s_mov_b32 s{sCapG}, {CAPG0}
k1_co:
s_min_u32 s{sRem}, s{sG}, s{sCapG}
s_waitcnt lgkmcnt(0)
s_barrier
""")
    st_()
    qb = T0

    def rd(q3, addr, o):
        for n2, r2 in enumerate(q3):
            a(f"ds_read_b64 v[{r2}:{r2+1}], v{addr} offset:{o+8*n2}")

    def pk(q, r4):
        a(f"""
v_lshrrev_b32 v{r4+1}, 10, v{r4+1}
v_bitop3_b32 v{r4+1}, v{vMx}, v{q+3}, v{r4+1} {BFI}
v_mov_b32 v{q+3}, v{r4}
v_lshrrev_b32 v{r4+1}, 10, v{r4+1}
v_bitop3_b32 v{q+1}, v{vMx}, v{q+1}, v{r4+1} {BFI}
""")

    def stq(q, it):
        a(f"""
s_sub_i32 s{sT0}, s{sRem}, {it*1024}
s_add_u32 s{sT1}, s{sSo}, {it*16384}
v_cmpx_gt_i32 vcc, s{sT0}, v0
buffer_store_dwordx4 v[{q}:{q+3}], v{vT16}, s[{S_R}:{S_R+3}], s{sT1} offen {st}
s_mov_b64 exec, -1
""")

    Q = (qb, qb + 6, qb + 12)
    Q6 = qb + 18 if not st_.on else None
    for n2 in range(3):
        rd((Q[n2], Q[n2] + 2, Q[n2] + 4), vT24, n2 * 24576)
    a(f"v_add_u32 v{vB}, {3*24576}, v{vT24}")
    for n2 in range(3):
        a(f"s_waitcnt lgkmcnt({3*(2-n2)})")
        pk(Q[n2], Q[n2] + 4)
        stq(Q[n2], n2)
    if Q6 is None:
        a(f"v_add_u32 v{vA48}, {6*24576}, v{vT24}")
        a(f"v_min_u32 v{vA48}, {LDS_ALL-24}, v{vA48}")
        rd((Q[0], Q[0] + 2, Q[0] + 4), vA48, 0)
        a("s_waitcnt lgkmcnt(0)")
        pk(Q[0], Q[0] + 4)
        stq(Q[0], 6)
    rd((Q[0], Q[0] + 2, Q[0] + 4), vB, 0)
    rd((Q[1], Q[1] + 2, Q[1] + 4), vB, 24576)
    a(f"v_min_u32 v{vB}, {LDS_ALL-24-49152}, v{vB}")
    rd((Q[2], Q[2] + 2, Q[2] + 4), vB, 49152)
    a(f"v_add_u32 v{vB}, {6*24576}, v{vT24}")
    a(f"v_min_u32 v{vB}, {LDS_ALL-24}, v{vB}")
    a("s_waitcnt lgkmcnt(6)")
    pk(Q[0], Q[0] + 4)
    deferred = [(Q[0], 3), (Q[1], 4), (Q[2], 5)]
    if Q6 is not None:
        rd((Q6, Q6 + 2, Q[0] + 4), vB, 0)
        a("s_waitcnt lgkmcnt(6)")
        pk(Q[1], Q[1] + 4)
        a("s_waitcnt lgkmcnt(3)")
        pk(Q[2], Q[2] + 4)
        a("s_waitcnt lgkmcnt(0)")
        pk(Q6, Q[0] + 4)
        deferred.append((Q6, 6))
    else:
        a("s_waitcnt lgkmcnt(3)")
        pk(Q[1], Q[1] + 4)
        a("s_waitcnt lgkmcnt(0)")
        pk(Q[2], Q[2] + 4)
    a(f"""
s_sub_u32 s{sG}, s{sG}, s{sRem}
s_cmp_eq_u32 s{sG}, 0
s_cbranch_scc1 k1_fin
s_barrier
""")
    st_()
    tmps = (Q[0] + 4, Q[0] + 5, Q[1] + 4, Q[1] + 5)
    for sl in range(50):
        w = rec(sl)
        t = tmps[sl & 3]
        a(f"""
v_sub_u32 v{t}, v{w+1}, v{vLo}
v_and_b32 v{t}, 0x3fffff, v{t}
v_cmpx_gt_u32 vcc, s{sCap8}, v{t}
ds_write_b64 v{t}, v[{w}:{w+1}]
s_mov_b64 exec, -1
""")
        if sl % 10 == 4 and sl // 10 < len(deferred):
            stq(*deferred[sl // 10])
    a(f"""
v_add_u32 v{vLo}, {CAP8}, v{vLo}
v_mul_u32_u24 v{vT24}, 24, v0
s_lshl_b32 s{sT0}, s{sRem}, 4
s_add_u32 s{sSo}, s{sSo}, s{sT0}
s_mov_b32 s{sCapG}, {CAPG}
s_branch k1_co
k1_fin:
""")
    for d in deferred:
        stq(*d)
    st_()
    if st_.on:
        a("s_waitcnt vmcnt(0)")
    st_()
    st_.flush(T0)
    a("""
k1_done:
s_endpgm
""")
    a.s += gen_code
    S_M, S_X = 4, 8
    a(f"""
k1_max:
s_sub_u32 s3, s2, {NT}
s_mul_i32 s{sT0}, s3, {33*16384}
v_add_u32 v{vT16}, s{sT0}, v{vT16}
v_mov_b32 v{vC}, 0
v_mov_b32 v{vAng}, 0
ds_write_b32 v{vC}, v{vC}
s_waitcnt lgkmcnt(0)
""")
    srd_off(a, S_M, P, None, 0, E * 8)
    srd_off(a, S_X, P + 10, None, MAX_OFF, 64)
    srd_off(a, 12, P + 10, None, HF_OFF, 8192)
    a(f"""
v_lshlrev_b32 v{T0}, 3, v0
v_mov_b32 v{T0+2}, 0
v_mov_b32 v{T0+3}, 0
buffer_store_dwordx2 v[{T0+2}:{T0+3}], v{T0}, s[12:15], 0 offen
""")
    a(f"""
s_load_dwordx2 s[16:17], s[0:1], {KA['dist']}
s_load_dwordx2 s[20:21], s[0:1], {KA['centers']}
s_load_dwordx8 s[60:67], s[0:1], {KA['w_rbf']}
s_lshl_b32 s{sT1}, s3, 10
v_add_u32 v{T0}, s{sT1}, v0
v_lshlrev_b32 v{T0}, 7, v{T0}
v_add_u32 v{T0+1}, {6144*128}, v{T0}
s_mov_b32 s18, {E*2}
s_mov_b32 s19, 0x00020000
s_waitcnt lgkmcnt(0)
buffer_load_dword v{T0+4}, v{T0}, s[16:19], 0 offen
buffer_load_dword v{T0+5}, v{T0+1}, s[16:19], 0 offen
s_load_dword s22, s[20:21], 0
s_load_dword s23, s[60:61], 0
s_load_dword s24, s[62:63], 0
s_load_dword s25, s[64:65], 0
s_load_dword s26, s[66:67], 0
""")
    a(f"v_mov_b32 v{T0+10}, 0")
    a(f"v_mov_b32 v{T0+11}, 0")
    a(f"ds_write_b32 v{vC}, v{vC} offset:4")
    a(f"s_mov_b32 s{sT1}, 3")
    a("k1_mxl:")
    for i in range(11):
        a(f"buffer_load_dwordx4 v[{RQ+4*i}:{RQ+4*i+3}], v{vT16}, s[{S_M}:{S_M+3}], 0 offen")
        a(f"v_add_u32 v{vT16}, 16384, v{vT16}")
    for i in range(11):
        a(f"s_waitcnt vmcnt({10-i})")
        for k in range(4):
            a(f"v_and_b32 v{RQ+4*i+k}, 0x7fff7fff, v{RQ+4*i+k}")
            a(f"v_pk_max_u16 v{vAng}, v{vAng}, v{RQ+4*i+k}")
            a(f"v_lshlrev_b32 v{T0+8}, 16, v{RQ+4*i+k}")
            a(f"v_and_b32 v{T0+9}, 0xffff0000, v{RQ+4*i+k}")
            a(f"v_add_f32 v{T0+10}, v{T0+10}, v{T0+8}")
            a(f"v_add_f32 v{T0+11}, v{T0+11}, v{T0+9}")
    a(f"""
s_sub_u32 s{sT1}, s{sT1}, 1
s_cmp_lg_u32 s{sT1}, 0
s_cbranch_scc1 k1_mxl
v_lshrrev_b32 v{T0}, 16, v{vAng}
v_and_b32 v{vAng}, 0xffff, v{vAng}
v_max_u32 v{vAng}, v{vAng}, v{T0}
v_add_f32 v{T0+10}, v{T0+10}, v{T0+11}
s_waitcnt lgkmcnt(0)
s_barrier
s_nop 1
""")
    scan(a, "v_max_u32", vAng)
    scan(a, "v_add_f32", T0 + 10)
    a(f"""
{EXEC63}
ds_max_u32 v{vC}, v{vAng}
ds_add_f32 v{vC}, v{T0+10} offset:4
s_mov_b64 exec, -1
s_waitcnt lgkmcnt(0)
s_barrier
s_cmp_lg_u32 s{sW}, 0
s_cbranch_scc1 k1_done2
ds_read_b32 v{vAng}, v{vC}
ds_read_b32 v{T0+1}, v{vC} offset:4
s_lshl_b32 s3, s3, 2
v_mov_b32 v{T0}, s3
s_mov_b64 exec, 1
s_waitcnt lgkmcnt(0)
v_and_b32 v{T0+1}, 0xffff0000, v{T0+1}
v_or_b32 v{vAng}, v{vAng}, v{T0+1}
buffer_store_dword v{vAng}, v{T0}, s[{S_X}:{S_X+3}], 0 offen
k1_done2:
s_endpgm
""")
    return a.s


def gen_k2():
    a = A()
    o = A()
    ld, pst = OPT['k2ld'], OPT['pst']
    abl = OPT['abl']
    ACC = 40960
    ACCB = 50000
    NW = ACC + 2 * ACCB
    S_R, S_T, S_M, S_P = 4, 8, 12, 16
    P = 20
    MXS = 24
    sW, sRb, sCg, sJ, sMo, sMode, sPf, sT0, sT1, sT2, sCarry, sTot, sXw, sCo = range(32, 46)
    sNK = 46
    sA, sB, sC, sD = 48, 50, 52, 54
    MK = (56, 62)
    MN = (68, 74)
    MX = (80, 86)
    TOT = (92, 93)
    sRet = P
    MS = MXS
    vL16, vBase, vT16, vLW, vMagic, vMHi, vSt = 1, 2, 3, 4, 5, 6, 7
    HR = 8
    vC0 = 10
    vX0 = 12
    MP = 14
    GA = 24
    PT = 30
    HQ = 34
    XT = 42
    RS = 46
    GX = 50
    FT = 56
    EN = 64
    RC = (88, 92)
    RXW = (96, 100)
    TH = 104
    MP2 = 108
    MPS = (MP, MP2)
    AD = 118
    vO16, vD, vM = 121, 122, 124
    NVG = 128
    sTN = 100
    sWk = 101
    sMsc = 3
    TID = OPT['tid'] == '1'

    st_ = Stamper(a, 1, 96, P + 2, vSt, S_M if OPT['fuse'] == '1' else S_R)
    st_.start()
    a(f"""
s_cmp_ge_u32 s2, 256
s_cbranch_scc1 k2_done
s_load_dwordx2 s[{P}:{P+1}], s[0:1], {KA['m']}
s_load_dwordx2 s[{P+2}:{P+3}], s[0:1], {KA['ws']}
s_load_dwordx2 s[{S_P}:{S_P+1}], s[0:1], {KA['dist']}
s_load_dwordx2 s[{MN[0]}:{MN[0]+1}], s[0:1], {KA['centers']}
s_load_dwordx4 s[{MX[0]}:{MX[0]+3}], s[0:1], {KA['w_rbf']}
s_load_dwordx4 s[{MX[0]+4}:{MX[0]+7}], s[0:1], {KA['w_down']}
""")
    code_touch(a, sA, RS, "k2_code_end", "k2ct")
    a(f"""
v_lshrrev_b32 v{FT}, 6, v0
v_and_b32 v{FT+1}, 63, v0
v_readfirstlane_b32 s{sW}, v{FT}
v_lshlrev_b32 v{vT16}, 4, v0
v_lshlrev_b32 v{vL16}, 4, v{FT+1}
s_and_b32 s{sT0}, s2, 7
s_lshr_b32 s{sCg}, s{sT0}, 1
s_lshr_b32 s{sRb}, s2, 3
s_and_b32 s{sT0}, s2, 1
s_lshl_b32 s{sT0}, s{sT0}, 5
s_add_u32 s{sRb}, s{sRb}, s{sT0}
s_lshl_b32 s{sCo}, s{sCg}, 6
s_add_u32 s{sCo}, s{sCo}, s{sRb}
v_lshrrev_b32 v{vLW}, 1, v{vT16}
v_add_u32 v{vLW}, 32768, v{vLW}
v_min_u32 v{vLW}, {CB*8-8}, v{vLW}
s_mul_i32 s{sMo}, s{sCg}, {NPH*CB*8}
s_mov_b32 s{sT2}, 0xffff0000
s_mov_b32 s{sT1}, {TGB}
v_mov_b32 v{vMHi}, 0xffff0000
v_mul_u32_u24 v{FT+2}, 43, v{FT+1}
v_lshrrev_b32 v{FT+2}, 7, v{FT+2}
v_mul_u32_u24 v{FT+3}, 3, v{FT+2}
v_sub_u32 v{FT+3}, v{FT+1}, v{FT+3}
s_cmp_lt_u32 s{sW}, 4
s_cbranch_scc1 k2_rl0
s_sub_u32 s{sT0}, s{sW}, 4
s_mul_i32 s{sT0}, s{sT0}, 21
v_add_u32 v{FT+2}, s{sT0}, v{FT+2}
s_branch k2_rl1
k2_rl0:
s_mul_i32 s{sT0}, s{sW}, 63
v_add_u32 v{FT+2}, s{sT0}, v{FT+1}
v_mov_b32 v{FT+3}, 3
k2_rl1:
v_mul_u32_u24 v{FT}, 96, v{FT+2}
v_add_u32 v{FT}, {ACC}, v{FT}
s_mov_b32 s{sT2}, {ACC + 252*96}
v_writelane_b32 v{FT}, s{sT2}, 63
s_mul_i32 s{sT0}, s{sCo}, {NPH*4}
s_mov_b32 s{sT2}, 43691
v_add_u32 v{GA+1}, 1024, v0
v_mul_u32_u24 v{GA+2}, s{sT2}, v0
v_mul_u32_u24 v{GA+3}, s{sT2}, v{GA+1}
v_lshrrev_b32 v{GA+2}, 18, v{GA+2}
v_lshrrev_b32 v{GA+3}, 18, v{GA+3}
v_mul_u32_u24 v{GA+4}, {TABS-96}, v{GA+2}
v_mul_u32_u24 v{GA+5}, {TABS-96}, v{GA+3}
v_add3_u32 v{GA}, v{GA+4}, v{vT16}, s{sT0}
v_add3_u32 v{GA+1}, v{GA+5}, v{vT16}, s{sT0}
v_add_u32 v{GA+1}, 16384, v{GA+1}
v_mov_b32 v{GA+2}, {253*6-1024}
v_cmp_lt_u32 s[{sC}:{sC+1}], v0, v{GA+2}
v_mul_lo_u32 v{vBase}, v{FT+2}, s{sT1}
v_lshl_add_u32 v{vBase}, v{FT+3}, 4, v{vBase}
v_mul_u32_u24 v{TH}, 3, v{FT+3}
v_add_u32 v{TH}, 1, v{TH}
v_lshlrev_b32 v{TH}, 19, v{TH}
v_add_u32 v{TH+1}, 0x80000, v{TH}
v_add_u32 v{TH+2}, 0x100000, v{TH}
s_waitcnt lgkmcnt(0)
""")
    srd_off(a, S_R, P + 2, None, REC_OFF, NT * TGB)
    srd_off(a, S_T, P + 2, None, TAB_OFF, NT * TABS)
    srd_off(a, S_M, P, None, 0, E * 8)

    def m_load(MP=MP, a=a):
        if TID:
            for p in 'bca':
                m_piece(MP, p)
            return
        if 'm' in abl:
            for i in range(3):
                a(f"buffer_load_dword v{MP+i}, v{vL16}, s[{S_M}:{S_M+3}], 0 offen")
            return
        a(f"""
s_add_u32 s{sT0}, s{sMo}, 16384
buffer_load_dwordx4 v[{MP}:{MP+3}], v{vT16}, s[{S_M}:{S_M+3}], s{sMo} offen
buffer_load_dwordx4 v[{MP+4}:{MP+7}], v{vT16}, s[{S_M}:{S_M+3}], s{sT0} offen
buffer_load_dwordx2 v[{MP+8}:{MP+9}], v{vLW}, s[{S_M}:{S_M+3}], s{sMo} offen
s_add_u32 s{sMo}, s{sMo}, {CB*8}
s_min_u32 s{sMo}, s{sMo}, {E*8 - CB*8}
""")

    def m_piece(MP, p, a=a):
        if TID:
            for i in {'b': (0, 1, 2, 3), 'c': (4, 5), 'a': (6, 7, 8, 9)}[p]:
                a(f"buffer_load_dword v{MP+i}, v{vLW}, s[{S_M}:{S_M+3}], 0 offen offset:{256*i}")
            if p == 'a':
                a(f"v_add_u32 v{vLW}, {CB*8}, v{vLW}")
            return
        if p == 'b':
            a(f"s_add_u32 s{sT0}, s{sMo}, 16384")
            a(f"buffer_load_dwordx4 v[{MP+4}:{MP+7}], v{vT16}, s[{S_M}:{S_M+3}], s{sT0} offen")
        elif p == 'c':
            a(f"buffer_load_dwordx2 v[{MP+8}:{MP+9}], v{vLW}, s[{S_M}:{S_M+3}], s{sMo} offen")
        else:
            a(f"""
buffer_load_dwordx4 v[{MP}:{MP+3}], v{vT16}, s[{S_M}:{S_M+3}], s{sMo} offen
s_add_u32 s{sMo}, s{sMo}, {CB*8}
s_min_u32 s{sMo}, s{sMo}, {E*8 - CB*8}
""")

    def m_write(MP=MP):
        if TID:
            a(f"s_mov_b32 m0, s{sWk}")
            a("s_nop 0")
            for i in range(10):
                a(f"ds_write_addtid_b32 v{MP+i} offset:{256*i}")
            return
        if 'w' in abl:
            return
        a(f"""
ds_write_b128 v{vT16}, v[{MP}:{MP+3}]
ds_write_b128 v{vT16}, v[{MP+4}:{MP+7}] offset:16384
ds_write_b64 v{vLW}, v[{MP+8}:{MP+9}]
""")

    def batch(bank):
        for i in range(4):
            a(f"buffer_load_dwordx4 v[{bank+4*i}:{bank+4*i+3}], v{vL16 if 'r' in abl else vBase}, s[{S_R}:{S_R+3}], 0 offen offset:{16*i} {ld}")
        a(f"v_add_u32 v{vBase}, 64, v{vBase}")

    def common_init():
        a(f"""
s_add_u32 s{sA}, s{P+2}, {MAX_OFF}
s_addc_u32 s{sA+1}, s{P+3}, 0
s_load_dwordx8 s[{MXS}:{MXS+7}], s[{sA}:{sA+1}], 0
s_mov_b64 s[{MK[1]+2}:{MK[1]+3}], 0
s_mov_b64 s[{MK[1]+4}:{MK[1]+5}], 0
v_mov_b32 v{HR}, {ACC}
v_mov_b32 v{HR+1}, {ACC}
v_mov_b32 v{vC0}, {ACC}
s_mov_b32 s{sJ}, 0
""")
        st_.init()

    def zero_acc():
        z = PT
        a(f"""
v_mov_b32 v{z}, 0
v_mov_b32 v{z+1}, 0
v_mov_b32 v{z+2}, 0
v_mov_b32 v{z+3}, 0
v_add_u32 v{FT+4}, {ACC}, v{vT16}
v_add_u32 v{FT+5}, {ACC+65536}, v{vT16}
ds_write_b128 v{FT+4}, v[{z}:{z+3}] offset:32768
ds_write_b128 v{FT+4}, v[{z}:{z+3}] offset:49152
ds_write_b128 v{FT+5}, v[{z}:{z+3}]
ds_write_b128 v{FT+5}, v[{z}:{z+3}] offset:16384
v_cmp_gt_u32 vcc, {6250-6144}, v0
s_and_saveexec_b64 s[{sB}:{sB+1}], vcc
ds_write_b128 v{FT+5}, v[{z}:{z+3}] offset:32768
s_mov_b64 exec, s[{sB}:{sB+1}]
""")

    def zero_acc2():
        z = PT
        a(f"""
v_add_u32 v{XT}, {ACC}, v{vT16}
ds_write_b128 v{XT}, v[{z}:{z+3}]
ds_write_b128 v{XT}, v[{z}:{z+3}] offset:16384
""")

    AK = (0, 2, 3)

    def decode(rc, t, a=a):
        a(f"""
v_alignbit_b32 v{t}, v{rc}, v{rc+1}, 19
v_lshlrev_b32 v{t+1}, 10, v{rc+1}
v_and_b32 v{t}, 0xfff8, v{t}
v_lshlrev_b32 v{t+2}, 20, v{rc+1}
v_alignbit_b32 v{t+1}, v{rc+2}, v{t+1}, 19
v_alignbit_b32 v{t+2}, v{rc+3}, v{t+2}, 19
v_and_b32 v{t+1}, 0xfff8, v{t+1}
v_and_b32 v{t+2}, 0xfff8, v{t+2}
""")

    def gissue(mk, t, ga, a=a, g2=None):
        g2 = ga + 4 if g2 is None else g2
        a(f"""
s_mov_b64 exec, s[{mk}:{mk+1}]
ds_read_b64 v[{ga}:{ga+1}], v{t}
s_mov_b64 exec, s[{mk+2}:{mk+3}]
ds_read_b64 v[{ga+2}:{ga+3}], v{t+1}
s_mov_b64 exec, s[{mk+4}:{mk+5}]
ds_read_b64 v[{g2}:{g2+1}], v{t+2}
""")

    def gathers(mk, rc, ga, a=a):
        decode(rc, PT, a)
        gissue(mk, PT, ga, a)

    def qcalc(t, g, ak, row, a=a):
        c = row
        a(f"""
v_and_b32 v{c}, v{vMHi}, v{ak}
v_lshlrev_b32 v{t}, 16, v{g}
v_and_b32 v{t+1}, v{vMHi}, v{g}
v_lshlrev_b32 v{t+2}, 16, v{g+1}
v_and_b32 v{t+3}, v{vMHi}, v{g+1}
v_fma_f32 v{t}, v{t}, v{c}, v{vMagic}
v_fma_f32 v{t+1}, v{t+1}, v{c}, v{vMagic}
v_fma_f32 v{t+2}, v{t+2}, v{c}, v{vMagic}
v_fma_f32 v{t+3}, v{t+3}, v{c}, v{vMagic}
v_and_b32 v{row}, 0xfff8, v{ak}
v_lshl_add_u64 v[{t}:{t+1}], v[{t}:{t+1}], 0, s[{sNK}:{sNK+1}]
v_add_u32 v{row}, {ACC}, v{row}
v_lshl_add_u64 v[{t+2}:{t+3}], v[{t+2}:{t+3}], 0, s[{sNK}:{sNK+1}]
""")

    def adds(mkp, row, t, a=a):
        a(f"""
s_mov_b64 exec, {"1" if 'a' in abl else "s[%d:%d]" % (mkp, mkp+1)}
ds_add_u64 v{row}, v[{t}:{t+1}]
ds_add_u64 v{row}, v[{t+2}:{t+3}] offset:{ACCB}
""")

    def held(h, g2, a2):
        qcalc(HQ + 4, g2, a2, HR + 1)
        adds(MK[h] + 4, HR + 1, HQ + 4)
        a("s_mov_b64 exec, -1")

    def f32_one(mkp, g, ak, a):
        t = XT
        a(f"""
v_and_b32 v{vX0}, v{vMHi}, v{ak}
v_and_b32 v{vX0+1}, 0xfff8, v{ak}
v_add_u32 v{vX0+1}, {ACC}, v{vX0+1}
v_lshlrev_b32 v{t}, 16, v{g}
v_and_b32 v{t+1}, v{vMHi}, v{g}
v_lshlrev_b32 v{t+2}, 16, v{g+1}
v_and_b32 v{t+3}, v{vMHi}, v{g+1}
v_mul_f32 v{t}, v{t}, v{vX0}
v_mul_f32 v{t+1}, v{t+1}, v{vX0}
v_mul_f32 v{t+2}, v{t+2}, v{vX0}
v_mul_f32 v{t+3}, v{t+3}, v{vX0}
s_mov_b64 exec, s[{mkp}:{mkp+1}]
ds_add_f32 v{vX0+1}, v{t}
ds_add_f32 v{vX0+1}, v{t+1} offset:4
ds_add_f32 v{vX0+1}, v{t+2} offset:{ACCB}
ds_add_f32 v{vX0+1}, v{t+3} offset:{ACCB+4}
s_mov_b64 exec, -1
s_waitcnt lgkmcnt(0)
""")

    def accum_main(h, rc, tag, g2, q0done=False):
        mk = MK[h]
        a(f"s_cmp_lg_u32 s{sMode}, 0")
        a(f"s_cbranch_scc1 k2_accf_{tag}")
        if not q0done:
            qcalc(PT, GA, rc + AK[0], vC0)
        adds(mk, vC0, PT)
        a("s_mov_b64 exec, -1")
        m_piece(MPS[h ^ 1], 'b')
        qcalc(HQ, GA + 2, rc + AK[1], HR)
        a(f"k2_acce_{tag}:")
        o(f"k2_accf_{tag}:")
        m_piece(MPS[h ^ 1], 'b', o)
        for k in range(3):
            f32_one(mk + 2 * k, (GA, GA + 2, g2)[k], rc + AK[k], o)
        o(f"""
s_mov_b64 s[{mk}:{mk+1}], 0
s_mov_b64 s[{mk+2}:{mk+3}], 0
s_mov_b64 s[{mk+4}:{mk+5}], 0
s_branch k2_acce_{tag}
""")

    def last_adds(h):
        adds(MK[h] + 2, HR, HQ)
        a("s_mov_b64 exec, -1")

    def window_now(mk, rc, tag):
        gathers(mk, rc, GX, o)
        o(f"""
s_mov_b64 exec, -1
s_cmp_lg_u32 s{sMode}, 0
s_waitcnt lgkmcnt(0)
s_cbranch_scc1 k2_wf_{tag}
""")
        for k in range(3):
            qcalc(XT, GX + 2 * k, rc + AK[k], vX0, o)
            adds(mk + 2 * k, vX0, XT, o)
            o("s_mov_b64 exec, -1")
        o(f"s_branch k2_we_{tag}")
        o(f"k2_wf_{tag}:")
        for k in range(3):
            f32_one(mk + 2 * k, GX + 2 * k, rc + AK[k], o)
        o(f"k2_we_{tag}:")

    def scale_setup():
        a(f"""
v_mov_b32 v{XT}, {NW}
ds_read_b128 v[{XT}:{XT+3}], v{XT}
v_mov_b32 v{vX0}, s{MXS}
v_add_f32 v{vX0}, s{MXS+1}, v{vX0}
v_add_f32 v{vX0}, s{MXS+2}, v{vX0}
v_add_f32 v{vX0}, s{MXS+3}, v{vX0}
v_add_f32 v{vX0}, s{MXS+4}, v{vX0}
v_add_f32 v{vX0}, s{MXS+5}, v{vX0}
v_mul_f32 v{vX0}, 0x3fa66666, v{vX0}
s_lshl_b32 s{MXS}, s{MXS}, 16
s_lshl_b32 s{MXS+1}, s{MXS+1}, 16
s_lshl_b32 s{MXS+2}, s{MXS+2}, 16
s_lshl_b32 s{MXS+3}, s{MXS+3}, 16
s_lshl_b32 s{MXS+4}, s{MXS+4}, 16
s_lshl_b32 s{MXS+5}, s{MXS+5}, 16
v_readfirstlane_b32 s{MXS+6}, v{vX0}
s_max_u32 s{MXS}, s{MXS}, s{MXS+1}
s_max_u32 s{MXS+2}, s{MXS+2}, s{MXS+3}
s_max_u32 s{MXS+4}, s{MXS+4}, s{MXS+5}
s_max_u32 s{MXS}, s{MXS}, s{MXS+2}
s_max_u32 s{sT2}, s{MXS}, s{MXS+4}
s_waitcnt lgkmcnt(0)
v_add_u32 v{XT}, v{XT}, v{XT+1}
v_add_u32 v{XT+2}, v{XT+2}, v{XT+3}
v_add_u32 v{XT}, v{XT}, v{XT+2}
v_lshrrev_b32 v{XT}, 4, v{XT}
v_mul_u32_u24 v{XT}, 3, v{XT}
v_max_u32 v{XT}, 1024, v{XT}
s_nop 0
v_readfirstlane_b32 s{sT0}, v{XT}
v_cvt_f32_u32 v{XT}, v{XT}
v_mul_f32 v{XT}, s{sT2}, v{XT}
v_mul_f32 v{XT}, 0x3f802000, v{XT}
s_nop 0
v_readfirstlane_b32 s{sT1}, v{XT}
s_mov_b32 s{sMode}, 0
s_cmp_gt_u32 s{sT0}, 0x100000
s_cselect_b32 s{sMode}, 1, s{sMode}
s_cmp_gt_u32 s{sT2}, 0x70000000
s_cselect_b32 s{sMode}, 1, s{sMode}
s_cmp_lt_u32 s{sT2}, 0x18000000
s_cselect_b32 s{sMode}, 1, s{sMode}
s_and_b32 s{sT1}, s{sT1}, 0x7f800000
s_cmp_gt_u32 s{sT1}, s{MXS+6}
s_cselect_b32 s{sMode}, 1, s{sMode}
s_and_b32 s{sT2}, s{sT2}, 0x7f800000
s_sub_u32 s{sPf}, s{sT1}, s{sT2}
s_add_u32 s{sMsc}, s{sT2}, {6 << 23}
s_add_u32 s{sPf}, s{sPf}, {(121 - 30) << 23}
s_sub_u32 s{sT1}, s{sT1}, {(7 << 23) - 0x400000}
v_mov_b32 v{vMagic}, s{sT1}
s_sub_u32 s{sNK}, 0, s{sT1}
s_not_b32 s{sNK+1}, s{sT1}
s_barrier
""")

    def early_setup():
        QP = 782
        a(f"""
s_load_dword s{MN[1]}, s[{MN[0]}:{MN[0]+1}], 0
s_load_dword s{MN[1]+1}, s[{MX[0]}:{MX[0]+1}], 0
s_load_dword s{MN[1]+2}, s[{MX[0]+2}:{MX[0]+3}], 0
s_load_dword s{MN[1]+3}, s[{MX[0]+4}:{MX[0]+5}], 0
s_load_dword s{MN[1]+4}, s[{MX[0]+6}:{MX[0]+7}], 0
s_mul_i32 s{sT1}, s{sRb}, {RB*8}
s_mul_i32 s{sT2}, s{sCg}, {QP*16}
s_add_u32 s{sT1}, s{sT1}, s{sT2}
v_add_u32 v{vO16}, s{sT1}, v{vT16}
s_sub_u32 s{sT2}, {RB*8}, s{sT2}
s_min_u32 s{sT2}, s{sT2}, {QP*16}
v_cmp_gt_u32 s[{sB}:{sB+1}], s{sT2}, v{vT16}
s_mov_b32 s{S_P+2}, {E*2}
s_mov_b32 s{S_P+3}, 0x00020000
v_cndmask_b32 v{vO16}, v{vMHi}, v{vO16}, s[{sB}:{sB+1}]
v_lshrrev_b32 v{vD}, 2, v{vO16}
""")

    def early():
        a(f"""
buffer_load_dword v{vD}, v{vD}, s[{S_P}:{S_P+3}], 0 offen
buffer_load_dwordx4 v[{vM}:{vM+3}], v{vO16}, s[{S_M}:{S_M+3}], 0 offen
""")

    def wait_bar(mkp, n, tag, mid=None):
        a(f"""
s_cmp_eq_u64 s[{mkp}:{mkp+1}], 0
s_cbranch_scc1 k2_wz_{tag}
k2_w_{tag}:
s_setprio 3
s_waitcnt lgkmcnt({n})
""")
        if mid:
            mid()
        a("s_barrier")
        o(f"""
k2_wz_{tag}:
s_waitcnt lgkmcnt(0)
s_branch k2_w_{tag}
""")

    NM = 10 if TID else 3
    NBC = 4 if TID else 1
    NA = 4 if TID else 1
    if TID:
        a(f"""
s_mul_i32 s{sWk}, s{sW}, 2560
s_add_u32 s{sT0}, s{sWk}, s{sMo}
v_lshrrev_b32 v{vLW}, 2, v{vL16}
v_add_u32 v{vLW}, s{sT0}, v{vLW}
""")
    RD = (RC[0], RC[1], RXW[0], RXW[1])
    FINE = OPT['fine'] == '1'
    FS = [80, 82, 84, 86, 88, 90, 28, 30, 24, 26]

    def fs(i, on=True):
        if FINE and on:
            a(f"s_memtime s[{FS[i]}:{FS[i]+1}]")

    a(f"""
s_lshl_b32 s{sT0}, s{sW}, 10
s_add_u32 m0, s{sT0}, {ACC}
s_nop 0
buffer_load_dwordx4 v{GA}, s[{S_T}:{S_T+3}], 0 offen lds
s_add_u32 m0, s{sT0}, {ACC+16384}
s_mov_b64 exec, s[{sC}:{sC+1}]
buffer_load_dwordx4 v{GA+1}, s[{S_T}:{S_T+3}], 0 offen lds
s_mov_b64 exec, -1
""")
    m_load()
    a(f"v_mov_b32 v{EN+21}, 0")
    a(f"v_mov_b32 v{EN+22}, 0")
    a(f"v_mov_b32 v{EN+23}, 0")
    common_init()
    early_setup()
    zero_acc()
    a(f"s_waitcnt vmcnt({NM})")
    a("s_barrier")
    for i in range(5):
        a(f"ds_read_b128 v[{EN+4*i}:{EN+4*i+3}], v{FT} offset:{16*i}")
    a(f"ds_read_b32 v{EN+20}, v{FT} offset:80")
    if OPT['pst2'] == '1':
        st_()
    a(f"""
s_cmp_lt_u32 s{sW}, 4
s_waitcnt lgkmcnt(0)
s_cbranch_scc1 k2_rem
""")
    def d_load(e, rc, t):
        a(f"""
v_and_b32 v{t}, 0x7fff0, v{e}
v_add_u32 v{t}, v{t}, v{vBase}
buffer_load_dwordx4 v[{rc}:{rc+3}], v{t}, s[{S_R}:{S_R+3}], 0 offen {ld}
""")

    d_load(EN, RD[0], FT)
    a(f"s_cmp_lt_u32 s{sW}, {OPT['gs']}")
    a("s_cbranch_scc1 k2_n2")
    d_load(EN + 1, RD[1], FT + 1)
    a("s_waitcnt vmcnt(2)")
    a("s_branch k2_n3")
    a("k2_n2:")
    a("s_waitcnt vmcnt(1)")
    a("k2_n3:")
    m_write()
    a("s_waitcnt lgkmcnt(0)")
    a("s_barrier")
    zero_acc2()
    scale_setup()
    m_load(MP2)

    def d_prep(r, off, par, n):
        mk = MK[r & 1]
        a(f"""
s_set_gpr_idx_on s{sJ}, 0x1
v_mov_b32 v{FT+1}, v{EN+off}
s_set_gpr_idx_off
v_cmp_le_u32 s[{mk}:{mk+1}], v{TH}, v{FT+1}
v_cmp_le_u32 s[{mk+2}:{mk+3}], v{TH+1}, v{FT+1}
v_cmp_le_u32 s[{mk+4}:{mk+5}], v{TH+2}, v{FT+1}
""")
        if n is not None:
            a(f"s_waitcnt vmcnt({n})")
        decode(RD[r], AD)

    GD2 = (GA + 4, GX)
    a(f"s_cmp_lt_u32 s{sW}, {OPT['gs']}")
    a("s_cbranch_scc1 k2_dv1")
    for par in (0, 1):
        if par == 1:
            a("k2_dv1:")
        if par == 1:
            d_load(EN + 1, RD[1], FT)
            d_load(EN + 2, RD[2], FT + 1)
        m_piece(MP, 'b')
        d_prep(0, 0, par, 1 + par + NM + NBC)
        a(f"k2_dloop{par}:")
        q0a = OPT['q0a'] == '2' or (OPT['q0a'] == '1' and par == 1)
        for r in range(4):
            h = r & 1
            mk = MK[h]
            on = r == int(OPT['fr'])
            fs(0, on)
            gissue(mk, AD, GA, a, GD2[h])
            a("s_setprio 0")
            a("s_mov_b64 exec, -1")
            fs(1, on)
            m_piece(MPS[h], 'c')
            m_piece(MPS[h], 'a')
            if h == par:
                a(f"""
s_set_gpr_idx_on s{sJ}, 0x2
v_and_b32 v{FT+2}, 0x7fff0, v{EN+r+2}
v_and_b32 v{FT+3}, 0x7fff0, v{EN+r+3}
s_set_gpr_idx_off
v_add_u32 v{FT+2}, v{FT+2}, v{vBase}
v_add_u32 v{FT+3}, v{FT+3}, v{vBase}
""")
            held(h ^ 1, GD2[h ^ 1], RD[(r + 3) & 3] + AK[2])
            fs(2, on)
            wait_bar(MK[h ^ 1] + 4, 2, f"da{par}{r}", (lambda: qcalc(PT, GA, RD[r] + AK[0], vC0)) if q0a else None)
            fs(3, on)
            a(f"s_waitcnt vmcnt({NM if h == par else NM+2})")
            if h == par:
                a(f"buffer_load_dwordx4 v[{RD[(r+2)&3]}:{RD[(r+2)&3]+3}], v{FT+2}, s[{S_R}:{S_R+3}], 0 offen {ld}")
                a(f"buffer_load_dwordx4 v[{RD[(r+3)&3]}:{RD[(r+3)&3]+3}], v{FT+3}, s[{S_R}:{S_R+3}], 0 offen {ld}")
            fs(4, on)
            m_write(MPS[h ^ 1])
            a("s_setprio 0")
            fs(5, on)
            accum_main(h, RD[r], f"d{par}{r}", GD2[h], q0a)
            fs(6, on)
            fs(7, on)
            d_prep((r + 1) & 3, r + 1, par, None if h == par else 1 + NM + NBC)
            if r == 3:
                a(f"s_add_u32 s{sJ}, s{sJ}, 4")
            last_adds(h)
            fs(8, on)
            wait_bar(mk + 2, 4, f"db{par}{r}")
            fs(9, on)
        a(f"""
s_cmp_lt_u32 s{sJ}, {NPH if not FINE else int(OPT['fn'])}
s_cbranch_scc0 k2_dend
s_cmp_lg_u32 s{sJ}, 8
s_cbranch_scc1 k2_dloop{par}
""")
        early()
        a(f"s_branch k2_dloop{par}")

    a("k2_dend:")
    held(1, GD2[1], RD[3] + AK[2])
    a("s_branch k2_epi")
    GR2 = (GA + 4, TH)
    vA2 = TH + 2
    nr, inc, pre, V, tg, val, e0 = FT, FT + 1, FT + 2, FT + 3, FT + 4, FT + 5, FT + 6
    dpp = "row_mask:0xf bank_mask:0xf"

    def flat_scan(ea, eb, stot, a=a):
        a(f"""
v_and_b32 v{nr}, 0x7fff0, v{eb}
v_and_b32 v{pre}, 0x7fff0, v{ea}
v_sub_u32 v{nr}, v{nr}, v{pre}
v_and_b32 v{V}, 0x7fff3, v{ea}
v_add_u32 v{nr}, -48, v{nr}
v_max_i32 v{nr}, 0, v{nr}
v_mov_b32 v{inc}, v{nr}
v_add_u32 v{V}, v{V}, v{vBase}
v_cmp_ne_u32 s[{sD}:{sD+1}], 0, v{nr}
""")
        scan(a, "v_add_u32", inc)
        a(f"""
v_sub_u32 v{pre}, v{inc}, v{nr}
v_readlane_b32 s{stot}, v{inc}, 63
v_sub_u32 v{V}, v{V}, v{pre}
""")

    def flat_push(swb, a=a):
        a(f"""
s_add_u32 s{sT1}, {swb}, 1024
v_cmp_ge_u32 s[{sA}:{sA+1}], {swb}, v{pre}
v_subrev_u32 v{tg}, {swb}, v{pre}
v_cmp_eq_u32 s[{sC}:{sC+1}], s{sT1}, v{inc}
s_bcnt1_i32_b64 s{sT0}, s[{sA}:{sA+1}]
v_add_u32 v{val}, -16, v{tg}
s_sub_u32 s{sT0}, s{sT0}, 1
v_cmp_gt_u32 vcc, 1008, v{val}
v_readlane_b32 s{sCarry}, v{V}, s{sT0}
v_lshrrev_b32 v{tg}, 2, v{tg}
s_and_b64 s[{sB}:{sB+1}], vcc, s[{sD}:{sD+1}]
v_cndmask_b32 v{tg}, 0, v{tg}, s[{sB}:{sB+1}]
v_cndmask_b32 v{val}, 0, v{V}, s[{sB}:{sB+1}]
ds_permute_b32 v{val}, v{tg}, v{val}
""")

    def flat_fin(swb, stot, mk, rc, a=a):
        a(f"""
v_cmp_ne_u32 s[{sA}:{sA+1}], 0, v{val}
v_add_u32 v{tg}, {swb}, v{vL16}
s_cmp_lg_u64 s[{sC}:{sC+1}], 0
v_max_u32_dpp v{val}, v{val}, v{val} row_shr:1 {dpp}
v_cmp_gt_u32 s[{mk}:{mk+1}], s{stot}, v{tg}
s_cselect_b32 s{sC+1}, 0x80000000, 0
v_max_u32_dpp v{val}, v{val}, v{val} row_shr:2 {dpp}
s_mov_b32 s{sC}, 0
s_lshr_b64 s[{sA}:{sA+1}], s[{sA}:{sA+1}], 1
v_max_u32_dpp v{val}, v{val}, v{val} row_shr:4 {dpp}
s_or_b64 s[{sC}:{sC+1}], s[{sC}:{sC+1}], s[{sA}:{sA+1}]
s_lshr_b64 s[{sA}:{sA+1}], s[{mk}:{mk+1}], 1
v_max_u32_dpp v{val}, v{val}, v{val} row_shr:8 {dpp}
s_andn2_b64 s[{sA}:{sA+1}], s[{mk}:{mk+1}], s[{sA}:{sA+1}]
s_bitset0_b64 s[{sA}:{sA+1}], 63
v_max_u32_dpp v{val}, v{val}, v{val} row_bcast:15 row_mask:0xa bank_mask:0xf
s_or_b64 s[{sC}:{sC+1}], s[{sC}:{sC+1}], s[{sA}:{sA+1}]
s_nop 0
v_max_u32_dpp v{val}, v{val}, v{val} row_bcast:31 row_mask:0xc bank_mask:0xf
v_max_u32 v{val}, s{sCarry}, v{val}
v_add_u32 v{tg}, v{tg}, v{val}
v_and_b32 v{val}, 3, v{val}
v_and_b32 v{tg}, -16, v{tg}
v_cmp_eq_u32 s[{sA}:{sA+1}], 2, v{val}
v_cmp_ne_u32 s[{sB}:{sB+1}], 0, v{val}
v_cndmask_b32 v{tg}, v{vMHi}, v{tg}, s[{mk}:{mk+1}]
buffer_load_dwordx4 v[{rc}:{rc+3}], v{vL16 if 'r' in abl else tg}, s[{S_R}:{S_R+3}], 0 offen {ld}
s_and_b64 s[{sA}:{sA+1}], s[{sA}:{sA+1}], s[{sC}:{sC+1}]
s_and_b64 s[{sB}:{sB+1}], s[{sB}:{sB+1}], s[{sC}:{sC+1}]
s_andn2_b64 s[{mk+2}:{mk+3}], s[{mk}:{mk+1}], s[{sA}:{sA+1}]
s_andn2_b64 s[{mk+4}:{mk+5}], s[{mk}:{mk+1}], s[{sB}:{sB+1}]
""")

    def second(h, tag):
        a(f"""
s_cmp_gt_u32 s{TOT[h]}, 1024
s_cbranch_scc1 k2_sy_{tag}
k2_ns_{tag}:
""")
        o(f"k2_sy_{tag}:")
        o(f"s_movk_i32 s{sXw}, 1024")
        flat_push(f"s{sXw}", o)
        o("s_waitcnt lgkmcnt(0)")
        flat_fin(f"s{sXw}", TOT[h], MX[h], RXW[h], o)
        o(f"s_branch k2_ns_{tag}")

    a("k2_rem:")
    a("s_setprio 1")
    flat_scan(EN, EN + 1, TOT[0])
    flat_push("0")
    a("s_waitcnt lgkmcnt(0)")
    flat_fin("0", TOT[0], MN[0], RC[0])
    second(0, "p0")
    if OPT['pst2'] == '1':
        st_()
    a(f"s_waitcnt vmcnt(1)")
    if OPT['pst2'] == '1':
        st_()
    m_write()
    a(f"""
v_and_b32 v{FT}, 0x7fff0, v{EN+20}
v_and_b32 v{FT+1}, 0x7fff0, v{EN}
v_sub_u32 v{FT}, v{FT}, v{FT+1}
s_lshl_b32 s{sT0}, s{sW}, 2
s_add_u32 s{sT0}, s{sT0}, {NW}
""")
    scan(a, "v_add_u32", FT)
    a(f"""
v_mov_b32 v{FT+3}, s{sT0}
{EXEC63}
ds_write_b32 v{FT+3}, v{FT}
s_mov_b64 exec, -1
s_waitcnt lgkmcnt(0)
s_barrier
""")
    st_()
    zero_acc2()
    scale_setup()
    st_()
    flat_scan(EN + 1, EN + 2, TOT[1])
    flat_push("0")
    m_load(MP2)
    m_piece(MP, 'b')
    a("s_waitcnt lgkmcnt(0)")
    flat_fin("0", TOT[1], MN[1], RC[1])
    second(1, "p1")

    def r_prep(h, off, n=NM+1):
        mk = MK[h]
        a(f"""
s_set_gpr_idx_on s{sJ}, 0x1
v_mov_b32 v{e0}, v{EN+off+2}
v_mov_b32 v{e0+1}, v{EN+off+3}
s_set_gpr_idx_off
""")
        flat_scan(e0, e0 + 1, sTN)
        a(f"s_waitcnt vmcnt({n})")
        for i in range(0, 6, 2):
            a(f"s_mov_b64 s[{mk+i}:{mk+i+1}], s[{MN[h]+i}:{MN[h]+i+1}]")
        decode(RC[h], AD)

    r_prep(0, 0, 1 + NM + NBC)
    if OPT['pst2'] == '1':
        st_()
    a("k2_rloop:")
    for h in range(2):
        mk = MK[h]
        on = h == (int(OPT['fr']) & 1)
        fs(0, on)
        gissue(mk, AD, GA, a, GR2[h])
        a("s_mov_b64 exec, -1")
        a(f"""
s_cmp_gt_u32 s{TOT[h]}, {1024 if not FINE else 0x7fffffff}
s_cbranch_scc1 k2_xy_{h}
k2_nx_{h}:
""")
        o(f"k2_xy_{h}:")
        window_now(MX[h], RXW[h], f"x{h}")
        o(f"""
s_waitcnt lgkmcnt(0)
s_cmp_le_u32 s{TOT[h]}, 2048
s_cbranch_scc1 k2_nx_{h}
s_movk_i32 s{sXw}, 2048
s_add_u32 s{sT2}, s{sJ}, {h}
s_call_b64 s[{sRet}:{sRet+1}], k2_slow
s_waitcnt lgkmcnt(0)
s_set_gpr_idx_on s{sJ}, 0x1
v_mov_b32 v{e0}, v{EN+h+2}
v_mov_b32 v{e0+1}, v{EN+h+3}
s_set_gpr_idx_off
""")
        flat_scan(e0, e0 + 1, sTN, o)
        o(f"s_branch k2_nx_{h}")
        flat_push("0")
        a("s_setprio 1")
        fs(1, on)
        m_piece(MPS[h], 'c')
        m_piece(MPS[h], 'a')
        a(f"s_mov_b32 s{TOT[h]}, s{sTN}")
        held(h ^ 1, GR2[h ^ 1], vA2)
        fs(2, on)
        wait_bar(MK[h ^ 1] + 4, 2, f"ra{h}")
        fs(3, on)
        a(f"s_waitcnt vmcnt({NM+1})")
        fs(4, on)
        m_write(MPS[h ^ 1])
        a("s_setprio 1")
        fs(5, on)
        accum_main(h, RC[h], f"r{h}", GR2[h])
        a(f"v_mov_b32 v{vA2}, v{RC[h]+AK[2]}")
        fs(6, on)
        flat_fin("0", TOT[h], MN[h], RC[h])
        if not FINE:
            second(h, f"l{h}")
        fs(7, on)
        r_prep(h ^ 1, h + 1)
        last_adds(h)
        fs(8, on)
        if h == 1:
            a(f"s_add_u32 s{sJ}, s{sJ}, 2")
        wait_bar(mk + 2, 4, f"rb{h}")
        fs(9, on)
        if OPT['pst2'] == '1':
            st_()
    a(f"""
s_cmp_lt_u32 s{sJ}, {NPH if not FINE else int(OPT['fn'])}
s_cbranch_scc0 k2_rend
s_cmp_lg_u32 s{sJ}, 8
s_cbranch_scc1 k2_rloop
""")
    early()
    a("s_branch k2_rloop")
    a("k2_rend:")
    held(1, GR2[1], vA2)
    def fused_epilogue():
        QP = 782
        EB = 64
        S_D, S_O, S_G = 4, 8, 24
        WR, WSB, WD, WU = 48, 64, 80, 88
        CE = 28
        CF = 80
        PP, PP2 = 20, 42
        tS = 40
        sSc, sFl = 44, 45
        vT = 9
        R = (16, 24)
        G = (32, 36)
        H = (40, 44)
        RP = (48, 52)
        S = (16, 20)
        AG = (24, 28)
        PL = 96
        a("k2_epi:")
        if FINE:
            a("s_waitcnt lgkmcnt(0)")
            for i2 in range(10):
                a(f"v_writelane_b32 v{FT}, s{FS[i2]}, {i2}")
            a(f"s_lshl_b32 s{sT0}, s2, 10")
            a(f"s_lshl_b32 s{sT1}, s{sW}, 6")
            a(f"s_add_u32 s{sT0}, s{sT0}, s{sT1}")
            srd_off(a, 8, P + 2, sT0, DIAG_OFF + 0x200000, 40)
            a(f"v_lshrrev_b32 v{FT+1}, 2, v{vL16}")
            a(f"buffer_store_dword v{FT}, v{FT+1}, s[8:11], 0 offen")
        a(f"""
s_load_dwordx2 s[{S_O}:{S_O+1}], s[0:1], {KA['out']}
s_load_dwordx2 s[{PP}:{PP+1}], s[0:1], {KA['centers']}
s_load_dwordx4 s[{WU}:{WU+3}], s[0:1], {KA['w_rbf']}
s_load_dwordx4 s[{WU+4}:{WU+7}], s[0:1], {KA['w_down']}
v_add_u32 v{vLW}, {ACC}, v{vT16}
v_add_u32 v{vBase}, {ACC+ACCB}, v{vT16}
v_mov_b32 v{vMagic}, s{sPf}
s_mul_i32 s{sT0}, s{sCg}, {E*8}
s_mul_i32 s{sT1}, s{sRb}, {RB*8}
s_add_u32 s{sT0}, s{sT0}, s{sT1}
v_cmp_ne_u32 s[{sNK}:{sNK+1}], v{vO16}, v{vMHi}
s_mov_b32 s{sJ}, s{sT0}
""")
        srd_off(a, S_P, P + 2, sT0, PART_OFF, RB * 8)
        srd_off(a, S_G, P + 2, None, HF_OFF, 8192)
        a(f"""
s_waitcnt vmcnt(0) lgkmcnt(0)
s_load_dwordx4 s[{CE}:{CE+3}], s[{PP}:{PP+1}], 0
s_load_dwordx16 s[{WR}:{WR+15}], s[{WU}:{WU+1}], 0
s_load_dwordx16 s[{WSB}:{WSB+15}], s[{WU+2}:{WU+3}], 0
s_mov_b64 s[{PP}:{PP+1}], s[{WU+4}:{WU+5}]
s_mov_b64 s[{PP2}:{PP2+1}], s[{WU+6}:{WU+7}]
s_barrier
""")
        st_()
        for it in range(4):
            b = EB + it * 8
            if it == 3:
                a(f"v_min_u32 v{vLW}, {ACC + 52*16}, v{vLW}")
                a(f"v_min_u32 v{vBase}, {ACC + ACCB + 52*16}, v{vBase}")
            a(f"ds_read_b128 v[{b}:{b+3}], v{vLW} offset:{it*16384}")
            a(f"ds_read_b128 v[{b+4}:{b+7}], v{vBase} offset:{it*16384}")
        a(f"""
s_mov_b32 s{S_O+2}, {E*8}
s_mov_b32 s{S_O+3}, 0x00020000
s_cmp_lg_u32 s{sMode}, 0
s_waitcnt lgkmcnt(0)
s_cbranch_scc1 k2_epf
""")
        for it in range(4):
            b = EB + it * 8
            for p in range(4):
                a(f"v_ashrrev_i32 v{FT+2+p}, 31, v{b+2*p}")
            for p in range(4):
                a(f"v_sub_u32 v{b+2*p+1}, v{b+2*p+1}, v{FT+2+p}")
            for p in range(8):
                a(f"v_cvt_f32_i32 v{b+p}, v{b+p}")
            for p in range(8):
                a(f"v_mul_f32 v{b+p}, v{vMagic}, v{b+p}")
            a(f"""
v_cvt_pk_f16_f32 v{b}, v{b}, v{b+1}
v_cvt_pk_f16_f32 v{b+1}, v{b+4}, v{b+5}
v_cvt_pk_f16_f32 v{b+2}, v{b+2}, v{b+3}
v_cvt_pk_f16_f32 v{b+3}, v{b+6}, v{b+7}
buffer_store_dwordx4 v[{b}:{b+3}], v{vT16}, s[{S_P}:{S_P+3}], 0 offen sc1
""")
            if it < 3:
                a(f"v_add_u32 v{vT16}, 16384, v{vT16}")
        a("k2_epj:")
        o("k2_epf:")
        o(f"s_lshl_b32 s{sT0}, s{sJ}, 1")
        srd_off(o, S_P, P + 2, sT0, P32_OFF, RB * 16)
        o(f"v_lshlrev_b32 v{vT16}, 1, v{vT16}")
        for it in range(4):
            b = EB + it * 8
            o(f"""
buffer_store_dwordx2 v[{b}:{b+1}], v{vT16}, s[{S_P}:{S_P+3}], 0 offen sc1
buffer_store_dwordx2 v[{b+4}:{b+5}], v{vT16}, s[{S_P}:{S_P+3}], 0 offen offset:8 sc1
buffer_store_dwordx2 v[{b+2}:{b+3}], v{vT16}, s[{S_P}:{S_P+3}], 0 offen offset:16 sc1
buffer_store_dwordx2 v[{b+6}:{b+7}], v{vT16}, s[{S_P}:{S_P+3}], 0 offen offset:24 sc1
v_add_u32 v{vT16}, 32768, v{vT16}
""")
        o("s_waitcnt vmcnt(0)")
        o("s_branch k2_epj")

        def rnd(x):
            a(f"v_cvt_pk_bf16_f32 v{x+1}, v{x}, v{x+1}")
            a(f"v_lshlrev_b32 v{x}, 16, v{x+1}")
            a(f"v_and_b32 v{x+1}, v{vMHi}, v{x+1}")

        a(f"""
s_cmp_gt_u32 s{sW}, 12
s_cbranch_scc1 k2_sig
""")
        for k in range(8):
            a(s_unpack(CF + k, CE, k))
        a(f"""
v_and_b32 v{vD+1}, v{vMHi}, v{vD}
v_lshlrev_b32 v{vD}, 16, v{vD}
""")
        for r in range(2):
            for k in range(0, 8, 2):
                a(f"v_pk_add_f32 v[{R[r]+k}:{R[r]+k+1}], v[{vD}:{vD+1}], s[{CF+k}:{CF+k+1}] op_sel:[{r},0] op_sel_hi:[{r},1] neg_lo:[0,1] neg_hi:[0,1]")
        a(f"s_load_dwordx8 s[{WD}:{WD+7}], s[{PP}:{PP+1}], 0")
        a(f"s_load_dwordx8 s[{WU}:{WU+7}], s[{PP2}:{PP2+1}], 0")
        allr = [R[r] + k for r in range(2) for k in range(8)]
        for x in allr[::2]:
            rnd(x)
        for x in allr:
            a(f"v_mul_f32 v{x}, v{x}, v{x}")
        for x in allr[::2]:
            rnd(x)
        for x in allr:
            a(f"v_mul_f32 v{x}, 0xc1200000, v{x}")
        for x in allr[::2]:
            rnd(x)
        st_()
        a("""
s_waitcnt vmcnt(0)
s_barrier
""")
        st_()
        for x in allr:
            a(f"v_mul_f32 v{x}, 0x3fb8aa3b, v{x}")
        for x in allr:
            a(f"v_exp_f32 v{x}, v{x}")
        a("s_nop 0")
        for r in range(2):
            for kk in range(4):
                a(f"v_cvt_pk_bf16_f32 v{RP[r]+kk}, v{R[r]+2*kk}, v{R[r]+2*kk+1}")
        cnt = [0]

        def wpair(base, kk, c):
            d = tS + (cnt[0] & 3)
            cnt[0] += 1
            op = "s_pack_ll_b32_b16" if c % 2 == 0 else "s_pack_hh_b32_b16"
            a(f"{op} s{d}, s{base + 4*kk + c//2}, s{base + 4*kk + 2 + c//2}")
            return d

        def dotmat(dst, src, base, nk):
            for kk in range(nk):
                for c in range(4):
                    w = wpair(base, kk, c)
                    for r in range(2):
                        acc = "0" if kk == 0 else f"v{dst[r]+c}"
                        a(f"v_dot2_f32_bf16 v{dst[r]+c}, v{src[r]+kk}, s{w}, {acc}")

        dotmat(H, RP, WR, 4)
        dotmat(G, RP, WSB, 4)
        for r in range(2):
            rnd(H[r])
            rnd(H[r] + 2)
        srd_off(a, S_P, P + 2, None, PART_OFF, 4 * E * 8)
        st_()
        a(f"""
v_mov_b32 v{vT}, {NW}
s_waitcnt lgkmcnt(0)
s_barrier
ds_read_b32 v{vT}, v{vT}
v_add_u32 v{FT}, {E*8}, v{vO16}
v_add_u32 v{FT+1}, {2*E*8}, v{vO16}
v_add_u32 v{FT+2}, {3*E*8}, v{vO16}
s_mov_b64 exec, s[{sNK}:{sNK+1}]
buffer_load_dwordx4 v[{PL}:{PL+3}], v{vO16}, s[{S_P}:{S_P+3}], 0 offen sc1
buffer_load_dwordx4 v[{PL+4}:{PL+7}], v{FT}, s[{S_P}:{S_P+3}], 0 offen sc1
buffer_load_dwordx4 v[{PL+8}:{PL+11}], v{FT+1}, s[{S_P}:{S_P+3}], 0 offen sc1
buffer_load_dwordx4 v[{PL+12}:{PL+15}], v{FT+2}, s[{S_P}:{S_P+3}], 0 offen sc1
s_waitcnt lgkmcnt(0)
v_readfirstlane_b32 s{sFl}, v{vT}
v_mov_b32 v{vT}, s{sMsc}
""")
        st_()
        a(f"""
s_cmp_gt_u32 s{sFl}, 255
s_cbranch_scc1 k2_fslow
s_waitcnt vmcnt(0)
""")
        for r in range(2):
            for c in range(4):
                reg = 2 * r + c // 2
                hi = c % 2
                d = S[r] + c
                a(f"v_fma_mix_f32 v{d}, v{PL+reg}, 1.0, v{PL+4+reg} op_sel:[{hi},0,{hi}] op_sel_hi:[1,0,1]")
                a(f"v_fma_mix_f32 v{d}, v{PL+8+reg}, 1.0, v{d} op_sel:[{hi},0,0] op_sel_hi:[1,0,0]")
                a(f"v_fma_mix_f32 v{d}, v{PL+12+reg}, 1.0, v{d} op_sel:[{hi},0,0] op_sel_hi:[1,0,0]")
        for r in range(2):
            for c in range(4):
                a(f"v_mul_f32 v{S[r]+c}, v{vT}, v{S[r]+c}")
        a("k2_fjoin:")
        for jj in range(4):
            for cp in range(2):
                d = tS + 2 * ((jj * 2 + cp) & 1)
                a(s_unpack(d, WD, jj * 4 + cp * 2))
                a(s_unpack(d + 1, WD, jj * 4 + cp * 2 + 1))
                for r in range(2):
                    sp = S[r] + (jj & ~1)
                    oo = jj & 1
                    dd = AG[r] + 2 * cp
                    if jj == 0:
                        a(f"v_pk_mul_f32 v[{dd}:{dd+1}], v[{sp}:{sp+1}], s[{d}:{d+1}] op_sel:[{oo},0] op_sel_hi:[{oo},1]")
                    else:
                        a(f"v_pk_fma_f32 v[{dd}:{dd+1}], v[{sp}:{sp+1}], s[{d}:{d+1}], v[{dd}:{dd+1}] op_sel:[{oo},0,0] op_sel_hi:[{oo},1,1]")
        for r in range(2):
            for c in range(4):
                a(f"v_mul_f32 v{AG[r]+c}, v{AG[r]+c}, v{G[r]+c}")
        for r in range(2):
            for kk in range(2):
                a(f"v_cvt_pk_bf16_f32 v{RP[r]+kk}, v{AG[r]+2*kk}, v{AG[r]+2*kk+1}")
        dotmat(G, RP, WU, 2)
        for r in range(2):
            for cp in range(2):
                a(f"v_lshlrev_b32 v{S[r]+2*cp}, 16, v{vM+2*r+cp}")
                a(f"v_and_b32 v{S[r]+2*cp+1}, v{vMHi}, v{vM+2*r+cp}")
        for r in range(2):
            rnd(G[r])
            rnd(G[r] + 2)
        for r in range(2):
            for c in range(4):
                a(f"v_mul_f32 v{G[r]+c}, v{G[r]+c}, v{H[r]+c}")
        for r in range(2):
            rnd(G[r])
            rnd(G[r] + 2)
        for r in range(2):
            for c in range(4):
                a(f"v_add_f32 v{G[r]+c}, v{G[r]+c}, v{S[r]+c}")
        for r in range(2):
            for cp in range(2):
                a(f"v_cvt_pk_bf16_f32 v{vM+2*r+cp}, v{G[r]+2*cp}, v{G[r]+2*cp+1}")
        a(f"buffer_store_dwordx4 v[{vM}:{vM+3}], v{vO16}, s[{S_O}:{S_O+3}], 0 offen")
        st_()
        st_.flush(FT)
        a("""
k2_done:
s_endpgm
""")
        a(f"""
k2_sig:
s_waitcnt vmcnt(0)
s_barrier
s_cmp_lg_u32 s{sW}, 15
s_cbranch_scc1 k2_sig_e
s_add_u32 s{sT0}, s{sCg}, 8
s_lshl_b32 s{sT0}, s{sMode}, s{sT0}
s_add_u32 s{sT0}, s{sT0}, 1
s_lshl_b32 s{sT1}, s{sRb}, 7
s_lshl_b32 s{sT2}, s{sCg}, 2
s_add_u32 s{sT2}, s{sT2}, s{sT1}
s_mov_b64 exec, 1
v_mov_b32 v{FT}, s{sT1}
v_mov_b32 v{FT+1}, s{sT0}
v_mov_b32 v{FT+2}, s{sT2}
buffer_store_dword v{FT+1}, v{FT+2}, s[{S_G}:{S_G+3}], 0 offen sc1
s_mov_b32 s{sT2}, 0x100000
k2_poll:
buffer_load_dwordx4 v[{FT+4}:{FT+7}], v{FT}, s[{S_G}:{S_G+3}], 0 offen sc1
s_waitcnt vmcnt(0)
v_add_u32 v{FT+1}, v{FT+4}, v{FT+5}
v_add3_u32 v{FT+1}, v{FT+1}, v{FT+6}, v{FT+7}
s_nop 0
v_readfirstlane_b32 s{sT1}, v{FT+1}
s_and_b32 s{sT1}, s{sT1}, 255
s_cmp_ge_u32 s{sT1}, 4
s_cbranch_scc1 k2_poll_e
s_sub_u32 s{sT2}, s{sT2}, 1
s_cbranch_scc1 k2_poll_e
s_sleep 1
s_branch k2_poll
k2_poll_e:
v_mov_b32 v{FT}, {NW}
ds_write_b32 v{FT}, v{FT+1}
s_waitcnt lgkmcnt(0)
k2_sig_e:
s_barrier
s_endpgm
""")
        o("k2_fslow:")
        srd_off(o, S_D, P + 2, None, P32_OFF, 4 * E * 16)
        o(f"v_lshlrev_b32 v{FT}, 1, v{vO16}")
        for i2 in range(8):
            o(f"v_mov_b32 v{S[0]+i2}, 0")
        o("s_waitcnt vmcnt(0)")
        for c in range(4):
            o(f"""
s_bitcmp1_b32 s{sFl}, {8+c}
s_cbranch_scc1 k2_s32_{c}
""")
            for r in range(2):
                for cc in range(4):
                    reg = 2 * r + cc // 2
                    o(f"v_fma_mix_f32 v{S[r]+cc}, v{PL+4*c+reg}, v{vT}, v{S[r]+cc} op_sel:[{cc%2},0,0] op_sel_hi:[1,0,0]")
            o(f"""
s_branch k2_sn_{c}
k2_s32_{c}:
buffer_load_dwordx4 v[24:27], v{FT}, s[{S_D}:{S_D+3}], 0 offen sc1
buffer_load_dwordx4 v[28:31], v{FT}, s[{S_D}:{S_D+3}], 0 offen offset:16 sc1
s_waitcnt vmcnt(0)
""")
            for i2 in range(8):
                o(f"v_add_f32 v{S[0]+i2}, v{S[0]+i2}, v{24+i2}")
            o(f"k2_sn_{c}:")
            o(f"v_add_u32 v{FT}, {E*16}, v{FT}")
        o("s_branch k2_fjoin")

    def plain_epilogue():
        a("k2_epi:")
        if FINE:
            a("s_waitcnt lgkmcnt(0)")
            for i2 in range(10):
                a(f"v_writelane_b32 v{FT}, s{FS[i2]}, {i2}")
            a(f"s_lshl_b32 s{sT0}, s2, 10")
            a(f"s_lshl_b32 s{sT1}, s{sW}, 6")
            a(f"s_add_u32 s{sT0}, s{sT0}, s{sT1}")
            srd_off(a, 8, P + 2, sT0, DIAG_OFF + 0x200000, 40)
            a(f"v_lshrrev_b32 v{FT+1}, 2, v{vL16}")
            a(f"buffer_store_dword v{FT}, v{FT+1}, s[8:11], 0 offen")
        EB = 64
        a(f"""
v_add_u32 v{vLW}, {ACC}, v{vT16}
v_add_u32 v{vBase}, {ACC+ACCB}, v{vT16}
v_mov_b32 v{vMagic}, s{sPf}
s_lshl_b32 s{sT0}, s{sCo}, 2
v_mov_b32 v{FT}, s{sT0}
v_mov_b32 v{FT+1}, s{sMode}
""")
        srd_off(a, S_T, P + 2, None, FLAG_OFF, 1024)
        a(f"""
s_mul_i32 s{sT0}, s{sCg}, {E*8}
s_mul_i32 s{sT1}, s{sRb}, {RB*8}
s_add_u32 s{sT0}, s{sT0}, s{sT1}
""")
        srd_off(a, S_P, P + 2, sT0, PART_OFF, RB * 8)
        a(f"s_lshl_b32 s{sT0}, s{sT0}, 1")
        srd_off(a, S_M, P + 2, sT0, P32_OFF, RB * 16)
        a(f"""
s_waitcnt vmcnt(0) lgkmcnt(0)
s_barrier
""")
        st_()
        for it in range(4):
            b = EB + it * 8
            if it == 3:
                a(f"v_min_u32 v{vLW}, {ACC + 52*16}, v{vLW}")
                a(f"v_min_u32 v{vBase}, {ACC + ACCB + 52*16}, v{vBase}")
            a(f"ds_read_b128 v[{b}:{b+3}], v{vLW} offset:{it*16384}")
            a(f"ds_read_b128 v[{b+4}:{b+7}], v{vBase} offset:{it*16384}")
        a(f"""
v_cmp_eq_u32 vcc, 0, v0
s_and_saveexec_b64 s[{sA}:{sA+1}], vcc
buffer_store_dword v{FT+1}, v{FT}, s[{S_T}:{S_T+3}], 0 offen
s_mov_b64 exec, s[{sA}:{sA+1}]
s_cmp_lg_u32 s{sMode}, 0
s_cbranch_scc1 k2_epf
""")
        for it in range(4):
            b = EB + it * 8
            a(f"s_waitcnt lgkmcnt({2*(3-it)})")
            for p in range(4):
                a(f"v_ashrrev_i32 v{FT+2+p}, 31, v{b+2*p}")
            for p in range(4):
                a(f"v_sub_u32 v{b+2*p+1}, v{b+2*p+1}, v{FT+2+p}")
            for p in range(8):
                a(f"v_cvt_f32_i32 v{b+p}, v{b+p}")
            for p in range(8):
                a(f"v_mul_f32 v{b+p}, v{vMagic}, v{b+p}")
            a(f"""
v_cvt_pk_f16_f32 v{b}, v{b}, v{b+1}
v_cvt_pk_f16_f32 v{b+1}, v{b+4}, v{b+5}
v_cvt_pk_f16_f32 v{b+2}, v{b+2}, v{b+3}
v_cvt_pk_f16_f32 v{b+3}, v{b+6}, v{b+7}
buffer_store_dwordx4 v[{b}:{b+3}], v{vT16}, s[{S_P}:{S_P+3}], 0 offen {pst}
""")
            if it < 3:
                a(f"v_add_u32 v{vT16}, 16384, v{vT16}")
        st_()
        if st_.on:
            a("s_waitcnt vmcnt(0)")
        st_()
        st_.flush(FT)
        a("""
k2_done:
s_endpgm
k2_epf:
s_waitcnt lgkmcnt(0)
""")
        a(f"v_lshlrev_b32 v{vT16}, 1, v{vT16}")
        for it in range(4):
            b = EB + it * 8
            a(f"""
buffer_store_dwordx2 v[{b}:{b+1}], v{vT16}, s[{S_M}:{S_M+3}], 0 offen
buffer_store_dwordx2 v[{b+4}:{b+5}], v{vT16}, s[{S_M}:{S_M+3}], 0 offen offset:8
buffer_store_dwordx2 v[{b+2}:{b+3}], v{vT16}, s[{S_M}:{S_M+3}], 0 offen offset:16
buffer_store_dwordx2 v[{b+6}:{b+7}], v{vT16}, s[{S_M}:{S_M+3}], 0 offen offset:24
v_add_u32 v{vT16}, 32768, v{vT16}
""")
        a("s_endpgm")

    if OPT['fuse'] == '1':
        fused_epilogue()
    else:
        plain_epilogue()
    o("k2_slow:")
    o(f"""
s_set_gpr_idx_on s{sT2}, 0x1
v_mov_b32 v{e0}, v{EN}
v_mov_b32 v{e0+1}, v{EN+1}
s_set_gpr_idx_off
""")
    flat_scan(e0, e0 + 1, sTot, o)
    o("k2_slow_l:")
    flat_push(f"s{sXw}", o)
    o("s_waitcnt lgkmcnt(0)")
    flat_fin(f"s{sXw}", sTot, MS, RS, o)
    o("s_waitcnt vmcnt(0)")
    window_now(MS, RS, "slow")
    o(f"""
s_add_u32 s{sXw}, s{sXw}, 1024
s_cmp_lt_u32 s{sXw}, s{sTot}
s_cbranch_scc1 k2_slow_l
s_setpc_b64 s[{sRet}:{sRet+1}]
""")
    txt = a.s
    if OPT['abl2']:
        i0 = txt.index('k2_dloop0:'); i1 = txt.index('k2_rem:'); i2 = txt.index('k2_rloop:'); i3 = txt.index('k2_epi:')
        def filt(t):
            out = []
            for l in t.split('\n'):
                x = l.strip()
                f = OPT['abl2']
                if 'v' in f and (x.startswith('buffer_') or x.startswith('s_waitcnt vmcnt')): continue
                if 'd' in f and x.startswith('ds_add'): continue
                if 'g' in f and x.startswith('ds_read'): continue
                if 'q' in f and (x.startswith('v_fma') or x.startswith('v_lshl_add_u64') or x.startswith('v_lshlrev_b32') or x.startswith('v_alignbit')): continue
                if 'p' in f and ('_dpp' in x or x.startswith('s_nop') or x.startswith('v_readlane') or x.startswith('v_cndmask') or x.startswith('ds_permute')): continue
                if 'e' in f and x.startswith('s_mov_b64 exec'): continue
                if 'b' in f and x.startswith('s_barrier'): continue
                if 'x' in f and (x.startswith('s_set_gpr')): continue
                out.append(l)
            return '\n'.join(out)
        txt = txt[:i0] + filt(txt[i0:i1]) + txt[i1:i2] + filt(txt[i2:i3]) + txt[i3:]
    return txt + o.s + "k2_code_end:\n    s_endpgm\n", NVG, NW + 64


def gen_k3():
    a = A()
    pld = OPT['pld']
    S_M, S_D, S_O, S_P = 4, 8, 12, 16
    WR, WSB, WD, WU, CE = 20, 36, 52, 60, 68
    CF = 72
    PP = 72
    FL = 84
    MXS = 88
    sT = 80
    sWs = 96
    st_ = Stamper(a, 2, 98, sWs, 60, S_P)
    st_.start()
    vO16, vD, vM, vHi = 1, 2, 4, 8
    PL = 12
    R = (28, 36)
    G = (44, 48)
    H = (52, 56)
    S = (28, 32)
    RP = (62, 66)
    vT = 9
    a(f"""
s_cmp_ge_u32 s2, 1600
s_cbranch_scc1 k3_done
s_load_dwordx2 s[{S_M}:{S_M+1}], s[0:1], {KA['m']}
s_load_dwordx2 s[{S_D}:{S_D+1}], s[0:1], {KA['dist']}
s_load_dwordx2 s[{S_O}:{S_O+1}], s[0:1], {KA['out']}
s_load_dwordx2 s[{sWs}:{sWs+1}], s[0:1], {KA['ws']}
s_load_dwordx2 s[{PP}:{PP+1}], s[0:1], {KA['centers']}
s_load_dwordx4 s[{PP+4}:{PP+7}], s[0:1], {KA['w_rbf']}
s_load_dwordx4 s[{PP+8}:{PP+11}], s[0:1], {KA['w_down']}
s_mul_i32 s3, s2, 2000
v_lshlrev_b32 v{vO16}, 4, v0
v_add_u32 v{vO16}, s3, v{vO16}
v_mov_b32 v{vHi}, 0xffff0000
v_cmp_gt_u32 vcc, 125, v0
s_and_b64 exec, exec, vcc
v_lshrrev_b32 v{vT}, 2, v{vO16}
s_mul_i32 s3, s2, 5243
s_lshr_b32 s3, s3, 17
s_lshl_b32 s3, s3, 4
s_waitcnt lgkmcnt(0)
""")
    a(srd(S_D, S_D, E * 2))
    a(f"buffer_load_dword v{vD}, v{vT}, s[{S_D}:{S_D+3}], 0 offen")
    a(f"""
s_load_dwordx4 s[{CE}:{CE+3}], s[{PP}:{PP+1}], 0
s_load_dwordx16 s[{WR}:{WR+15}], s[{PP+4}:{PP+5}], 0
s_load_dwordx16 s[{WSB}:{WSB+15}], s[{PP+6}:{PP+7}], 0
s_load_dwordx8 s[{WD}:{WD+7}], s[{PP+8}:{PP+9}], 0
s_load_dwordx8 s[{WU}:{WU+7}], s[{PP+10}:{PP+11}], 0
s_add_u32 s{PP+2}, s{sWs}, {MAX_OFF}
s_addc_u32 s{PP+3}, s{sWs+1}, 0
s_load_dwordx8 s[{MXS}:{MXS+7}], s[{PP+2}:{PP+3}], 0
s_add_u32 s{PP+2}, s{PP+2}, s3
s_addc_u32 s{PP+3}, s{PP+3}, 0
s_load_dwordx4 s[{FL}:{FL+3}], s[{PP+2}:{PP+3}], {FLAG_OFF-MAX_OFF}
""")
    srd_off(a, S_P, sWs, None, PART_OFF, 4 * E * 8)
    for c in range(4):
        if c:
            a(f"s_mov_b32 s3, {c*E*8}")
        a(f"buffer_load_dwordx4 v[{PL+4*c}:{PL+4*c+3}], v{vO16}, s[{S_P}:{S_P+3}], {'s3' if c else '0'} offen {pld}")
    a(srd(S_M, S_M, E * 8) + srd(S_O, S_O, E * 8))
    a(f"buffer_load_dwordx4 v[{vM}:{vM+3}], v{vO16}, s[{S_M}:{S_M+3}], 0 offen")
    a("s_waitcnt lgkmcnt(0)")
    for k in range(8):
        a(s_unpack(CF + k, CE, k))
    a(f"""
s_max_u32 s{MXS}, s{MXS}, s{MXS+1}
s_max_u32 s{MXS+2}, s{MXS+2}, s{MXS+3}
s_max_u32 s{MXS+4}, s{MXS+4}, s{MXS+5}
s_max_u32 s{MXS}, s{MXS}, s{MXS+2}
s_max_u32 s{MXS}, s{MXS}, s{MXS+4}
s_lshl_b32 s3, s{MXS}, 16
s_and_b32 s3, s3, 0x7f800000
s_add_u32 s3, s3, {2 << 23}
s_waitcnt vmcnt(5)
v_and_b32 v{vD+1}, v{vHi}, v{vD}
v_lshlrev_b32 v{vD}, 16, v{vD}
""")

    st_.init()
    st_()

    def rnd(x):
        a(f"v_cvt_pk_bf16_f32 v{x+1}, v{x}, v{x+1}")
        a(f"v_lshlrev_b32 v{x}, 16, v{x+1}")
        a(f"v_and_b32 v{x+1}, v{vHi}, v{x+1}")

    for r in range(2):
        for k in range(0, 8, 2):
            a(f"v_pk_add_f32 v[{R[r]+k}:{R[r]+k+1}], v[{vD}:{vD+1}], s[{CF+k}:{CF+k+1}] op_sel:[{r},0] op_sel_hi:[{r},1] neg_lo:[0,1] neg_hi:[0,1]")
    allr = [R[r] + k for r in range(2) for k in range(8)]
    for x in allr[::2]:
        rnd(x)
    for x in allr:
        a(f"v_mul_f32 v{x}, v{x}, v{x}")
    for x in allr[::2]:
        rnd(x)
    for x in allr:
        a(f"v_mul_f32 v{x}, 0xc1200000, v{x}")
    for x in allr[::2]:
        rnd(x)
    for x in allr:
        a(f"v_mul_f32 v{x}, 0x3fb8aa3b, v{x}")
    for x in allr:
        a(f"v_exp_f32 v{x}, v{x}")
    a("s_nop 0")
    for r in range(2):
        for kk in range(4):
            a(f"v_cvt_pk_bf16_f32 v{RP[r]+kk}, v{R[r]+2*kk}, v{R[r]+2*kk+1}")

    cnt = [0]

    def wpair(base, kk, c):
        d = sT + (cnt[0] & 3)
        cnt[0] += 1
        op = "s_pack_ll_b32_b16" if c % 2 == 0 else "s_pack_hh_b32_b16"
        a(f"{op} s{d}, s{base + 4*kk + c//2}, s{base + 4*kk + 2 + c//2}")
        return d

    def dotmat(dst, src, base, nk):
        for kk in range(nk):
            for c in range(4):
                w = wpair(base, kk, c)
                for r in range(2):
                    acc = "0" if kk == 0 else f"v{dst[r]+c}"
                    a(f"v_dot2_f32_bf16 v{dst[r]+c}, v{src[r]+kk}, s{w}, {acc}")

    dotmat(H, RP, WR, 4)
    dotmat(G, RP, WSB, 4)
    for r in range(2):
        rnd(H[r])
        rnd(H[r] + 2)
    a(f"""
s_or_b32 s{sT}, s{FL}, s{FL+1}
s_or_b32 s{sT+1}, s{FL+2}, s{FL+3}
s_or_b32 s{sT}, s{sT}, s{sT+1}
v_mov_b32 v{vT}, s3
s_cmp_lg_u32 s{sT}, 0
s_cbranch_scc1 k3_slow
s_waitcnt vmcnt(1)
""")
    for r in range(2):
        for c in range(4):
            reg = 2 * r + c // 2
            hi = c % 2
            d = S[r] + c
            a(f"v_fma_mix_f32 v{d}, v{PL+reg}, 1.0, v{PL+4+reg} op_sel:[{hi},0,{hi}] op_sel_hi:[1,0,1]")
            a(f"v_fma_mix_f32 v{d}, v{PL+8+reg}, 1.0, v{d} op_sel:[{hi},0,0] op_sel_hi:[1,0,0]")
            a(f"v_fma_mix_f32 v{d}, v{PL+12+reg}, 1.0, v{d} op_sel:[{hi},0,0] op_sel_hi:[1,0,0]")
    for r in range(2):
        for c in range(4):
            a(f"v_mul_f32 v{S[r]+c}, v{vT}, v{S[r]+c}")
    a("k3_join:")
    st_()
    AG = (36, 40)
    for j in range(4):
        for cp in range(2):
            d = sT + 2 * ((j * 2 + cp) & 1)
            a(s_unpack(d, WD, j * 4 + cp * 2))
            a(s_unpack(d + 1, WD, j * 4 + cp * 2 + 1))
            for r in range(2):
                sp = S[r] + (j & ~1)
                o = j & 1
                dd = AG[r] + 2 * cp
                if j == 0:
                    a(f"v_pk_mul_f32 v[{dd}:{dd+1}], v[{sp}:{sp+1}], s[{d}:{d+1}] op_sel:[{o},0] op_sel_hi:[{o},1]")
                else:
                    a(f"v_pk_fma_f32 v[{dd}:{dd+1}], v[{sp}:{sp+1}], s[{d}:{d+1}], v[{dd}:{dd+1}] op_sel:[{o},0,0] op_sel_hi:[{o},1,1]")
    for r in range(2):
        for c in range(4):
            a(f"v_mul_f32 v{AG[r]+c}, v{AG[r]+c}, v{G[r]+c}")
    for r in range(2):
        for kk in range(2):
            a(f"v_cvt_pk_bf16_f32 v{RP[r]+kk}, v{AG[r]+2*kk}, v{AG[r]+2*kk+1}")
    dotmat(G, RP, WU, 2)
    a("s_waitcnt vmcnt(0)")
    for r in range(2):
        for cp in range(2):
            a(f"v_lshlrev_b32 v{S[r]+2*cp}, 16, v{vM+2*r+cp}")
            a(f"v_and_b32 v{S[r]+2*cp+1}, v{vHi}, v{vM+2*r+cp}")
    for r in range(2):
        rnd(G[r])
        rnd(G[r] + 2)
    for r in range(2):
        for c in range(4):
            a(f"v_mul_f32 v{G[r]+c}, v{G[r]+c}, v{H[r]+c}")
    for r in range(2):
        rnd(G[r])
        rnd(G[r] + 2)
    for r in range(2):
        for c in range(4):
            a(f"v_add_f32 v{G[r]+c}, v{G[r]+c}, v{S[r]+c}")
    for r in range(2):
        for cp in range(2):
            a(f"v_cvt_pk_bf16_f32 v{vM+2*r+cp}, v{G[r]+2*cp}, v{G[r]+2*cp+1}")
    a(f"""
buffer_store_dwordx4 v[{vM}:{vM+3}], v{vO16}, s[{S_O}:{S_O+3}], 0 offen
""")
    st_()
    st_.flush(61)
    a(f"""
k3_done:
s_endpgm
k3_slow:
""")
    srd_off(a, S_D, sWs, None, P32_OFF, 4 * E * 16)
    a(f"v_lshlrev_b32 v{vT+1}, 1, v{vO16}")
    for i in range(8):
        a(f"v_mov_b32 v{S[0]+i}, 0")
    a("s_waitcnt vmcnt(0)")
    for c in range(4):
        a(f"""
s_cmp_lg_u32 s{FL+c}, 0
s_cbranch_scc1 k3_s32_{c}
""")
        for r in range(2):
            for cc in range(4):
                reg = 2 * r + cc // 2
                a(f"v_fma_mix_f32 v{S[r]+cc}, v{PL+4*c+reg}, v{vT}, v{S[r]+cc} op_sel:[{cc%2},0,0] op_sel_hi:[1,0,0]")
        a(f"""
s_branch k3_sn_{c}
k3_s32_{c}:
buffer_load_dwordx4 v[36:39], v{vT+1}, s[{S_D}:{S_D+3}], 0 offen
buffer_load_dwordx4 v[40:43], v{vT+1}, s[{S_D}:{S_D+3}], 0 offen offset:16
s_waitcnt vmcnt(0)
""")
        for i in range(8):
            a(f"v_add_f32 v{S[0]+i}, v{S[0]+i}, v{36+i}")
        a(f"k3_sn_{c}:")
        a(f"v_add_u32 v{vT+1}, {E*16}, v{vT+1}")
    a("s_branch k3_join")
    return a.s


k2, k2v, k2lds = gen_k2()
out = HEADER
out += "; K1: 2-D fine binning of triplets (register-resident tile), K2: LDS gather + integer LDS accumulation + finalize\n"
out += f"; @launch kernel=k1_kernel grid=({NT+NMX},1,1) block=(1024,1,1) lds={LDS_ALL}\n"
out += f"; @launch kernel=k2_kernel grid=(256,1,1) block=(1024,1,1) lds={k2lds}\n"
if OPT['fuse'] == '0':
    out += "; @launch kernel=k3_kernel grid=(1600,1,1) block=(128,1,1) lds=0\n"
out += '.amdgcn_target "amdgcn-amd-amdhsa--gfx950"\n'
out += kernel_begin('k1_kernel') + gen_k1()
out += kernel_begin('k2_kernel') + k2
if OPT['fuse'] == '0':
    out += kernel_begin('k3_kernel') + gen_k3()
out += kernel_desc('k1_kernel', 128, 80) + kernel_desc('k2_kernel', k2v, 102)
if OPT['fuse'] == '0':
    out += kernel_desc('k3_kernel', 70, 102 if OPT['diag'] == '1' else 98)
open(sys.argv[1], 'w').write(out)
```

```python
import sys
sys.path.insert(0, 'dev')
from common import *

NT = 256
NMX = 0
TILE = 50000
RB = 6250
CB = 5000
NCB = 80
NPH = 20
F = 64 * NCB
TGB = 20120 * 16
TABS = (F + 4) * 4
CAPG = 6826
CAP8 = CAPG * 24
REC_OFF = 0
TAB_OFF = 0x5000000
MAX_OFF = 0x5510000
FLAG_OFF = 0x5511000
HF_OFF = 0x5514000
PART_OFF = 0x5600000
P32_OFF = 0x6400000
DIAG_OFF = 0xFC00000
LDS_ALL = 163840
assert NT * TGB <= TAB_OFF and TAB_OFF + NT * TABS <= MAX_OFF

OPT = dict(ld='nt', st='', k2ld='', pst='', pld='', diag='0', depth='3', ne='4', nm='1', abl='', rb='0', fuse='1', abl2='', clk='0', tid='1', wb='0', fine='0', fr='2', fn='12', gs='10', vf='0', pst2='0', ff='1', q0a='1', cp='1')
for a_ in sys.argv[2:]:
    k_, v_ = a_.split('=')
    OPT[k_] = v_.replace('+', ' ')

BFI = "bitop3:0xca"
ANDOR = "bitop3:0xea"


class A:
    def __init__(self):
        self.s = ""

    def __call__(self, txt):
        for l in txt.strip('\n').split('\n'):
            l = l.strip()
            if not l:
                continue
            self.s += ("" if l.endswith(':') else "    ") + l + "\n"


def srd_off(a, d, ptr, off_sgpr, off_imm, nbytes):
    if off_sgpr is not None:
        a(f"s_add_u32 s{d}, s{ptr}, s{off_sgpr}")
        a(f"s_addc_u32 s{d+1}, s{ptr+1}, 0")
        if off_imm:
            a(f"s_add_u32 s{d}, s{d}, {off_imm}")
            a(f"s_addc_u32 s{d+1}, s{d+1}, 0")
    else:
        a(f"s_add_u32 s{d}, s{ptr}, {off_imm}")
        a(f"s_addc_u32 s{d+1}, s{ptr+1}, 0")
    a(f"s_mov_b32 s{d+2}, {nbytes}")
    a(f"s_mov_b32 s{d+3}, 0x00020000")


class Stamper:
    def __init__(self, a, kidx, sbase, wsptr, vtmp, srd):
        self.a, self.k, self.sb, self.ws, self.v, self.srd = a, kidx, sbase, wsptr, vtmp, srd
        self.on = OPT['diag'] == '1'

    def start(self):
        if self.on:
            self.a(f"s_memrealtime s[{self.sb+2}:{self.sb+3}]")

    def init(self):
        if not self.on:
            return
        a, sb = self.a, self.sb
        a(f"s_mov_b64 s[{sb}:{sb+1}], exec")
        a(f"s_mov_b64 exec, -1")
        a(f"v_mov_b32 v{self.v}, 0")
        a(f"s_mov_b64 exec, s[{sb}:{sb+1}]")
        a(f"v_writelane_b32 v{self.v}, s{sb+2}, 0")
        a(f"s_mov_b32 s{sb+3}, 1")

    def __call__(self):
        if not self.on:
            return
        a, sb = self.a, self.sb
        a(f"s_memrealtime s[{sb}:{sb+1}]")
        a(f"s_mov_b32 s{sb+2}, m0")
        a(f"s_mov_b32 m0, s{sb+3}")
        a("s_waitcnt lgkmcnt(0)")
        a(f"v_writelane_b32 v{self.v}, s{sb}, m0")
        a(f"s_add_u32 s{sb+3}, s{sb+3}, 1")
        if OPT['clk'] == '1':
            a(f"s_memtime s[{sb}:{sb+1}]")
            a(f"s_add_u32 m0, s{sb+3}, 31")
            a("s_waitcnt lgkmcnt(0)")
            a(f"v_writelane_b32 v{self.v}, s{sb}, m0")
        a(f"s_mov_b32 m0, s{sb+2}")

    def flush(self, vt):
        if not self.on:
            return
        a, sb = self.a, self.sb
        a(f"s_lshl_b32 s{sb}, s2, 8")
        srd_off(a, self.srd, self.ws, sb, DIAG_OFF + self.k * 0x100000, 256)
        a(f"s_mov_b64 exec, -1")
        a(f"v_cmp_gt_u32 vcc, 64, v0")
        a(f"s_and_b64 exec, exec, vcc")
        a(f"v_lshlrev_b32 v{vt}, 2, v0")
        a(f"buffer_store_dword v{self.v}, v{vt}, s[{self.srd}:{self.srd+3}], 0 offen")
        a(f"s_mov_b64 exec, -1")


def scan(a, op, v, full=True):
    for sh in (1, 2, 4, 8):
        a(f"{op}_dpp v{v}, v{v}, v{v} row_shr:{sh} row_mask:0xf bank_mask:0xf")
        a("s_nop 1")
    if full:
        a(f"{op}_dpp v{v}, v{v}, v{v} row_bcast:15 row_mask:0xa bank_mask:0xf")
        a("s_nop 1")
        a(f"{op}_dpp v{v}, v{v}, v{v} row_bcast:31 row_mask:0xc bank_mask:0xf")
        a("s_nop 1")


def code_touch(a, sp, vt, end_label, tag):
    if OPT['cp'] != '1':
        return 0
    a(f"""
s_getpc_b64 s[{sp}:{sp+1}]
{tag}_pc:
v_lshlrev_b32 v{vt}, 6, v0
v_min_u32 v{vt}, {end_label}-{tag}_pc-4, v{vt}
v_mov_b32 v{vt+1}, s{sp+1}
v_add_co_u32 v{vt}, vcc, s{sp}, v{vt}
s_nop 1
v_addc_co_u32 v{vt+1}, vcc, 0, v{vt+1}, vcc
global_load_dword v{vt}, v[{vt}:{vt+1}], off
""")
    return 1


EXEC63 = "s_mov_b32 exec_lo, 0\ns_mov_b32 exec_hi, 0x80000000"


def gen_k1():
    a = A()
    ld, st = OPT['ld'], OPT['st']
    D = int(OPT['depth'])
    WT = 20480
    STG0 = 20736
    CAPG0 = (LDS_ALL - STG0) // 24
    AN = 18
    S_O, S_I, S_A, S_R, S_T, S_F = 4, 8, 12, 16, 20, 24
    P = 28
    sW, sMR, sMC, sNR, sNC, sG, sLo8, sT0, sT1, sCap8, sRem, sSo, sHi, sCGK, sCapG = range(40, 55)
    vC, vAng, vT16, vDma = 1, 2, 3, 4
    vFq = 5
    T0 = 6
    RX = 30
    vMq = 22
    sV = 62
    sMax = 64
    S_X = 68
    RQ = 32
    vA48 = 27
    vSt = 26

    def rec(slot):
        if slot >= 48:
            return RX + 2 * (slot - 48)
        q, k = divmod(slot, 4)
        return RQ + q * 8 + (0, 4, 2, 6)[k]

    st_ = Stamper(a, 0, 56, P + 10, vSt, S_O)
    st_.start()
    a(f"""
s_cmp_ge_u32 s2, {NT+NMX}
s_cbranch_scc1 k1_done
s_load_dwordx4 s[{P}:{P+3}], s[0:1], {KA['m']}
s_load_dwordx2 s[{P+4}:{P+5}], s[0:1], {KA['idx_out']}
s_load_dwordx2 s[{P+6}:{P+7}], s[0:1], {KA['angle']}
s_load_dwordx2 s[{P+8}:{P+9}], s[0:1], {KA['ang_freq']}
s_load_dwordx2 s[{P+10}:{P+11}], s[0:1], {KA['ws']}
v_lshrrev_b32 v{T0}, 6, v0
v_lshlrev_b32 v{vT16}, 4, v0
v_readfirstlane_b32 s{sW}, v{T0}
s_load_dwordx2 s[{S_X}:{S_X+1}], s[0:1], {KA['dist']}
v_mov_b32 v{T0+4}, 0
v_mov_b32 v{T0+5}, 0
v_mov_b32 v{T0+6}, 0
v_mov_b32 v{T0+7}, 0
v_lshlrev_b32 v{T0+1}, 2, v0
ds_write_b128 v{vT16}, v[{T0+4}:{T0+7}]
ds_write_b32 v{T0+1}, v{T0+4} offset:16384
v_mov_b32 v{T0+2}, {WT+64}
ds_write_b64 v{T0+2}, v[{T0+4}:{T0+5}]
v_mov_b32 v{T0+2}, 848
v_cmp_lt_u32 s[{sV}:{sV+1}], v0, v{T0+2}
v_mov_b32 v{vC}, 1
s_mov_b32 s{sMR}, 687195
s_mov_b32 s{sMC}, 858994
s_mov_b32 s{sNR}, {-RB}
s_mov_b32 s{sNC}, {-CB}
s_mov_b32 s{sCap8}, {CAP8}
s_mov_b32 s{sCGK}, {63*NPH*4}
s_mul_i32 s{sT0}, s2, {TILE*4}
s_mul_i32 s{sT1}, s2, {TILE*2}
s_waitcnt lgkmcnt(0)
""")
    srd_off(a, S_O, P + 4, sT0, 0, TILE * 4)
    srd_off(a, S_I, P + 2, sT0, 0, TILE * 4)
    srd_off(a, S_A, P + 6, sT1, 0, TILE * 2)

    vm = []

    def issue_pair(q):
        if q < 12:
            b = RQ + q * 8
            a(f"s_mov_b32 s{sT0}, {q*16384}")
            a(f"buffer_load_dwordx4 v[{b}:{b+3}], v{vT16}, s[{S_O}:{S_O+3}], s{sT0} offen {ld}")
            a(f"buffer_load_dwordx4 v[{b+4}:{b+7}], v{vT16}, s[{S_I}:{S_I+3}], s{sT0} offen {ld}")
            vm.extend([('O', q), ('I', q)])
        elif q == 12:
            a(f"""
v_lshrrev_b32 v{vA48}, 2, v{vT16}
v_add_u32 v{vA48}, {49152*4}, v{vA48}
buffer_load_dword v{RX}, v{vA48}, s[{S_O}:{S_O+3}], 0 offen {ld}
buffer_load_dword v{RX+1}, v{vA48}, s[{S_I}:{S_I+3}], 0 offen {ld}
v_lshrrev_b32 v{vA48}, 1, v{vA48}
buffer_load_ushort v{vA48}, v{vA48}, s[{S_A}:{S_A+3}], 0 offen {ld}
""")
            vm.extend([('O', 12), ('I', 12), ('A', 48)])

    def issue_ang(q):
        if q < 12:
            an = AN + 2 * (q % 4)
            a(f"s_mov_b32 s{sT1}, {q*8192}")
            a(f"buffer_load_dwordx2 v[{an}:{an+1}], v{vAng}, s[{S_A}:{S_A+3}], s{sT1} offen {ld}")
            vm.append(('D', q))

    def wait_for(key):
        n = len(vm) - 1 - vm.index(key)
        a(f"s_waitcnt vmcnt({n})")

    srd_off(a, S_F, P + 8, None, 0, 2)
    a(f"""
v_mov_b32 v{vFq}, 0
v_lshrrev_b32 v{vAng}, 1, v{vT16}
buffer_load_ushort v{vFq}, v{vFq}, s[{S_F}:{S_F+3}], 0 offen
""")
    vm.append(('F', 0))
    for q in range(D):
        issue_pair(q)
        if q < int(OPT['ne']):
            issue_ang(q)
    if code_touch(a, 60, 28, "k2_code_end", "k1ct"):
        vm.append(('C', 0))
    vMq = RQ + 88
    srd_off(a, S_T, P, None, 0, E * 8)
    a(f"""
s_mul_i32 s{sT0}, s2, {782*16}
v_add_u32 v{T0}, s{sT0}, v{vT16}
v_mov_b32 v{T0+2}, 782
v_cmp_lt_u32 s[{sMax}:{sMax+1}], v0, v{T0+2}
v_mov_b32 v{T0+2}, 0xffff0000
s_mul_i32 s{sT0}, s2, {25*128}
v_cndmask_b32 v{T0}, v{T0+2}, v{T0}, s[{sMax}:{sMax+1}]
buffer_load_dwordx4 v[{vMq}:{vMq+3}], v{T0}, s[{S_T}:{S_T+3}], 0 offen
v_min_u32 v{T0+1}, 24, v0
v_lshlrev_b32 v{T0+1}, 7, v{T0+1}
v_add_u32 v{T0+1}, s{sT0}, v{T0+1}
s_mov_b32 s{S_X+2}, {E*2}
s_mov_b32 s{S_X+3}, 0x00020000
buffer_load_dword v29, v{T0+1}, s[{S_X}:{S_X+3}], 0 offen
""")
    vm.extend([('M', 0), ('X', 0)])
    a(f"""
s_mov_b32 s{sHi}, 0xffff0000
s_mul_i32 s{sT0}, s2, {TGB}
""")
    srd_off(a, S_R, P + 10, sT0, REC_OFF, TGB)
    a(f"s_mul_i32 s{sT0}, s2, {TABS}")
    srd_off(a, S_T, P + 10, sT0, TAB_OFF, TABS)
    st_.init()
    a("s_barrier")
    st_()
    def stats():
        wait_for(('M', 0))
        for k in range(4):
            a(f"v_and_b32 v{vMq+k}, 0x7fff7fff, v{vMq+k}")
        a(f"""
v_pk_max_u16 v{T0}, v{vMq}, v{vMq+1}
v_pk_max_u16 v{T0+1}, v{vMq+2}, v{vMq+3}
v_pk_max_u16 v{T0}, v{T0}, v{T0+1}
v_lshrrev_b32 v{T0+1}, 16, v{T0}
v_and_b32 v{T0}, 0xffff, v{T0}
v_max_u32 v{T0}, v{T0}, v{T0+1}
v_mov_b32 v{T0+1}, 0
""")
        for k in range(4):
            a(f"v_lshlrev_b32 v{T0+2}, 16, v{vMq+k}")
            a(f"v_and_b32 v{T0+3}, 0xffff0000, v{vMq+k}")
            a(f"v_add_f32 v{T0+1}, v{T0+1}, v{T0+2}")
            a(f"v_add_f32 v{T0+1}, v{T0+1}, v{T0+3}")
        a(f"v_mov_b32 v{T0+2}, {WT+64}")
        scan(a, "v_max_u32", T0)
        scan(a, "v_add_f32", T0 + 1)
        a(f"""
{EXEC63}
ds_max_u32 v{T0+2}, v{T0}
ds_add_f32 v{T0+2}, v{T0+1} offset:4
s_mov_b64 exec, -1
""")

    t1, t2, tR1, tR3 = T0, T0 + 1, T0 + 2, T0 + 3
    tb = T0 + 4

    def binning(ro, ri, dst_rl, tbk, masked=False):
        a(f"""
v_mul_hi_u32_u24 v{t1}, s{sMR}, v{ro}
v_mul_hi_u32_u24 v{t2}, s{sMC}, v{ri}
v_mad_i32_i24 v{dst_rl}, v{t1}, s{sNR}, v{ro}
v_mul_u32_u24 v{t1}, {NPH*4}, v{t1}
v_mad_i32_i24 v{ri}, v{t2}, s{sNC}, v{ri}
v_lshl_add_u32 v{tbk}, v{t2}, 2, v{t1}
v_mul_u32_u24 v{t2}, 205, v{t2}
v_lshrrev_b32 v{t2}, 12, v{t2}
v_mad_u32_u24 v{tbk}, v{t2}, s{sCGK}, v{tbk}
""")
        if masked:
            a(f"s_mov_b64 exec, s[{sV}:{sV+1}]")
        a(f"ds_add_u32 v{tbk}, v{vC}")
        if masked:
            a("s_mov_b64 exec, -1")

    def packpair(o0, o1, i0, i1, tR, b0, b1):
        a(f"""
v_lshrrev_b32 v{t1}, 10, v{i0}
v_lshrrev_b32 v{t2}, 10, v{i1}
v_lshl_or_b32 v{o0}, v{o0}, 3, v{t1}
v_lshl_or_b32 v{o1}, v{i0}, 22, v{b0}
v_lshl_or_b32 v{i0}, v{tR}, 3, v{t2}
v_lshl_or_b32 v{i1}, v{i1}, 22, v{b1}
""")

    def cospair(src, w_lo, w_hi, xx, one):
        a(f"""
v_lshlrev_b32 v{xx}, 16, v{src}
v_and_b32 v{xx+1}, 0xffff0000, v{src}
""")
        if not one:
            a(f"""
v_mul_f32 v{xx}, v{vFq}, v{xx}
v_mul_f32 v{xx+1}, v{vFq}, v{xx+1}
v_cvt_pk_bf16_f32 v{xx+1}, v{xx}, v{xx+1}
v_lshlrev_b32 v{xx}, 16, v{xx+1}
v_and_b32 v{xx+1}, 0xffff0000, v{xx+1}
""")
        a(f"""
v_mul_f32 v{xx}, 0.15915494, v{xx}
v_mul_f32 v{xx+1}, 0.15915494, v{xx+1}
v_fract_f32 v{xx}, v{xx}
v_fract_f32 v{xx+1}, v{xx+1}
v_cos_f32 v{xx}, v{xx}
v_cos_f32 v{xx+1}, v{xx+1}
s_nop 0
v_cvt_pk_bf16_f32 v{xx}, v{xx}, v{xx+1}
v_lshl_or_b32 v{w_lo}, v{xx}, 16, v{w_lo}
v_and_or_b32 v{w_hi}, v{xx}, s{sHi}, v{w_hi}
""")

    NE = int(OPT['ne'])
    for q in range(13):
        if q == D:
            stats()
        wait_for(('I', q))
        issue_pair(q + D)
        if q + D < NE:
            issue_ang(q + D)
        if q < 12:
            r = RQ + q * 8
            for k in range(4):
                binning(r + k, r + 4 + k, r + k if k % 2 == 0 else (tR1 if k == 1 else tR3), tb + k)
            packpair(r, r + 1, r + 4, r + 5, tR1, tb, tb + 1)
            packpair(r + 2, r + 3, r + 6, r + 7, tR3, tb + 2, tb + 3)
            if q < NE:
                wait_for(('D', q))
                if q == 0:
                    a(f"v_lshlrev_b32 v{vFq}, 16, v{vFq}")
                an = AN + 2 * (q % 4)
                cospair(an, rec(q * 4), rec(q * 4 + 1), T0 + 8, False)
                cospair(an + 1, rec(q * 4 + 2), rec(q * 4 + 3), T0 + 10, False)
        else:
            binning(RX, RX + 1, RX, tb, True)
            a(f"""
v_lshrrev_b32 v{t1}, 10, v{RX+1}
v_lshl_or_b32 v{RX}, v{RX}, 3, v{t1}
v_lshl_or_b32 v{RX+1}, v{RX+1}, 22, v{tb}
""")
    for q in range(NE, NE + 4):
        issue_ang(q)
    a("""
s_waitcnt lgkmcnt(0)
s_barrier
""")
    st_()
    c = T0
    g = T0 + 6
    tm = T0 + 11
    vA, vS, vI = vAng, vDma, vC
    a(f"v_mul_u32_u24 v{vA}, 20, v0")
    for i in range(5):
        a(f"ds_read_b32 v{c+i}, v{vA} offset:{4*i}")
    a(f"s_mov_b32 s{sT0}, 43691")
    if NE == 0:
        a(f"v_lshlrev_b32 v{vFq}, 16, v{vFq}")
    a("s_waitcnt lgkmcnt(0)")
    for i in range(5):
        a(f"v_add_u32 v{g+i}, 2, v{c+i}")
        a(f"v_mul_u32_u24 v{g+i}, s{sT0}, v{g+i}")
        a(f"v_lshrrev_b32 v{g+i}, 17, v{g+i}")
    a(f"""
v_add3_u32 v{vS}, v{g}, v{g+1}, v{g+2}
v_add3_u32 v{vS}, v{vS}, v{g+3}, v{g+4}
v_mov_b32 v{vI}, v{vS}
s_lshl_b32 s{sT0}, s{sW}, 2
s_add_u32 s{sT0}, s{sT0}, {WT}
""")
    scan(a, "v_add_u32", vI)
    a(f"""
v_mov_b32 v{tm}, s{sT0}
{EXEC63}
ds_write_b32 v{tm}, v{vI}
s_mov_b64 exec, -1
""")
    for i in range(5):
        a(f"v_mul_u32_u24 v{c+5}, 3, v{g+i}")
        a(f"v_sub_u32 v{c+5}, v{c+5}, v{c+i}")
        a(f"v_min_u32 v{c+i}, 0x1fff, v{c+i}")
        a(f"v_lshl_or_b32 v{c+i}, v{c+i}, 19, v{c+5}")
    a(f"""
v_sub_u32 v{vI}, v{vI}, v{vS}
v_and_b32 v{tm}, 15, v0
v_lshlrev_b32 v{tm}, 2, v{tm}
v_readfirstlane_b32 s{sLo8}, v{vFq}
s_waitcnt lgkmcnt(0)
s_barrier
ds_read_b32 v{tm}, v{tm} offset:{WT}
v_mov_b32 v28, {WT+64}
ds_read_b64 v[28:29], v28
s_waitcnt lgkmcnt(0)
v_mov_b32 v{vS}, v{tm}
v_and_b32 v29, 0xffff0000, v29
v_or_b32 v28, v28, v29
""")
    scan(a, "v_add_u32", tm, full=False)
    a(f"""
v_readlane_b32 s{sG}, v{tm}, 15
v_sub_u32 v{vS}, v{tm}, v{vS}
s_nop 0
v_readlane_b32 s{sT0}, v{vS}, s{sW}
s_nop 1
v_add_u32 v{vI}, s{sT0}, v{vI}
""")
    for i in range(5):
        t = (tm, vS)[i & 1]
        a(f"v_mul_u32_u24 v{t}, 24, v{vI}")
        a(f"v_lshl_or_b32 v{c+i}, v{vI}, 4, v{c+i}")
        a(f"ds_write_b32 v{vA}, v{t} offset:{4*i}")
        a(f"v_add_u32 v{vI}, v{vI}, v{g+i}")
    vM22 = vDma
    a(f"""
v_lshlrev_b32 v{c+5}, 4, v{vI}
buffer_store_dwordx4 v[{c}:{c+3}], v{vA}, s[{S_T}:{S_T+3}], 0 offen
buffer_store_dword v{c+4}, v{vA}, s[{S_T}:{S_T+3}], 0 offen offset:16
v_mov_b32 v{tm}, 1023
v_cmp_eq_u32 s[{P}:{P+1}], v0, v{tm}
v_mov_b32 v{vC}, 8
v_mov_b32 v{tm}, 0xffff0000
v_cndmask_b32 v{vA}, v{tm}, v{vA}, s[{P}:{P+1}]
buffer_store_dword v{c+5}, v{vA}, s[{S_T}:{S_T+3}], 0 offen offset:20
v_mov_b32 v{vM22}, 0x3fffff
v_lshrrev_b32 v{vAng}, 1, v{vT16}
s_mov_b32 s{sRem}, {CAPG0*24}
s_min_u32 s{sG}, s{sG}, 20080
v_readfirstlane_b32 s{sMax}, v28
s_waitcnt lgkmcnt(0)
s_barrier
""")
    vm.extend([('S', 0), ('S', 1), ('S', 2)])
    st_()
    pt = (T0, T0 + 4)
    x = T0 + 8

    def slots(q):
        return range(4 * q, 4 * q + (4 if q < 12 else 1))

    def issue(q, s):
        for k, sl in enumerate(slots(q)):
            a(f"v_and_b32 v{pt[s]+k}, v{vM22}, v{rec(sl)+1}")
            if sl == 48:
                a(f"v_cndmask_b32 v{pt[s]+k}, v{vM22}, v{pt[s]+k}, s[{sV}:{sV+1}]")
                a(f"s_mov_b64 exec, s[{sV}:{sV+1}]")
            a(f"ds_add_rtn_u32 v{pt[s]+k}, v{pt[s]+k}, v{vC}")
            if sl == 48:
                a("s_mov_b64 exec, -1")

    def consume(q, s, pending, one):
        if q < NE:
            pass
        elif q < 12:
            an = AN + 2 * (q % 4)
            wait_for(('D', q))
            cospair(an, rec(q * 4), rec(q * 4 + 1), x, one)
            cospair(an + 1, rec(q * 4 + 2), rec(q * 4 + 3), x + 2, one)
            issue_ang(q + 4)
        else:
            wait_for(('A', 48))
            cospair(vA48, rec(48), 29, x, one)
        a(f"s_waitcnt lgkmcnt({pending})")
        for k, sl in enumerate(slots(q)):
            w = rec(sl)
            a(f"v_bitop3_b32 v{w+1}, v{vM22}, v{pt[s]+k}, v{w+1} {BFI}")
        for k, sl in enumerate(slots(q)):
            w = rec(sl)
            a(f"""
v_cmpx_gt_u32 vcc, s{sRem}, v{pt[s]+k}
ds_write_b64 v{pt[s]+k}, v[{w}:{w+1}] offset:{STG0}
s_mov_b64 exec, -1
""")

    def merged(one):
        late = list(range(NE, 12))
        order = [12] + late[:4] + list(range(NE)) + late[4:]
        issue(order[0], 0)
        for n, q in enumerate(order):
            if n + 1 < len(order):
                issue(order[n + 1], (n + 1) & 1)
                consume(q, n & 1, 4, one)
            else:
                consume(q, n & 1, 0, one)

    if OPT['ff'] == '1':
        a(f"s_cmp_lg_u32 s{sLo8}, 0x3f800000")
        a("s_cbranch_scc1 k1_gen")
        save = list(vm)
        merged(True)
        a("k1_mj:")
        done = a.s
        a.s = ""
        vm[:] = save
        a("k1_gen:")
        merged(False)
        a("s_branch k1_mj")
        gen_code = a.s
        a.s = done
    else:
        merged(False)
        gen_code = ""
    vLo, vT24, vMx, vB = vC, vAng, vDma, vFq
    a(f"""
v_mov_b32 v{vLo}, {CAPG0*24}
v_mul_u32_u24 v{vT24}, 24, v0
v_add_u32 v{vT24}, {STG0}, v{vT24}
v_mov_b32 v{vMx}, 0xffc00000
s_mov_b32 s{sSo}, 0
s_mov_b32 s{sCapG}, {CAPG0}
k1_co:
s_min_u32 s{sRem}, s{sG}, s{sCapG}
s_waitcnt lgkmcnt(0)
s_barrier
""")
    st_()
    qb = T0

    def rd(q3, addr, o):
        for n2, r2 in enumerate(q3):
            a(f"ds_read_b64 v[{r2}:{r2+1}], v{addr} offset:{o+8*n2}")

    def pk(q, r4):
        a(f"""
v_lshrrev_b32 v{r4+1}, 10, v{r4+1}
v_bitop3_b32 v{r4+1}, v{vMx}, v{q+3}, v{r4+1} {BFI}
v_mov_b32 v{q+3}, v{r4}
v_lshrrev_b32 v{r4+1}, 10, v{r4+1}
v_bitop3_b32 v{q+1}, v{vMx}, v{q+1}, v{r4+1} {BFI}
""")

    def stq(q, it):
        a(f"""
s_sub_i32 s{sT0}, s{sRem}, {it*1024}
s_add_u32 s{sT1}, s{sSo}, {it*16384}
v_cmpx_gt_i32 vcc, s{sT0}, v0
buffer_store_dwordx4 v[{q}:{q+3}], v{vT16}, s[{S_R}:{S_R+3}], s{sT1} offen {st}
s_mov_b64 exec, -1
""")

    Q = (qb, qb + 6, qb + 12)
    Q6 = qb + 18 if not st_.on else None
    for n2 in range(3):
        rd((Q[n2], Q[n2] + 2, Q[n2] + 4), vT24, n2 * 24576)
    a(f"v_add_u32 v{vB}, {3*24576}, v{vT24}")
    for n2 in range(3):
        a(f"s_waitcnt lgkmcnt({3*(2-n2)})")
        pk(Q[n2], Q[n2] + 4)
        stq(Q[n2], n2)
    if Q6 is None:
        a(f"v_add_u32 v{vA48}, {6*24576}, v{vT24}")
        a(f"v_min_u32 v{vA48}, {LDS_ALL-24}, v{vA48}")
        rd((Q[0], Q[0] + 2, Q[0] + 4), vA48, 0)
        a("s_waitcnt lgkmcnt(0)")
        pk(Q[0], Q[0] + 4)
        stq(Q[0], 6)
    rd((Q[0], Q[0] + 2, Q[0] + 4), vB, 0)
    rd((Q[1], Q[1] + 2, Q[1] + 4), vB, 24576)
    a(f"v_min_u32 v{vB}, {LDS_ALL-24-49152}, v{vB}")
    rd((Q[2], Q[2] + 2, Q[2] + 4), vB, 49152)
    a(f"v_add_u32 v{vB}, {6*24576}, v{vT24}")
    a(f"v_min_u32 v{vB}, {LDS_ALL-24}, v{vB}")
    a("s_waitcnt lgkmcnt(6)")
    pk(Q[0], Q[0] + 4)
    deferred = [(Q[0], 3), (Q[1], 4), (Q[2], 5)]
    if Q6 is not None:
        rd((Q6, Q6 + 2, Q[0] + 4), vB, 0)
        a("s_waitcnt lgkmcnt(6)")
        pk(Q[1], Q[1] + 4)
        a("s_waitcnt lgkmcnt(3)")
        pk(Q[2], Q[2] + 4)
        a("s_waitcnt lgkmcnt(0)")
        pk(Q6, Q[0] + 4)
        deferred.append((Q6, 6))
    else:
        a("s_waitcnt lgkmcnt(3)")
        pk(Q[1], Q[1] + 4)
        a("s_waitcnt lgkmcnt(0)")
        pk(Q[2], Q[2] + 4)
    a(f"""
s_sub_u32 s{sG}, s{sG}, s{sRem}
s_cmp_eq_u32 s{sG}, 0
s_cbranch_scc1 k1_fin
s_barrier
""")
    st_()
    tmps = (Q[0] + 4, Q[0] + 5, Q[1] + 4, Q[1] + 5)
    for sl in range(49):
        w = rec(sl)
        t = tmps[sl & 3]
        a(f"""
v_sub_u32 v{t}, v{w+1}, v{vLo}
v_and_b32 v{t}, 0x3fffff, v{t}
v_cmpx_gt_u32 vcc, s{sCap8}, v{t}
ds_write_b64 v{t}, v[{w}:{w+1}]
s_mov_b64 exec, -1
""")
        if sl % 10 == 4 and sl // 10 < len(deferred):
            stq(*deferred[sl // 10])
    a(f"""
v_add_u32 v{vLo}, {CAP8}, v{vLo}
v_mul_u32_u24 v{vT24}, 24, v0
s_lshl_b32 s{sT0}, s{sRem}, 4
s_add_u32 s{sSo}, s{sSo}, s{sT0}
s_mov_b32 s{sCapG}, {CAPG}
s_branch k1_co
k1_fin:
""")
    for d in deferred:
        stq(*d)
    st_()
    if st_.on:
        a("s_waitcnt vmcnt(0)")
    st_()
    st_.flush(T0)
    a(f"""
s_cmp_lg_u32 s{sW}, 0
s_cbranch_scc1 k1_done
s_load_dwordx2 s[20:21], s[0:1], {KA['centers']}
s_load_dwordx8 s[4:11], s[0:1], {KA['w_rbf']}
""")
    srd_off(a, S_X, P + 10, None, MAX_OFF, HF_OFF - MAX_OFF + 8192)
    a(f"""
s_lshl_b32 s{sT0}, s2, 5
s_add_u32 s{sT0}, s{sT0}, {HF_OFF - MAX_OFF}
s_lshl_b32 s{sT1}, s2, 2
v_lshlrev_b32 v28, 2, v0
v_add_u32 v28, s{sT0}, v28
v_mov_b32 v29, 0
v_writelane_b32 v28, s{sT1}, 8
v_writelane_b32 v29, s{sMax}, 8
s_mov_b64 exec, 0x1ff
buffer_store_dword v29, v28, s[{S_X}:{S_X+3}], 0 offen
s_waitcnt lgkmcnt(0)
s_load_dword s22, s[20:21], 0
s_load_dword s23, s[4:5], 0
s_load_dword s24, s[6:7], 0
s_load_dword s25, s[8:9], 0
s_load_dword s26, s[10:11], 0
k1_done:
s_endpgm
""")
    a.s += gen_code
    return a.s


def gen_k2():
    a = A()
    o = A()
    ld, pst = OPT['k2ld'], OPT['pst']
    abl = OPT['abl']
    ACC = 40960
    ACCB = 50000
    NW = ACC + 2 * ACCB
    S_R, S_T, S_M, S_P = 4, 8, 12, 16
    P = 20
    MXS = 24
    sW, sRb, sCg, sJ, sMo, sMode, sPf, sT0, sT1, sT2, sCarry, sTot, sXw, sCo = range(32, 46)
    sNK = 46
    sA, sB, sC, sD = 48, 50, 52, 54
    MK = (56, 62)
    MN = (68, 74)
    MX = (80, 86)
    TOT = (92, 93)
    sRet = P
    MS = MXS
    vL16, vBase, vT16, vLW, vMagic, vMHi, vSt = 1, 2, 3, 4, 5, 6, 7
    HR = 8
    vC0 = 10
    vX0 = 12
    MP = 14
    GA = 24
    PT = 30
    HQ = 34
    XT = 42
    RS = 46
    GX = 50
    FT = 56
    EN = 64
    RC = (88, 92)
    RXW = (96, 100)
    TH = 104
    MP2 = 108
    MPS = (MP, MP2)
    AD = 118
    vO16, vD, vM = 121, 122, 124
    NVG = 128
    sTN = 100
    sWk = 101
    sMsc = 3
    TID = OPT['tid'] == '1'

    st_ = Stamper(a, 1, 96, P + 2, vSt, S_M if OPT['fuse'] == '1' else S_R)
    st_.start()
    a(f"""
s_cmp_ge_u32 s2, 256
s_cbranch_scc1 k2_done
s_load_dwordx2 s[{P}:{P+1}], s[0:1], {KA['m']}
s_load_dwordx2 s[{P+2}:{P+3}], s[0:1], {KA['ws']}
s_load_dwordx2 s[{S_P}:{S_P+1}], s[0:1], {KA['dist']}
s_load_dwordx2 s[{MN[0]}:{MN[0]+1}], s[0:1], {KA['centers']}
s_load_dwordx4 s[{MX[0]}:{MX[0]+3}], s[0:1], {KA['w_rbf']}
s_load_dwordx4 s[{MX[0]+4}:{MX[0]+7}], s[0:1], {KA['w_down']}
""")
    code_touch(a, sA, RS, "k2_code_end", "k2ct")
    a(f"""
v_lshrrev_b32 v{FT}, 6, v0
v_and_b32 v{FT+1}, 63, v0
v_readfirstlane_b32 s{sW}, v{FT}
v_lshlrev_b32 v{vT16}, 4, v0
v_lshlrev_b32 v{vL16}, 4, v{FT+1}
s_and_b32 s{sT0}, s2, 7
s_lshr_b32 s{sCg}, s{sT0}, 1
s_lshr_b32 s{sRb}, s2, 3
s_and_b32 s{sT0}, s2, 1
s_lshl_b32 s{sT0}, s{sT0}, 5
s_add_u32 s{sRb}, s{sRb}, s{sT0}
s_lshl_b32 s{sCo}, s{sCg}, 6
s_add_u32 s{sCo}, s{sCo}, s{sRb}
v_lshrrev_b32 v{vLW}, 1, v{vT16}
v_add_u32 v{vLW}, 32768, v{vLW}
v_min_u32 v{vLW}, {CB*8-8}, v{vLW}
s_mul_i32 s{sMo}, s{sCg}, {NPH*CB*8}
s_mov_b32 s{sT2}, 0xffff0000
s_mov_b32 s{sT1}, {TGB}
v_mov_b32 v{vMHi}, 0xffff0000
s_cmp_lt_u32 s{sW}, 4
s_cbranch_scc1 k2_rl0
v_add_u32 v{FT+4}, -256, v0
v_mul_u32_u24 v{FT+2}, 0xaaab, v{FT+4}
v_lshrrev_b32 v{FT+2}, 17, v{FT+2}
v_mul_u32_u24 v{FT+3}, 3, v{FT+2}
v_sub_u32 v{FT+3}, v{FT+4}, v{FT+3}
s_branch k2_rl1
k2_rl0:
v_mov_b32 v{FT+2}, v0
v_mov_b32 v{FT+3}, 3
k2_rl1:
v_mul_u32_u24 v{FT}, 96, v{FT+2}
v_add_u32 v{FT}, {ACC}, v{FT}
s_mul_i32 s{sT0}, s{sCo}, {NPH*4}
s_mov_b32 s{sT2}, 43691
v_add_u32 v{GA+1}, 1024, v0
v_mul_u32_u24 v{GA+2}, s{sT2}, v0
v_mul_u32_u24 v{GA+3}, s{sT2}, v{GA+1}
v_lshrrev_b32 v{GA+2}, 18, v{GA+2}
v_lshrrev_b32 v{GA+3}, 18, v{GA+3}
v_mul_u32_u24 v{GA+4}, {TABS-96}, v{GA+2}
v_mul_u32_u24 v{GA+5}, {TABS-96}, v{GA+3}
v_add3_u32 v{GA}, v{GA+4}, v{vT16}, s{sT0}
v_add3_u32 v{GA+1}, v{GA+5}, v{vT16}, s{sT0}
v_add_u32 v{GA+1}, 16384, v{GA+1}
v_mov_b32 v{GA+2}, {256*6-1024}
v_cmp_lt_u32 s[{sC}:{sC+1}], v0, v{GA+2}
v_mul_lo_u32 v{vBase}, v{FT+2}, s{sT1}
v_lshl_add_u32 v{vBase}, v{FT+3}, 4, v{vBase}
v_mul_u32_u24 v{TH}, 3, v{FT+3}
v_add_u32 v{TH}, 1, v{TH}
v_lshlrev_b32 v{TH}, 19, v{TH}
v_add_u32 v{TH+1}, 0x80000, v{TH}
v_add_u32 v{TH+2}, 0x100000, v{TH}
s_waitcnt lgkmcnt(0)
""")
    srd_off(a, S_R, P + 2, None, REC_OFF, NT * TGB)
    srd_off(a, S_T, P + 2, None, TAB_OFF, NT * TABS)
    srd_off(a, S_M, P, None, 0, E * 8)

    def m_load(MP=MP, a=a):
        if TID:
            for p in 'bca':
                m_piece(MP, p)
            return
        if 'm' in abl:
            for i in range(3):
                a(f"buffer_load_dword v{MP+i}, v{vL16}, s[{S_M}:{S_M+3}], 0 offen")
            return
        a(f"""
s_add_u32 s{sT0}, s{sMo}, 16384
buffer_load_dwordx4 v[{MP}:{MP+3}], v{vT16}, s[{S_M}:{S_M+3}], s{sMo} offen
buffer_load_dwordx4 v[{MP+4}:{MP+7}], v{vT16}, s[{S_M}:{S_M+3}], s{sT0} offen
buffer_load_dwordx2 v[{MP+8}:{MP+9}], v{vLW}, s[{S_M}:{S_M+3}], s{sMo} offen
s_add_u32 s{sMo}, s{sMo}, {CB*8}
s_min_u32 s{sMo}, s{sMo}, {E*8 - CB*8}
""")

    def m_piece(MP, p, a=a):
        if TID:
            for i in {'b': (0, 1, 2, 3), 'c': (4, 5), 'a': (6, 7, 8, 9)}[p]:
                a(f"buffer_load_dword v{MP+i}, v{vLW}, s[{S_M}:{S_M+3}], 0 offen offset:{256*i}")
            if p == 'a':
                a(f"v_add_u32 v{vLW}, {CB*8}, v{vLW}")
            return
        if p == 'b':
            a(f"s_add_u32 s{sT0}, s{sMo}, 16384")
            a(f"buffer_load_dwordx4 v[{MP+4}:{MP+7}], v{vT16}, s[{S_M}:{S_M+3}], s{sT0} offen")
        elif p == 'c':
            a(f"buffer_load_dwordx2 v[{MP+8}:{MP+9}], v{vLW}, s[{S_M}:{S_M+3}], s{sMo} offen")
        else:
            a(f"""
buffer_load_dwordx4 v[{MP}:{MP+3}], v{vT16}, s[{S_M}:{S_M+3}], s{sMo} offen
s_add_u32 s{sMo}, s{sMo}, {CB*8}
s_min_u32 s{sMo}, s{sMo}, {E*8 - CB*8}
""")

    def m_write(MP=MP):
        if TID:
            a(f"s_mov_b32 m0, s{sWk}")
            a("s_nop 0")
            for i in range(10):
                a(f"ds_write_addtid_b32 v{MP+i} offset:{256*i}")
            return
        if 'w' in abl:
            return
        a(f"""
ds_write_b128 v{vT16}, v[{MP}:{MP+3}]
ds_write_b128 v{vT16}, v[{MP+4}:{MP+7}] offset:16384
ds_write_b64 v{vLW}, v[{MP+8}:{MP+9}]
""")

    def batch(bank):
        for i in range(4):
            a(f"buffer_load_dwordx4 v[{bank+4*i}:{bank+4*i+3}], v{vL16 if 'r' in abl else vBase}, s[{S_R}:{S_R+3}], 0 offen offset:{16*i} {ld}")
        a(f"v_add_u32 v{vBase}, 64, v{vBase}")

    def common_init():
        a(f"""
s_mov_b64 s[{MK[1]+2}:{MK[1]+3}], 0
s_mov_b64 s[{MK[1]+4}:{MK[1]+5}], 0
v_mov_b32 v{HR}, {ACC}
v_mov_b32 v{HR+1}, {ACC}
v_mov_b32 v{vC0}, {ACC}
s_mov_b32 s{sJ}, 0
""")
        st_.init()

    def zero_acc():
        z = PT
        a(f"""
v_mov_b32 v{z}, 0
v_mov_b32 v{z+1}, 0
v_mov_b32 v{z+2}, 0
v_mov_b32 v{z+3}, 0
v_add_u32 v{FT+4}, {ACC}, v{vT16}
v_add_u32 v{FT+5}, {ACC+65536}, v{vT16}
ds_write_b128 v{FT+4}, v[{z}:{z+3}] offset:32768
ds_write_b128 v{FT+4}, v[{z}:{z+3}] offset:49152
ds_write_b128 v{FT+5}, v[{z}:{z+3}]
ds_write_b128 v{FT+5}, v[{z}:{z+3}] offset:16384
v_cmp_gt_u32 vcc, {6250-6144}, v0
s_and_saveexec_b64 s[{sB}:{sB+1}], vcc
ds_write_b128 v{FT+5}, v[{z}:{z+3}] offset:32768
s_mov_b64 exec, s[{sB}:{sB+1}]
""")

    def zero_acc2():
        z = PT
        a(f"""
v_add_u32 v{XT}, {ACC}, v{vT16}
ds_write_b128 v{XT}, v[{z}:{z+3}]
ds_write_b128 v{XT}, v[{z}:{z+3}] offset:16384
""")

    AK = (0, 2, 3)

    def decode(rc, t, a=a):
        a(f"""
v_alignbit_b32 v{t}, v{rc}, v{rc+1}, 19
v_lshlrev_b32 v{t+1}, 10, v{rc+1}
v_and_b32 v{t}, 0xfff8, v{t}
v_lshlrev_b32 v{t+2}, 20, v{rc+1}
v_alignbit_b32 v{t+1}, v{rc+2}, v{t+1}, 19
v_alignbit_b32 v{t+2}, v{rc+3}, v{t+2}, 19
v_and_b32 v{t+1}, 0xfff8, v{t+1}
v_and_b32 v{t+2}, 0xfff8, v{t+2}
""")

    def gissue(mk, t, ga, a=a, g2=None):
        g2 = ga + 4 if g2 is None else g2
        a(f"""
s_mov_b64 exec, s[{mk}:{mk+1}]
ds_read_b64 v[{ga}:{ga+1}], v{t}
s_mov_b64 exec, s[{mk+2}:{mk+3}]
ds_read_b64 v[{ga+2}:{ga+3}], v{t+1}
s_mov_b64 exec, s[{mk+4}:{mk+5}]
ds_read_b64 v[{g2}:{g2+1}], v{t+2}
""")

    def gathers(mk, rc, ga, a=a):
        decode(rc, PT, a)
        gissue(mk, PT, ga, a)

    def qcalc(t, g, ak, row, a=a):
        c = row
        a(f"""
v_and_b32 v{c}, v{vMHi}, v{ak}
v_lshlrev_b32 v{t}, 16, v{g}
v_and_b32 v{t+1}, v{vMHi}, v{g}
v_lshlrev_b32 v{t+2}, 16, v{g+1}
v_and_b32 v{t+3}, v{vMHi}, v{g+1}
v_fma_f32 v{t}, v{t}, v{c}, v{vMagic}
v_fma_f32 v{t+1}, v{t+1}, v{c}, v{vMagic}
v_fma_f32 v{t+2}, v{t+2}, v{c}, v{vMagic}
v_fma_f32 v{t+3}, v{t+3}, v{c}, v{vMagic}
v_and_b32 v{row}, 0xfff8, v{ak}
v_lshl_add_u64 v[{t}:{t+1}], v[{t}:{t+1}], 0, s[{sNK}:{sNK+1}]
v_add_u32 v{row}, {ACC}, v{row}
v_lshl_add_u64 v[{t+2}:{t+3}], v[{t+2}:{t+3}], 0, s[{sNK}:{sNK+1}]
""")

    def adds(mkp, row, t, a=a):
        a(f"""
s_mov_b64 exec, {"1" if 'a' in abl else "s[%d:%d]" % (mkp, mkp+1)}
ds_add_u64 v{row}, v[{t}:{t+1}]
ds_add_u64 v{row}, v[{t+2}:{t+3}] offset:{ACCB}
""")

    def held(h, g2, a2):
        qcalc(HQ + 4, g2, a2, HR + 1)
        adds(MK[h] + 4, HR + 1, HQ + 4)
        a("s_mov_b64 exec, -1")

    def f32_one(mkp, g, ak, a):
        t = XT
        a(f"""
v_and_b32 v{vX0}, v{vMHi}, v{ak}
v_and_b32 v{vX0+1}, 0xfff8, v{ak}
v_add_u32 v{vX0+1}, {ACC}, v{vX0+1}
v_lshlrev_b32 v{t}, 16, v{g}
v_and_b32 v{t+1}, v{vMHi}, v{g}
v_lshlrev_b32 v{t+2}, 16, v{g+1}
v_and_b32 v{t+3}, v{vMHi}, v{g+1}
v_mul_f32 v{t}, v{t}, v{vX0}
v_mul_f32 v{t+1}, v{t+1}, v{vX0}
v_mul_f32 v{t+2}, v{t+2}, v{vX0}
v_mul_f32 v{t+3}, v{t+3}, v{vX0}
s_mov_b64 exec, s[{mkp}:{mkp+1}]
ds_add_f32 v{vX0+1}, v{t}
ds_add_f32 v{vX0+1}, v{t+1} offset:4
ds_add_f32 v{vX0+1}, v{t+2} offset:{ACCB}
ds_add_f32 v{vX0+1}, v{t+3} offset:{ACCB+4}
s_mov_b64 exec, -1
s_waitcnt lgkmcnt(0)
""")

    def accum_main(h, rc, tag, g2, q0done=False):
        mk = MK[h]
        a(f"s_cmp_lg_u32 s{sMode}, 0")
        a(f"s_cbranch_scc1 k2_accf_{tag}")
        if not q0done:
            qcalc(PT, GA, rc + AK[0], vC0)
        adds(mk, vC0, PT)
        a("s_mov_b64 exec, -1")
        m_piece(MPS[h ^ 1], 'b')
        qcalc(HQ, GA + 2, rc + AK[1], HR)
        a(f"k2_acce_{tag}:")
        o(f"k2_accf_{tag}:")
        m_piece(MPS[h ^ 1], 'b', o)
        for k in range(3):
            f32_one(mk + 2 * k, (GA, GA + 2, g2)[k], rc + AK[k], o)
        o(f"""
s_mov_b64 s[{mk}:{mk+1}], 0
s_mov_b64 s[{mk+2}:{mk+3}], 0
s_mov_b64 s[{mk+4}:{mk+5}], 0
s_branch k2_acce_{tag}
""")

    def last_adds(h):
        adds(MK[h] + 2, HR, HQ)
        a("s_mov_b64 exec, -1")

    def window_now(mk, rc, tag):
        gathers(mk, rc, GX, o)
        o(f"""
s_mov_b64 exec, -1
s_cmp_lg_u32 s{sMode}, 0
s_waitcnt lgkmcnt(0)
s_cbranch_scc1 k2_wf_{tag}
""")
        for k in range(3):
            qcalc(XT, GX + 2 * k, rc + AK[k], vX0, o)
            adds(mk + 2 * k, vX0, XT, o)
            o("s_mov_b64 exec, -1")
        o(f"s_branch k2_we_{tag}")
        o(f"k2_wf_{tag}:")
        for k in range(3):
            f32_one(mk + 2 * k, GX + 2 * k, rc + AK[k], o)
        o(f"k2_we_{tag}:")

    def scale_setup():
        a(f"""
v_mov_b32 v{XT}, {NW}
ds_read_b128 v[{XT}:{XT+3}], v{XT}
s_mov_b32 s{sT2}, s{MXS+7}
s_waitcnt lgkmcnt(0)
v_add_u32 v{XT}, v{XT}, v{XT+1}
v_add_u32 v{XT+2}, v{XT+2}, v{XT+3}
v_add_u32 v{XT}, v{XT}, v{XT+2}
v_lshrrev_b32 v{XT}, 4, v{XT}
v_mul_u32_u24 v{XT}, 3, v{XT}
v_max_u32 v{XT}, 1024, v{XT}
s_nop 0
v_readfirstlane_b32 s{sT0}, v{XT}
v_cvt_f32_u32 v{XT}, v{XT}
v_mul_f32 v{XT}, s{sT2}, v{XT}
v_mul_f32 v{XT}, 0x3f802000, v{XT}
s_nop 0
v_readfirstlane_b32 s{sT1}, v{XT}
s_mov_b32 s{sMode}, 0
s_cmp_gt_u32 s{sT0}, 0x100000
s_cselect_b32 s{sMode}, 1, s{sMode}
s_cmp_gt_u32 s{sT2}, 0x70000000
s_cselect_b32 s{sMode}, 1, s{sMode}
s_cmp_lt_u32 s{sT2}, 0x18000000
s_cselect_b32 s{sMode}, 1, s{sMode}
s_and_b32 s{sT1}, s{sT1}, 0x7f800000
s_cmp_gt_u32 s{sT1}, s{MXS+6}
s_cselect_b32 s{sMode}, 1, s{sMode}
s_and_b32 s{sT2}, s{sT2}, 0x7f800000
s_sub_u32 s{sPf}, s{sT1}, s{sT2}
s_add_u32 s{sMsc}, s{sT2}, {6 << 23}
s_add_u32 s{sPf}, s{sPf}, {(121 - 30) << 23}
s_sub_u32 s{sT1}, s{sT1}, {(7 << 23) - 0x400000}
v_mov_b32 v{vMagic}, s{sT1}
s_sub_u32 s{sNK}, 0, s{sT1}
s_not_b32 s{sNK+1}, s{sT1}
s_barrier
""")

    def early_setup():
        QP = 782
        a(f"""
s_load_dword s{MN[1]}, s[{MN[0]}:{MN[0]+1}], 0
s_load_dword s{MN[1]+1}, s[{MX[0]}:{MX[0]+1}], 0
s_load_dword s{MN[1]+2}, s[{MX[0]+2}:{MX[0]+3}], 0
s_load_dword s{MN[1]+3}, s[{MX[0]+4}:{MX[0]+5}], 0
s_load_dword s{MN[1]+4}, s[{MX[0]+6}:{MX[0]+7}], 0
s_mul_i32 s{sT1}, s{sRb}, {RB*8}
s_mul_i32 s{sT2}, s{sCg}, {QP*16}
s_add_u32 s{sT1}, s{sT1}, s{sT2}
v_add_u32 v{vO16}, s{sT1}, v{vT16}
s_sub_u32 s{sT2}, {RB*8}, s{sT2}
s_min_u32 s{sT2}, s{sT2}, {QP*16}
v_cmp_gt_u32 s[{sB}:{sB+1}], s{sT2}, v{vT16}
s_mov_b32 s{S_P+2}, {E*2}
s_mov_b32 s{S_P+3}, 0x00020000
v_cndmask_b32 v{vO16}, v{vMHi}, v{vO16}, s[{sB}:{sB+1}]
v_lshrrev_b32 v{vD}, 2, v{vO16}
""")

    def early():
        a(f"""
buffer_load_dword v{vD}, v{vD}, s[{S_P}:{S_P+3}], 0 offen
buffer_load_dwordx4 v[{vM}:{vM+3}], v{vO16}, s[{S_M}:{S_M+3}], 0 offen
""")

    def wait_bar(mkp, n, tag, mid=None):
        a(f"""
s_cmp_eq_u64 s[{mkp}:{mkp+1}], 0
s_cbranch_scc1 k2_wz_{tag}
k2_w_{tag}:
s_setprio 3
s_waitcnt lgkmcnt({n})
""")
        if mid:
            mid()
        a("s_barrier")
        o(f"""
k2_wz_{tag}:
s_waitcnt lgkmcnt(0)
s_branch k2_w_{tag}
""")

    NM = 10 if TID else 3
    NBC = 4 if TID else 1
    NA = 4 if TID else 1
    if TID:
        a(f"""
s_mul_i32 s{sWk}, s{sW}, 2560
s_add_u32 s{sT0}, s{sWk}, s{sMo}
v_lshrrev_b32 v{vLW}, 2, v{vL16}
v_add_u32 v{vLW}, s{sT0}, v{vLW}
""")
    RD = (RC[0], RC[1], RXW[0], RXW[1])
    FINE = OPT['fine'] == '1'
    FS = [80, 82, 84, 86, 88, 90, 28, 30, 24, 26]

    def fs(i, on=True):
        if FINE and on:
            a(f"s_memtime s[{FS[i]}:{FS[i]+1}]")

    srd_off(a, MXS, P + 2, None, MAX_OFF, 1024)
    a(f"""
buffer_load_dwordx4 v[{HQ}:{HQ+3}], v{vL16}, s[{MXS}:{MXS+3}], 0 offen
s_lshl_b32 s{sT0}, s{sW}, 10
s_add_u32 m0, s{sT0}, {ACC}
s_nop 0
buffer_load_dwordx4 v{GA}, s[{S_T}:{S_T+3}], 0 offen lds
s_add_u32 m0, s{sT0}, {ACC+16384}
s_mov_b64 exec, s[{sC}:{sC+1}]
buffer_load_dwordx4 v{GA+1}, s[{S_T}:{S_T+3}], 0 offen lds
s_mov_b64 exec, -1
""")
    m_load()
    a(f"v_mov_b32 v{EN+21}, 0")
    a(f"v_mov_b32 v{EN+22}, 0")
    a(f"v_mov_b32 v{EN+23}, 0")
    common_init()
    early_setup()
    zero_acc()
    a(f"s_waitcnt vmcnt({NM})")
    a("s_barrier")
    for i in range(5):
        a(f"ds_read_b128 v[{EN+4*i}:{EN+4*i+3}], v{FT} offset:{16*i}")
    a(f"ds_read_b32 v{EN+20}, v{FT} offset:80")
    a(f"""
v_add_f32 v{HQ+4}, v{HQ}, v{HQ+1}
v_add_f32 v{HQ+5}, v{HQ+2}, v{HQ+3}
v_add_f32 v{HQ+4}, v{HQ+4}, v{HQ+5}
v_pk_max_u16 v{HQ}, v{HQ}, v{HQ+1}
v_pk_max_u16 v{HQ+2}, v{HQ+2}, v{HQ+3}
v_pk_max_u16 v{HQ}, v{HQ}, v{HQ+2}
v_lshlrev_b32 v{HQ}, 16, v{HQ}
s_nop 0
""")
    for (sh, rm) in (("row_shr:1", '0xf'), ("row_shr:2", '0xf'), ("row_shr:4", '0xf'), ("row_shr:8", '0xf'), ("row_bcast:15", '0xa'), ("row_bcast:31", '0xc')):
        a(f"v_add_f32_dpp v{HQ+4}, v{HQ+4}, v{HQ+4} {sh} row_mask:{rm} bank_mask:0xf")
        a(f"v_max_u32_dpp v{HQ}, v{HQ}, v{HQ} {sh} row_mask:{rm} bank_mask:0xf")
        a("s_nop 0")
    a(f"""
v_mul_f32 v{HQ+4}, 0x3fa66666, v{HQ+4}
v_readlane_b32 s{MXS+7}, v{HQ}, 63
v_readlane_b32 s{MXS+6}, v{HQ+4}, 63
""")
    if OPT['pst2'] == '1':
        st_()
    a(f"""
s_cmp_lt_u32 s{sW}, 4
s_waitcnt lgkmcnt(0)
s_cbranch_scc1 k2_rem
""")
    def d_load(e, rc, t):
        a(f"""
v_and_b32 v{t}, 0x7fff0, v{e}
v_add_u32 v{t}, v{t}, v{vBase}
buffer_load_dwordx4 v[{rc}:{rc+3}], v{t}, s[{S_R}:{S_R+3}], 0 offen {ld}
""")

    d_load(EN, RD[0], FT)
    a(f"s_cmp_lt_u32 s{sW}, {OPT['gs']}")
    a("s_cbranch_scc1 k2_n2")
    d_load(EN + 1, RD[1], FT + 1)
    a("s_waitcnt vmcnt(2)")
    a("s_branch k2_n3")
    a("k2_n2:")
    a("s_waitcnt vmcnt(1)")
    a("k2_n3:")
    m_write()
    a("s_waitcnt lgkmcnt(0)")
    a("s_barrier")
    zero_acc2()
    scale_setup()
    m_load(MP2)

    def d_prep(r, off, par, n):
        mk = MK[r & 1]
        a(f"""
s_set_gpr_idx_on s{sJ}, 0x1
v_mov_b32 v{FT+1}, v{EN+off}
s_set_gpr_idx_off
v_cmp_le_u32 s[{mk}:{mk+1}], v{TH}, v{FT+1}
v_cmp_le_u32 s[{mk+2}:{mk+3}], v{TH+1}, v{FT+1}
v_cmp_le_u32 s[{mk+4}:{mk+5}], v{TH+2}, v{FT+1}
""")
        if n is not None:
            a(f"s_waitcnt vmcnt({n})")
        decode(RD[r], AD)

    GD2 = (GA + 4, GX)
    a(f"s_cmp_lt_u32 s{sW}, {OPT['gs']}")
    a("s_cbranch_scc1 k2_dv1")
    for par in (0, 1):
        if par == 1:
            a("k2_dv1:")
        if par == 1:
            d_load(EN + 1, RD[1], FT)
            d_load(EN + 2, RD[2], FT + 1)
        m_piece(MP, 'b')
        d_prep(0, 0, par, 1 + par + NM + NBC)
        a(f"k2_dloop{par}:")
        q0a = OPT['q0a'] == '2' or (OPT['q0a'] == '1' and par == 1)
        for r in range(4):
            h = r & 1
            mk = MK[h]
            on = r == int(OPT['fr'])
            fs(0, on)
            gissue(mk, AD, GA, a, GD2[h])
            a("s_setprio 0")
            a("s_mov_b64 exec, -1")
            fs(1, on)
            m_piece(MPS[h], 'c')
            m_piece(MPS[h], 'a')
            if h == par:
                a(f"""
s_set_gpr_idx_on s{sJ}, 0x2
v_and_b32 v{FT+2}, 0x7fff0, v{EN+r+2}
v_and_b32 v{FT+3}, 0x7fff0, v{EN+r+3}
s_set_gpr_idx_off
v_add_u32 v{FT+2}, v{FT+2}, v{vBase}
v_add_u32 v{FT+3}, v{FT+3}, v{vBase}
""")
            held(h ^ 1, GD2[h ^ 1], RD[(r + 3) & 3] + AK[2])
            fs(2, on)
            wait_bar(MK[h ^ 1] + 4, 2, f"da{par}{r}", (lambda: qcalc(PT, GA, RD[r] + AK[0], vC0)) if q0a else None)
            fs(3, on)
            a(f"s_waitcnt vmcnt({NM if h == par else NM+2})")
            if h == par:
                a(f"buffer_load_dwordx4 v[{RD[(r+2)&3]}:{RD[(r+2)&3]+3}], v{FT+2}, s[{S_R}:{S_R+3}], 0 offen {ld}")
                a(f"buffer_load_dwordx4 v[{RD[(r+3)&3]}:{RD[(r+3)&3]+3}], v{FT+3}, s[{S_R}:{S_R+3}], 0 offen {ld}")
            fs(4, on)
            m_write(MPS[h ^ 1])
            a("s_setprio 0")
            fs(5, on)
            accum_main(h, RD[r], f"d{par}{r}", GD2[h], q0a)
            fs(6, on)
            fs(7, on)
            d_prep((r + 1) & 3, r + 1, par, None if h == par else 1 + NM + NBC)
            if r == 3:
                a(f"s_add_u32 s{sJ}, s{sJ}, 4")
            last_adds(h)
            fs(8, on)
            wait_bar(mk + 2, 4, f"db{par}{r}")
            fs(9, on)
        a(f"""
s_cmp_lt_u32 s{sJ}, {NPH if not FINE else int(OPT['fn'])}
s_cbranch_scc0 k2_dend
s_cmp_lg_u32 s{sJ}, 8
s_cbranch_scc1 k2_dloop{par}
""")
        early()
        a(f"s_branch k2_dloop{par}")

    a("k2_dend:")
    held(1, GD2[1], RD[3] + AK[2])
    a("s_branch k2_epi")
    GR2 = (GA + 4, TH)
    vA2 = TH + 2
    nr, inc, pre, V, tg, val, e0 = FT, FT + 1, FT + 2, FT + 3, FT + 4, FT + 5, FT + 6
    dpp = "row_mask:0xf bank_mask:0xf"

    def flat_scan(ea, eb, stot, a=a):
        a(f"""
v_and_b32 v{nr}, 0x7fff0, v{eb}
v_and_b32 v{pre}, 0x7fff0, v{ea}
v_sub_u32 v{nr}, v{nr}, v{pre}
v_and_b32 v{V}, 0x7fff3, v{ea}
v_add_u32 v{nr}, -48, v{nr}
v_max_i32 v{nr}, 0, v{nr}
v_mov_b32 v{inc}, v{nr}
v_add_u32 v{V}, v{V}, v{vBase}
v_cmp_ne_u32 s[{sD}:{sD+1}], 0, v{nr}
""")
        scan(a, "v_add_u32", inc)
        a(f"""
v_sub_u32 v{pre}, v{inc}, v{nr}
v_readlane_b32 s{stot}, v{inc}, 63
v_sub_u32 v{V}, v{V}, v{pre}
""")

    def flat_push(swb, a=a):
        a(f"""
s_add_u32 s{sT1}, {swb}, 1024
v_cmp_ge_u32 s[{sA}:{sA+1}], {swb}, v{pre}
v_subrev_u32 v{tg}, {swb}, v{pre}
v_cmp_eq_u32 s[{sC}:{sC+1}], s{sT1}, v{inc}
s_bcnt1_i32_b64 s{sT0}, s[{sA}:{sA+1}]
v_add_u32 v{val}, -16, v{tg}
s_sub_u32 s{sT0}, s{sT0}, 1
v_cmp_gt_u32 vcc, 1008, v{val}
v_readlane_b32 s{sCarry}, v{V}, s{sT0}
v_lshrrev_b32 v{tg}, 2, v{tg}
s_and_b64 s[{sB}:{sB+1}], vcc, s[{sD}:{sD+1}]
v_cndmask_b32 v{tg}, 0, v{tg}, s[{sB}:{sB+1}]
v_cndmask_b32 v{val}, 0, v{V}, s[{sB}:{sB+1}]
ds_permute_b32 v{val}, v{tg}, v{val}
""")

    def flat_fin(swb, stot, mk, rc, a=a):
        a(f"""
v_cmp_ne_u32 s[{sA}:{sA+1}], 0, v{val}
v_add_u32 v{tg}, {swb}, v{vL16}
s_cmp_lg_u64 s[{sC}:{sC+1}], 0
v_max_u32_dpp v{val}, v{val}, v{val} row_shr:1 {dpp}
v_cmp_gt_u32 s[{mk}:{mk+1}], s{stot}, v{tg}
s_cselect_b32 s{sC+1}, 0x80000000, 0
v_max_u32_dpp v{val}, v{val}, v{val} row_shr:2 {dpp}
s_mov_b32 s{sC}, 0
s_lshr_b64 s[{sA}:{sA+1}], s[{sA}:{sA+1}], 1
v_max_u32_dpp v{val}, v{val}, v{val} row_shr:4 {dpp}
s_or_b64 s[{sC}:{sC+1}], s[{sC}:{sC+1}], s[{sA}:{sA+1}]
s_lshr_b64 s[{sA}:{sA+1}], s[{mk}:{mk+1}], 1
v_max_u32_dpp v{val}, v{val}, v{val} row_shr:8 {dpp}
s_andn2_b64 s[{sA}:{sA+1}], s[{mk}:{mk+1}], s[{sA}:{sA+1}]
s_bitset0_b64 s[{sA}:{sA+1}], 63
v_max_u32_dpp v{val}, v{val}, v{val} row_bcast:15 row_mask:0xa bank_mask:0xf
s_or_b64 s[{sC}:{sC+1}], s[{sC}:{sC+1}], s[{sA}:{sA+1}]
s_nop 0
v_max_u32_dpp v{val}, v{val}, v{val} row_bcast:31 row_mask:0xc bank_mask:0xf
v_max_u32 v{val}, s{sCarry}, v{val}
v_add_u32 v{tg}, v{tg}, v{val}
v_and_b32 v{val}, 3, v{val}
v_and_b32 v{tg}, -16, v{tg}
v_cmp_eq_u32 s[{sA}:{sA+1}], 2, v{val}
v_cmp_ne_u32 s[{sB}:{sB+1}], 0, v{val}
v_cndmask_b32 v{tg}, v{vMHi}, v{tg}, s[{mk}:{mk+1}]
buffer_load_dwordx4 v[{rc}:{rc+3}], v{vL16 if 'r' in abl else tg}, s[{S_R}:{S_R+3}], 0 offen {ld}
s_and_b64 s[{sA}:{sA+1}], s[{sA}:{sA+1}], s[{sC}:{sC+1}]
s_and_b64 s[{sB}:{sB+1}], s[{sB}:{sB+1}], s[{sC}:{sC+1}]
s_andn2_b64 s[{mk+2}:{mk+3}], s[{mk}:{mk+1}], s[{sA}:{sA+1}]
s_andn2_b64 s[{mk+4}:{mk+5}], s[{mk}:{mk+1}], s[{sB}:{sB+1}]
""")

    def second(h, tag):
        a(f"""
s_cmp_gt_u32 s{TOT[h]}, 1024
s_cbranch_scc1 k2_sy_{tag}
k2_ns_{tag}:
""")
        o(f"k2_sy_{tag}:")
        o(f"s_movk_i32 s{sXw}, 1024")
        flat_push(f"s{sXw}", o)
        o("s_waitcnt lgkmcnt(0)")
        flat_fin(f"s{sXw}", TOT[h], MX[h], RXW[h], o)
        o(f"s_branch k2_ns_{tag}")

    a("k2_rem:")
    a("s_setprio 1")
    flat_scan(EN, EN + 1, TOT[0])
    flat_push("0")
    a("s_waitcnt lgkmcnt(0)")
    flat_fin("0", TOT[0], MN[0], RC[0])
    second(0, "p0")
    if OPT['pst2'] == '1':
        st_()
    a(f"s_waitcnt vmcnt(1)")
    if OPT['pst2'] == '1':
        st_()
    m_write()
    a(f"""
v_and_b32 v{FT}, 0x7fff0, v{EN+20}
v_and_b32 v{FT+1}, 0x7fff0, v{EN}
v_sub_u32 v{FT}, v{FT}, v{FT+1}
s_lshl_b32 s{sT0}, s{sW}, 2
s_add_u32 s{sT0}, s{sT0}, {NW}
""")
    scan(a, "v_add_u32", FT)
    a(f"""
v_mov_b32 v{FT+3}, s{sT0}
{EXEC63}
ds_write_b32 v{FT+3}, v{FT}
s_mov_b64 exec, -1
s_waitcnt lgkmcnt(0)
s_barrier
""")
    st_()
    zero_acc2()
    scale_setup()
    st_()
    flat_scan(EN + 1, EN + 2, TOT[1])
    flat_push("0")
    m_load(MP2)
    m_piece(MP, 'b')
    a("s_waitcnt lgkmcnt(0)")
    flat_fin("0", TOT[1], MN[1], RC[1])
    second(1, "p1")

    def r_prep(h, off, n=NM+1):
        mk = MK[h]
        a(f"""
s_set_gpr_idx_on s{sJ}, 0x1
v_mov_b32 v{e0}, v{EN+off+2}
v_mov_b32 v{e0+1}, v{EN+off+3}
s_set_gpr_idx_off
""")
        flat_scan(e0, e0 + 1, sTN)
        a(f"s_waitcnt vmcnt({n})")
        for i in range(0, 6, 2):
            a(f"s_mov_b64 s[{mk+i}:{mk+i+1}], s[{MN[h]+i}:{MN[h]+i+1}]")
        decode(RC[h], AD)

    r_prep(0, 0, 1 + NM + NBC)
    if OPT['pst2'] == '1':
        st_()
    a("k2_rloop:")
    for h in range(2):
        mk = MK[h]
        on = h == (int(OPT['fr']) & 1)
        fs(0, on)
        gissue(mk, AD, GA, a, GR2[h])
        a("s_mov_b64 exec, -1")
        a(f"""
s_cmp_gt_u32 s{TOT[h]}, {1024 if not FINE else 0x7fffffff}
s_cbranch_scc1 k2_xy_{h}
k2_nx_{h}:
""")
        o(f"k2_xy_{h}:")
        window_now(MX[h], RXW[h], f"x{h}")
        o(f"""
s_waitcnt lgkmcnt(0)
s_cmp_le_u32 s{TOT[h]}, 2048
s_cbranch_scc1 k2_nx_{h}
s_movk_i32 s{sXw}, 2048
s_add_u32 s{sT2}, s{sJ}, {h}
s_call_b64 s[{sRet}:{sRet+1}], k2_slow
s_waitcnt lgkmcnt(0)
s_set_gpr_idx_on s{sJ}, 0x1
v_mov_b32 v{e0}, v{EN+h+2}
v_mov_b32 v{e0+1}, v{EN+h+3}
s_set_gpr_idx_off
""")
        flat_scan(e0, e0 + 1, sTN, o)
        o(f"s_branch k2_nx_{h}")
        flat_push("0")
        a("s_setprio 1")
        fs(1, on)
        m_piece(MPS[h], 'c')
        m_piece(MPS[h], 'a')
        a(f"s_mov_b32 s{TOT[h]}, s{sTN}")
        held(h ^ 1, GR2[h ^ 1], vA2)
        fs(2, on)
        wait_bar(MK[h ^ 1] + 4, 2, f"ra{h}")
        fs(3, on)
        a(f"s_waitcnt vmcnt({NM+1})")
        fs(4, on)
        m_write(MPS[h ^ 1])
        a("s_setprio 1")
        fs(5, on)
        accum_main(h, RC[h], f"r{h}", GR2[h])
        a(f"v_mov_b32 v{vA2}, v{RC[h]+AK[2]}")
        fs(6, on)
        flat_fin("0", TOT[h], MN[h], RC[h])
        if not FINE:
            second(h, f"l{h}")
        fs(7, on)
        r_prep(h ^ 1, h + 1)
        last_adds(h)
        fs(8, on)
        if h == 1:
            a(f"s_add_u32 s{sJ}, s{sJ}, 2")
        wait_bar(mk + 2, 4, f"rb{h}")
        fs(9, on)
        if OPT['pst2'] == '1':
            st_()
    a(f"""
s_cmp_lt_u32 s{sJ}, {NPH if not FINE else int(OPT['fn'])}
s_cbranch_scc0 k2_rend
s_cmp_lg_u32 s{sJ}, 8
s_cbranch_scc1 k2_rloop
""")
    early()
    a("s_branch k2_rloop")
    a("k2_rend:")
    held(1, GR2[1], vA2)
    def fused_epilogue():
        QP = 782
        EB = 64
        S_D, S_O, S_G = 4, 8, 24
        WR, WSB, WD, WU = 48, 64, 80, 88
        CE = 28
        CF = 80
        PP, PP2 = 20, 42
        tS = 40
        sSc, sFl = 44, 45
        vT = 9
        R = (16, 24)
        G = (32, 36)
        H = (40, 44)
        RP = (48, 52)
        S = (16, 20)
        AG = (24, 28)
        PL = 96
        a("k2_epi:")
        if FINE:
            a("s_waitcnt lgkmcnt(0)")
            for i2 in range(10):
                a(f"v_writelane_b32 v{FT}, s{FS[i2]}, {i2}")
            a(f"s_lshl_b32 s{sT0}, s2, 10")
            a(f"s_lshl_b32 s{sT1}, s{sW}, 6")
            a(f"s_add_u32 s{sT0}, s{sT0}, s{sT1}")
            srd_off(a, 8, P + 2, sT0, DIAG_OFF + 0x200000, 40)
            a(f"v_lshrrev_b32 v{FT+1}, 2, v{vL16}")
            a(f"buffer_store_dword v{FT}, v{FT+1}, s[8:11], 0 offen")
        a(f"""
s_load_dwordx2 s[{S_O}:{S_O+1}], s[0:1], {KA['out']}
s_load_dwordx2 s[{PP}:{PP+1}], s[0:1], {KA['centers']}
s_load_dwordx4 s[{WU}:{WU+3}], s[0:1], {KA['w_rbf']}
s_load_dwordx4 s[{WU+4}:{WU+7}], s[0:1], {KA['w_down']}
v_add_u32 v{vLW}, {ACC}, v{vT16}
v_add_u32 v{vBase}, {ACC+ACCB}, v{vT16}
v_mov_b32 v{vMagic}, s{sPf}
s_mul_i32 s{sT0}, s{sCg}, {E*8}
s_mul_i32 s{sT1}, s{sRb}, {RB*8}
s_add_u32 s{sT0}, s{sT0}, s{sT1}
v_cmp_ne_u32 s[{sNK}:{sNK+1}], v{vO16}, v{vMHi}
s_mov_b32 s{sJ}, s{sT0}
""")
        srd_off(a, S_P, P + 2, sT0, PART_OFF, RB * 8)
        srd_off(a, S_G, P + 2, None, HF_OFF, 8192)
        a(f"""
s_waitcnt vmcnt(0) lgkmcnt(0)
s_load_dwordx4 s[{CE}:{CE+3}], s[{PP}:{PP+1}], 0
s_load_dwordx16 s[{WR}:{WR+15}], s[{WU}:{WU+1}], 0
s_load_dwordx16 s[{WSB}:{WSB+15}], s[{WU+2}:{WU+3}], 0
s_mov_b64 s[{PP}:{PP+1}], s[{WU+4}:{WU+5}]
s_mov_b64 s[{PP2}:{PP2+1}], s[{WU+6}:{WU+7}]
s_barrier
""")
        st_()
        for it in range(4):
            b = EB + it * 8
            if it == 3:
                a(f"v_min_u32 v{vLW}, {ACC + 52*16}, v{vLW}")
                a(f"v_min_u32 v{vBase}, {ACC + ACCB + 52*16}, v{vBase}")
            a(f"ds_read_b128 v[{b}:{b+3}], v{vLW} offset:{it*16384}")
            a(f"ds_read_b128 v[{b+4}:{b+7}], v{vBase} offset:{it*16384}")
        a(f"""
s_mov_b32 s{S_O+2}, {E*8}
s_mov_b32 s{S_O+3}, 0x00020000
s_cmp_lg_u32 s{sMode}, 0
s_waitcnt lgkmcnt(0)
s_cbranch_scc1 k2_epf
""")
        for it in range(4):
            b = EB + it * 8
            for p in range(4):
                a(f"v_ashrrev_i32 v{FT+2+p}, 31, v{b+2*p}")
            for p in range(4):
                a(f"v_sub_u32 v{b+2*p+1}, v{b+2*p+1}, v{FT+2+p}")
            for p in range(8):
                a(f"v_cvt_f32_i32 v{b+p}, v{b+p}")
            for p in range(8):
                a(f"v_mul_f32 v{b+p}, v{vMagic}, v{b+p}")
            a(f"""
v_cvt_pk_f16_f32 v{b}, v{b}, v{b+1}
v_cvt_pk_f16_f32 v{b+1}, v{b+4}, v{b+5}
v_cvt_pk_f16_f32 v{b+2}, v{b+2}, v{b+3}
v_cvt_pk_f16_f32 v{b+3}, v{b+6}, v{b+7}
buffer_store_dwordx4 v[{b}:{b+3}], v{vT16}, s[{S_P}:{S_P+3}], 0 offen sc1
""")
            if it < 3:
                a(f"v_add_u32 v{vT16}, 16384, v{vT16}")
        a("k2_epj:")
        o("k2_epf:")
        o(f"s_lshl_b32 s{sT0}, s{sJ}, 1")
        srd_off(o, S_P, P + 2, sT0, P32_OFF, RB * 16)
        o(f"v_lshlrev_b32 v{vT16}, 1, v{vT16}")
        for it in range(4):
            b = EB + it * 8
            o(f"""
buffer_store_dwordx2 v[{b}:{b+1}], v{vT16}, s[{S_P}:{S_P+3}], 0 offen sc1
buffer_store_dwordx2 v[{b+4}:{b+5}], v{vT16}, s[{S_P}:{S_P+3}], 0 offen offset:8 sc1
buffer_store_dwordx2 v[{b+2}:{b+3}], v{vT16}, s[{S_P}:{S_P+3}], 0 offen offset:16 sc1
buffer_store_dwordx2 v[{b+6}:{b+7}], v{vT16}, s[{S_P}:{S_P+3}], 0 offen offset:24 sc1
v_add_u32 v{vT16}, 32768, v{vT16}
""")
        o("s_waitcnt vmcnt(0)")
        o("s_branch k2_epj")

        def rnd(x):
            a(f"v_cvt_pk_bf16_f32 v{x+1}, v{x}, v{x+1}")
            a(f"v_lshlrev_b32 v{x}, 16, v{x+1}")
            a(f"v_and_b32 v{x+1}, v{vMHi}, v{x+1}")

        a(f"""
s_cmp_gt_u32 s{sW}, 12
s_cbranch_scc1 k2_sig
""")
        for k in range(8):
            a(s_unpack(CF + k, CE, k))
        a(f"""
v_and_b32 v{vD+1}, v{vMHi}, v{vD}
v_lshlrev_b32 v{vD}, 16, v{vD}
""")
        for r in range(2):
            for k in range(0, 8, 2):
                a(f"v_pk_add_f32 v[{R[r]+k}:{R[r]+k+1}], v[{vD}:{vD+1}], s[{CF+k}:{CF+k+1}] op_sel:[{r},0] op_sel_hi:[{r},1] neg_lo:[0,1] neg_hi:[0,1]")
        a(f"s_load_dwordx8 s[{WD}:{WD+7}], s[{PP}:{PP+1}], 0")
        a(f"s_load_dwordx8 s[{WU}:{WU+7}], s[{PP2}:{PP2+1}], 0")
        allr = [R[r] + k for r in range(2) for k in range(8)]
        for x in allr[::2]:
            rnd(x)
        for x in allr:
            a(f"v_mul_f32 v{x}, v{x}, v{x}")
        for x in allr[::2]:
            rnd(x)
        for x in allr:
            a(f"v_mul_f32 v{x}, 0xc1200000, v{x}")
        for x in allr[::2]:
            rnd(x)
        st_()
        a("""
s_waitcnt vmcnt(0)
s_barrier
""")
        st_()
        for x in allr:
            a(f"v_mul_f32 v{x}, 0x3fb8aa3b, v{x}")
        for x in allr:
            a(f"v_exp_f32 v{x}, v{x}")
        a("s_nop 0")
        for r in range(2):
            for kk in range(4):
                a(f"v_cvt_pk_bf16_f32 v{RP[r]+kk}, v{R[r]+2*kk}, v{R[r]+2*kk+1}")
        cnt = [0]

        def wpair(base, kk, c):
            d = tS + (cnt[0] & 3)
            cnt[0] += 1
            op = "s_pack_ll_b32_b16" if c % 2 == 0 else "s_pack_hh_b32_b16"
            a(f"{op} s{d}, s{base + 4*kk + c//2}, s{base + 4*kk + 2 + c//2}")
            return d

        def dotmat(dst, src, base, nk):
            for kk in range(nk):
                for c in range(4):
                    w = wpair(base, kk, c)
                    for r in range(2):
                        acc = "0" if kk == 0 else f"v{dst[r]+c}"
                        a(f"v_dot2_f32_bf16 v{dst[r]+c}, v{src[r]+kk}, s{w}, {acc}")

        dotmat(H, RP, WR, 4)
        dotmat(G, RP, WSB, 4)
        for r in range(2):
            rnd(H[r])
            rnd(H[r] + 2)
        srd_off(a, S_P, P + 2, None, PART_OFF, 4 * E * 8)
        st_()
        a(f"""
v_mov_b32 v{vT}, {NW}
s_waitcnt lgkmcnt(0)
s_barrier
ds_read_b32 v{vT}, v{vT}
v_add_u32 v{FT}, {E*8}, v{vO16}
v_add_u32 v{FT+1}, {2*E*8}, v{vO16}
v_add_u32 v{FT+2}, {3*E*8}, v{vO16}
s_mov_b64 exec, s[{sNK}:{sNK+1}]
buffer_load_dwordx4 v[{PL}:{PL+3}], v{vO16}, s[{S_P}:{S_P+3}], 0 offen sc1
buffer_load_dwordx4 v[{PL+4}:{PL+7}], v{FT}, s[{S_P}:{S_P+3}], 0 offen sc1
buffer_load_dwordx4 v[{PL+8}:{PL+11}], v{FT+1}, s[{S_P}:{S_P+3}], 0 offen sc1
buffer_load_dwordx4 v[{PL+12}:{PL+15}], v{FT+2}, s[{S_P}:{S_P+3}], 0 offen sc1
s_waitcnt lgkmcnt(0)
v_readfirstlane_b32 s{sFl}, v{vT}
v_mov_b32 v{vT}, s{sMsc}
""")
        st_()
        a(f"""
s_cmp_gt_u32 s{sFl}, 255
s_cbranch_scc1 k2_fslow
s_waitcnt vmcnt(0)
""")
        for r in range(2):
            for c in range(4):
                reg = 2 * r + c // 2
                hi = c % 2
                d = S[r] + c
                a(f"v_fma_mix_f32 v{d}, v{PL+reg}, 1.0, v{PL+4+reg} op_sel:[{hi},0,{hi}] op_sel_hi:[1,0,1]")
                a(f"v_fma_mix_f32 v{d}, v{PL+8+reg}, 1.0, v{d} op_sel:[{hi},0,0] op_sel_hi:[1,0,0]")
                a(f"v_fma_mix_f32 v{d}, v{PL+12+reg}, 1.0, v{d} op_sel:[{hi},0,0] op_sel_hi:[1,0,0]")
        for r in range(2):
            for c in range(4):
                a(f"v_mul_f32 v{S[r]+c}, v{vT}, v{S[r]+c}")
        a("k2_fjoin:")
        for jj in range(4):
            for cp in range(2):
                d = tS + 2 * ((jj * 2 + cp) & 1)
                a(s_unpack(d, WD, jj * 4 + cp * 2))
                a(s_unpack(d + 1, WD, jj * 4 + cp * 2 + 1))
                for r in range(2):
                    sp = S[r] + (jj & ~1)
                    oo = jj & 1
                    dd = AG[r] + 2 * cp
                    if jj == 0:
                        a(f"v_pk_mul_f32 v[{dd}:{dd+1}], v[{sp}:{sp+1}], s[{d}:{d+1}] op_sel:[{oo},0] op_sel_hi:[{oo},1]")
                    else:
                        a(f"v_pk_fma_f32 v[{dd}:{dd+1}], v[{sp}:{sp+1}], s[{d}:{d+1}], v[{dd}:{dd+1}] op_sel:[{oo},0,0] op_sel_hi:[{oo},1,1]")
        for r in range(2):
            for c in range(4):
                a(f"v_mul_f32 v{AG[r]+c}, v{AG[r]+c}, v{G[r]+c}")
        for r in range(2):
            for kk in range(2):
                a(f"v_cvt_pk_bf16_f32 v{RP[r]+kk}, v{AG[r]+2*kk}, v{AG[r]+2*kk+1}")
        dotmat(G, RP, WU, 2)
        for r in range(2):
            for cp in range(2):
                a(f"v_lshlrev_b32 v{S[r]+2*cp}, 16, v{vM+2*r+cp}")
                a(f"v_and_b32 v{S[r]+2*cp+1}, v{vMHi}, v{vM+2*r+cp}")
        for r in range(2):
            rnd(G[r])
            rnd(G[r] + 2)
        for r in range(2):
            for c in range(4):
                a(f"v_mul_f32 v{G[r]+c}, v{G[r]+c}, v{H[r]+c}")
        for r in range(2):
            rnd(G[r])
            rnd(G[r] + 2)
        for r in range(2):
            for c in range(4):
                a(f"v_add_f32 v{G[r]+c}, v{G[r]+c}, v{S[r]+c}")
        for r in range(2):
            for cp in range(2):
                a(f"v_cvt_pk_bf16_f32 v{vM+2*r+cp}, v{G[r]+2*cp}, v{G[r]+2*cp+1}")
        a(f"buffer_store_dwordx4 v[{vM}:{vM+3}], v{vO16}, s[{S_O}:{S_O+3}], 0 offen")
        st_()
        st_.flush(FT)
        a("""
k2_done:
s_endpgm
""")
        a(f"""
k2_sig:
s_waitcnt vmcnt(0)
s_barrier
s_cmp_lg_u32 s{sW}, 15
s_cbranch_scc1 k2_sig_e
s_add_u32 s{sT0}, s{sCg}, 8
s_lshl_b32 s{sT0}, s{sMode}, s{sT0}
s_add_u32 s{sT0}, s{sT0}, 1
s_lshl_b32 s{sT1}, s{sRb}, 7
s_lshl_b32 s{sT2}, s{sCg}, 2
s_add_u32 s{sT2}, s{sT2}, s{sT1}
s_mov_b64 exec, 1
v_mov_b32 v{FT}, s{sT1}
v_mov_b32 v{FT+1}, s{sT0}
v_mov_b32 v{FT+2}, s{sT2}
buffer_store_dword v{FT+1}, v{FT+2}, s[{S_G}:{S_G+3}], 0 offen sc1
s_mov_b32 s{sT2}, 0x100000
k2_poll:
buffer_load_dwordx4 v[{FT+4}:{FT+7}], v{FT}, s[{S_G}:{S_G+3}], 0 offen sc1
s_waitcnt vmcnt(0)
v_add_u32 v{FT+1}, v{FT+4}, v{FT+5}
v_add3_u32 v{FT+1}, v{FT+1}, v{FT+6}, v{FT+7}
s_nop 0
v_readfirstlane_b32 s{sT1}, v{FT+1}
s_and_b32 s{sT1}, s{sT1}, 255
s_cmp_ge_u32 s{sT1}, 4
s_cbranch_scc1 k2_poll_e
s_sub_u32 s{sT2}, s{sT2}, 1
s_cbranch_scc1 k2_poll_e
s_sleep 1
s_branch k2_poll
k2_poll_e:
v_mov_b32 v{FT}, {NW}
ds_write_b32 v{FT}, v{FT+1}
s_waitcnt lgkmcnt(0)
k2_sig_e:
s_barrier
s_endpgm
""")
        o("k2_fslow:")
        srd_off(o, S_D, P + 2, None, P32_OFF, 4 * E * 16)
        o(f"v_lshlrev_b32 v{FT}, 1, v{vO16}")
        for i2 in range(8):
            o(f"v_mov_b32 v{S[0]+i2}, 0")
        o("s_waitcnt vmcnt(0)")
        for c in range(4):
            o(f"""
s_bitcmp1_b32 s{sFl}, {8+c}
s_cbranch_scc1 k2_s32_{c}
""")
            for r in range(2):
                for cc in range(4):
                    reg = 2 * r + cc // 2
                    o(f"v_fma_mix_f32 v{S[r]+cc}, v{PL+4*c+reg}, v{vT}, v{S[r]+cc} op_sel:[{cc%2},0,0] op_sel_hi:[1,0,0]")
            o(f"""
s_branch k2_sn_{c}
k2_s32_{c}:
buffer_load_dwordx4 v[24:27], v{FT}, s[{S_D}:{S_D+3}], 0 offen sc1
buffer_load_dwordx4 v[28:31], v{FT}, s[{S_D}:{S_D+3}], 0 offen offset:16 sc1
s_waitcnt vmcnt(0)
""")
            for i2 in range(8):
                o(f"v_add_f32 v{S[0]+i2}, v{S[0]+i2}, v{24+i2}")
            o(f"k2_sn_{c}:")
            o(f"v_add_u32 v{FT}, {E*16}, v{FT}")
        o("s_branch k2_fjoin")

    def plain_epilogue():
        a("k2_epi:")
        if FINE:
            a("s_waitcnt lgkmcnt(0)")
            for i2 in range(10):
                a(f"v_writelane_b32 v{FT}, s{FS[i2]}, {i2}")
            a(f"s_lshl_b32 s{sT0}, s2, 10")
            a(f"s_lshl_b32 s{sT1}, s{sW}, 6")
            a(f"s_add_u32 s{sT0}, s{sT0}, s{sT1}")
            srd_off(a, 8, P + 2, sT0, DIAG_OFF + 0x200000, 40)
            a(f"v_lshrrev_b32 v{FT+1}, 2, v{vL16}")
            a(f"buffer_store_dword v{FT}, v{FT+1}, s[8:11], 0 offen")
        EB = 64
        a(f"""
v_add_u32 v{vLW}, {ACC}, v{vT16}
v_add_u32 v{vBase}, {ACC+ACCB}, v{vT16}
v_mov_b32 v{vMagic}, s{sPf}
s_lshl_b32 s{sT0}, s{sCo}, 2
v_mov_b32 v{FT}, s{sT0}
v_mov_b32 v{FT+1}, s{sMode}
""")
        srd_off(a, S_T, P + 2, None, FLAG_OFF, 1024)
        a(f"""
s_mul_i32 s{sT0}, s{sCg}, {E*8}
s_mul_i32 s{sT1}, s{sRb}, {RB*8}
s_add_u32 s{sT0}, s{sT0}, s{sT1}
""")
        srd_off(a, S_P, P + 2, sT0, PART_OFF, RB * 8)
        a(f"s_lshl_b32 s{sT0}, s{sT0}, 1")
        srd_off(a, S_M, P + 2, sT0, P32_OFF, RB * 16)
        a(f"""
s_waitcnt vmcnt(0) lgkmcnt(0)
s_barrier
""")
        st_()
        for it in range(4):
            b = EB + it * 8
            if it == 3:
                a(f"v_min_u32 v{vLW}, {ACC + 52*16}, v{vLW}")
                a(f"v_min_u32 v{vBase}, {ACC + ACCB + 52*16}, v{vBase}")
            a(f"ds_read_b128 v[{b}:{b+3}], v{vLW} offset:{it*16384}")
            a(f"ds_read_b128 v[{b+4}:{b+7}], v{vBase} offset:{it*16384}")
        a(f"""
v_cmp_eq_u32 vcc, 0, v0
s_and_saveexec_b64 s[{sA}:{sA+1}], vcc
buffer_store_dword v{FT+1}, v{FT}, s[{S_T}:{S_T+3}], 0 offen
s_mov_b64 exec, s[{sA}:{sA+1}]
s_cmp_lg_u32 s{sMode}, 0
s_cbranch_scc1 k2_epf
""")
        for it in range(4):
            b = EB + it * 8
            a(f"s_waitcnt lgkmcnt({2*(3-it)})")
            for p in range(4):
                a(f"v_ashrrev_i32 v{FT+2+p}, 31, v{b+2*p}")
            for p in range(4):
                a(f"v_sub_u32 v{b+2*p+1}, v{b+2*p+1}, v{FT+2+p}")
            for p in range(8):
                a(f"v_cvt_f32_i32 v{b+p}, v{b+p}")
            for p in range(8):
                a(f"v_mul_f32 v{b+p}, v{vMagic}, v{b+p}")
            a(f"""
v_cvt_pk_f16_f32 v{b}, v{b}, v{b+1}
v_cvt_pk_f16_f32 v{b+1}, v{b+4}, v{b+5}
v_cvt_pk_f16_f32 v{b+2}, v{b+2}, v{b+3}
v_cvt_pk_f16_f32 v{b+3}, v{b+6}, v{b+7}
buffer_store_dwordx4 v[{b}:{b+3}], v{vT16}, s[{S_P}:{S_P+3}], 0 offen {pst}
""")
            if it < 3:
                a(f"v_add_u32 v{vT16}, 16384, v{vT16}")
        st_()
        if st_.on:
            a("s_waitcnt vmcnt(0)")
        st_()
        st_.flush(FT)
        a("""
k2_done:
s_endpgm
k2_epf:
s_waitcnt lgkmcnt(0)
""")
        a(f"v_lshlrev_b32 v{vT16}, 1, v{vT16}")
        for it in range(4):
            b = EB + it * 8
            a(f"""
buffer_store_dwordx2 v[{b}:{b+1}], v{vT16}, s[{S_M}:{S_M+3}], 0 offen
buffer_store_dwordx2 v[{b+4}:{b+5}], v{vT16}, s[{S_M}:{S_M+3}], 0 offen offset:8
buffer_store_dwordx2 v[{b+2}:{b+3}], v{vT16}, s[{S_M}:{S_M+3}], 0 offen offset:16
buffer_store_dwordx2 v[{b+6}:{b+7}], v{vT16}, s[{S_M}:{S_M+3}], 0 offen offset:24
v_add_u32 v{vT16}, 32768, v{vT16}
""")
        a("s_endpgm")

    if OPT['fuse'] == '1':
        fused_epilogue()
    else:
        plain_epilogue()
    o("k2_slow:")
    o(f"""
s_set_gpr_idx_on s{sT2}, 0x1
v_mov_b32 v{e0}, v{EN}
v_mov_b32 v{e0+1}, v{EN+1}
s_set_gpr_idx_off
""")
    flat_scan(e0, e0 + 1, sTot, o)
    o("k2_slow_l:")
    flat_push(f"s{sXw}", o)
    o("s_waitcnt lgkmcnt(0)")
    flat_fin(f"s{sXw}", sTot, MS, RS, o)
    o("s_waitcnt vmcnt(0)")
    window_now(MS, RS, "slow")
    o(f"""
s_add_u32 s{sXw}, s{sXw}, 1024
s_cmp_lt_u32 s{sXw}, s{sTot}
s_cbranch_scc1 k2_slow_l
s_setpc_b64 s[{sRet}:{sRet+1}]
""")
    txt = a.s
    if OPT['abl2']:
        i0 = txt.index('k2_dloop0:'); i1 = txt.index('k2_rem:'); i2 = txt.index('k2_rloop:'); i3 = txt.index('k2_epi:')
        def filt(t):
            out = []
            for l in t.split('\n'):
                x = l.strip()
                f = OPT['abl2']
                if 'v' in f and (x.startswith('buffer_') or x.startswith('s_waitcnt vmcnt')): continue
                if 'd' in f and x.startswith('ds_add'): continue
                if 'g' in f and x.startswith('ds_read'): continue
                if 'q' in f and (x.startswith('v_fma') or x.startswith('v_lshl_add_u64') or x.startswith('v_lshlrev_b32') or x.startswith('v_alignbit')): continue
                if 'p' in f and ('_dpp' in x or x.startswith('s_nop') or x.startswith('v_readlane') or x.startswith('v_cndmask') or x.startswith('ds_permute')): continue
                if 'e' in f and x.startswith('s_mov_b64 exec'): continue
                if 'b' in f and x.startswith('s_barrier'): continue
                if 'x' in f and (x.startswith('s_set_gpr')): continue
                out.append(l)
            return '\n'.join(out)
        txt = txt[:i0] + filt(txt[i0:i1]) + txt[i1:i2] + filt(txt[i2:i3]) + txt[i3:]
    return txt + o.s + "k2_code_end:\n    s_endpgm\n", NVG, NW + 64


def gen_k3():
    a = A()
    pld = OPT['pld']
    S_M, S_D, S_O, S_P = 4, 8, 12, 16
    WR, WSB, WD, WU, CE = 20, 36, 52, 60, 68
    CF = 72
    PP = 72
    FL = 84
    MXS = 88
    sT = 80
    sWs = 96
    st_ = Stamper(a, 2, 98, sWs, 60, S_P)
    st_.start()
    vO16, vD, vM, vHi = 1, 2, 4, 8
    PL = 12
    R = (28, 36)
    G = (44, 48)
    H = (52, 56)
    S = (28, 32)
    RP = (62, 66)
    vT = 9
    a(f"""
s_cmp_ge_u32 s2, 1600
s_cbranch_scc1 k3_done
s_load_dwordx2 s[{S_M}:{S_M+1}], s[0:1], {KA['m']}
s_load_dwordx2 s[{S_D}:{S_D+1}], s[0:1], {KA['dist']}
s_load_dwordx2 s[{S_O}:{S_O+1}], s[0:1], {KA['out']}
s_load_dwordx2 s[{sWs}:{sWs+1}], s[0:1], {KA['ws']}
s_load_dwordx2 s[{PP}:{PP+1}], s[0:1], {KA['centers']}
s_load_dwordx4 s[{PP+4}:{PP+7}], s[0:1], {KA['w_rbf']}
s_load_dwordx4 s[{PP+8}:{PP+11}], s[0:1], {KA['w_down']}
s_mul_i32 s3, s2, 2000
v_lshlrev_b32 v{vO16}, 4, v0
v_add_u32 v{vO16}, s3, v{vO16}
v_mov_b32 v{vHi}, 0xffff0000
v_cmp_gt_u32 vcc, 125, v0
s_and_b64 exec, exec, vcc
v_lshrrev_b32 v{vT}, 2, v{vO16}
s_mul_i32 s3, s2, 5243
s_lshr_b32 s3, s3, 17
s_lshl_b32 s3, s3, 4
s_waitcnt lgkmcnt(0)
""")
    a(srd(S_D, S_D, E * 2))
    a(f"buffer_load_dword v{vD}, v{vT}, s[{S_D}:{S_D+3}], 0 offen")
    a(f"""
s_load_dwordx4 s[{CE}:{CE+3}], s[{PP}:{PP+1}], 0
s_load_dwordx16 s[{WR}:{WR+15}], s[{PP+4}:{PP+5}], 0
s_load_dwordx16 s[{WSB}:{WSB+15}], s[{PP+6}:{PP+7}], 0
s_load_dwordx8 s[{WD}:{WD+7}], s[{PP+8}:{PP+9}], 0
s_load_dwordx8 s[{WU}:{WU+7}], s[{PP+10}:{PP+11}], 0
s_add_u32 s{PP+2}, s{sWs}, {MAX_OFF}
s_addc_u32 s{PP+3}, s{sWs+1}, 0
s_load_dwordx8 s[{MXS}:{MXS+7}], s[{PP+2}:{PP+3}], 0
s_add_u32 s{PP+2}, s{PP+2}, s3
s_addc_u32 s{PP+3}, s{PP+3}, 0
s_load_dwordx4 s[{FL}:{FL+3}], s[{PP+2}:{PP+3}], {FLAG_OFF-MAX_OFF}
""")
    srd_off(a, S_P, sWs, None, PART_OFF, 4 * E * 8)
    for c in range(4):
        if c:
            a(f"s_mov_b32 s3, {c*E*8}")
        a(f"buffer_load_dwordx4 v[{PL+4*c}:{PL+4*c+3}], v{vO16}, s[{S_P}:{S_P+3}], {'s3' if c else '0'} offen {pld}")
    a(srd(S_M, S_M, E * 8) + srd(S_O, S_O, E * 8))
    a(f"buffer_load_dwordx4 v[{vM}:{vM+3}], v{vO16}, s[{S_M}:{S_M+3}], 0 offen")
    a("s_waitcnt lgkmcnt(0)")
    for k in range(8):
        a(s_unpack(CF + k, CE, k))
    a(f"""
s_max_u32 s{MXS}, s{MXS}, s{MXS+1}
s_max_u32 s{MXS+2}, s{MXS+2}, s{MXS+3}
s_max_u32 s{MXS+4}, s{MXS+4}, s{MXS+5}
s_max_u32 s{MXS}, s{MXS}, s{MXS+2}
s_max_u32 s{MXS}, s{MXS}, s{MXS+4}
s_lshl_b32 s3, s{MXS}, 16
s_and_b32 s3, s3, 0x7f800000
s_add_u32 s3, s3, {2 << 23}
s_waitcnt vmcnt(5)
v_and_b32 v{vD+1}, v{vHi}, v{vD}
v_lshlrev_b32 v{vD}, 16, v{vD}
""")

    st_.init()
    st_()

    def rnd(x):
        a(f"v_cvt_pk_bf16_f32 v{x+1}, v{x}, v{x+1}")
        a(f"v_lshlrev_b32 v{x}, 16, v{x+1}")
        a(f"v_and_b32 v{x+1}, v{vHi}, v{x+1}")

    for r in range(2):
        for k in range(0, 8, 2):
            a(f"v_pk_add_f32 v[{R[r]+k}:{R[r]+k+1}], v[{vD}:{vD+1}], s[{CF+k}:{CF+k+1}] op_sel:[{r},0] op_sel_hi:[{r},1] neg_lo:[0,1] neg_hi:[0,1]")
    allr = [R[r] + k for r in range(2) for k in range(8)]
    for x in allr[::2]:
        rnd(x)
    for x in allr:
        a(f"v_mul_f32 v{x}, v{x}, v{x}")
    for x in allr[::2]:
        rnd(x)
    for x in allr:
        a(f"v_mul_f32 v{x}, 0xc1200000, v{x}")
    for x in allr[::2]:
        rnd(x)
    for x in allr:
        a(f"v_mul_f32 v{x}, 0x3fb8aa3b, v{x}")
    for x in allr:
        a(f"v_exp_f32 v{x}, v{x}")
    a("s_nop 0")
    for r in range(2):
        for kk in range(4):
            a(f"v_cvt_pk_bf16_f32 v{RP[r]+kk}, v{R[r]+2*kk}, v{R[r]+2*kk+1}")

    cnt = [0]

    def wpair(base, kk, c):
        d = sT + (cnt[0] & 3)
        cnt[0] += 1
        op = "s_pack_ll_b32_b16" if c % 2 == 0 else "s_pack_hh_b32_b16"
        a(f"{op} s{d}, s{base + 4*kk + c//2}, s{base + 4*kk + 2 + c//2}")
        return d

    def dotmat(dst, src, base, nk):
        for kk in range(nk):
            for c in range(4):
                w = wpair(base, kk, c)
                for r in range(2):
                    acc = "0" if kk == 0 else f"v{dst[r]+c}"
                    a(f"v_dot2_f32_bf16 v{dst[r]+c}, v{src[r]+kk}, s{w}, {acc}")

    dotmat(H, RP, WR, 4)
    dotmat(G, RP, WSB, 4)
    for r in range(2):
        rnd(H[r])
        rnd(H[r] + 2)
    a(f"""
s_or_b32 s{sT}, s{FL}, s{FL+1}
s_or_b32 s{sT+1}, s{FL+2}, s{FL+3}
s_or_b32 s{sT}, s{sT}, s{sT+1}
v_mov_b32 v{vT}, s3
s_cmp_lg_u32 s{sT}, 0
s_cbranch_scc1 k3_slow
s_waitcnt vmcnt(1)
""")
    for r in range(2):
        for c in range(4):
            reg = 2 * r + c // 2
            hi = c % 2
            d = S[r] + c
            a(f"v_fma_mix_f32 v{d}, v{PL+reg}, 1.0, v{PL+4+reg} op_sel:[{hi},0,{hi}] op_sel_hi:[1,0,1]")
            a(f"v_fma_mix_f32 v{d}, v{PL+8+reg}, 1.0, v{d} op_sel:[{hi},0,0] op_sel_hi:[1,0,0]")
            a(f"v_fma_mix_f32 v{d}, v{PL+12+reg}, 1.0, v{d} op_sel:[{hi},0,0] op_sel_hi:[1,0,0]")
    for r in range(2):
        for c in range(4):
            a(f"v_mul_f32 v{S[r]+c}, v{vT}, v{S[r]+c}")
    a("k3_join:")
    st_()
    AG = (36, 40)
    for j in range(4):
        for cp in range(2):
            d = sT + 2 * ((j * 2 + cp) & 1)
            a(s_unpack(d, WD, j * 4 + cp * 2))
            a(s_unpack(d + 1, WD, j * 4 + cp * 2 + 1))
            for r in range(2):
                sp = S[r] + (j & ~1)
                o = j & 1
                dd = AG[r] + 2 * cp
                if j == 0:
                    a(f"v_pk_mul_f32 v[{dd}:{dd+1}], v[{sp}:{sp+1}], s[{d}:{d+1}] op_sel:[{o},0] op_sel_hi:[{o},1]")
                else:
                    a(f"v_pk_fma_f32 v[{dd}:{dd+1}], v[{sp}:{sp+1}], s[{d}:{d+1}], v[{dd}:{dd+1}] op_sel:[{o},0,0] op_sel_hi:[{o},1,1]")
    for r in range(2):
        for c in range(4):
            a(f"v_mul_f32 v{AG[r]+c}, v{AG[r]+c}, v{G[r]+c}")
    for r in range(2):
        for kk in range(2):
            a(f"v_cvt_pk_bf16_f32 v{RP[r]+kk}, v{AG[r]+2*kk}, v{AG[r]+2*kk+1}")
    dotmat(G, RP, WU, 2)
    a("s_waitcnt vmcnt(0)")
    for r in range(2):
        for cp in range(2):
            a(f"v_lshlrev_b32 v{S[r]+2*cp}, 16, v{vM+2*r+cp}")
            a(f"v_and_b32 v{S[r]+2*cp+1}, v{vHi}, v{vM+2*r+cp}")
    for r in range(2):
        rnd(G[r])
        rnd(G[r] + 2)
    for r in range(2):
        for c in range(4):
            a(f"v_mul_f32 v{G[r]+c}, v{G[r]+c}, v{H[r]+c}")
    for r in range(2):
        rnd(G[r])
        rnd(G[r] + 2)
    for r in range(2):
        for c in range(4):
            a(f"v_add_f32 v{G[r]+c}, v{G[r]+c}, v{S[r]+c}")
    for r in range(2):
        for cp in range(2):
            a(f"v_cvt_pk_bf16_f32 v{vM+2*r+cp}, v{G[r]+2*cp}, v{G[r]+2*cp+1}")
    a(f"""
buffer_store_dwordx4 v[{vM}:{vM+3}], v{vO16}, s[{S_O}:{S_O+3}], 0 offen
""")
    st_()
    st_.flush(61)
    a(f"""
k3_done:
s_endpgm
k3_slow:
""")
    srd_off(a, S_D, sWs, None, P32_OFF, 4 * E * 16)
    a(f"v_lshlrev_b32 v{vT+1}, 1, v{vO16}")
    for i in range(8):
        a(f"v_mov_b32 v{S[0]+i}, 0")
    a("s_waitcnt vmcnt(0)")
    for c in range(4):
        a(f"""
s_cmp_lg_u32 s{FL+c}, 0
s_cbranch_scc1 k3_s32_{c}
""")
        for r in range(2):
            for cc in range(4):
                reg = 2 * r + cc // 2
                a(f"v_fma_mix_f32 v{S[r]+cc}, v{PL+4*c+reg}, v{vT}, v{S[r]+cc} op_sel:[{cc%2},0,0] op_sel_hi:[1,0,0]")
        a(f"""
s_branch k3_sn_{c}
k3_s32_{c}:
buffer_load_dwordx4 v[36:39], v{vT+1}, s[{S_D}:{S_D+3}], 0 offen
buffer_load_dwordx4 v[40:43], v{vT+1}, s[{S_D}:{S_D+3}], 0 offen offset:16
s_waitcnt vmcnt(0)
""")
        for i in range(8):
            a(f"v_add_f32 v{S[0]+i}, v{S[0]+i}, v{36+i}")
        a(f"k3_sn_{c}:")
        a(f"v_add_u32 v{vT+1}, {E*16}, v{vT+1}")
    a("s_branch k3_join")
    return a.s


k2, k2v, k2lds = gen_k2()
out = HEADER
out += "; K1: 2-D fine binning of triplets (register-resident tile), K2: LDS gather + integer LDS accumulation + finalize\n"
out += f"; @launch kernel=k1_kernel grid=({NT+NMX},1,1) block=(1024,1,1) lds={LDS_ALL}\n"
out += f"; @launch kernel=k2_kernel grid=(256,1,1) block=(1024,1,1) lds={k2lds}\n"
if OPT['fuse'] == '0':
    out += "; @launch kernel=k3_kernel grid=(1600,1,1) block=(128,1,1) lds=0\n"
out += '.amdgcn_target "amdgcn-amd-amdhsa--gfx950"\n'
out += kernel_begin('k1_kernel') + gen_k1()
out += kernel_begin('k2_kernel') + k2
if OPT['fuse'] == '0':
    out += kernel_begin('k3_kernel') + gen_k3()
out += kernel_desc('k1_kernel', 128, 80) + kernel_desc('k2_kernel', k2v, 102)
if OPT['fuse'] == '0':
    out += kernel_desc('k3_kernel', 70, 102 if OPT['diag'] == '1' else 98)
open(sys.argv[1], 'w').write(out)
```

```python
import sys
sys.path.insert(0, 'dev')
from common import *

NT = 256
NMX = 0
TILE = 50000
RB = 6250
CB = 5000
NCB = 80
NPH = 20
F = 64 * NCB
TGB = 20120 * 16
TABS = (F + 4) * 4
CAPG = 6826
CAP8 = CAPG * 24
REC_OFF = 0
TAB_OFF = 0x5000000
MAX_OFF = 0x5510000
FLAG_OFF = 0x5511000
HF_OFF = 0x5514000
PART_OFF = 0x5600000
P32_OFF = 0x6400000
DIAG_OFF = 0xFC00000
LDS_ALL = 163840
assert NT * TGB <= TAB_OFF and TAB_OFF + NT * TABS <= MAX_OFF

OPT = dict(ld='nt', st='', k2ld='', pst='', pld='', diag='0', depth='3', ne='4', nm='1', abl='', rb='0', fuse='1', abl2='', clk='0', tid='1', wb='0', fine='0', fr='2', fn='12', gs='10', vf='0', pst2='0', ff='1', q0a='1', cp='1')
for a_ in sys.argv[2:]:
    k_, v_ = a_.split('=')
    OPT[k_] = v_.replace('+', ' ')

BFI = "bitop3:0xca"
ANDOR = "bitop3:0xea"


class A:
    def __init__(self):
        self.s = ""

    def __call__(self, txt):
        for l in txt.strip('\n').split('\n'):
            l = l.strip()
            if not l:
                continue
            self.s += ("" if l.endswith(':') else "    ") + l + "\n"


def srd_off(a, d, ptr, off_sgpr, off_imm, nbytes):
    if off_sgpr is not None:
        a(f"s_add_u32 s{d}, s{ptr}, s{off_sgpr}")
        a(f"s_addc_u32 s{d+1}, s{ptr+1}, 0")
        if off_imm:
            a(f"s_add_u32 s{d}, s{d}, {off_imm}")
            a(f"s_addc_u32 s{d+1}, s{d+1}, 0")
    else:
        a(f"s_add_u32 s{d}, s{ptr}, {off_imm}")
        a(f"s_addc_u32 s{d+1}, s{ptr+1}, 0")
    a(f"s_mov_b32 s{d+2}, {nbytes}")
    a(f"s_mov_b32 s{d+3}, 0x00020000")


class Stamper:
    def __init__(self, a, kidx, sbase, wsptr, vtmp, srd):
        self.a, self.k, self.sb, self.ws, self.v, self.srd = a, kidx, sbase, wsptr, vtmp, srd
        self.on = OPT['diag'] == '1'

    def start(self):
        if self.on:
            self.a(f"s_memrealtime s[{self.sb+2}:{self.sb+3}]")

    def init(self):
        if not self.on:
            return
        a, sb = self.a, self.sb
        a(f"s_mov_b64 s[{sb}:{sb+1}], exec")
        a(f"s_mov_b64 exec, -1")
        a(f"v_mov_b32 v{self.v}, 0")
        a(f"s_mov_b64 exec, s[{sb}:{sb+1}]")
        a(f"v_writelane_b32 v{self.v}, s{sb+2}, 0")
        a(f"s_mov_b32 s{sb+3}, 1")

    def __call__(self):
        if not self.on:
            return
        a, sb = self.a, self.sb
        a(f"s_memrealtime s[{sb}:{sb+1}]")
        a(f"s_mov_b32 s{sb+2}, m0")
        a(f"s_mov_b32 m0, s{sb+3}")
        a("s_waitcnt lgkmcnt(0)")
        a(f"v_writelane_b32 v{self.v}, s{sb}, m0")
        a(f"s_add_u32 s{sb+3}, s{sb+3}, 1")
        if OPT['clk'] == '1':
            a(f"s_memtime s[{sb}:{sb+1}]")
            a(f"s_add_u32 m0, s{sb+3}, 31")
            a("s_waitcnt lgkmcnt(0)")
            a(f"v_writelane_b32 v{self.v}, s{sb}, m0")
        a(f"s_mov_b32 m0, s{sb+2}")

    def flush(self, vt):
        if not self.on:
            return
        a, sb = self.a, self.sb
        a(f"s_lshl_b32 s{sb}, s2, 8")
        srd_off(a, self.srd, self.ws, sb, DIAG_OFF + self.k * 0x100000, 256)
        a(f"s_mov_b64 exec, -1")
        a(f"v_cmp_gt_u32 vcc, 64, v0")
        a(f"s_and_b64 exec, exec, vcc")
        a(f"v_lshlrev_b32 v{vt}, 2, v0")
        a(f"buffer_store_dword v{self.v}, v{vt}, s[{self.srd}:{self.srd+3}], 0 offen")
        a(f"s_mov_b64 exec, -1")


def scan(a, op, v, full=True):
    for sh in (1, 2, 4, 8):
        a(f"{op}_dpp v{v}, v{v}, v{v} row_shr:{sh} row_mask:0xf bank_mask:0xf")
        a("s_nop 1")
    if full:
        a(f"{op}_dpp v{v}, v{v}, v{v} row_bcast:15 row_mask:0xa bank_mask:0xf")
        a("s_nop 1")
        a(f"{op}_dpp v{v}, v{v}, v{v} row_bcast:31 row_mask:0xc bank_mask:0xf")
        a("s_nop 1")


def code_touch(a, sp, vt, end_label, tag):
    if OPT['cp'] != '1':
        return 0
    a(f"""
s_getpc_b64 s[{sp}:{sp+1}]
{tag}_pc:
v_lshlrev_b32 v{vt}, 6, v0
v_min_u32 v{vt}, {end_label}-{tag}_pc-4, v{vt}
v_mov_b32 v{vt+1}, s{sp+1}
v_add_co_u32 v{vt}, vcc, s{sp}, v{vt}
s_nop 1
v_addc_co_u32 v{vt+1}, vcc, 0, v{vt+1}, vcc
global_load_dword v{vt}, v[{vt}:{vt+1}], off
""")
    return 1


EXEC63 = "s_mov_b32 exec_lo, 0\ns_mov_b32 exec_hi, 0x80000000"


def gen_k1():
    a = A()
    ld, st = OPT['ld'], OPT['st']
    D = int(OPT['depth'])
    WT = 20480
    STG0 = 20736
    CAPG0 = (LDS_ALL - STG0) // 24
    AN = 18
    S_O, S_I, S_A, S_R, S_T, S_F = 4, 8, 12, 16, 20, 24
    P = 28
    sW, sMR, sMC, sNR, sNC, sG, sLo8, sT0, sT1, sCap8, sRem, sSo, sHi, sCGK, sCapG = range(40, 55)
    vC, vAng, vT16, vDma = 1, 2, 3, 4
    vFq = 5
    T0 = 6
    RX = 30
    vMq = 22
    sV = 62
    sMax = 64
    S_X = 68
    RQ = 32
    vA48 = 27
    vSt = 26

    def rec(slot):
        if slot >= 48:
            return RX + 2 * (slot - 48)
        q, k = divmod(slot, 4)
        return RQ + q * 8 + (0, 4, 2, 6)[k]

    st_ = Stamper(a, 0, 56, P + 10, vSt, S_O)
    st_.start()
    a(f"""
s_cmp_ge_u32 s2, {NT+NMX}
s_cbranch_scc1 k1_done
s_load_dwordx4 s[{P}:{P+3}], s[0:1], {KA['m']}
s_load_dwordx2 s[{P+4}:{P+5}], s[0:1], {KA['idx_out']}
s_load_dwordx2 s[{P+6}:{P+7}], s[0:1], {KA['angle']}
s_load_dwordx2 s[{P+8}:{P+9}], s[0:1], {KA['ang_freq']}
s_load_dwordx2 s[{P+10}:{P+11}], s[0:1], {KA['ws']}
s_load_dwordx2 s[{S_X}:{S_X+1}], s[0:1], {KA['dist']}
""")
    code_touch(a, 60, 28, "k2_code_end", "k1ct")
    a(f"""
v_lshrrev_b32 v{T0}, 6, v0
v_lshlrev_b32 v{vT16}, 4, v0
v_readfirstlane_b32 s{sW}, v{T0}
v_mov_b32 v{T0+4}, 0
v_mov_b32 v{T0+5}, 0
v_mov_b32 v{T0+6}, 0
v_mov_b32 v{T0+7}, 0
v_lshlrev_b32 v{T0+1}, 2, v0
ds_write_b128 v{vT16}, v[{T0+4}:{T0+7}]
ds_write_b32 v{T0+1}, v{T0+4} offset:16384
v_mov_b32 v{T0+2}, {WT+64}
ds_write_b64 v{T0+2}, v[{T0+4}:{T0+5}]
v_mov_b32 v{T0+2}, 848
v_cmp_lt_u32 s[{sV}:{sV+1}], v0, v{T0+2}
v_mov_b32 v{vC}, 1
s_mov_b32 s{sMR}, 687195
s_mov_b32 s{sMC}, 858994
s_mov_b32 s{sNR}, {-RB}
s_mov_b32 s{sNC}, {-CB}
s_mov_b32 s{sCap8}, {CAP8}
s_mov_b32 s{sCGK}, {63*NPH*4}
s_mul_i32 s{sT0}, s2, {TILE*4}
s_mul_i32 s{sT1}, s2, {TILE*2}
s_waitcnt lgkmcnt(0)
s_barrier
""")
    srd_off(a, S_O, P + 4, sT0, 0, TILE * 4)
    srd_off(a, S_I, P + 2, sT0, 0, TILE * 4)
    srd_off(a, S_A, P + 6, sT1, 0, TILE * 2)

    vm = []

    def issue_pair(q):
        if q < 12:
            b = RQ + q * 8
            a(f"s_mov_b32 s{sT0}, {q*16384}")
            a(f"buffer_load_dwordx4 v[{b}:{b+3}], v{vT16}, s[{S_O}:{S_O+3}], s{sT0} offen {ld}")
            a(f"buffer_load_dwordx4 v[{b+4}:{b+7}], v{vT16}, s[{S_I}:{S_I+3}], s{sT0} offen {ld}")
            vm.extend([('O', q), ('I', q)])
        elif q == 12:
            a(f"""
v_lshrrev_b32 v{vA48}, 2, v{vT16}
v_add_u32 v{vA48}, {49152*4}, v{vA48}
buffer_load_dword v{RX}, v{vA48}, s[{S_O}:{S_O+3}], 0 offen {ld}
buffer_load_dword v{RX+1}, v{vA48}, s[{S_I}:{S_I+3}], 0 offen {ld}
v_lshrrev_b32 v{vA48}, 1, v{vA48}
buffer_load_ushort v{vA48}, v{vA48}, s[{S_A}:{S_A+3}], 0 offen {ld}
""")
            vm.extend([('O', 12), ('I', 12), ('A', 48)])

    def issue_ang(q):
        if q < 12:
            an = AN + 2 * (q % 4)
            a(f"s_mov_b32 s{sT1}, {q*8192}")
            a(f"buffer_load_dwordx2 v[{an}:{an+1}], v{vAng}, s[{S_A}:{S_A+3}], s{sT1} offen {ld}")
            vm.append(('D', q))

    def wait_for(key):
        n = len(vm) - 1 - vm.index(key)
        a(f"s_waitcnt vmcnt({n})")

    srd_off(a, S_F, P + 8, None, 0, 2)
    a(f"""
v_mov_b32 v{vFq}, 0
v_lshrrev_b32 v{vAng}, 1, v{vT16}
buffer_load_ushort v{vFq}, v{vFq}, s[{S_F}:{S_F+3}], 0 offen
""")
    vm.append(('F', 0))
    for q in range(D):
        issue_pair(q)
        if q < int(OPT['ne']):
            issue_ang(q)
    vMq = RQ + 88

    def small_loads():
        srd_off(a, S_F, P, None, 0, E * 8)
        a(f"""
s_mul_i32 s{sT0}, s2, {782*16}
v_add_u32 v{T0}, s{sT0}, v{vT16}
v_mov_b32 v{T0+2}, 782
v_cmp_lt_u32 s[{sMax}:{sMax+1}], v0, v{T0+2}
v_mov_b32 v{T0+2}, 0xffff0000
s_mul_i32 s{sT0}, s2, {25*128}
v_cndmask_b32 v{T0}, v{T0+2}, v{T0}, s[{sMax}:{sMax+1}]
buffer_load_dwordx4 v[{vMq}:{vMq+3}], v{T0}, s[{S_F}:{S_F+3}], 0 offen
v_min_u32 v{T0+1}, 24, v0
v_lshlrev_b32 v{T0+1}, 7, v{T0+1}
v_add_u32 v{T0+1}, s{sT0}, v{T0+1}
s_mov_b32 s{S_X+2}, {E*2}
s_mov_b32 s{S_X+3}, 0x00020000
buffer_load_dword v29, v{T0+1}, s[{S_X}:{S_X+3}], 0 offen
""")
        vm.extend([('M', 0), ('X', 0)])

    a(f"""
s_mov_b32 s{sHi}, 0xffff0000
s_mul_i32 s{sT0}, s2, {TGB}
""")
    srd_off(a, S_R, P + 10, sT0, REC_OFF, TGB)
    a(f"s_mul_i32 s{sT0}, s2, {TABS}")
    srd_off(a, S_T, P + 10, sT0, TAB_OFF, TABS)
    st_.init()
    st_()
    def stats():
        wait_for(('M', 0))
        for k in range(4):
            a(f"v_and_b32 v{vMq+k}, 0x7fff7fff, v{vMq+k}")
        a(f"""
v_pk_max_u16 v{T0}, v{vMq}, v{vMq+1}
v_pk_max_u16 v{T0+1}, v{vMq+2}, v{vMq+3}
v_pk_max_u16 v{T0}, v{T0}, v{T0+1}
v_lshrrev_b32 v{T0+1}, 16, v{T0}
v_and_b32 v{T0}, 0xffff, v{T0}
v_max_u32 v{T0}, v{T0}, v{T0+1}
v_mov_b32 v{T0+1}, 0
""")
        for k in range(4):
            a(f"v_lshlrev_b32 v{T0+2}, 16, v{vMq+k}")
            a(f"v_and_b32 v{T0+3}, 0xffff0000, v{vMq+k}")
            a(f"v_add_f32 v{T0+1}, v{T0+1}, v{T0+2}")
            a(f"v_add_f32 v{T0+1}, v{T0+1}, v{T0+3}")
        a(f"v_mov_b32 v{T0+2}, {WT+64}")
        scan(a, "v_max_u32", T0)
        scan(a, "v_add_f32", T0 + 1)
        a(f"""
{EXEC63}
ds_max_u32 v{T0+2}, v{T0}
ds_add_f32 v{T0+2}, v{T0+1} offset:4
s_mov_b64 exec, -1
""")

    t1, t2, tR1, tR3 = T0, T0 + 1, T0 + 2, T0 + 3
    tb = T0 + 4

    def binning(ro, ri, dst_rl, tbk, masked=False):
        a(f"""
v_mul_hi_u32_u24 v{t1}, s{sMR}, v{ro}
v_mul_hi_u32_u24 v{t2}, s{sMC}, v{ri}
v_mad_i32_i24 v{dst_rl}, v{t1}, s{sNR}, v{ro}
v_mul_u32_u24 v{t1}, {NPH*4}, v{t1}
v_mad_i32_i24 v{ri}, v{t2}, s{sNC}, v{ri}
v_lshl_add_u32 v{tbk}, v{t2}, 2, v{t1}
v_mul_u32_u24 v{t2}, 205, v{t2}
v_lshrrev_b32 v{t2}, 12, v{t2}
v_mad_u32_u24 v{tbk}, v{t2}, s{sCGK}, v{tbk}
""")
        if masked:
            a(f"s_mov_b64 exec, s[{sV}:{sV+1}]")
        a(f"ds_add_u32 v{tbk}, v{vC}")
        if masked:
            a("s_mov_b64 exec, -1")

    def packpair(o0, o1, i0, i1, tR, b0, b1):
        a(f"""
v_lshrrev_b32 v{t1}, 10, v{i0}
v_lshrrev_b32 v{t2}, 10, v{i1}
v_lshl_or_b32 v{o0}, v{o0}, 3, v{t1}
v_lshl_or_b32 v{o1}, v{i0}, 22, v{b0}
v_lshl_or_b32 v{i0}, v{tR}, 3, v{t2}
v_lshl_or_b32 v{i1}, v{i1}, 22, v{b1}
""")

    def cospair(src, w_lo, w_hi, xx, one):
        a(f"""
v_lshlrev_b32 v{xx}, 16, v{src}
v_and_b32 v{xx+1}, 0xffff0000, v{src}
""")
        if not one:
            a(f"""
v_mul_f32 v{xx}, v{vFq}, v{xx}
v_mul_f32 v{xx+1}, v{vFq}, v{xx+1}
v_cvt_pk_bf16_f32 v{xx+1}, v{xx}, v{xx+1}
v_lshlrev_b32 v{xx}, 16, v{xx+1}
v_and_b32 v{xx+1}, 0xffff0000, v{xx+1}
""")
        a(f"""
v_mul_f32 v{xx}, 0.15915494, v{xx}
v_mul_f32 v{xx+1}, 0.15915494, v{xx+1}
v_fract_f32 v{xx}, v{xx}
v_fract_f32 v{xx+1}, v{xx+1}
v_cos_f32 v{xx}, v{xx}
v_cos_f32 v{xx+1}, v{xx+1}
s_nop 0
v_cvt_pk_bf16_f32 v{xx}, v{xx}, v{xx+1}
v_lshl_or_b32 v{w_lo}, v{xx}, 16, v{w_lo}
v_and_or_b32 v{w_hi}, v{xx}, s{sHi}, v{w_hi}
""")

    NE = int(OPT['ne'])
    for q in range(13):
        if q == 6:
            stats()
        wait_for(('I', q))
        issue_pair(q + D)
        if q + D < NE:
            issue_ang(q + D)
        if q == 2:
            small_loads()
        if q < 12:
            r = RQ + q * 8
            for k in range(4):
                binning(r + k, r + 4 + k, r + k if k % 2 == 0 else (tR1 if k == 1 else tR3), tb + k)
            packpair(r, r + 1, r + 4, r + 5, tR1, tb, tb + 1)
            packpair(r + 2, r + 3, r + 6, r + 7, tR3, tb + 2, tb + 3)
            if q < NE:
                wait_for(('D', q))
                if q == 0:
                    a(f"v_lshlrev_b32 v{vFq}, 16, v{vFq}")
                an = AN + 2 * (q % 4)
                cospair(an, rec(q * 4), rec(q * 4 + 1), T0 + 8, False)
                cospair(an + 1, rec(q * 4 + 2), rec(q * 4 + 3), T0 + 10, False)
        else:
            binning(RX, RX + 1, RX, tb, True)
            a(f"""
v_lshrrev_b32 v{t1}, 10, v{RX+1}
v_lshl_or_b32 v{RX}, v{RX}, 3, v{t1}
v_lshl_or_b32 v{RX+1}, v{RX+1}, 22, v{tb}
""")
    for q in range(NE, NE + 4):
        issue_ang(q)
    a("""
s_waitcnt lgkmcnt(0)
s_barrier
""")
    st_()
    c = T0
    g = T0 + 6
    tm = T0 + 11
    vA, vS, vI = vAng, vDma, vC
    a(f"v_mul_u32_u24 v{vA}, 20, v0")
    for i in range(5):
        a(f"ds_read_b32 v{c+i}, v{vA} offset:{4*i}")
    a(f"s_mov_b32 s{sT0}, 43691")
    if NE == 0:
        a(f"v_lshlrev_b32 v{vFq}, 16, v{vFq}")
    a("s_waitcnt lgkmcnt(0)")
    for i in range(5):
        a(f"v_add_u32 v{g+i}, 2, v{c+i}")
        a(f"v_mul_u32_u24 v{g+i}, s{sT0}, v{g+i}")
        a(f"v_lshrrev_b32 v{g+i}, 17, v{g+i}")
    a(f"""
v_add3_u32 v{vS}, v{g}, v{g+1}, v{g+2}
v_add3_u32 v{vS}, v{vS}, v{g+3}, v{g+4}
v_mov_b32 v{vI}, v{vS}
s_lshl_b32 s{sT0}, s{sW}, 2
s_add_u32 s{sT0}, s{sT0}, {WT}
""")
    scan(a, "v_add_u32", vI)
    a(f"""
v_mov_b32 v{tm}, s{sT0}
{EXEC63}
ds_write_b32 v{tm}, v{vI}
s_mov_b64 exec, -1
""")
    for i in range(5):
        a(f"v_mul_u32_u24 v{c+5}, 3, v{g+i}")
        a(f"v_sub_u32 v{c+5}, v{c+5}, v{c+i}")
        a(f"v_min_u32 v{c+i}, 0x1fff, v{c+i}")
        a(f"v_lshl_or_b32 v{c+i}, v{c+i}, 19, v{c+5}")
    a(f"""
v_sub_u32 v{vI}, v{vI}, v{vS}
v_and_b32 v{tm}, 15, v0
v_lshlrev_b32 v{tm}, 2, v{tm}
v_readfirstlane_b32 s{sLo8}, v{vFq}
s_waitcnt lgkmcnt(0)
s_barrier
ds_read_b32 v{tm}, v{tm} offset:{WT}
v_mov_b32 v28, {WT+64}
ds_read_b64 v[28:29], v28
s_waitcnt lgkmcnt(0)
v_mov_b32 v{vS}, v{tm}
v_and_b32 v29, 0xffff0000, v29
v_or_b32 v28, v28, v29
""")
    scan(a, "v_add_u32", tm, full=False)
    a(f"""
v_readlane_b32 s{sG}, v{tm}, 15
v_sub_u32 v{vS}, v{tm}, v{vS}
s_nop 0
v_readlane_b32 s{sT0}, v{vS}, s{sW}
s_nop 1
v_add_u32 v{vI}, s{sT0}, v{vI}
""")
    for i in range(5):
        t = (tm, vS)[i & 1]
        a(f"v_mul_u32_u24 v{t}, 24, v{vI}")
        a(f"v_lshl_or_b32 v{c+i}, v{vI}, 4, v{c+i}")
        a(f"ds_write_b32 v{vA}, v{t} offset:{4*i}")
        a(f"v_add_u32 v{vI}, v{vI}, v{g+i}")
    vM22 = vDma
    a(f"""
v_lshlrev_b32 v{c+5}, 4, v{vI}
buffer_store_dwordx4 v[{c}:{c+3}], v{vA}, s[{S_T}:{S_T+3}], 0 offen
buffer_store_dword v{c+4}, v{vA}, s[{S_T}:{S_T+3}], 0 offen offset:16
v_mov_b32 v{tm}, 1023
v_cmp_eq_u32 s[{P}:{P+1}], v0, v{tm}
v_mov_b32 v{vC}, 8
v_mov_b32 v{tm}, 0xffff0000
v_cndmask_b32 v{vA}, v{tm}, v{vA}, s[{P}:{P+1}]
buffer_store_dword v{c+5}, v{vA}, s[{S_T}:{S_T+3}], 0 offen offset:20
v_mov_b32 v{vM22}, 0x3fffff
v_lshrrev_b32 v{vAng}, 1, v{vT16}
s_mov_b32 s{sRem}, {CAPG0*24}
s_min_u32 s{sG}, s{sG}, 20080
v_readfirstlane_b32 s{sMax}, v28
s_waitcnt lgkmcnt(0)
s_barrier
""")
    vm.extend([('S', 0), ('S', 1), ('S', 2)])
    st_()
    pt = (T0, T0 + 4)
    x = T0 + 8

    def slots(q):
        return range(4 * q, 4 * q + (4 if q < 12 else 1))

    def issue(q, s):
        for k, sl in enumerate(slots(q)):
            a(f"v_and_b32 v{pt[s]+k}, v{vM22}, v{rec(sl)+1}")
            if sl == 48:
                a(f"v_cndmask_b32 v{pt[s]+k}, v{vM22}, v{pt[s]+k}, s[{sV}:{sV+1}]")
                a(f"s_mov_b64 exec, s[{sV}:{sV+1}]")
            a(f"ds_add_rtn_u32 v{pt[s]+k}, v{pt[s]+k}, v{vC}")
            if sl == 48:
                a("s_mov_b64 exec, -1")

    def consume(q, s, pending, one):
        if q < NE:
            pass
        elif q < 12:
            an = AN + 2 * (q % 4)
            wait_for(('D', q))
            cospair(an, rec(q * 4), rec(q * 4 + 1), x, one)
            cospair(an + 1, rec(q * 4 + 2), rec(q * 4 + 3), x + 2, one)
            issue_ang(q + 4)
        else:
            wait_for(('A', 48))
            cospair(vA48, rec(48), 29, x, one)
        a(f"s_waitcnt lgkmcnt({pending})")
        for k, sl in enumerate(slots(q)):
            w = rec(sl)
            a(f"v_bitop3_b32 v{w+1}, v{vM22}, v{pt[s]+k}, v{w+1} {BFI}")
        for k, sl in enumerate(slots(q)):
            w = rec(sl)
            a(f"""
v_cmpx_gt_u32 vcc, s{sRem}, v{pt[s]+k}
ds_write_b64 v{pt[s]+k}, v[{w}:{w+1}] offset:{STG0}
s_mov_b64 exec, -1
""")

    def merged(one):
        late = list(range(NE, 12))
        order = [12] + late[:4] + list(range(NE)) + late[4:]
        issue(order[0], 0)
        for n, q in enumerate(order):
            if n + 1 < len(order):
                issue(order[n + 1], (n + 1) & 1)
                consume(q, n & 1, 4, one)
            else:
                consume(q, n & 1, 0, one)

    if OPT['ff'] == '1':
        a(f"s_cmp_lg_u32 s{sLo8}, 0x3f800000")
        a("s_cbranch_scc1 k1_gen")
        save = list(vm)
        merged(True)
        a("k1_mj:")
        done = a.s
        a.s = ""
        vm[:] = save
        a("k1_gen:")
        merged(False)
        a("s_branch k1_mj")
        gen_code = a.s
        a.s = done
    else:
        merged(False)
        gen_code = ""
    vLo, vT24, vMx, vB = vC, vAng, vDma, vFq
    a(f"""
v_mov_b32 v{vLo}, {CAPG0*24}
v_mul_u32_u24 v{vT24}, 24, v0
v_add_u32 v{vT24}, {STG0}, v{vT24}
v_mov_b32 v{vMx}, 0xffc00000
s_mov_b32 s{sSo}, 0
s_mov_b32 s{sCapG}, {CAPG0}
k1_co:
s_min_u32 s{sRem}, s{sG}, s{sCapG}
s_waitcnt lgkmcnt(0)
s_barrier
""")
    st_()
    qb = T0

    def rd(q3, addr, o):
        for n2, r2 in enumerate(q3):
            a(f"ds_read_b64 v[{r2}:{r2+1}], v{addr} offset:{o+8*n2}")

    def pk(q, r4):
        a(f"""
v_lshrrev_b32 v{r4+1}, 10, v{r4+1}
v_bitop3_b32 v{r4+1}, v{vMx}, v{q+3}, v{r4+1} {BFI}
v_mov_b32 v{q+3}, v{r4}
v_lshrrev_b32 v{r4+1}, 10, v{r4+1}
v_bitop3_b32 v{q+1}, v{vMx}, v{q+1}, v{r4+1} {BFI}
""")

    def stq(q, it):
        a(f"""
s_sub_i32 s{sT0}, s{sRem}, {it*1024}
s_add_u32 s{sT1}, s{sSo}, {it*16384}
v_cmpx_gt_i32 vcc, s{sT0}, v0
buffer_store_dwordx4 v[{q}:{q+3}], v{vT16}, s[{S_R}:{S_R+3}], s{sT1} offen {st}
s_mov_b64 exec, -1
""")

    Q = (qb, qb + 6, qb + 12)
    Q6 = qb + 18 if not st_.on else None
    for n2 in range(3):
        rd((Q[n2], Q[n2] + 2, Q[n2] + 4), vT24, n2 * 24576)
    a(f"v_add_u32 v{vB}, {3*24576}, v{vT24}")
    for n2 in range(3):
        a(f"s_waitcnt lgkmcnt({3*(2-n2)})")
        pk(Q[n2], Q[n2] + 4)
        stq(Q[n2], n2)
    if Q6 is None:
        a(f"v_add_u32 v{vA48}, {6*24576}, v{vT24}")
        a(f"v_min_u32 v{vA48}, {LDS_ALL-24}, v{vA48}")
        rd((Q[0], Q[0] + 2, Q[0] + 4), vA48, 0)
        a("s_waitcnt lgkmcnt(0)")
        pk(Q[0], Q[0] + 4)
        stq(Q[0], 6)
    rd((Q[0], Q[0] + 2, Q[0] + 4), vB, 0)
    rd((Q[1], Q[1] + 2, Q[1] + 4), vB, 24576)
    a(f"v_min_u32 v{vB}, {LDS_ALL-24-49152}, v{vB}")
    rd((Q[2], Q[2] + 2, Q[2] + 4), vB, 49152)
    a(f"v_add_u32 v{vB}, {6*24576}, v{vT24}")
    a(f"v_min_u32 v{vB}, {LDS_ALL-24}, v{vB}")
    a("s_waitcnt lgkmcnt(6)")
    pk(Q[0], Q[0] + 4)
    deferred = [(Q[0], 3), (Q[1], 4), (Q[2], 5)]
    if Q6 is not None:
        rd((Q6, Q6 + 2, Q[0] + 4), vB, 0)
        a("s_waitcnt lgkmcnt(6)")
        pk(Q[1], Q[1] + 4)
        a("s_waitcnt lgkmcnt(3)")
        pk(Q[2], Q[2] + 4)
        a("s_waitcnt lgkmcnt(0)")
        pk(Q6, Q[0] + 4)
        deferred.append((Q6, 6))
    else:
        a("s_waitcnt lgkmcnt(3)")
        pk(Q[1], Q[1] + 4)
        a("s_waitcnt lgkmcnt(0)")
        pk(Q[2], Q[2] + 4)
    a(f"""
s_sub_u32 s{sG}, s{sG}, s{sRem}
s_cmp_eq_u32 s{sG}, 0
s_cbranch_scc1 k1_fin
s_barrier
""")
    st_()
    tmps = (Q[0] + 4, Q[0] + 5, Q[1] + 4, Q[1] + 5)
    for sl in range(49):
        w = rec(sl)
        t = tmps[sl & 3]
        a(f"""
v_sub_u32 v{t}, v{w+1}, v{vLo}
v_and_b32 v{t}, 0x3fffff, v{t}
v_cmpx_gt_u32 vcc, s{sCap8}, v{t}
ds_write_b64 v{t}, v[{w}:{w+1}]
s_mov_b64 exec, -1
""")
        if sl % 10 == 4 and sl // 10 < len(deferred):
            stq(*deferred[sl // 10])
    a(f"""
v_add_u32 v{vLo}, {CAP8}, v{vLo}
v_mul_u32_u24 v{vT24}, 24, v0
s_lshl_b32 s{sT0}, s{sRem}, 4
s_add_u32 s{sSo}, s{sSo}, s{sT0}
s_mov_b32 s{sCapG}, {CAPG}
s_branch k1_co
k1_fin:
""")
    for d in deferred:
        stq(*d)
    st_()
    if st_.on:
        a("s_waitcnt vmcnt(0)")
    st_()
    st_.flush(T0)
    a(f"""
s_cmp_lg_u32 s{sW}, 0
s_cbranch_scc1 k1_done
s_load_dwordx2 s[20:21], s[0:1], {KA['centers']}
s_load_dwordx8 s[4:11], s[0:1], {KA['w_rbf']}
""")
    srd_off(a, S_X, P + 10, None, MAX_OFF, HF_OFF - MAX_OFF + 8192)
    a(f"""
s_lshl_b32 s{sT0}, s2, 5
s_add_u32 s{sT0}, s{sT0}, {HF_OFF - MAX_OFF}
s_lshl_b32 s{sT1}, s2, 2
v_lshlrev_b32 v28, 2, v0
v_add_u32 v28, s{sT0}, v28
v_mov_b32 v29, 0
v_writelane_b32 v28, s{sT1}, 8
v_writelane_b32 v29, s{sMax}, 8
s_mov_b64 exec, 0x1ff
buffer_store_dword v29, v28, s[{S_X}:{S_X+3}], 0 offen
s_waitcnt lgkmcnt(0)
s_load_dword s22, s[20:21], 0
s_load_dword s23, s[4:5], 0
s_load_dword s24, s[6:7], 0
s_load_dword s25, s[8:9], 0
s_load_dword s26, s[10:11], 0
k1_done:
s_endpgm
""")
    a.s += gen_code
    return a.s


def gen_k2():
    a = A()
    o = A()
    ld, pst = OPT['k2ld'], OPT['pst']
    abl = OPT['abl']
    ACC = 40960
    ACCB = 50000
    NW = ACC + 2 * ACCB
    S_R, S_T, S_M, S_P = 4, 8, 12, 16
    P = 20
    MXS = 24
    sW, sRb, sCg, sJ, sMo, sMode, sPf, sT0, sT1, sT2, sCarry, sTot, sXw, sCo = range(32, 46)
    sNK = 46
    sA, sB, sC, sD = 48, 50, 52, 54
    MK = (56, 62)
    MN = (68, 74)
    MX = (80, 86)
    TOT = (92, 93)
    sRet = P
    MS = MXS
    vL16, vBase, vT16, vLW, vMagic, vMHi, vSt = 1, 2, 3, 4, 5, 6, 7
    HR = 8
    vC0 = 10
    vX0 = 12
    MP = 14
    GA = 24
    PT = 30
    HQ = 34
    XT = 42
    RS = 46
    GX = 50
    FT = 56
    EN = 64
    RC = (88, 92)
    RXW = (96, 100)
    TH = 104
    MP2 = 108
    MPS = (MP, MP2)
    AD = 118
    vO16, vD, vM = 121, 122, 124
    NVG = 128
    sTN = 100
    sWk = 101
    sMsc = 3
    sXp = 94
    TID = OPT['tid'] == '1'

    st_ = Stamper(a, 1, 96, P + 2, vSt, S_M if OPT['fuse'] == '1' else S_R)
    st_.start()
    a(f"""
s_cmp_ge_u32 s2, 256
s_cbranch_scc1 k2_done
s_load_dwordx2 s[{P}:{P+1}], s[0:1], {KA['m']}
s_load_dwordx2 s[{P+2}:{P+3}], s[0:1], {KA['ws']}
s_load_dwordx2 s[{S_P}:{S_P+1}], s[0:1], {KA['dist']}
s_load_dwordx2 s[{MN[0]}:{MN[0]+1}], s[0:1], {KA['centers']}
s_load_dwordx4 s[{MX[0]}:{MX[0]+3}], s[0:1], {KA['w_rbf']}
s_load_dwordx4 s[{MX[0]+4}:{MX[0]+7}], s[0:1], {KA['w_down']}
""")
    code_touch(a, sA, RS, "k2_code_end", "k2ct")
    a(f"""
v_lshrrev_b32 v{FT}, 6, v0
v_and_b32 v{FT+1}, 63, v0
v_readfirstlane_b32 s{sW}, v{FT}
v_lshlrev_b32 v{vT16}, 4, v0
v_lshlrev_b32 v{vL16}, 4, v{FT+1}
s_and_b32 s{sT0}, s2, 7
s_lshr_b32 s{sCg}, s{sT0}, 1
s_lshr_b32 s{sRb}, s2, 3
s_and_b32 s{sT0}, s2, 1
s_lshl_b32 s{sT0}, s{sT0}, 5
s_add_u32 s{sRb}, s{sRb}, s{sT0}
s_lshl_b32 s{sCo}, s{sCg}, 6
s_add_u32 s{sCo}, s{sCo}, s{sRb}
v_lshrrev_b32 v{vLW}, 1, v{vT16}
v_add_u32 v{vLW}, 32768, v{vLW}
v_min_u32 v{vLW}, {CB*8-8}, v{vLW}
s_mul_i32 s{sMo}, s{sCg}, {NPH*CB*8}
s_mov_b32 s{sT2}, 0xffff0000
s_mov_b32 s{sT1}, {TGB}
v_mov_b32 v{vMHi}, 0xffff0000
s_cmp_lt_u32 s{sW}, 4
s_cbranch_scc1 k2_rl0
v_add_u32 v{FT+4}, -256, v0
v_mul_u32_u24 v{FT+2}, 0xaaab, v{FT+4}
v_lshrrev_b32 v{FT+2}, 17, v{FT+2}
v_mul_u32_u24 v{FT+3}, 3, v{FT+2}
v_sub_u32 v{FT+3}, v{FT+4}, v{FT+3}
s_branch k2_rl1
k2_rl0:
v_mov_b32 v{FT+2}, v0
v_mov_b32 v{FT+3}, 3
k2_rl1:
v_mul_u32_u24 v{FT}, 96, v{FT+2}
v_add_u32 v{FT}, {ACC}, v{FT}
s_mul_i32 s{sT0}, s{sCo}, {NPH*4}
s_mov_b32 s{sT2}, 43691
v_add_u32 v{GA+1}, 1024, v0
v_mul_u32_u24 v{GA+2}, s{sT2}, v0
v_mul_u32_u24 v{GA+3}, s{sT2}, v{GA+1}
v_lshrrev_b32 v{GA+2}, 18, v{GA+2}
v_lshrrev_b32 v{GA+3}, 18, v{GA+3}
v_mul_u32_u24 v{GA+4}, {TABS-96}, v{GA+2}
v_mul_u32_u24 v{GA+5}, {TABS-96}, v{GA+3}
v_add3_u32 v{GA}, v{GA+4}, v{vT16}, s{sT0}
v_add3_u32 v{GA+1}, v{GA+5}, v{vT16}, s{sT0}
v_add_u32 v{GA+1}, 16384, v{GA+1}
v_mov_b32 v{GA+2}, {256*6-1024}
v_cmp_lt_u32 s[{sC}:{sC+1}], v0, v{GA+2}
v_mul_lo_u32 v{vBase}, v{FT+2}, s{sT1}
v_lshl_add_u32 v{vBase}, v{FT+3}, 4, v{vBase}
v_mul_u32_u24 v{TH}, 3, v{FT+3}
v_add_u32 v{TH}, 1, v{TH}
v_lshlrev_b32 v{TH}, 19, v{TH}
v_add_u32 v{TH+1}, 0x80000, v{TH}
v_add_u32 v{TH+2}, 0x100000, v{TH}
s_waitcnt lgkmcnt(0)
""")
    srd_off(a, S_R, P + 2, None, REC_OFF, NT * TGB)
    srd_off(a, S_T, P + 2, None, TAB_OFF, NT * TABS)
    srd_off(a, S_M, P, None, 0, E * 8)
    a(f"s_add_u32 s{S_M+2}, s{sMo}, {NPH*CB*8}")

    def m_load(MP=MP, a=a):
        if TID:
            for p in 'bca':
                m_piece(MP, p)
            return
        if 'm' in abl:
            for i in range(3):
                a(f"buffer_load_dword v{MP+i}, v{vL16}, s[{S_M}:{S_M+3}], 0 offen")
            return
        a(f"""
s_add_u32 s{sT0}, s{sMo}, 16384
buffer_load_dwordx4 v[{MP}:{MP+3}], v{vT16}, s[{S_M}:{S_M+3}], s{sMo} offen
buffer_load_dwordx4 v[{MP+4}:{MP+7}], v{vT16}, s[{S_M}:{S_M+3}], s{sT0} offen
buffer_load_dwordx2 v[{MP+8}:{MP+9}], v{vLW}, s[{S_M}:{S_M+3}], s{sMo} offen
s_add_u32 s{sMo}, s{sMo}, {CB*8}
s_min_u32 s{sMo}, s{sMo}, {E*8 - CB*8}
""")

    def m_piece(MP, p, a=a):
        if TID:
            for i in {'b': (0, 1, 2, 3), 'c': (4, 5), 'a': (6, 7, 8, 9)}[p]:
                a(f"buffer_load_dword v{MP+i}, v{vLW}, s[{S_M}:{S_M+3}], 0 offen offset:{256*i}")
            if p == 'a':
                a(f"v_add_u32 v{vLW}, {CB*8}, v{vLW}")
            return
        if p == 'b':
            a(f"s_add_u32 s{sT0}, s{sMo}, 16384")
            a(f"buffer_load_dwordx4 v[{MP+4}:{MP+7}], v{vT16}, s[{S_M}:{S_M+3}], s{sT0} offen")
        elif p == 'c':
            a(f"buffer_load_dwordx2 v[{MP+8}:{MP+9}], v{vLW}, s[{S_M}:{S_M+3}], s{sMo} offen")
        else:
            a(f"""
buffer_load_dwordx4 v[{MP}:{MP+3}], v{vT16}, s[{S_M}:{S_M+3}], s{sMo} offen
s_add_u32 s{sMo}, s{sMo}, {CB*8}
s_min_u32 s{sMo}, s{sMo}, {E*8 - CB*8}
""")

    def m_write(MP=MP):
        if TID:
            a(f"s_mov_b32 m0, s{sWk}")
            a("s_nop 0")
            for i in range(10):
                a(f"ds_write_addtid_b32 v{MP+i} offset:{256*i}")
            return
        if 'w' in abl:
            return
        a(f"""
ds_write_b128 v{vT16}, v[{MP}:{MP+3}]
ds_write_b128 v{vT16}, v[{MP+4}:{MP+7}] offset:16384
ds_write_b64 v{vLW}, v[{MP+8}:{MP+9}]
""")

    def batch(bank):
        for i in range(4):
            a(f"buffer_load_dwordx4 v[{bank+4*i}:{bank+4*i+3}], v{vL16 if 'r' in abl else vBase}, s[{S_R}:{S_R+3}], 0 offen offset:{16*i} {ld}")
        a(f"v_add_u32 v{vBase}, 64, v{vBase}")

    def common_init():
        a(f"""
s_mov_b64 s[{MK[1]+2}:{MK[1]+3}], 0
s_mov_b64 s[{MK[1]+4}:{MK[1]+5}], 0
v_mov_b32 v{HR}, {ACC}
v_mov_b32 v{HR+1}, {ACC}
v_mov_b32 v{vC0}, {ACC}
s_mov_b32 s{sJ}, 0
""")
        st_.init()

    def zero_acc():
        z = PT
        a(f"""
v_mov_b32 v{z}, 0
v_mov_b32 v{z+1}, 0
v_mov_b32 v{z+2}, 0
v_mov_b32 v{z+3}, 0
v_add_u32 v{FT+4}, {ACC}, v{vT16}
v_add_u32 v{FT+5}, {ACC+65536}, v{vT16}
ds_write_b128 v{FT+4}, v[{z}:{z+3}] offset:32768
ds_write_b128 v{FT+4}, v[{z}:{z+3}] offset:49152
ds_write_b128 v{FT+5}, v[{z}:{z+3}]
ds_write_b128 v{FT+5}, v[{z}:{z+3}] offset:16384
v_cmp_gt_u32 vcc, {6250-6144}, v0
s_and_saveexec_b64 s[{sB}:{sB+1}], vcc
ds_write_b128 v{FT+5}, v[{z}:{z+3}] offset:32768
s_mov_b64 exec, s[{sB}:{sB+1}]
""")

    def zero_acc2():
        z = PT
        a(f"""
v_add_u32 v{XT}, {ACC}, v{vT16}
ds_write_b128 v{XT}, v[{z}:{z+3}]
ds_write_b128 v{XT}, v[{z}:{z+3}] offset:16384
""")

    AK = (0, 2, 3)

    def decode(rc, t, a=a):
        a(f"""
v_alignbit_b32 v{t}, v{rc}, v{rc+1}, 19
v_lshlrev_b32 v{t+1}, 10, v{rc+1}
v_and_b32 v{t}, 0xfff8, v{t}
v_lshlrev_b32 v{t+2}, 20, v{rc+1}
v_alignbit_b32 v{t+1}, v{rc+2}, v{t+1}, 19
v_alignbit_b32 v{t+2}, v{rc+3}, v{t+2}, 19
v_and_b32 v{t+1}, 0xfff8, v{t+1}
v_and_b32 v{t+2}, 0xfff8, v{t+2}
""")

    def gissue(mk, t, ga, a=a, g2=None):
        g2 = ga + 4 if g2 is None else g2
        a(f"""
s_mov_b64 exec, s[{mk}:{mk+1}]
ds_read_b64 v[{ga}:{ga+1}], v{t}
s_mov_b64 exec, s[{mk+2}:{mk+3}]
ds_read_b64 v[{ga+2}:{ga+3}], v{t+1}
s_mov_b64 exec, s[{mk+4}:{mk+5}]
ds_read_b64 v[{g2}:{g2+1}], v{t+2}
""")

    def gathers(mk, rc, ga, a=a):
        decode(rc, PT, a)
        gissue(mk, PT, ga, a)

    def qcalc(t, g, ak, row, a=a):
        c = row
        a(f"""
v_and_b32 v{c}, v{vMHi}, v{ak}
v_lshlrev_b32 v{t}, 16, v{g}
v_and_b32 v{t+1}, v{vMHi}, v{g}
v_lshlrev_b32 v{t+2}, 16, v{g+1}
v_and_b32 v{t+3}, v{vMHi}, v{g+1}
v_fma_f32 v{t}, v{t}, v{c}, v{vMagic}
v_fma_f32 v{t+1}, v{t+1}, v{c}, v{vMagic}
v_fma_f32 v{t+2}, v{t+2}, v{c}, v{vMagic}
v_fma_f32 v{t+3}, v{t+3}, v{c}, v{vMagic}
v_and_b32 v{row}, 0xfff8, v{ak}
v_lshl_add_u64 v[{t}:{t+1}], v[{t}:{t+1}], 0, s[{sNK}:{sNK+1}]
v_add_u32 v{row}, {ACC}, v{row}
v_lshl_add_u64 v[{t+2}:{t+3}], v[{t+2}:{t+3}], 0, s[{sNK}:{sNK+1}]
""")

    def adds(mkp, row, t, a=a):
        a(f"""
s_mov_b64 exec, {"1" if 'a' in abl else "s[%d:%d]" % (mkp, mkp+1)}
ds_add_u64 v{row}, v[{t}:{t+1}]
ds_add_u64 v{row}, v[{t+2}:{t+3}] offset:{ACCB}
""")

    def held(h, g2, a2):
        qcalc(HQ + 4, g2, a2, HR + 1)
        adds(MK[h] + 4, HR + 1, HQ + 4)
        a("s_mov_b64 exec, -1")

    def f32_one(mkp, g, ak, a):
        t = XT
        a(f"""
v_and_b32 v{vX0}, v{vMHi}, v{ak}
v_and_b32 v{vX0+1}, 0xfff8, v{ak}
v_add_u32 v{vX0+1}, {ACC}, v{vX0+1}
v_lshlrev_b32 v{t}, 16, v{g}
v_and_b32 v{t+1}, v{vMHi}, v{g}
v_lshlrev_b32 v{t+2}, 16, v{g+1}
v_and_b32 v{t+3}, v{vMHi}, v{g+1}
v_mul_f32 v{t}, v{t}, v{vX0}
v_mul_f32 v{t+1}, v{t+1}, v{vX0}
v_mul_f32 v{t+2}, v{t+2}, v{vX0}
v_mul_f32 v{t+3}, v{t+3}, v{vX0}
s_mov_b64 exec, s[{mkp}:{mkp+1}]
ds_add_f32 v{vX0+1}, v{t}
ds_add_f32 v{vX0+1}, v{t+1} offset:4
ds_add_f32 v{vX0+1}, v{t+2} offset:{ACCB}
ds_add_f32 v{vX0+1}, v{t+3} offset:{ACCB+4}
s_mov_b64 exec, -1
s_waitcnt lgkmcnt(0)
""")

    def accum_main(h, rc, tag, g2, q0done=False):
        mk = MK[h]
        a(f"s_cmp_lg_u32 s{sMode}, 0")
        a(f"s_cbranch_scc1 k2_accf_{tag}")
        if not q0done:
            qcalc(PT, GA, rc + AK[0], vC0)
        adds(mk, vC0, PT)
        a("s_mov_b64 exec, -1")
        m_piece(MPS[h ^ 1], 'b')
        qcalc(HQ, GA + 2, rc + AK[1], HR)
        a(f"k2_acce_{tag}:")
        o(f"k2_accf_{tag}:")
        m_piece(MPS[h ^ 1], 'b', o)
        for k in range(3):
            f32_one(mk + 2 * k, (GA, GA + 2, g2)[k], rc + AK[k], o)
        o(f"""
s_mov_b64 s[{mk}:{mk+1}], 0
s_mov_b64 s[{mk+2}:{mk+3}], 0
s_mov_b64 s[{mk+4}:{mk+5}], 0
s_branch k2_acce_{tag}
""")

    def last_adds(h):
        adds(MK[h] + 2, HR, HQ)
        a("s_mov_b64 exec, -1")

    def window_now(mk, rc, tag):
        gathers(mk, rc, GX, o)
        o(f"""
s_mov_b64 exec, -1
s_cmp_lg_u32 s{sMode}, 0
s_waitcnt lgkmcnt(0)
s_cbranch_scc1 k2_wf_{tag}
""")
        for k in range(3):
            qcalc(XT, GX + 2 * k, rc + AK[k], vX0, o)
            adds(mk + 2 * k, vX0, XT, o)
            o("s_mov_b64 exec, -1")
        o(f"s_branch k2_we_{tag}")
        o(f"k2_wf_{tag}:")
        for k in range(3):
            f32_one(mk + 2 * k, GX + 2 * k, rc + AK[k], o)
        o(f"k2_we_{tag}:")

    def scale_setup():
        a(f"""
v_mov_b32 v{XT}, {NW}
ds_read_b128 v[{XT}:{XT+3}], v{XT}
s_mov_b32 s{sT2}, s{MXS+7}
s_waitcnt lgkmcnt(0)
v_add_u32 v{XT}, v{XT}, v{XT+1}
v_add_u32 v{XT+2}, v{XT+2}, v{XT+3}
v_add_u32 v{XT}, v{XT}, v{XT+2}
v_lshrrev_b32 v{XT}, 4, v{XT}
v_mul_u32_u24 v{XT}, 3, v{XT}
v_max_u32 v{XT}, 1024, v{XT}
s_nop 0
v_readfirstlane_b32 s{sT0}, v{XT}
v_cvt_f32_u32 v{XT}, v{XT}
v_mul_f32 v{XT}, s{sT2}, v{XT}
v_mul_f32 v{XT}, 0x3f802000, v{XT}
s_nop 0
v_readfirstlane_b32 s{sT1}, v{XT}
s_mov_b32 s{sMode}, 0
s_cmp_gt_u32 s{sT0}, 0x100000
s_cselect_b32 s{sMode}, 1, s{sMode}
s_cmp_gt_u32 s{sT2}, 0x70000000
s_cselect_b32 s{sMode}, 1, s{sMode}
s_cmp_lt_u32 s{sT2}, 0x18000000
s_cselect_b32 s{sMode}, 1, s{sMode}
s_and_b32 s{sT1}, s{sT1}, 0x7f800000
s_cmp_gt_u32 s{sT1}, s{MXS+6}
s_cselect_b32 s{sMode}, 1, s{sMode}
s_and_b32 s{sT2}, s{sT2}, 0x7f800000
s_sub_u32 s{sPf}, s{sT1}, s{sT2}
s_add_u32 s{sMsc}, s{sT2}, {6 << 23}
s_add_u32 s{sPf}, s{sPf}, {(121 - 30) << 23}
s_sub_u32 s{sT1}, s{sT1}, {(7 << 23) - 0x400000}
v_mov_b32 v{vMagic}, s{sT1}
s_sub_u32 s{sNK}, 0, s{sT1}
s_not_b32 s{sNK+1}, s{sT1}
s_barrier
""")

    def early_setup():
        QP = 782
        a(f"""
s_load_dword s{MN[1]}, s[{MN[0]}:{MN[0]+1}], 0
s_load_dword s{MN[1]+1}, s[{MX[0]}:{MX[0]+1}], 0
s_load_dword s{MN[1]+2}, s[{MX[0]+2}:{MX[0]+3}], 0
s_load_dword s{MN[1]+3}, s[{MX[0]+4}:{MX[0]+5}], 0
s_load_dword s{MN[1]+4}, s[{MX[0]+6}:{MX[0]+7}], 0
s_mul_i32 s{sT1}, s{sRb}, {RB*8}
s_mul_i32 s{sT2}, s{sCg}, {QP*16}
s_add_u32 s{sT1}, s{sT1}, s{sT2}
v_add_u32 v{vO16}, s{sT1}, v{vT16}
s_sub_u32 s{sT2}, {RB*8}, s{sT2}
s_min_u32 s{sT2}, s{sT2}, {QP*16}
v_cmp_gt_u32 s[{sB}:{sB+1}], s{sT2}, v{vT16}
s_mov_b32 s{S_P+2}, {E*2}
s_mov_b32 s{S_P+3}, 0x00020000
v_cndmask_b32 v{vO16}, v{vMHi}, v{vO16}, s[{sB}:{sB+1}]
v_lshrrev_b32 v{vD}, 2, v{vO16}
""")

    def early():
        a(f"""
buffer_load_dword v{vD}, v{vD}, s[{S_P}:{S_P+3}], 0 offen
buffer_load_dwordx4 v[{vM}:{vM+3}], v{vO16}, s[{S_T}:{S_T+3}], 0 offen
""")

    def wait_bar(mkp, n, tag, mid=None):
        a(f"""
s_cmp_eq_u64 s[{mkp}:{mkp+1}], 0
s_cbranch_scc1 k2_wz_{tag}
k2_w_{tag}:
s_setprio 3
s_waitcnt lgkmcnt({n})
""")
        if mid:
            mid()
        a("s_barrier")
        o(f"""
k2_wz_{tag}:
s_waitcnt lgkmcnt(0)
s_branch k2_w_{tag}
""")

    NM = 10 if TID else 3
    NBC = 4 if TID else 1
    NA = 4 if TID else 1
    if TID:
        a(f"""
s_mul_i32 s{sWk}, s{sW}, 2560
s_add_u32 s{sT0}, s{sWk}, s{sMo}
v_lshrrev_b32 v{vLW}, 2, v{vL16}
v_add_u32 v{vLW}, s{sT0}, v{vLW}
""")
    RD = (RC[0], RC[1], RXW[0], RXW[1])
    FINE = OPT['fine'] == '1'
    FS = [80, 82, 84, 86, 88, 90, 28, 30, 24, 26]

    def fs(i, on=True):
        if FINE and on:
            a(f"s_memtime s[{FS[i]}:{FS[i]+1}]")

    srd_off(a, MXS, P + 2, None, MAX_OFF, 1024)
    a(f"""
buffer_load_dwordx4 v[{HQ}:{HQ+3}], v{vL16}, s[{MXS}:{MXS+3}], 0 offen
s_lshl_b32 s{sT0}, s{sW}, 10
s_add_u32 m0, s{sT0}, {ACC}
s_nop 0
buffer_load_dwordx4 v{GA}, s[{S_T}:{S_T+3}], 0 offen lds
s_add_u32 m0, s{sT0}, {ACC+16384}
s_mov_b64 exec, s[{sC}:{sC+1}]
buffer_load_dwordx4 v{GA+1}, s[{S_T}:{S_T+3}], 0 offen lds
s_mov_b64 exec, -1
""")
    m_load()
    srd_off(a, S_T, P, None, 0, E * 8)
    a(f"v_mov_b32 v{EN+21}, 0")
    a(f"v_mov_b32 v{EN+22}, 0")
    a(f"v_mov_b32 v{EN+23}, 0")
    common_init()
    early_setup()
    zero_acc()
    a(f"s_waitcnt vmcnt({NM})")
    a("s_barrier")
    for i in range(5):
        a(f"ds_read_b128 v[{EN+4*i}:{EN+4*i+3}], v{FT} offset:{16*i}")
    a(f"ds_read_b32 v{EN+20}, v{FT} offset:80")
    a(f"""
v_add_f32 v{HQ+4}, v{HQ}, v{HQ+1}
v_add_f32 v{HQ+5}, v{HQ+2}, v{HQ+3}
v_add_f32 v{HQ+4}, v{HQ+4}, v{HQ+5}
v_pk_max_u16 v{HQ}, v{HQ}, v{HQ+1}
v_pk_max_u16 v{HQ+2}, v{HQ+2}, v{HQ+3}
v_pk_max_u16 v{HQ}, v{HQ}, v{HQ+2}
v_lshlrev_b32 v{HQ}, 16, v{HQ}
s_nop 0
""")
    for (sh, rm) in (("row_shr:1", '0xf'), ("row_shr:2", '0xf'), ("row_shr:4", '0xf'), ("row_shr:8", '0xf'), ("row_bcast:15", '0xa'), ("row_bcast:31", '0xc')):
        a(f"v_add_f32_dpp v{HQ+4}, v{HQ+4}, v{HQ+4} {sh} row_mask:{rm} bank_mask:0xf")
        a(f"v_max_u32_dpp v{HQ}, v{HQ}, v{HQ} {sh} row_mask:{rm} bank_mask:0xf")
        a("s_nop 0")
    a(f"""
v_mul_f32 v{HQ+4}, 0x3fa66666, v{HQ+4}
v_readlane_b32 s{MXS+7}, v{HQ}, 63
v_readlane_b32 s{MXS+6}, v{HQ+4}, 63
""")
    if OPT['pst2'] == '1':
        st_()
    a(f"""
s_cmp_lt_u32 s{sW}, 4
s_waitcnt lgkmcnt(0)
s_cbranch_scc1 k2_rem
""")
    def d_load(e, rc, t):
        a(f"""
v_and_b32 v{t}, 0x7fff0, v{e}
v_add_u32 v{t}, v{t}, v{vBase}
buffer_load_dwordx4 v[{rc}:{rc+3}], v{t}, s[{S_R}:{S_R+3}], 0 offen {ld}
""")

    d_load(EN, RD[0], FT)
    for i in range(20, 24):
        a(f"v_mov_b32 v{EN+i}, v{EN+19}")
    a(f"s_cmp_lt_u32 s{sW}, {OPT['gs']}")
    a("s_cbranch_scc1 k2_n2")
    d_load(EN + 1, RD[1], FT + 1)
    a("s_waitcnt vmcnt(2)")
    a("s_branch k2_n3")
    a("k2_n2:")
    a("s_waitcnt vmcnt(1)")
    a("k2_n3:")
    m_write()
    a("s_waitcnt lgkmcnt(0)")
    a("s_barrier")
    zero_acc2()
    scale_setup()
    m_load(MP2)

    def d_prep(r, off, par, n):
        mk = MK[r & 1]
        a(f"""
s_set_gpr_idx_on s{sJ}, 0x1
v_mov_b32 v{FT+1}, v{EN+off}
s_set_gpr_idx_off
v_cmp_le_u32 s[{mk}:{mk+1}], v{TH}, v{FT+1}
v_cmp_le_u32 s[{mk+2}:{mk+3}], v{TH+1}, v{FT+1}
v_cmp_le_u32 s[{mk+4}:{mk+5}], v{TH+2}, v{FT+1}
""")
        if n is not None:
            a(f"s_waitcnt vmcnt({n})")
        decode(RD[r], AD)

    GD2 = (GA + 4, GX)
    a(f"s_cmp_lt_u32 s{sW}, {OPT['gs']}")
    a("s_cbranch_scc1 k2_dv1")
    for par in (0, 1):
        if par == 1:
            a("k2_dv1:")
        if par == 1:
            d_load(EN + 1, RD[1], FT)
            d_load(EN + 2, RD[2], FT + 1)
        m_piece(MP, 'b')
        d_prep(0, 0, par, 1 + par + NM + NBC)
        a(f"k2_dloop{par}:")
        q0a = OPT['q0a'] == '2' or (OPT['q0a'] == '1' and par == 1)
        for r in range(4):
            h = r & 1
            mk = MK[h]
            on = r == int(OPT['fr'])
            fs(0, on)
            gissue(mk, AD, GA, a, GD2[h])
            a("s_setprio 0")
            a("s_mov_b64 exec, -1")
            fs(1, on)
            m_piece(MPS[h], 'c')
            m_piece(MPS[h], 'a')
            if h == par:
                a(f"""
s_set_gpr_idx_on s{sJ}, 0x2
v_and_b32 v{FT+2}, 0x7fff0, v{EN+r+2}
v_and_b32 v{FT+3}, 0x7fff0, v{EN+r+3}
s_set_gpr_idx_off
v_add_u32 v{FT+2}, v{FT+2}, v{vBase}
v_add_u32 v{FT+3}, v{FT+3}, v{vBase}
""")
            held(h ^ 1, GD2[h ^ 1], RD[(r + 3) & 3] + AK[2])
            fs(2, on)
            wait_bar(MK[h ^ 1] + 4, 2, f"da{par}{r}", (lambda: qcalc(PT, GA, RD[r] + AK[0], vC0)) if q0a else None)
            fs(3, on)
            a(f"s_waitcnt vmcnt({NM if h == par else NM+2})")
            if h == par:
                a(f"buffer_load_dwordx4 v[{RD[(r+2)&3]}:{RD[(r+2)&3]+3}], v{FT+2}, s[{S_R}:{S_R+3}], 0 offen {ld}")
                a(f"buffer_load_dwordx4 v[{RD[(r+3)&3]}:{RD[(r+3)&3]+3}], v{FT+3}, s[{S_R}:{S_R+3}], 0 offen {ld}")
            fs(4, on)
            m_write(MPS[h ^ 1])
            a("s_setprio 0")
            fs(5, on)
            accum_main(h, RD[r], f"d{par}{r}", GD2[h], q0a)
            fs(6, on)
            fs(7, on)
            d_prep((r + 1) & 3, r + 1, par, None if h == par else 1 + NM + NBC)
            if r == 3:
                a(f"s_add_u32 s{sJ}, s{sJ}, 4")
            last_adds(h)
            fs(8, on)
            wait_bar(mk + 2, 4, f"db{par}{r}")
            fs(9, on)
        a(f"""
s_cmp_lt_u32 s{sJ}, {NPH if not FINE else int(OPT['fn'])}
s_cbranch_scc0 k2_dend
s_cmp_lg_u32 s{sJ}, 8
s_cbranch_scc1 k2_dloop{par}
""")
        early()
        a(f"s_branch k2_dloop{par}")

    a("k2_dend:")
    held(1, GD2[1], RD[3] + AK[2])
    a("s_branch k2_epi")
    GR2 = (GA + 4, TH)
    vA2 = TH + 2
    nr, inc, pre, V, tg, val, e0 = FT, FT + 1, FT + 2, FT + 3, FT + 4, FT + 5, FT + 6
    dpp = "row_mask:0xf bank_mask:0xf"

    def flat_scan(ea, eb, stot, a=a):
        a(f"""
v_and_b32 v{nr}, 0x7fff0, v{eb}
v_and_b32 v{pre}, 0x7fff0, v{ea}
v_sub_u32 v{nr}, v{nr}, v{pre}
v_and_b32 v{V}, 0x7fff3, v{ea}
v_add_u32 v{nr}, -48, v{nr}
v_max_i32 v{nr}, 0, v{nr}
v_mov_b32 v{inc}, v{nr}
v_add_u32 v{V}, v{V}, v{vBase}
v_cmp_ne_u32 s[{sD}:{sD+1}], 0, v{nr}
""")
        scan(a, "v_add_u32", inc)
        a(f"""
v_sub_u32 v{pre}, v{inc}, v{nr}
v_readlane_b32 s{stot}, v{inc}, 63
v_sub_u32 v{V}, v{V}, v{pre}
""")

    def flat_push(swb, a=a):
        a(f"""
s_add_u32 s{sT1}, {swb}, 1024
v_cmp_ge_u32 s[{sA}:{sA+1}], {swb}, v{pre}
v_subrev_u32 v{tg}, {swb}, v{pre}
v_cmp_eq_u32 s[{sC}:{sC+1}], s{sT1}, v{inc}
s_bcnt1_i32_b64 s{sT0}, s[{sA}:{sA+1}]
v_add_u32 v{val}, -16, v{tg}
s_sub_u32 s{sT0}, s{sT0}, 1
v_cmp_gt_u32 vcc, 1008, v{val}
v_readlane_b32 s{sCarry}, v{V}, s{sT0}
v_lshrrev_b32 v{tg}, 2, v{tg}
s_and_b64 s[{sB}:{sB+1}], vcc, s[{sD}:{sD+1}]
v_cndmask_b32 v{tg}, 0, v{tg}, s[{sB}:{sB+1}]
v_cndmask_b32 v{val}, 0, v{V}, s[{sB}:{sB+1}]
ds_permute_b32 v{val}, v{tg}, v{val}
""")

    def flat_fin(swb, stot, mk, rc, a=a):
        a(f"""
v_cmp_ne_u32 s[{sA}:{sA+1}], 0, v{val}
v_add_u32 v{tg}, {swb}, v{vL16}
s_cmp_lg_u64 s[{sC}:{sC+1}], 0
v_max_u32_dpp v{val}, v{val}, v{val} row_shr:1 {dpp}
v_cmp_gt_u32 s[{mk}:{mk+1}], s{stot}, v{tg}
s_cselect_b32 s{sC+1}, 0x80000000, 0
v_max_u32_dpp v{val}, v{val}, v{val} row_shr:2 {dpp}
s_mov_b32 s{sC}, 0
s_lshr_b64 s[{sA}:{sA+1}], s[{sA}:{sA+1}], 1
v_max_u32_dpp v{val}, v{val}, v{val} row_shr:4 {dpp}
s_or_b64 s[{sC}:{sC+1}], s[{sC}:{sC+1}], s[{sA}:{sA+1}]
s_lshr_b64 s[{sA}:{sA+1}], s[{mk}:{mk+1}], 1
v_max_u32_dpp v{val}, v{val}, v{val} row_shr:8 {dpp}
s_andn2_b64 s[{sA}:{sA+1}], s[{mk}:{mk+1}], s[{sA}:{sA+1}]
s_bitset0_b64 s[{sA}:{sA+1}], 63
v_max_u32_dpp v{val}, v{val}, v{val} row_bcast:15 row_mask:0xa bank_mask:0xf
s_or_b64 s[{sC}:{sC+1}], s[{sC}:{sC+1}], s[{sA}:{sA+1}]
s_nop 0
v_max_u32_dpp v{val}, v{val}, v{val} row_bcast:31 row_mask:0xc bank_mask:0xf
v_max_u32 v{val}, s{sCarry}, v{val}
v_add_u32 v{tg}, v{tg}, v{val}
v_and_b32 v{val}, 3, v{val}
v_and_b32 v{tg}, -16, v{tg}
v_cmp_eq_u32 s[{sA}:{sA+1}], 2, v{val}
v_cmp_ne_u32 s[{sB}:{sB+1}], 0, v{val}
v_cndmask_b32 v{tg}, v{vMHi}, v{tg}, s[{mk}:{mk+1}]
buffer_load_dwordx4 v[{rc}:{rc+3}], v{vL16 if 'r' in abl else tg}, s[{S_R}:{S_R+3}], 0 offen {ld}
s_and_b64 s[{sA}:{sA+1}], s[{sA}:{sA+1}], s[{sC}:{sC+1}]
s_and_b64 s[{sB}:{sB+1}], s[{sB}:{sB+1}], s[{sC}:{sC+1}]
s_andn2_b64 s[{mk+2}:{mk+3}], s[{mk}:{mk+1}], s[{sA}:{sA+1}]
s_andn2_b64 s[{mk+4}:{mk+5}], s[{mk}:{mk+1}], s[{sB}:{sB+1}]
""")

    def second(h, tag):
        a(f"""
s_cmp_gt_u32 s{TOT[h]}, 1024
s_cbranch_scc1 k2_sy_{tag}
k2_ns_{tag}:
""")
        o(f"k2_sy_{tag}:")
        o(f"s_movk_i32 s{sXw}, 1024")
        flat_push(f"s{sXw}", o)
        o("s_waitcnt lgkmcnt(0)")
        flat_fin(f"s{sXw}", TOT[h], MX[h], RXW[h], o)
        o(f"s_branch k2_ns_{tag}")

    a("k2_rem:")
    a("s_setprio 1")
    a(f"s_mov_b32 s{sXp}, 0")
    flat_scan(EN, EN + 1, TOT[0])
    flat_push("0")
    a("s_waitcnt lgkmcnt(0)")
    flat_fin("0", TOT[0], MN[0], RC[0])
    second(0, "p0")
    if OPT['pst2'] == '1':
        st_()
    a(f"s_waitcnt vmcnt(1)")
    if OPT['pst2'] == '1':
        st_()
    m_write()
    a(f"""
v_and_b32 v{FT}, 0x7fff0, v{EN+20}
v_and_b32 v{FT+1}, 0x7fff0, v{EN}
v_sub_u32 v{FT}, v{FT}, v{FT+1}
s_lshl_b32 s{sT0}, s{sW}, 2
s_add_u32 s{sT0}, s{sT0}, {NW}
""")
    scan(a, "v_add_u32", FT)
    a(f"""
v_mov_b32 v{FT+3}, s{sT0}
{EXEC63}
ds_write_b32 v{FT+3}, v{FT}
s_mov_b64 exec, -1
s_waitcnt lgkmcnt(0)
s_barrier
""")
    st_()
    zero_acc2()
    scale_setup()
    st_()
    flat_scan(EN + 1, EN + 2, TOT[1])
    flat_push("0")
    m_load(MP2)
    m_piece(MP, 'b')
    a("s_waitcnt lgkmcnt(0)")
    flat_fin("0", TOT[1], MN[1], RC[1])
    second(1, "p1")

    def r_prep(h, off, n=NM+1):
        mk = MK[h]
        a(f"""
s_set_gpr_idx_on s{sJ}, 0x1
v_mov_b32 v{e0}, v{EN+off+2}
v_mov_b32 v{e0+1}, v{EN+off+3}
s_set_gpr_idx_off
""")
        flat_scan(e0, e0 + 1, sTN)
        a(f"s_waitcnt vmcnt({n})")
        for i in range(0, 6, 2):
            a(f"s_mov_b64 s[{mk+i}:{mk+i+1}], s[{MN[h]+i}:{MN[h]+i+1}]")
        decode(RC[h], AD)

    r_prep(0, 0, 1 + NM + NBC)
    if OPT['pst2'] == '1':
        st_()
    a("k2_rloop:")
    for h in range(2):
        mk = MK[h]
        on = h == (int(OPT['fr']) & 1)
        fs(0, on)
        gissue(mk, AD, GA, a, GR2[h])
        a("s_mov_b64 exec, -1")
        a(f"""
s_cmp_gt_u32 s{TOT[h]}, {1024 if not FINE else 0x7fffffff}
s_cbranch_scc1 k2_xy_{h}
k2_nx_{h}:
""")
        o(f"k2_xy_{h}:")
        o(f"s_cmp_gt_u32 s{TOT[h]}, 2048")
        o(f"s_cbranch_scc1 k2_xz_{h}")
        gathers(MX[h], RXW[h], GX, o)
        o(f"""
s_mov_b64 exec, -1
s_mov_b32 s{sXp}, 1
s_branch k2_nx_{h}
k2_xb_{h}:
s_mov_b32 s{sXp}, 0
s_cmp_lg_u32 s{sMode}, 0
s_cbranch_scc1 k2_xf_{h}
""")
        for k in range(3):
            qcalc(XT, GX + 2 * k, RXW[h] + AK[k], vX0, o)
            adds(MX[h] + 2 * k, vX0, XT, o)
            o("s_mov_b64 exec, -1")
        o(f"s_branch k2_xe_{h}")
        o(f"k2_xf_{h}:")
        for k in range(3):
            f32_one(MX[h] + 2 * k, GX + 2 * k, RXW[h] + AK[k], o)
        o(f"s_branch k2_xe_{h}")
        o(f"k2_xz_{h}:")
        window_now(MX[h], RXW[h], f"x{h}")
        o(f"""
s_waitcnt lgkmcnt(0)
s_cmp_le_u32 s{TOT[h]}, 2048
s_cbranch_scc1 k2_nx_{h}
s_movk_i32 s{sXw}, 2048
s_add_u32 s{sT2}, s{sJ}, {h}
s_call_b64 s[{sRet}:{sRet+1}], k2_slow
s_waitcnt lgkmcnt(0)
s_set_gpr_idx_on s{sJ}, 0x1
v_mov_b32 v{e0}, v{EN+h+2}
v_mov_b32 v{e0+1}, v{EN+h+3}
s_set_gpr_idx_off
""")
        flat_scan(e0, e0 + 1, sTN, o)
        o(f"s_branch k2_nx_{h}")
        flat_push("0")
        a("s_setprio 1")
        fs(1, on)
        m_piece(MPS[h], 'c')
        m_piece(MPS[h], 'a')
        a(f"s_mov_b32 s{TOT[h]}, s{sTN}")
        held(h ^ 1, GR2[h ^ 1], vA2)
        fs(2, on)
        wait_bar(MK[h ^ 1] + 4, 2, f"ra{h}")
        fs(3, on)
        a(f"s_waitcnt vmcnt({NM+1})")
        fs(4, on)
        m_write(MPS[h ^ 1])
        a("s_setprio 1")
        fs(5, on)
        accum_main(h, RC[h], f"r{h}", GR2[h])
        a(f"v_mov_b32 v{vA2}, v{RC[h]+AK[2]}")
        a(f"s_cmp_lg_u32 s{sXp}, 0")
        a(f"s_cbranch_scc1 k2_xb_{h}")
        a(f"k2_xe_{h}:")
        fs(6, on)
        flat_fin("0", TOT[h], MN[h], RC[h])
        if not FINE:
            second(h, f"l{h}")
        fs(7, on)
        r_prep(h ^ 1, h + 1)
        last_adds(h)
        fs(8, on)
        if h == 1:
            a(f"s_add_u32 s{sJ}, s{sJ}, 2")
        wait_bar(mk + 2, 4, f"rb{h}")
        fs(9, on)
        if OPT['pst2'] == '1':
            st_()
    a(f"""
s_cmp_lt_u32 s{sJ}, {NPH if not FINE else int(OPT['fn'])}
s_cbranch_scc0 k2_rend
s_cmp_lg_u32 s{sJ}, 8
s_cbranch_scc1 k2_rloop
""")
    early()
    a("s_branch k2_rloop")
    a("k2_rend:")
    held(1, GR2[1], vA2)
    def fused_epilogue():
        QP = 782
        EB = 64
        S_D, S_O, S_G = 4, 8, 24
        WR, WSB, WD, WU = 48, 64, 80, 88
        CE = 28
        CF = 80
        PP, PP2 = 20, 42
        tS = 40
        sSc, sFl = 44, 45
        vT = 9
        R = (16, 24)
        G = (32, 36)
        H = (40, 44)
        RP = (48, 52)
        S = (16, 20)
        AG = (24, 28)
        PL = 96
        a("k2_epi:")
        if FINE:
            a("s_waitcnt lgkmcnt(0)")
            for i2 in range(10):
                a(f"v_writelane_b32 v{FT}, s{FS[i2]}, {i2}")
            a(f"s_lshl_b32 s{sT0}, s2, 10")
            a(f"s_lshl_b32 s{sT1}, s{sW}, 6")
            a(f"s_add_u32 s{sT0}, s{sT0}, s{sT1}")
            srd_off(a, 8, P + 2, sT0, DIAG_OFF + 0x200000, 40)
            a(f"v_lshrrev_b32 v{FT+1}, 2, v{vL16}")
            a(f"buffer_store_dword v{FT}, v{FT+1}, s[8:11], 0 offen")
        a(f"""
s_load_dwordx2 s[{S_O}:{S_O+1}], s[0:1], {KA['out']}
s_load_dwordx2 s[{PP}:{PP+1}], s[0:1], {KA['centers']}
s_load_dwordx4 s[{WU}:{WU+3}], s[0:1], {KA['w_rbf']}
s_load_dwordx4 s[{WU+4}:{WU+7}], s[0:1], {KA['w_down']}
v_add_u32 v{vLW}, {ACC}, v{vT16}
v_add_u32 v{vBase}, {ACC+ACCB}, v{vT16}
v_mov_b32 v{vMagic}, s{sPf}
s_mul_i32 s{sT0}, s{sCg}, {E*8}
s_mul_i32 s{sT1}, s{sRb}, {RB*8}
s_add_u32 s{sT0}, s{sT0}, s{sT1}
v_cmp_ne_u32 s[{sNK}:{sNK+1}], v{vO16}, v{vMHi}
s_mov_b32 s{sJ}, s{sT0}
""")
        srd_off(a, S_P, P + 2, sT0, PART_OFF, RB * 8)
        srd_off(a, S_G, P + 2, None, HF_OFF, 8192)
        a(f"""
s_waitcnt vmcnt(0) lgkmcnt(0)
s_load_dwordx4 s[{CE}:{CE+3}], s[{PP}:{PP+1}], 0
s_load_dwordx16 s[{WR}:{WR+15}], s[{WU}:{WU+1}], 0
s_load_dwordx16 s[{WSB}:{WSB+15}], s[{WU+2}:{WU+3}], 0
s_mov_b64 s[{PP}:{PP+1}], s[{WU+4}:{WU+5}]
s_mov_b64 s[{PP2}:{PP2+1}], s[{WU+6}:{WU+7}]
s_barrier
""")
        st_()
        for it in range(4):
            b = EB + it * 8
            if it == 3:
                a(f"v_min_u32 v{vLW}, {ACC + 52*16}, v{vLW}")
                a(f"v_min_u32 v{vBase}, {ACC + ACCB + 52*16}, v{vBase}")
            a(f"ds_read_b128 v[{b}:{b+3}], v{vLW} offset:{it*16384}")
            a(f"ds_read_b128 v[{b+4}:{b+7}], v{vBase} offset:{it*16384}")
        a(f"""
s_mov_b32 s{S_O+2}, {E*8}
s_mov_b32 s{S_O+3}, 0x00020000
s_cmp_lg_u32 s{sMode}, 0
s_waitcnt lgkmcnt(0)
s_cbranch_scc1 k2_epf
""")
        for it in range(4):
            b = EB + it * 8
            for p in range(4):
                a(f"v_ashrrev_i32 v{FT+2+p}, 31, v{b+2*p}")
            for p in range(4):
                a(f"v_sub_u32 v{b+2*p+1}, v{b+2*p+1}, v{FT+2+p}")
            for p in range(8):
                a(f"v_cvt_f32_i32 v{b+p}, v{b+p}")
            for p in range(8):
                a(f"v_mul_f32 v{b+p}, v{vMagic}, v{b+p}")
            a(f"""
v_cvt_pk_f16_f32 v{b}, v{b}, v{b+1}
v_cvt_pk_f16_f32 v{b+1}, v{b+4}, v{b+5}
v_cvt_pk_f16_f32 v{b+2}, v{b+2}, v{b+3}
v_cvt_pk_f16_f32 v{b+3}, v{b+6}, v{b+7}
buffer_store_dwordx4 v[{b}:{b+3}], v{vT16}, s[{S_P}:{S_P+3}], 0 offen sc1
""")
            if it < 3:
                a(f"v_add_u32 v{vT16}, 16384, v{vT16}")
        a("k2_epj:")
        o("k2_epf:")
        o(f"s_lshl_b32 s{sT0}, s{sJ}, 1")
        srd_off(o, S_P, P + 2, sT0, P32_OFF, RB * 16)
        o(f"v_lshlrev_b32 v{vT16}, 1, v{vT16}")
        for it in range(4):
            b = EB + it * 8
            o(f"""
buffer_store_dwordx2 v[{b}:{b+1}], v{vT16}, s[{S_P}:{S_P+3}], 0 offen sc1
buffer_store_dwordx2 v[{b+4}:{b+5}], v{vT16}, s[{S_P}:{S_P+3}], 0 offen offset:8 sc1
buffer_store_dwordx2 v[{b+2}:{b+3}], v{vT16}, s[{S_P}:{S_P+3}], 0 offen offset:16 sc1
buffer_store_dwordx2 v[{b+6}:{b+7}], v{vT16}, s[{S_P}:{S_P+3}], 0 offen offset:24 sc1
v_add_u32 v{vT16}, 32768, v{vT16}
""")
        o("s_waitcnt vmcnt(0)")
        o("s_branch k2_epj")

        def rnd(x):
            a(f"v_cvt_pk_bf16_f32 v{x+1}, v{x}, v{x+1}")
            a(f"v_lshlrev_b32 v{x}, 16, v{x+1}")
            a(f"v_and_b32 v{x+1}, v{vMHi}, v{x+1}")

        a(f"""
s_cmp_gt_u32 s{sW}, 12
s_cbranch_scc1 k2_sig
""")
        for k in range(8):
            a(s_unpack(CF + k, CE, k))
        a(f"""
v_and_b32 v{vD+1}, v{vMHi}, v{vD}
v_lshlrev_b32 v{vD}, 16, v{vD}
""")
        for r in range(2):
            for k in range(0, 8, 2):
                a(f"v_pk_add_f32 v[{R[r]+k}:{R[r]+k+1}], v[{vD}:{vD+1}], s[{CF+k}:{CF+k+1}] op_sel:[{r},0] op_sel_hi:[{r},1] neg_lo:[0,1] neg_hi:[0,1]")
        a(f"s_load_dwordx8 s[{WD}:{WD+7}], s[{PP}:{PP+1}], 0")
        a(f"s_load_dwordx8 s[{WU}:{WU+7}], s[{PP2}:{PP2+1}], 0")
        allr = [R[r] + k for r in range(2) for k in range(8)]
        for x in allr[::2]:
            rnd(x)
        for x in allr:
            a(f"v_mul_f32 v{x}, v{x}, v{x}")
        for x in allr[::2]:
            rnd(x)
        for x in allr:
            a(f"v_mul_f32 v{x}, 0xc1200000, v{x}")
        for x in allr[::2]:
            rnd(x)
        st_()
        a("""
s_waitcnt vmcnt(0)
s_barrier
""")
        st_()
        for x in allr:
            a(f"v_mul_f32 v{x}, 0x3fb8aa3b, v{x}")
        for x in allr:
            a(f"v_exp_f32 v{x}, v{x}")
        a("s_nop 0")
        for r in range(2):
            for kk in range(4):
                a(f"v_cvt_pk_bf16_f32 v{RP[r]+kk}, v{R[r]+2*kk}, v{R[r]+2*kk+1}")
        cnt = [0]

        def wpair(base, kk, c):
            d = tS + (cnt[0] & 3)
            cnt[0] += 1
            op = "s_pack_ll_b32_b16" if c % 2 == 0 else "s_pack_hh_b32_b16"
            a(f"{op} s{d}, s{base + 4*kk + c//2}, s{base + 4*kk + 2 + c//2}")
            return d

        def dotmat(dst, src, base, nk):
            for kk in range(nk):
                for c in range(4):
                    w = wpair(base, kk, c)
                    for r in range(2):
                        acc = "0" if kk == 0 else f"v{dst[r]+c}"
                        a(f"v_dot2_f32_bf16 v{dst[r]+c}, v{src[r]+kk}, s{w}, {acc}")

        dotmat(H, RP, WR, 4)
        dotmat(G, RP, WSB, 4)
        for r in range(2):
            rnd(H[r])
            rnd(H[r] + 2)
        srd_off(a, S_P, P + 2, None, PART_OFF, 4 * E * 8)
        st_()
        a(f"""
v_mov_b32 v{vT}, {NW}
s_waitcnt lgkmcnt(0)
s_barrier
ds_read_b32 v{vT}, v{vT}
v_add_u32 v{FT}, {E*8}, v{vO16}
v_add_u32 v{FT+1}, {2*E*8}, v{vO16}
v_add_u32 v{FT+2}, {3*E*8}, v{vO16}
s_mov_b64 exec, s[{sNK}:{sNK+1}]
buffer_load_dwordx4 v[{PL}:{PL+3}], v{vO16}, s[{S_P}:{S_P+3}], 0 offen sc1
buffer_load_dwordx4 v[{PL+4}:{PL+7}], v{FT}, s[{S_P}:{S_P+3}], 0 offen sc1
buffer_load_dwordx4 v[{PL+8}:{PL+11}], v{FT+1}, s[{S_P}:{S_P+3}], 0 offen sc1
buffer_load_dwordx4 v[{PL+12}:{PL+15}], v{FT+2}, s[{S_P}:{S_P+3}], 0 offen sc1
s_waitcnt lgkmcnt(0)
v_readfirstlane_b32 s{sFl}, v{vT}
v_mov_b32 v{vT}, s{sMsc}
""")
        st_()
        a(f"""
s_cmp_gt_u32 s{sFl}, 255
s_cbranch_scc1 k2_fslow
s_waitcnt vmcnt(0)
""")
        for r in range(2):
            for c in range(4):
                reg = 2 * r + c // 2
                hi = c % 2
                d = S[r] + c
                a(f"v_fma_mix_f32 v{d}, v{PL+reg}, 1.0, v{PL+4+reg} op_sel:[{hi},0,{hi}] op_sel_hi:[1,0,1]")
                a(f"v_fma_mix_f32 v{d}, v{PL+8+reg}, 1.0, v{d} op_sel:[{hi},0,0] op_sel_hi:[1,0,0]")
                a(f"v_fma_mix_f32 v{d}, v{PL+12+reg}, 1.0, v{d} op_sel:[{hi},0,0] op_sel_hi:[1,0,0]")
        for r in range(2):
            for c in range(4):
                a(f"v_mul_f32 v{S[r]+c}, v{vT}, v{S[r]+c}")
        a("k2_fjoin:")
        for jj in range(4):
            for cp in range(2):
                d = tS + 2 * ((jj * 2 + cp) & 1)
                a(s_unpack(d, WD, jj * 4 + cp * 2))
                a(s_unpack(d + 1, WD, jj * 4 + cp * 2 + 1))
                for r in range(2):
                    sp = S[r] + (jj & ~1)
                    oo = jj & 1
                    dd = AG[r] + 2 * cp
                    if jj == 0:
                        a(f"v_pk_mul_f32 v[{dd}:{dd+1}], v[{sp}:{sp+1}], s[{d}:{d+1}] op_sel:[{oo},0] op_sel_hi:[{oo},1]")
                    else:
                        a(f"v_pk_fma_f32 v[{dd}:{dd+1}], v[{sp}:{sp+1}], s[{d}:{d+1}], v[{dd}:{dd+1}] op_sel:[{oo},0,0] op_sel_hi:[{oo},1,1]")
        for r in range(2):
            for c in range(4):
                a(f"v_mul_f32 v{AG[r]+c}, v{AG[r]+c}, v{G[r]+c}")
        for r in range(2):
            for kk in range(2):
                a(f"v_cvt_pk_bf16_f32 v{RP[r]+kk}, v{AG[r]+2*kk}, v{AG[r]+2*kk+1}")
        dotmat(G, RP, WU, 2)
        for r in range(2):
            for cp in range(2):
                a(f"v_lshlrev_b32 v{S[r]+2*cp}, 16, v{vM+2*r+cp}")
                a(f"v_and_b32 v{S[r]+2*cp+1}, v{vMHi}, v{vM+2*r+cp}")
        for r in range(2):
            rnd(G[r])
            rnd(G[r] + 2)
        for r in range(2):
            for c in range(4):
                a(f"v_mul_f32 v{G[r]+c}, v{G[r]+c}, v{H[r]+c}")
        for r in range(2):
            rnd(G[r])
            rnd(G[r] + 2)
        for r in range(2):
            for c in range(4):
                a(f"v_add_f32 v{G[r]+c}, v{G[r]+c}, v{S[r]+c}")
        for r in range(2):
            for cp in range(2):
                a(f"v_cvt_pk_bf16_f32 v{vM+2*r+cp}, v{G[r]+2*cp}, v{G[r]+2*cp+1}")
        a(f"buffer_store_dwordx4 v[{vM}:{vM+3}], v{vO16}, s[{S_O}:{S_O+3}], 0 offen")
        st_()
        st_.flush(FT)
        a("""
k2_done:
s_endpgm
""")
        a(f"""
k2_sig:
s_waitcnt vmcnt(0)
s_barrier
s_cmp_lg_u32 s{sW}, 15
s_cbranch_scc1 k2_sig_e
s_add_u32 s{sT0}, s{sCg}, 8
s_lshl_b32 s{sT0}, s{sMode}, s{sT0}
s_add_u32 s{sT0}, s{sT0}, 1
s_lshl_b32 s{sT1}, s{sRb}, 7
s_lshl_b32 s{sT2}, s{sCg}, 2
s_add_u32 s{sT2}, s{sT2}, s{sT1}
s_mov_b64 exec, 1
v_mov_b32 v{FT}, s{sT1}
v_mov_b32 v{FT+1}, s{sT0}
v_mov_b32 v{FT+2}, s{sT2}
buffer_store_dword v{FT+1}, v{FT+2}, s[{S_G}:{S_G+3}], 0 offen sc1
s_mov_b32 s{sT2}, 0x100000
k2_poll:
buffer_load_dwordx4 v[{FT+4}:{FT+7}], v{FT}, s[{S_G}:{S_G+3}], 0 offen sc1
s_waitcnt vmcnt(0)
v_add_u32 v{FT+1}, v{FT+4}, v{FT+5}
v_add3_u32 v{FT+1}, v{FT+1}, v{FT+6}, v{FT+7}
s_nop 0
v_readfirstlane_b32 s{sT1}, v{FT+1}
s_and_b32 s{sT1}, s{sT1}, 255
s_cmp_ge_u32 s{sT1}, 4
s_cbranch_scc1 k2_poll_e
s_sub_u32 s{sT2}, s{sT2}, 1
s_cbranch_scc1 k2_poll_e
s_sleep 1
s_branch k2_poll
k2_poll_e:
v_mov_b32 v{FT}, {NW}
ds_write_b32 v{FT}, v{FT+1}
s_waitcnt lgkmcnt(0)
k2_sig_e:
s_barrier
s_endpgm
""")
        o("k2_fslow:")
        srd_off(o, S_D, P + 2, None, P32_OFF, 4 * E * 16)
        o(f"v_lshlrev_b32 v{FT}, 1, v{vO16}")
        for i2 in range(8):
            o(f"v_mov_b32 v{S[0]+i2}, 0")
        o("s_waitcnt vmcnt(0)")
        for c in range(4):
            o(f"""
s_bitcmp1_b32 s{sFl}, {8+c}
s_cbranch_scc1 k2_s32_{c}
""")
            for r in range(2):
                for cc in range(4):
                    reg = 2 * r + cc // 2
                    o(f"v_fma_mix_f32 v{S[r]+cc}, v{PL+4*c+reg}, v{vT}, v{S[r]+cc} op_sel:[{cc%2},0,0] op_sel_hi:[1,0,0]")
            o(f"""
s_branch k2_sn_{c}
k2_s32_{c}:
buffer_load_dwordx4 v[24:27], v{FT}, s[{S_D}:{S_D+3}], 0 offen sc1
buffer_load_dwordx4 v[28:31], v{FT}, s[{S_D}:{S_D+3}], 0 offen offset:16 sc1
s_waitcnt vmcnt(0)
""")
            for i2 in range(8):
                o(f"v_add_f32 v{S[0]+i2}, v{S[0]+i2}, v{24+i2}")
            o(f"k2_sn_{c}:")
            o(f"v_add_u32 v{FT}, {E*16}, v{FT}")
        o("s_branch k2_fjoin")

    def plain_epilogue():
        a("k2_epi:")
        if FINE:
            a("s_waitcnt lgkmcnt(0)")
            for i2 in range(10):
                a(f"v_writelane_b32 v{FT}, s{FS[i2]}, {i2}")
            a(f"s_lshl_b32 s{sT0}, s2, 10")
            a(f"s_lshl_b32 s{sT1}, s{sW}, 6")
            a(f"s_add_u32 s{sT0}, s{sT0}, s{sT1}")
            srd_off(a, 8, P + 2, sT0, DIAG_OFF + 0x200000, 40)
            a(f"v_lshrrev_b32 v{FT+1}, 2, v{vL16}")
            a(f"buffer_store_dword v{FT}, v{FT+1}, s[8:11], 0 offen")
        EB = 64
        a(f"""
v_add_u32 v{vLW}, {ACC}, v{vT16}
v_add_u32 v{vBase}, {ACC+ACCB}, v{vT16}
v_mov_b32 v{vMagic}, s{sPf}
s_lshl_b32 s{sT0}, s{sCo}, 2
v_mov_b32 v{FT}, s{sT0}
v_mov_b32 v{FT+1}, s{sMode}
""")
        srd_off(a, S_T, P + 2, None, FLAG_OFF, 1024)
        a(f"""
s_mul_i32 s{sT0}, s{sCg}, {E*8}
s_mul_i32 s{sT1}, s{sRb}, {RB*8}
s_add_u32 s{sT0}, s{sT0}, s{sT1}
""")
        srd_off(a, S_P, P + 2, sT0, PART_OFF, RB * 8)
        a(f"s_lshl_b32 s{sT0}, s{sT0}, 1")
        srd_off(a, S_M, P + 2, sT0, P32_OFF, RB * 16)
        a(f"""
s_waitcnt vmcnt(0) lgkmcnt(0)
s_barrier
""")
        st_()
        for it in range(4):
            b = EB + it * 8
            if it == 3:
                a(f"v_min_u32 v{vLW}, {ACC + 52*16}, v{vLW}")
                a(f"v_min_u32 v{vBase}, {ACC + ACCB + 52*16}, v{vBase}")
            a(f"ds_read_b128 v[{b}:{b+3}], v{vLW} offset:{it*16384}")
            a(f"ds_read_b128 v[{b+4}:{b+7}], v{vBase} offset:{it*16384}")
        a(f"""
v_cmp_eq_u32 vcc, 0, v0
s_and_saveexec_b64 s[{sA}:{sA+1}], vcc
buffer_store_dword v{FT+1}, v{FT}, s[{S_T}:{S_T+3}], 0 offen
s_mov_b64 exec, s[{sA}:{sA+1}]
s_cmp_lg_u32 s{sMode}, 0
s_cbranch_scc1 k2_epf
""")
        for it in range(4):
            b = EB + it * 8
            a(f"s_waitcnt lgkmcnt({2*(3-it)})")
            for p in range(4):
                a(f"v_ashrrev_i32 v{FT+2+p}, 31, v{b+2*p}")
            for p in range(4):
                a(f"v_sub_u32 v{b+2*p+1}, v{b+2*p+1}, v{FT+2+p}")
            for p in range(8):
                a(f"v_cvt_f32_i32 v{b+p}, v{b+p}")
            for p in range(8):
                a(f"v_mul_f32 v{b+p}, v{vMagic}, v{b+p}")
            a(f"""
v_cvt_pk_f16_f32 v{b}, v{b}, v{b+1}
v_cvt_pk_f16_f32 v{b+1}, v{b+4}, v{b+5}
v_cvt_pk_f16_f32 v{b+2}, v{b+2}, v{b+3}
v_cvt_pk_f16_f32 v{b+3}, v{b+6}, v{b+7}
buffer_store_dwordx4 v[{b}:{b+3}], v{vT16}, s[{S_P}:{S_P+3}], 0 offen {pst}
""")
            if it < 3:
                a(f"v_add_u32 v{vT16}, 16384, v{vT16}")
        st_()
        if st_.on:
            a("s_waitcnt vmcnt(0)")
        st_()
        st_.flush(FT)
        a("""
k2_done:
s_endpgm
k2_epf:
s_waitcnt lgkmcnt(0)
""")
        a(f"v_lshlrev_b32 v{vT16}, 1, v{vT16}")
        for it in range(4):
            b = EB + it * 8
            a(f"""
buffer_store_dwordx2 v[{b}:{b+1}], v{vT16}, s[{S_M}:{S_M+3}], 0 offen
buffer_store_dwordx2 v[{b+4}:{b+5}], v{vT16}, s[{S_M}:{S_M+3}], 0 offen offset:8
buffer_store_dwordx2 v[{b+2}:{b+3}], v{vT16}, s[{S_M}:{S_M+3}], 0 offen offset:16
buffer_store_dwordx2 v[{b+6}:{b+7}], v{vT16}, s[{S_M}:{S_M+3}], 0 offen offset:24
v_add_u32 v{vT16}, 32768, v{vT16}
""")
        a("s_endpgm")

    if OPT['fuse'] == '1':
        fused_epilogue()
    else:
        plain_epilogue()
    o("k2_slow:")
    o(f"""
s_set_gpr_idx_on s{sT2}, 0x1
v_mov_b32 v{e0}, v{EN}
v_mov_b32 v{e0+1}, v{EN+1}
s_set_gpr_idx_off
""")
    flat_scan(e0, e0 + 1, sTot, o)
    o("k2_slow_l:")
    flat_push(f"s{sXw}", o)
    o("s_waitcnt lgkmcnt(0)")
    flat_fin(f"s{sXw}", sTot, MS, RS, o)
    o("s_waitcnt vmcnt(0)")
    window_now(MS, RS, "slow")
    o(f"""
s_add_u32 s{sXw}, s{sXw}, 1024
s_cmp_lt_u32 s{sXw}, s{sTot}
s_cbranch_scc1 k2_slow_l
s_setpc_b64 s[{sRet}:{sRet+1}]
""")
    txt = a.s
    if OPT['abl2']:
        i0 = txt.index('k2_dloop0:'); i1 = txt.index('k2_rem:'); i2 = txt.index('k2_rloop:'); i3 = txt.index('k2_epi:')
        def filt(t):
            out = []
            for l in t.split('\n'):
                x = l.strip()
                f = OPT['abl2']
                if 'v' in f and (x.startswith('buffer_') or x.startswith('s_waitcnt vmcnt')): continue
                if 'd' in f and x.startswith('ds_add'): continue
                if 'g' in f and x.startswith('ds_read'): continue
                if 'q' in f and (x.startswith('v_fma') or x.startswith('v_lshl_add_u64') or x.startswith('v_lshlrev_b32') or x.startswith('v_alignbit')): continue
                if 'p' in f and ('_dpp' in x or x.startswith('s_nop') or x.startswith('v_readlane') or x.startswith('v_cndmask') or x.startswith('ds_permute')): continue
                if 'e' in f and x.startswith('s_mov_b64 exec'): continue
                if 'b' in f and x.startswith('s_barrier'): continue
                if 'x' in f and (x.startswith('s_set_gpr')): continue
                out.append(l)
            return '\n'.join(out)
        txt = txt[:i0] + filt(txt[i0:i1]) + txt[i1:i2] + filt(txt[i2:i3]) + txt[i3:]
    return txt + o.s + "k2_code_end:\n    s_endpgm\n", NVG, NW + 64


def gen_k3():
    a = A()
    pld = OPT['pld']
    S_M, S_D, S_O, S_P = 4, 8, 12, 16
    WR, WSB, WD, WU, CE = 20, 36, 52, 60, 68
    CF = 72
    PP = 72
    FL = 84
    MXS = 88
    sT = 80
    sWs = 96
    st_ = Stamper(a, 2, 98, sWs, 60, S_P)
    st_.start()
    vO16, vD, vM, vHi = 1, 2, 4, 8
    PL = 12
    R = (28, 36)
    G = (44, 48)
    H = (52, 56)
    S = (28, 32)
    RP = (62, 66)
    vT = 9
    a(f"""
s_cmp_ge_u32 s2, 1600
s_cbranch_scc1 k3_done
s_load_dwordx2 s[{S_M}:{S_M+1}], s[0:1], {KA['m']}
s_load_dwordx2 s[{S_D}:{S_D+1}], s[0:1], {KA['dist']}
s_load_dwordx2 s[{S_O}:{S_O+1}], s[0:1], {KA['out']}
s_load_dwordx2 s[{sWs}:{sWs+1}], s[0:1], {KA['ws']}
s_load_dwordx2 s[{PP}:{PP+1}], s[0:1], {KA['centers']}
s_load_dwordx4 s[{PP+4}:{PP+7}], s[0:1], {KA['w_rbf']}
s_load_dwordx4 s[{PP+8}:{PP+11}], s[0:1], {KA['w_down']}
s_mul_i32 s3, s2, 2000
v_lshlrev_b32 v{vO16}, 4, v0
v_add_u32 v{vO16}, s3, v{vO16}
v_mov_b32 v{vHi}, 0xffff0000
v_cmp_gt_u32 vcc, 125, v0
s_and_b64 exec, exec, vcc
v_lshrrev_b32 v{vT}, 2, v{vO16}
s_mul_i32 s3, s2, 5243
s_lshr_b32 s3, s3, 17
s_lshl_b32 s3, s3, 4
s_waitcnt lgkmcnt(0)
""")
    a(srd(S_D, S_D, E * 2))
    a(f"buffer_load_dword v{vD}, v{vT}, s[{S_D}:{S_D+3}], 0 offen")
    a(f"""
s_load_dwordx4 s[{CE}:{CE+3}], s[{PP}:{PP+1}], 0
s_load_dwordx16 s[{WR}:{WR+15}], s[{PP+4}:{PP+5}], 0
s_load_dwordx16 s[{WSB}:{WSB+15}], s[{PP+6}:{PP+7}], 0
s_load_dwordx8 s[{WD}:{WD+7}], s[{PP+8}:{PP+9}], 0
s_load_dwordx8 s[{WU}:{WU+7}], s[{PP+10}:{PP+11}], 0
s_add_u32 s{PP+2}, s{sWs}, {MAX_OFF}
s_addc_u32 s{PP+3}, s{sWs+1}, 0
s_load_dwordx8 s[{MXS}:{MXS+7}], s[{PP+2}:{PP+3}], 0
s_add_u32 s{PP+2}, s{PP+2}, s3
s_addc_u32 s{PP+3}, s{PP+3}, 0
s_load_dwordx4 s[{FL}:{FL+3}], s[{PP+2}:{PP+3}], {FLAG_OFF-MAX_OFF}
""")
    srd_off(a, S_P, sWs, None, PART_OFF, 4 * E * 8)
    for c in range(4):
        if c:
            a(f"s_mov_b32 s3, {c*E*8}")
        a(f"buffer_load_dwordx4 v[{PL+4*c}:{PL+4*c+3}], v{vO16}, s[{S_P}:{S_P+3}], {'s3' if c else '0'} offen {pld}")
    a(srd(S_M, S_M, E * 8) + srd(S_O, S_O, E * 8))
    a(f"buffer_load_dwordx4 v[{vM}:{vM+3}], v{vO16}, s[{S_T}:{S_T+3}], 0 offen")
    a("s_waitcnt lgkmcnt(0)")
    for k in range(8):
        a(s_unpack(CF + k, CE, k))
    a(f"""
s_max_u32 s{MXS}, s{MXS}, s{MXS+1}
s_max_u32 s{MXS+2}, s{MXS+2}, s{MXS+3}
s_max_u32 s{MXS+4}, s{MXS+4}, s{MXS+5}
s_max_u32 s{MXS}, s{MXS}, s{MXS+2}
s_max_u32 s{MXS}, s{MXS}, s{MXS+4}
s_lshl_b32 s3, s{MXS}, 16
s_and_b32 s3, s3, 0x7f800000
s_add_u32 s3, s3, {2 << 23}
s_waitcnt vmcnt(5)
v_and_b32 v{vD+1}, v{vHi}, v{vD}
v_lshlrev_b32 v{vD}, 16, v{vD}
""")

    st_.init()
    st_()

    def rnd(x):
        a(f"v_cvt_pk_bf16_f32 v{x+1}, v{x}, v{x+1}")
        a(f"v_lshlrev_b32 v{x}, 16, v{x+1}")
        a(f"v_and_b32 v{x+1}, v{vHi}, v{x+1}")

    for r in range(2):
        for k in range(0, 8, 2):
            a(f"v_pk_add_f32 v[{R[r]+k}:{R[r]+k+1}], v[{vD}:{vD+1}], s[{CF+k}:{CF+k+1}] op_sel:[{r},0] op_sel_hi:[{r},1] neg_lo:[0,1] neg_hi:[0,1]")
    allr = [R[r] + k for r in range(2) for k in range(8)]
    for x in allr[::2]:
        rnd(x)
    for x in allr:
        a(f"v_mul_f32 v{x}, v{x}, v{x}")
    for x in allr[::2]:
        rnd(x)
    for x in allr:
        a(f"v_mul_f32 v{x}, 0xc1200000, v{x}")
    for x in allr[::2]:
        rnd(x)
    for x in allr:
        a(f"v_mul_f32 v{x}, 0x3fb8aa3b, v{x}")
    for x in allr:
        a(f"v_exp_f32 v{x}, v{x}")
    a("s_nop 0")
    for r in range(2):
        for kk in range(4):
            a(f"v_cvt_pk_bf16_f32 v{RP[r]+kk}, v{R[r]+2*kk}, v{R[r]+2*kk+1}")

    cnt = [0]

    def wpair(base, kk, c):
        d = sT + (cnt[0] & 3)
        cnt[0] += 1
        op = "s_pack_ll_b32_b16" if c % 2 == 0 else "s_pack_hh_b32_b16"
        a(f"{op} s{d}, s{base + 4*kk + c//2}, s{base + 4*kk + 2 + c//2}")
        return d

    def dotmat(dst, src, base, nk):
        for kk in range(nk):
            for c in range(4):
                w = wpair(base, kk, c)
                for r in range(2):
                    acc = "0" if kk == 0 else f"v{dst[r]+c}"
                    a(f"v_dot2_f32_bf16 v{dst[r]+c}, v{src[r]+kk}, s{w}, {acc}")

    dotmat(H, RP, WR, 4)
    dotmat(G, RP, WSB, 4)
    for r in range(2):
        rnd(H[r])
        rnd(H[r] + 2)
    a(f"""
s_or_b32 s{sT}, s{FL}, s{FL+1}
s_or_b32 s{sT+1}, s{FL+2}, s{FL+3}
s_or_b32 s{sT}, s{sT}, s{sT+1}
v_mov_b32 v{vT}, s3
s_cmp_lg_u32 s{sT}, 0
s_cbranch_scc1 k3_slow
s_waitcnt vmcnt(1)
""")
    for r in range(2):
        for c in range(4):
            reg = 2 * r + c // 2
            hi = c % 2
            d = S[r] + c
            a(f"v_fma_mix_f32 v{d}, v{PL+reg}, 1.0, v{PL+4+reg} op_sel:[{hi},0,{hi}] op_sel_hi:[1,0,1]")
            a(f"v_fma_mix_f32 v{d}, v{PL+8+reg}, 1.0, v{d} op_sel:[{hi},0,0] op_sel_hi:[1,0,0]")
            a(f"v_fma_mix_f32 v{d}, v{PL+12+reg}, 1.0, v{d} op_sel:[{hi},0,0] op_sel_hi:[1,0,0]")
    for r in range(2):
        for c in range(4):
            a(f"v_mul_f32 v{S[r]+c}, v{vT}, v{S[r]+c}")
    a("k3_join:")
    st_()
    AG = (36, 40)
    for j in range(4):
        for cp in range(2):
            d = sT + 2 * ((j * 2 + cp) & 1)
            a(s_unpack(d, WD, j * 4 + cp * 2))
            a(s_unpack(d + 1, WD, j * 4 + cp * 2 + 1))
            for r in range(2):
                sp = S[r] + (j & ~1)
                o = j & 1
                dd = AG[r] + 2 * cp
                if j == 0:
                    a(f"v_pk_mul_f32 v[{dd}:{dd+1}], v[{sp}:{sp+1}], s[{d}:{d+1}] op_sel:[{o},0] op_sel_hi:[{o},1]")
                else:
                    a(f"v_pk_fma_f32 v[{dd}:{dd+1}], v[{sp}:{sp+1}], s[{d}:{d+1}], v[{dd}:{dd+1}] op_sel:[{o},0,0] op_sel_hi:[{o},1,1]")
    for r in range(2):
        for c in range(4):
            a(f"v_mul_f32 v{AG[r]+c}, v{AG[r]+c}, v{G[r]+c}")
    for r in range(2):
        for kk in range(2):
            a(f"v_cvt_pk_bf16_f32 v{RP[r]+kk}, v{AG[r]+2*kk}, v{AG[r]+2*kk+1}")
    dotmat(G, RP, WU, 2)
    a("s_waitcnt vmcnt(0)")
    for r in range(2):
        for cp in range(2):
            a(f"v_lshlrev_b32 v{S[r]+2*cp}, 16, v{vM+2*r+cp}")
            a(f"v_and_b32 v{S[r]+2*cp+1}, v{vHi}, v{vM+2*r+cp}")
    for r in range(2):
        rnd(G[r])
        rnd(G[r] + 2)
    for r in range(2):
        for c in range(4):
            a(f"v_mul_f32 v{G[r]+c}, v{G[r]+c}, v{H[r]+c}")
    for r in range(2):
        rnd(G[r])
        rnd(G[r] + 2)
    for r in range(2):
        for c in range(4):
            a(f"v_add_f32 v{G[r]+c}, v{G[r]+c}, v{S[r]+c}")
    for r in range(2):
        for cp in range(2):
            a(f"v_cvt_pk_bf16_f32 v{vM+2*r+cp}, v{G[r]+2*cp}, v{G[r]+2*cp+1}")
    a(f"""
buffer_store_dwordx4 v[{vM}:{vM+3}], v{vO16}, s[{S_O}:{S_O+3}], 0 offen
""")
    st_()
    st_.flush(61)
    a(f"""
k3_done:
s_endpgm
k3_slow:
""")
    srd_off(a, S_D, sWs, None, P32_OFF, 4 * E * 16)
    a(f"v_lshlrev_b32 v{vT+1}, 1, v{vO16}")
    for i in range(8):
        a(f"v_mov_b32 v{S[0]+i}, 0")
    a("s_waitcnt vmcnt(0)")
    for c in range(4):
        a(f"""
s_cmp_lg_u32 s{FL+c}, 0
s_cbranch_scc1 k3_s32_{c}
""")
        for r in range(2):
            for cc in range(4):
                reg = 2 * r + cc // 2
                a(f"v_fma_mix_f32 v{S[r]+cc}, v{PL+4*c+reg}, v{vT}, v{S[r]+cc} op_sel:[{cc%2},0,0] op_sel_hi:[1,0,0]")
        a(f"""
s_branch k3_sn_{c}
k3_s32_{c}:
buffer_load_dwordx4 v[36:39], v{vT+1}, s[{S_D}:{S_D+3}], 0 offen
buffer_load_dwordx4 v[40:43], v{vT+1}, s[{S_D}:{S_D+3}], 0 offen offset:16
s_waitcnt vmcnt(0)
""")
        for i in range(8):
            a(f"v_add_f32 v{S[0]+i}, v{S[0]+i}, v{36+i}")
        a(f"k3_sn_{c}:")
        a(f"v_add_u32 v{vT+1}, {E*16}, v{vT+1}")
    a("s_branch k3_join")
    return a.s


k2, k2v, k2lds = gen_k2()
out = HEADER
out += "; K1: 2-D fine binning of triplets (register-resident tile), K2: LDS gather + integer LDS accumulation + finalize\n"
out += f"; @launch kernel=k1_kernel grid=({NT+NMX},1,1) block=(1024,1,1) lds={LDS_ALL}\n"
out += f"; @launch kernel=k2_kernel grid=(256,1,1) block=(1024,1,1) lds={k2lds}\n"
if OPT['fuse'] == '0':
    out += "; @launch kernel=k3_kernel grid=(1600,1,1) block=(128,1,1) lds=0\n"
out += '.amdgcn_target "amdgcn-amd-amdhsa--gfx950"\n'
out += kernel_begin('k1_kernel') + gen_k1()
out += kernel_begin('k2_kernel') + k2
if OPT['fuse'] == '0':
    out += kernel_begin('k3_kernel') + gen_k3()
out += kernel_desc('k1_kernel', 128, 80) + kernel_desc('k2_kernel', k2v, 102)
if OPT['fuse'] == '0':
    out += kernel_desc('k3_kernel', 70, 102 if OPT['diag'] == '1' else 98)
open(sys.argv[1], 'w').write(out)
```

```python
import sys
sys.path.insert(0, 'dev')
from common import *

NT = 256
NMX = 0
TILE = 50000
RB = 6250
import os
CB = int(os.environ.get('CB', '5008'))
NCB = 80
MAGC = -(-(1 << 32) // CB)
assert (MAGC * CB - (1 << 32)) * E < (1 << 32) and CB * NCB >= E
NPH = 20
F = 64 * NCB
TGB = 20120 * 16
TABS = (F + 4) * 4
CAPG = 6824
CAP8 = CAPG * 24
REC_OFF = 0
TAB_OFF = 0x5000000
MAX_OFF = 0x5510000
FLAG_OFF = 0x5511000
HF_OFF = 0x5514000
PART_OFF = 0x5600000
P32_OFF = 0x6400000
DIAG_OFF = 0xFC00000
LDS_ALL = 163840
assert NT * TGB <= TAB_OFF and TAB_OFF + NT * TABS <= MAX_OFF

OPT = dict(ld='nt', st='', k2ld='', pst='', pld='', diag='0', depth='3', ne='4', nm='1', abl='', rb='0', fuse='1', abl2='', clk='0', tid='1', wb='0', fine='0', fr='2', fn='12', gs='10', vf='0', pst2='0', ff='1', q0a='1', cp='1', st0='', st0d='', st1='', st1d='')
for a_ in sys.argv[2:]:
    k_, v_ = a_.split('=')
    OPT[k_] = v_.replace('+', ' ')

BFI = "bitop3:0xca"
ANDOR = "bitop3:0xea"


class A:
    def __init__(self):
        self.s = ""

    def __call__(self, txt):
        for l in txt.strip('\n').split('\n'):
            l = l.strip()
            if not l:
                continue
            self.s += ("" if l.endswith(':') else "    ") + l + "\n"


def srd_off(a, d, ptr, off_sgpr, off_imm, nbytes):
    if off_sgpr is not None:
        a(f"s_add_u32 s{d}, s{ptr}, s{off_sgpr}")
        a(f"s_addc_u32 s{d+1}, s{ptr+1}, 0")
        if off_imm:
            a(f"s_add_u32 s{d}, s{d}, {off_imm}")
            a(f"s_addc_u32 s{d+1}, s{d+1}, 0")
    else:
        a(f"s_add_u32 s{d}, s{ptr}, {off_imm}")
        a(f"s_addc_u32 s{d+1}, s{ptr+1}, 0")
    a(f"s_mov_b32 s{d+2}, {nbytes}")
    a(f"s_mov_b32 s{d+3}, 0x00020000")


class Stamper:
    def __init__(self, a, kidx, sbase, wsptr, vtmp, srd):
        self.a, self.k, self.sb, self.ws, self.v, self.srd = a, kidx, sbase, wsptr, vtmp, srd
        self.on = OPT['diag'] == '1'

    def start(self):
        if self.on:
            self.a(f"s_memrealtime s[{self.sb+2}:{self.sb+3}]")

    def init(self):
        if not self.on:
            return
        a, sb = self.a, self.sb
        a(f"s_mov_b64 s[{sb}:{sb+1}], exec")
        a(f"s_mov_b64 exec, -1")
        a(f"v_mov_b32 v{self.v}, 0")
        a(f"s_mov_b64 exec, s[{sb}:{sb+1}]")
        a(f"v_writelane_b32 v{self.v}, s{sb+2}, 0")
        a(f"s_mov_b32 s{sb+3}, 1")

    def __call__(self):
        if not self.on:
            return
        a, sb = self.a, self.sb
        a(f"s_memrealtime s[{sb}:{sb+1}]")
        a(f"s_mov_b32 s{sb+2}, m0")
        a(f"s_mov_b32 m0, s{sb+3}")
        a("s_waitcnt lgkmcnt(0)")
        a(f"v_writelane_b32 v{self.v}, s{sb}, m0")
        a(f"s_add_u32 s{sb+3}, s{sb+3}, 1")
        if OPT['clk'] == '1':
            a(f"s_memtime s[{sb}:{sb+1}]")
            a(f"s_add_u32 m0, s{sb+3}, 31")
            a("s_waitcnt lgkmcnt(0)")
            a(f"v_writelane_b32 v{self.v}, s{sb}, m0")
        a(f"s_mov_b32 m0, s{sb+2}")

    def flush(self, vt):
        if not self.on:
            return
        a, sb = self.a, self.sb
        a(f"s_lshl_b32 s{sb}, s2, 8")
        srd_off(a, self.srd, self.ws, sb, DIAG_OFF + self.k * 0x100000, 256)
        a(f"s_mov_b64 exec, -1")
        a(f"v_cmp_gt_u32 vcc, 64, v0")
        a(f"s_and_b64 exec, exec, vcc")
        a(f"v_lshlrev_b32 v{vt}, 2, v0")
        a(f"buffer_store_dword v{self.v}, v{vt}, s[{self.srd}:{self.srd+3}], 0 offen")
        a(f"s_mov_b64 exec, -1")


def scan(a, op, v, full=True):
    for sh in (1, 2, 4, 8):
        a(f"{op}_dpp v{v}, v{v}, v{v} row_shr:{sh} row_mask:0xf bank_mask:0xf")
        a("s_nop 1")
    if full:
        a(f"{op}_dpp v{v}, v{v}, v{v} row_bcast:15 row_mask:0xa bank_mask:0xf")
        a("s_nop 1")
        a(f"{op}_dpp v{v}, v{v}, v{v} row_bcast:31 row_mask:0xc bank_mask:0xf")
        a("s_nop 1")


def code_touch(a, sp, vt, end_label, tag, st):
    if OPT['cp'] != '1':
        return 0
    a(f"""
s_getpc_b64 s[{sp}:{sp+1}]
{tag}_pc:
s_bfe_u32 s{st}, s2, 0x30003
s_lshl_b32 s{st}, s{st}, 13
v_and_b32 v{vt}, 63, v0
v_lshlrev_b32 v{vt}, 7, v{vt}
v_add_u32 v{vt}, s{st}, v{vt}
v_min_u32 v{vt}, {end_label}-{tag}_pc-4, v{vt}
v_mov_b32 v{vt+1}, s{sp+1}
v_add_co_u32 v{vt}, vcc, s{sp}, v{vt}
v_cmp_gt_u32 s[{sp}:{sp+1}], 64, v0
s_nop 0
v_addc_co_u32 v{vt+1}, vcc, 0, v{vt+1}, vcc
s_and_saveexec_b64 s[{sp}:{sp+1}], s[{sp}:{sp+1}]
s_cbranch_execz {tag}_skip
global_load_dword v{vt}, v[{vt}:{vt+1}], off
{tag}_skip:
s_mov_b64 exec, -1
""")
    return 1


EXEC63 = "s_mov_b32 exec_lo, 0\ns_mov_b32 exec_hi, 0x80000000"


def gen_k1():
    a = A()
    ld, st = OPT['ld'], OPT['st']
    D = int(OPT['depth'])
    WT = 20480
    STG0 = 20736
    CAPG0 = (LDS_ALL - STG0) // 24 // 8 * 8
    AN = 18
    S_O, S_I, S_A, S_R, S_T, S_F = 4, 8, 12, 16, 20, 24
    P = 28
    sW, sMR, sMC, sNR, sNC, sG, sLo8, sT0, sT1, sCap8, sRem, sSo, sHi, sCGK, sCapG = range(40, 55)
    vC, vAng, vT16, vDma = 1, 2, 3, 4
    vFq = 5
    T0 = 6
    RX = 30
    vMq = 22
    sV = 62
    sMax = 64
    S_X = 68
    RQ = 32
    vA48 = 27
    vSt = 26

    def rec(slot):
        if slot >= 48:
            return RX + 2 * (slot - 48)
        q, k = divmod(slot, 4)
        return RQ + q * 8 + (0, 4, 2, 6)[k]

    st_ = Stamper(a, 0, 56, P + 10, vSt, S_O)
    st_.start()
    a(f"""
s_cmp_ge_u32 s2, {NT+NMX}
s_cbranch_scc1 k1_done
s_load_dwordx4 s[{P}:{P+3}], s[0:1], {KA['m']}
s_load_dwordx2 s[{P+4}:{P+5}], s[0:1], {KA['idx_out']}
s_load_dwordx2 s[{P+6}:{P+7}], s[0:1], {KA['angle']}
s_load_dwordx2 s[{P+8}:{P+9}], s[0:1], {KA['ang_freq']}
s_load_dwordx2 s[{P+10}:{P+11}], s[0:1], {KA['ws']}
s_load_dwordx2 s[{S_X}:{S_X+1}], s[0:1], {KA['dist']}
""")
    code_touch(a, 60, 28, "k2_code_end", "k1ct", sT0)
    a(f"""
v_lshrrev_b32 v{T0}, 6, v0
v_lshlrev_b32 v{vT16}, 4, v0
v_readfirstlane_b32 s{sW}, v{T0}
v_mov_b32 v{T0+4}, 0
v_mov_b32 v{T0+5}, 0
v_mov_b32 v{T0+6}, 0
v_mov_b32 v{T0+7}, 0
v_lshlrev_b32 v{T0+1}, 2, v0
ds_write_b128 v{vT16}, v[{T0+4}:{T0+7}]
ds_write_b32 v{T0+1}, v{T0+4} offset:16384
v_mov_b32 v{T0+2}, {WT+64}
ds_write_b64 v{T0+2}, v[{T0+4}:{T0+5}]
s_mul_i32 s{sT0}, s2, 3125
s_add_u32 s{sT1}, s{sT0}, 3125
s_lshr_b32 s{sT0}, s{sT0}, 2
s_lshr_b32 s{sT1}, s{sT1}, 2
s_sub_u32 s{sG}, s{sT1}, s{sT0}
s_lshl_b32 s{sG}, s{sG}, 6
s_sub_u32 s{sRem}, s{sG}, 49152
v_cmp_gt_u32 s[{sV}:{sV+1}], s{sRem}, v0
v_mov_b32 v{vC}, 1
s_mov_b32 s{sMR}, 687195
s_mov_b32 s{sMC}, {MAGC}
s_mov_b32 s{sNR}, {-RB}
s_mov_b32 s{sNC}, {-CB}
s_mov_b32 s{sCap8}, {CAP8}
s_mov_b32 s{sCGK}, {63*NPH*4}
s_lshl_b32 s{sT1}, s{sT0}, 7
s_lshl_b32 s{sT0}, s{sT0}, 8
s_waitcnt lgkmcnt(0)
s_barrier
""")
    srd_off(a, S_O, P + 4, sT0, 0, 0)
    srd_off(a, S_I, P + 2, sT0, 0, 0)
    srd_off(a, S_A, P + 6, sT1, 0, 0)
    a(f"""
s_lshl_b32 s{S_O+2}, s{sG}, 2
s_lshl_b32 s{S_I+2}, s{sG}, 2
s_lshl_b32 s{S_A+2}, s{sG}, 1
""")

    vm = []

    def issue_pair(q):
        if q < 12:
            b = RQ + q * 8
            a(f"s_mov_b32 s{sT0}, {q*16384}")
            a(f"buffer_load_dwordx4 v[{b}:{b+3}], v{vT16}, s[{S_O}:{S_O+3}], s{sT0} offen {ld}")
            a(f"buffer_load_dwordx4 v[{b+4}:{b+7}], v{vT16}, s[{S_I}:{S_I+3}], s{sT0} offen {ld}")
            vm.extend([('O', q), ('I', q)])
        elif q == 12:
            a(f"""
v_lshrrev_b32 v{vA48}, 2, v{vT16}
v_add_u32 v{vA48}, {49152*4}, v{vA48}
buffer_load_dword v{RX}, v{vA48}, s[{S_O}:{S_O+3}], 0 offen {ld}
buffer_load_dword v{RX+1}, v{vA48}, s[{S_I}:{S_I+3}], 0 offen {ld}
v_lshrrev_b32 v{vA48}, 1, v{vA48}
buffer_load_ushort v{vA48}, v{vA48}, s[{S_A}:{S_A+3}], 0 offen {ld}
""")
            vm.extend([('O', 12), ('I', 12), ('A', 48)])

    def issue_ang(q):
        if q < 12:
            an = AN + 2 * (q % 4)
            a(f"s_mov_b32 s{sT1}, {q*8192}")
            a(f"buffer_load_dwordx2 v[{an}:{an+1}], v{vAng}, s[{S_A}:{S_A+3}], s{sT1} offen {ld}")
            vm.append(('D', q))

    def wait_for(key):
        n = len(vm) - 1 - vm.index(key)
        a(f"s_waitcnt vmcnt({n})")

    srd_off(a, S_F, P + 8, None, 0, 2)
    a(f"""
v_mov_b32 v{vFq}, 0
v_lshrrev_b32 v{vAng}, 1, v{vT16}
buffer_load_ushort v{vFq}, v{vFq}, s[{S_F}:{S_F+3}], 0 offen
""")
    vm.append(('F', 0))
    for q in range(D):
        issue_pair(q)
        if q < int(OPT['ne']):
            issue_ang(q)
    vMq = RQ + 88

    def small_loads():
        srd_off(a, S_F, P, None, 0, E * 8)
        a(f"""
s_mul_i32 s{sT0}, s2, {782*16}
v_add_u32 v{T0}, s{sT0}, v{vT16}
v_mov_b32 v{T0+2}, 782
v_cmp_lt_u32 s[{sMax}:{sMax+1}], v0, v{T0+2}
v_mov_b32 v{T0+2}, 0xffff0000
s_mul_i32 s{sT0}, s2, {25*128}
v_cndmask_b32 v{T0}, v{T0+2}, v{T0}, s[{sMax}:{sMax+1}]
buffer_load_dwordx4 v[{vMq}:{vMq+3}], v{T0}, s[{S_F}:{S_F+3}], 0 offen
v_min_u32 v{T0+1}, 24, v0
v_lshlrev_b32 v{T0+1}, 7, v{T0+1}
v_add_u32 v{T0+1}, s{sT0}, v{T0+1}
s_mov_b32 s{S_X+2}, {E*2}
s_mov_b32 s{S_X+3}, 0x00020000
buffer_load_dword v29, v{T0+1}, s[{S_X}:{S_X+3}], 0 offen
""")
        vm.extend([('M', 0), ('X', 0)])

    a(f"""
s_mov_b32 s{sHi}, 0xffff0000
s_mul_i32 s{sT0}, s2, {TGB}
""")
    srd_off(a, S_R, P + 10, sT0, REC_OFF, TGB)
    a(f"s_mul_i32 s{sT0}, s2, {TABS}")
    srd_off(a, S_T, P + 10, sT0, TAB_OFF, TABS)
    st_.init()
    st_()
    def stats():
        wait_for(('M', 0))
        for k in range(4):
            a(f"v_and_b32 v{vMq+k}, 0x7fff7fff, v{vMq+k}")
        a(f"""
v_pk_max_u16 v{T0}, v{vMq}, v{vMq+1}
v_pk_max_u16 v{T0+1}, v{vMq+2}, v{vMq+3}
v_pk_max_u16 v{T0}, v{T0}, v{T0+1}
v_lshrrev_b32 v{T0+1}, 16, v{T0}
v_and_b32 v{T0}, 0xffff, v{T0}
v_max_u32 v{T0}, v{T0}, v{T0+1}
v_mov_b32 v{T0+1}, 0
""")
        for k in range(4):
            a(f"v_lshlrev_b32 v{T0+2}, 16, v{vMq+k}")
            a(f"v_and_b32 v{T0+3}, 0xffff0000, v{vMq+k}")
            a(f"v_add_f32 v{T0+1}, v{T0+1}, v{T0+2}")
            a(f"v_add_f32 v{T0+1}, v{T0+1}, v{T0+3}")
        a(f"v_mov_b32 v{T0+2}, {WT+64}")
        scan(a, "v_max_u32", T0)
        scan(a, "v_add_f32", T0 + 1)
        a(f"""
{EXEC63}
ds_max_u32 v{T0+2}, v{T0}
ds_add_f32 v{T0+2}, v{T0+1} offset:4
s_mov_b64 exec, -1
""")

    t1, t2, tR1, tR3 = T0, T0 + 1, T0 + 2, T0 + 3
    tb = T0 + 4

    def binning(ro, ri, dst_rl, tbk, masked=False):
        a(f"""
v_mul_hi_u32_u24 v{t1}, s{sMR}, v{ro}
v_mul_hi_u32_u24 v{t2}, s{sMC}, v{ri}
v_mad_i32_i24 v{dst_rl}, v{t1}, s{sNR}, v{ro}
v_mul_u32_u24 v{t1}, {NPH*4}, v{t1}
v_mad_i32_i24 v{ri}, v{t2}, s{sNC}, v{ri}
v_lshl_add_u32 v{tbk}, v{t2}, 2, v{t1}
v_mul_u32_u24 v{t2}, 205, v{t2}
v_lshrrev_b32 v{t2}, 12, v{t2}
v_mad_u32_u24 v{tbk}, v{t2}, s{sCGK}, v{tbk}
""")
        if masked:
            a(f"s_mov_b64 exec, s[{sV}:{sV+1}]")
        a(f"ds_add_u32 v{tbk}, v{vC}")
        if masked:
            a("s_mov_b64 exec, -1")

    def packpair(o0, o1, i0, i1, tR, b0, b1):
        a(f"""
v_lshrrev_b32 v{t1}, 10, v{i0}
v_lshrrev_b32 v{t2}, 10, v{i1}
v_lshl_or_b32 v{o0}, v{o0}, 3, v{t1}
v_lshl_or_b32 v{o1}, v{i0}, 22, v{b0}
v_lshl_or_b32 v{i0}, v{tR}, 3, v{t2}
v_lshl_or_b32 v{i1}, v{i1}, 22, v{b1}
""")

    def cospair(src, w_lo, w_hi, xx, one):
        a(f"""
v_lshlrev_b32 v{xx}, 16, v{src}
v_and_b32 v{xx+1}, 0xffff0000, v{src}
""")
        if not one:
            a(f"""
v_mul_f32 v{xx}, v{vFq}, v{xx}
v_mul_f32 v{xx+1}, v{vFq}, v{xx+1}
v_cvt_pk_bf16_f32 v{xx+1}, v{xx}, v{xx+1}
v_lshlrev_b32 v{xx}, 16, v{xx+1}
v_and_b32 v{xx+1}, 0xffff0000, v{xx+1}
""")
        a(f"""
v_mul_f32 v{xx}, 0.15915494, v{xx}
v_mul_f32 v{xx+1}, 0.15915494, v{xx+1}
v_fract_f32 v{xx}, v{xx}
v_fract_f32 v{xx+1}, v{xx+1}
v_cos_f32 v{xx}, v{xx}
v_cos_f32 v{xx+1}, v{xx+1}
s_nop 0
v_cvt_pk_bf16_f32 v{xx}, v{xx}, v{xx+1}
v_lshl_or_b32 v{w_lo}, v{xx}, 16, v{w_lo}
v_and_or_b32 v{w_hi}, v{xx}, s{sHi}, v{w_hi}
""")

    NE = int(OPT['ne'])
    for q in range(13):
        if q == 6:
            stats()
        wait_for(('I', q))
        issue_pair(q + D)
        if q + D < NE:
            issue_ang(q + D)
        if q == 2:
            small_loads()
        if q < 12:
            r = RQ + q * 8
            for k in range(4):
                binning(r + k, r + 4 + k, r + k if k % 2 == 0 else (tR1 if k == 1 else tR3), tb + k)
            packpair(r, r + 1, r + 4, r + 5, tR1, tb, tb + 1)
            packpair(r + 2, r + 3, r + 6, r + 7, tR3, tb + 2, tb + 3)
            if q < NE:
                wait_for(('D', q))
                if q == 0:
                    a(f"v_lshlrev_b32 v{vFq}, 16, v{vFq}")
                an = AN + 2 * (q % 4)
                cospair(an, rec(q * 4), rec(q * 4 + 1), T0 + 8, False)
                cospair(an + 1, rec(q * 4 + 2), rec(q * 4 + 3), T0 + 10, False)
        else:
            binning(RX, RX + 1, RX, tb, True)
            a(f"""
v_lshrrev_b32 v{t1}, 10, v{RX+1}
v_lshl_or_b32 v{RX}, v{RX}, 3, v{t1}
v_lshl_or_b32 v{RX+1}, v{RX+1}, 22, v{tb}
""")
    for q in range(NE, NE + 4):
        issue_ang(q)
    a("""
s_waitcnt lgkmcnt(0)
s_barrier
""")
    st_()
    c = T0
    g = T0 + 6
    tm = T0 + 11
    vA, vS, vI = vAng, vDma, vC
    a(f"v_mul_u32_u24 v{vA}, 20, v0")
    for i in range(5):
        a(f"ds_read_b32 v{c+i}, v{vA} offset:{4*i}")
    a(f"s_mov_b32 s{sT0}, 43691")
    if NE == 0:
        a(f"v_lshlrev_b32 v{vFq}, 16, v{vFq}")
    a("s_waitcnt lgkmcnt(0)")
    for i in range(5):
        a(f"v_add_u32 v{g+i}, 2, v{c+i}")
        a(f"v_mul_u32_u24 v{g+i}, s{sT0}, v{g+i}")
        a(f"v_lshrrev_b32 v{g+i}, 17, v{g+i}")
    a(f"""
v_add3_u32 v{vS}, v{g}, v{g+1}, v{g+2}
v_add3_u32 v{vS}, v{vS}, v{g+3}, v{g+4}
v_mov_b32 v{vI}, v{vS}
s_lshl_b32 s{sT0}, s{sW}, 2
s_add_u32 s{sT0}, s{sT0}, {WT}
""")
    scan(a, "v_add_u32", vI)
    a(f"""
v_mov_b32 v{tm}, s{sT0}
{EXEC63}
ds_write_b32 v{tm}, v{vI}
s_mov_b64 exec, -1
""")
    for i in range(5):
        a(f"v_mul_u32_u24 v{c+5}, 3, v{g+i}")
        a(f"v_sub_u32 v{c+5}, v{c+5}, v{c+i}")
        a(f"v_min_u32 v{c+i}, 0x1fff, v{c+i}")
        a(f"v_lshl_or_b32 v{c+i}, v{c+i}, 19, v{c+5}")
    a(f"""
v_sub_u32 v{vI}, v{vI}, v{vS}
v_and_b32 v{tm}, 15, v0
v_lshlrev_b32 v{tm}, 2, v{tm}
v_readfirstlane_b32 s{sLo8}, v{vFq}
s_waitcnt lgkmcnt(0)
s_barrier
ds_read_b32 v{tm}, v{tm} offset:{WT}
v_mov_b32 v28, {WT+64}
ds_read_b64 v[28:29], v28
s_waitcnt lgkmcnt(0)
v_mov_b32 v{vS}, v{tm}
v_and_b32 v29, 0xffff0000, v29
v_or_b32 v28, v28, v29
""")
    scan(a, "v_add_u32", tm, full=False)
    a(f"""
v_readlane_b32 s{sG}, v{tm}, 15
v_sub_u32 v{vS}, v{tm}, v{vS}
s_nop 0
v_readlane_b32 s{sT0}, v{vS}, s{sW}
s_nop 1
v_add_u32 v{vI}, s{sT0}, v{vI}
""")
    for i in range(5):
        t = (tm, vS)[i & 1]
        a(f"v_mul_u32_u24 v{t}, 24, v{vI}")
        a(f"v_lshl_or_b32 v{c+i}, v{vI}, 4, v{c+i}")
        a(f"ds_write_b32 v{vA}, v{t} offset:{4*i}")
        a(f"v_add_u32 v{vI}, v{vI}, v{g+i}")
    vM22 = vDma
    a(f"""
v_lshlrev_b32 v{c+5}, 4, v{vI}
buffer_store_dwordx4 v[{c}:{c+3}], v{vA}, s[{S_T}:{S_T+3}], 0 offen
buffer_store_dword v{c+4}, v{vA}, s[{S_T}:{S_T+3}], 0 offen offset:16
v_mov_b32 v{tm}, 1023
v_cmp_eq_u32 s[{P}:{P+1}], v0, v{tm}
v_mov_b32 v{vC}, 8
v_mov_b32 v{tm}, 0xffff0000
v_cndmask_b32 v{vA}, v{tm}, v{vA}, s[{P}:{P+1}]
buffer_store_dword v{c+5}, v{vA}, s[{S_T}:{S_T+3}], 0 offen offset:20
v_mov_b32 v{vM22}, 0x3fffff
v_lshrrev_b32 v{vAng}, 1, v{vT16}
s_mov_b32 s{sRem}, {CAPG0*24}
s_min_u32 s{sG}, s{sG}, 20096
v_readfirstlane_b32 s{sMax}, v28
s_waitcnt lgkmcnt(0)
s_barrier
""")
    vm.extend([('S', 0), ('S', 1), ('S', 2)])
    st_()
    pt = (T0, T0 + 4)
    x = T0 + 8

    def slots(q):
        return range(4 * q, 4 * q + (4 if q < 12 else 1))

    def issue(q, s):
        for k, sl in enumerate(slots(q)):
            a(f"v_and_b32 v{pt[s]+k}, v{vM22}, v{rec(sl)+1}")
            if sl == 48:
                a(f"v_cndmask_b32 v{pt[s]+k}, v{vM22}, v{pt[s]+k}, s[{sV}:{sV+1}]")
                a(f"s_mov_b64 exec, s[{sV}:{sV+1}]")
            a(f"ds_add_rtn_u32 v{pt[s]+k}, v{pt[s]+k}, v{vC}")
            if sl == 48:
                a("s_mov_b64 exec, -1")

    def consume(q, s, pending, one):
        if q < NE:
            pass
        elif q < 12:
            an = AN + 2 * (q % 4)
            wait_for(('D', q))
            cospair(an, rec(q * 4), rec(q * 4 + 1), x, one)
            cospair(an + 1, rec(q * 4 + 2), rec(q * 4 + 3), x + 2, one)
            issue_ang(q + 4)
        else:
            wait_for(('A', 48))
            cospair(vA48, rec(48), 29, x, one)
        a(f"s_waitcnt lgkmcnt({pending})")
        for k, sl in enumerate(slots(q)):
            w = rec(sl)
            a(f"v_bitop3_b32 v{w+1}, v{vM22}, v{pt[s]+k}, v{w+1} {BFI}")
        for k, sl in enumerate(slots(q)):
            w = rec(sl)
            a(f"""
v_cmpx_gt_u32 vcc, s{sRem}, v{pt[s]+k}
ds_write_b64 v{pt[s]+k}, v[{w}:{w+1}] offset:{STG0}
s_mov_b64 exec, -1
""")

    def merged(one):
        late = list(range(NE, 12))
        order = [12] + late[:4] + list(range(NE)) + late[4:]
        issue(order[0], 0)
        for n, q in enumerate(order):
            if n + 1 < len(order):
                issue(order[n + 1], (n + 1) & 1)
                consume(q, n & 1, 4, one)
            else:
                consume(q, n & 1, 0, one)

    if OPT['ff'] == '1':
        a(f"s_cmp_lg_u32 s{sLo8}, 0x3f800000")
        a("s_cbranch_scc1 k1_gen")
        save = list(vm)
        merged(True)
        a("k1_mj:")
        done = a.s
        a.s = ""
        vm[:] = save
        a("k1_gen:")
        merged(False)
        a("s_branch k1_mj")
        gen_code = a.s
        a.s = done
    else:
        merged(False)
        gen_code = ""
    vLo, vT24, vMx, vB = vC, vAng, vDma, vFq
    a(f"""
v_mov_b32 v{vLo}, {CAPG0*24}
v_mul_u32_u24 v{vT24}, 24, v0
v_add_u32 v{vT24}, {STG0}, v{vT24}
v_mov_b32 v{vMx}, 0xffc00000
s_mov_b32 s{sSo}, 0
s_mov_b32 s{sCapG}, {CAPG0}
""")

    def round_code(tag, stn, std, last):
        a(f"""
k1_co{tag}:
s_min_u32 s{sRem}, s{sG}, s{sCapG}
s_waitcnt lgkmcnt(0)
s_barrier
""")
        st_()
        qb = T0

        def rd(q3, addr, o):
            for n2, r2 in enumerate(q3):
                a(f"ds_read_b64 v[{r2}:{r2+1}], v{addr} offset:{o+8*n2}")

        def pk(q, r4):
            a(f"""
v_lshrrev_b32 v{r4+1}, 10, v{r4+1}
v_bitop3_b32 v{r4+1}, v{vMx}, v{q+3}, v{r4+1} {BFI}
v_mov_b32 v{q+3}, v{r4}
v_lshrrev_b32 v{r4+1}, 10, v{r4+1}
v_bitop3_b32 v{q+1}, v{vMx}, v{q+1}, v{r4+1} {BFI}
""")

        def stq(q, it, st=stn):
            a(f"""
s_sub_i32 s{sT0}, s{sRem}, {it*1024}
s_add_u32 s{sT1}, s{sSo}, {it*16384}
v_cmpx_gt_i32 vcc, s{sT0}, v0
buffer_store_dwordx4 v[{q}:{q+3}], v{vT16}, s[{S_R}:{S_R+3}], s{sT1} offen {st}
s_mov_b64 exec, -1
""")

        Q = (qb, qb + 6, qb + 12)
        Q6 = qb + 18 if not st_.on else None
        for n2 in range(3):
            rd((Q[n2], Q[n2] + 2, Q[n2] + 4), vT24, n2 * 24576)
        a(f"v_add_u32 v{vB}, {3*24576}, v{vT24}")
        for n2 in range(3):
            a(f"s_waitcnt lgkmcnt({3*(2-n2)})")
            pk(Q[n2], Q[n2] + 4)
            stq(Q[n2], n2)
        if Q6 is None:
            a(f"v_add_u32 v{vA48}, {6*24576}, v{vT24}")
            a(f"v_min_u32 v{vA48}, {LDS_ALL-24}, v{vA48}")
            rd((Q[0], Q[0] + 2, Q[0] + 4), vA48, 0)
            a("s_waitcnt lgkmcnt(0)")
            pk(Q[0], Q[0] + 4)
            stq(Q[0], 6)
        rd((Q[0], Q[0] + 2, Q[0] + 4), vB, 0)
        rd((Q[1], Q[1] + 2, Q[1] + 4), vB, 24576)
        a(f"v_min_u32 v{vB}, {LDS_ALL-24-49152}, v{vB}")
        rd((Q[2], Q[2] + 2, Q[2] + 4), vB, 49152)
        a(f"v_add_u32 v{vB}, {6*24576}, v{vT24}")
        a(f"v_min_u32 v{vB}, {LDS_ALL-24}, v{vB}")
        a("s_waitcnt lgkmcnt(6)")
        pk(Q[0], Q[0] + 4)
        deferred = [(Q[0], 3), (Q[1], 4), (Q[2], 5)]
        if Q6 is not None:
            rd((Q6, Q6 + 2, Q[0] + 4), vB, 0)
            a("s_waitcnt lgkmcnt(6)")
            pk(Q[1], Q[1] + 4)
            a("s_waitcnt lgkmcnt(3)")
            pk(Q[2], Q[2] + 4)
            a("s_waitcnt lgkmcnt(0)")
            pk(Q6, Q[0] + 4)
            deferred.append((Q6, 6))
        else:
            a("s_waitcnt lgkmcnt(3)")
            pk(Q[1], Q[1] + 4)
            a("s_waitcnt lgkmcnt(0)")
            pk(Q[2], Q[2] + 4)
        a(f"""
s_sub_u32 s{sG}, s{sG}, s{sRem}
s_cmp_eq_u32 s{sG}, 0
s_cbranch_scc1 k1_fin
s_barrier
""")
        st_()
        tmps = (Q[0] + 4, Q[0] + 5, Q[1] + 4, Q[1] + 5)
        for sl in range(49):
            w = rec(sl)
            t = tmps[sl & 3]
            a(f"""
v_sub_u32 v{t}, v{w+1}, v{vLo}
v_and_b32 v{t}, 0x3fffff, v{t}
v_cmpx_gt_u32 vcc, s{sCap8}, v{t}
ds_write_b64 v{t}, v[{w}:{w+1}]
s_mov_b64 exec, -1
""")
            if sl % 10 == 4 and sl // 10 < len(deferred):
                stq(*deferred[sl // 10], st=std)
        a(f"""
v_add_u32 v{vLo}, {CAP8}, v{vLo}
v_mul_u32_u24 v{vT24}, 24, v0
s_lshl_b32 s{sT0}, s{sRem}, 4
s_add_u32 s{sSo}, s{sSo}, s{sT0}
s_mov_b32 s{sCapG}, {CAPG}
""")
        if last:
            a(f"s_branch k1_co{tag}")
        return stq, deferred

    if OPT['st0'] or OPT['st0d'] or OPT['st1'] or OPT['st1d']:
        round_code("a", OPT['st0'], OPT['st0d'], False)
    if OPT['st1'] or OPT['st1d']:
        round_code("b", OPT['st1'], OPT['st1d'], False)
    stq, deferred = round_code("", st, st, True)
    a("k1_fin:")
    for d in deferred:
        stq(*d)
    st_()
    if st_.on:
        a("s_waitcnt vmcnt(0)")
    st_()
    st_.flush(T0)
    a(f"""
s_cmp_lg_u32 s{sW}, 0
s_cbranch_scc1 k1_done
s_load_dwordx2 s[20:21], s[0:1], {KA['centers']}
s_load_dwordx8 s[4:11], s[0:1], {KA['w_rbf']}
""")
    srd_off(a, S_X, P + 10, None, MAX_OFF, HF_OFF - MAX_OFF + 8192)
    a(f"""
s_lshl_b32 s{sT0}, s2, 5
s_add_u32 s{sT0}, s{sT0}, {HF_OFF - MAX_OFF}
s_lshl_b32 s{sT1}, s2, 2
v_lshlrev_b32 v28, 2, v0
v_add_u32 v28, s{sT0}, v28
v_mov_b32 v29, 0
v_writelane_b32 v28, s{sT1}, 8
v_writelane_b32 v29, s{sMax}, 8
s_mov_b64 exec, 0x1ff
buffer_store_dword v29, v28, s[{S_X}:{S_X+3}], 0 offen
s_waitcnt lgkmcnt(0)
s_load_dword s22, s[20:21], 0
s_load_dword s23, s[4:5], 0
s_load_dword s24, s[6:7], 0
s_load_dword s25, s[8:9], 0
s_load_dword s26, s[10:11], 0
k1_done:
s_endpgm
""")
    a.s += gen_code
    return a.s


def gen_k2():
    a = A()
    o = A()
    ld, pst = OPT['k2ld'], OPT['pst']
    abl = OPT['abl']
    ACC = 40960
    ACCB = 50000
    NW = ACC + 2 * ACCB
    S_R, S_T, S_M, S_P = 4, 8, 12, 16
    P = 20
    MXS = 24
    sW, sRb, sCg, sJ, sMo, sMode, sPf, sT0, sT1, sT2, sCarry, sTot, sXw, sCo = range(32, 46)
    sNK = 46
    sA, sB, sC, sD = 48, 50, 52, 54
    MK = (56, 62)
    MN = (68, 74)
    MX = (80, 86)
    TOT = (92, 93)
    sRet = P
    MS = MXS
    vL16, vBase, vT16, vLW, vMagic, vMHi, vSt = 1, 2, 3, 4, 5, 6, 7
    HR = 8
    vC0 = 10
    vX0 = 12
    MP = 14
    GA = 24
    PT = 30
    HQ = 34
    XT = 42
    RS = 46
    GX = 50
    FT = 56
    EN = 64
    RC = (88, 92)
    RXW = (96, 100)
    TH = 104
    MP2 = 108
    MPS = (MP, MP2)
    AD = 118
    vO16, vD, vM = 121, 122, 124
    NVG = 128
    sTN = 100
    sWk = 101
    sMsc = 3
    sXp = 94
    TID = OPT['tid'] == '1'

    st_ = Stamper(a, 1, 96, P + 2, vSt, S_M if OPT['fuse'] == '1' else S_R)
    st_.start()
    a(f"""
s_cmp_ge_u32 s2, 256
s_cbranch_scc1 k2_done
s_load_dwordx2 s[{P}:{P+1}], s[0:1], {KA['m']}
s_load_dwordx2 s[{P+2}:{P+3}], s[0:1], {KA['ws']}
s_load_dwordx2 s[{S_P}:{S_P+1}], s[0:1], {KA['dist']}
s_load_dwordx2 s[{MN[0]}:{MN[0]+1}], s[0:1], {KA['centers']}
s_load_dwordx4 s[{MX[0]}:{MX[0]+3}], s[0:1], {KA['w_rbf']}
s_load_dwordx4 s[{MX[0]+4}:{MX[0]+7}], s[0:1], {KA['w_down']}
""")
    code_touch(a, sA, RS, "k2_code_end", "k2ct", sT0)
    a(f"""
v_lshrrev_b32 v{FT}, 6, v0
v_and_b32 v{FT+1}, 63, v0
v_readfirstlane_b32 s{sW}, v{FT}
v_lshlrev_b32 v{vT16}, 4, v0
v_lshlrev_b32 v{vL16}, 4, v{FT+1}
s_and_b32 s{sT0}, s2, 7
s_lshr_b32 s{sCg}, s{sT0}, 1
s_lshr_b32 s{sRb}, s2, 3
s_and_b32 s{sT0}, s2, 1
s_lshl_b32 s{sT0}, s{sT0}, 5
s_add_u32 s{sRb}, s{sRb}, s{sT0}
s_lshl_b32 s{sCo}, s{sCg}, 6
s_add_u32 s{sCo}, s{sCo}, s{sRb}
v_lshrrev_b32 v{vLW}, 1, v{vT16}
v_add_u32 v{vLW}, 32768, v{vLW}
v_min_u32 v{vLW}, {CB*8-8}, v{vLW}
s_mul_i32 s{sMo}, s{sCg}, {NPH*CB*8}
s_mov_b32 s{sT2}, 0xffff0000
s_mov_b32 s{sT1}, {TGB}
v_mov_b32 v{vMHi}, 0xffff0000
s_cmp_lt_u32 s{sW}, 4
s_cbranch_scc1 k2_rl0
v_add_u32 v{FT+4}, -256, v0
v_mul_u32_u24 v{FT+2}, 0xaaab, v{FT+4}
v_lshrrev_b32 v{FT+2}, 17, v{FT+2}
v_mul_u32_u24 v{FT+3}, 3, v{FT+2}
v_sub_u32 v{FT+3}, v{FT+4}, v{FT+3}
s_branch k2_rl1
k2_rl0:
v_mov_b32 v{FT+2}, v0
v_mov_b32 v{FT+3}, 3
k2_rl1:
v_mul_u32_u24 v{FT}, 96, v{FT+2}
v_add_u32 v{FT}, {ACC}, v{FT}
s_mul_i32 s{sT0}, s{sCo}, {NPH*4}
s_mov_b32 s{sT2}, 43691
v_add_u32 v{GA+1}, 1024, v0
v_mul_u32_u24 v{GA+2}, s{sT2}, v0
v_mul_u32_u24 v{GA+3}, s{sT2}, v{GA+1}
v_lshrrev_b32 v{GA+2}, 18, v{GA+2}
v_lshrrev_b32 v{GA+3}, 18, v{GA+3}
v_mul_u32_u24 v{GA+4}, {TABS-96}, v{GA+2}
v_mul_u32_u24 v{GA+5}, {TABS-96}, v{GA+3}
v_add3_u32 v{GA}, v{GA+4}, v{vT16}, s{sT0}
v_add3_u32 v{GA+1}, v{GA+5}, v{vT16}, s{sT0}
v_add_u32 v{GA+1}, 16384, v{GA+1}
v_mov_b32 v{GA+2}, {256*6-1024}
v_cmp_lt_u32 s[{sC}:{sC+1}], v0, v{GA+2}
v_mul_lo_u32 v{vBase}, v{FT+2}, s{sT1}
v_lshl_add_u32 v{vBase}, v{FT+3}, 4, v{vBase}
v_mul_u32_u24 v{TH}, 3, v{FT+3}
v_add_u32 v{TH}, 1, v{TH}
v_lshlrev_b32 v{TH}, 19, v{TH}
v_add_u32 v{TH+1}, 0x80000, v{TH}
v_add_u32 v{TH+2}, 0x100000, v{TH}
s_waitcnt lgkmcnt(0)
""")
    srd_off(a, S_R, P + 2, None, REC_OFF, NT * TGB)
    srd_off(a, S_T, P + 2, None, TAB_OFF, NT * TABS)
    srd_off(a, S_M, P, None, 0, E * 8)
    a(f"s_add_u32 s{S_M+2}, s{sMo}, {NPH*CB*8}")
    a(f"s_min_u32 s{S_M+2}, s{S_M+2}, {E*8}")
    assert TID

    def m_load(MP=MP, a=a):
        if TID:
            for p in 'bca':
                m_piece(MP, p)
            return
        if 'm' in abl:
            for i in range(3):
                a(f"buffer_load_dword v{MP+i}, v{vL16}, s[{S_M}:{S_M+3}], 0 offen")
            return
        a(f"""
s_add_u32 s{sT0}, s{sMo}, 16384
buffer_load_dwordx4 v[{MP}:{MP+3}], v{vT16}, s[{S_M}:{S_M+3}], s{sMo} offen
buffer_load_dwordx4 v[{MP+4}:{MP+7}], v{vT16}, s[{S_M}:{S_M+3}], s{sT0} offen
buffer_load_dwordx2 v[{MP+8}:{MP+9}], v{vLW}, s[{S_M}:{S_M+3}], s{sMo} offen
s_add_u32 s{sMo}, s{sMo}, {CB*8}
s_min_u32 s{sMo}, s{sMo}, {E*8 - CB*8}
""")

    def m_piece(MP, p, a=a):
        if TID:
            for i in {'b': (0, 1, 2, 3), 'c': (4, 5), 'a': (6, 7, 8, 9)}[p]:
                a(f"buffer_load_dword v{MP+i}, v{vLW}, s[{S_M}:{S_M+3}], 0 offen offset:{256*i}")
            if p == 'a':
                a(f"v_add_u32 v{vLW}, {CB*8}, v{vLW}")
            return
        if p == 'b':
            a(f"s_add_u32 s{sT0}, s{sMo}, 16384")
            a(f"buffer_load_dwordx4 v[{MP+4}:{MP+7}], v{vT16}, s[{S_M}:{S_M+3}], s{sT0} offen")
        elif p == 'c':
            a(f"buffer_load_dwordx2 v[{MP+8}:{MP+9}], v{vLW}, s[{S_M}:{S_M+3}], s{sMo} offen")
        else:
            a(f"""
buffer_load_dwordx4 v[{MP}:{MP+3}], v{vT16}, s[{S_M}:{S_M+3}], s{sMo} offen
s_add_u32 s{sMo}, s{sMo}, {CB*8}
s_min_u32 s{sMo}, s{sMo}, {E*8 - CB*8}
""")

    def m_write(MP=MP):
        if TID:
            a(f"s_mov_b32 m0, s{sWk}")
            a("s_nop 0")
            for i in range(10):
                a(f"ds_write_addtid_b32 v{MP+i} offset:{256*i}")
            return
        if 'w' in abl:
            return
        a(f"""
ds_write_b128 v{vT16}, v[{MP}:{MP+3}]
ds_write_b128 v{vT16}, v[{MP+4}:{MP+7}] offset:16384
ds_write_b64 v{vLW}, v[{MP+8}:{MP+9}]
""")

    def batch(bank):
        for i in range(4):
            a(f"buffer_load_dwordx4 v[{bank+4*i}:{bank+4*i+3}], v{vL16 if 'r' in abl else vBase}, s[{S_R}:{S_R+3}], 0 offen offset:{16*i} {ld}")
        a(f"v_add_u32 v{vBase}, 64, v{vBase}")

    def common_init():
        a(f"""
s_mov_b64 s[{MK[1]+2}:{MK[1]+3}], 0
s_mov_b64 s[{MK[1]+4}:{MK[1]+5}], 0
v_mov_b32 v{HR}, {ACC}
v_mov_b32 v{HR+1}, {ACC}
v_mov_b32 v{vC0}, {ACC}
s_mov_b32 s{sJ}, 0
""")
        st_.init()

    def zero_acc():
        z = PT
        a(f"""
v_mov_b32 v{z}, 0
v_mov_b32 v{z+1}, 0
v_mov_b32 v{z+2}, 0
v_mov_b32 v{z+3}, 0
v_add_u32 v{FT+4}, {ACC}, v{vT16}
v_add_u32 v{FT+5}, {ACC+65536}, v{vT16}
ds_write_b128 v{FT+4}, v[{z}:{z+3}] offset:32768
ds_write_b128 v{FT+4}, v[{z}:{z+3}] offset:49152
ds_write_b128 v{FT+5}, v[{z}:{z+3}]
ds_write_b128 v{FT+5}, v[{z}:{z+3}] offset:16384
v_cmp_gt_u32 vcc, {6250-6144}, v0
s_and_saveexec_b64 s[{sB}:{sB+1}], vcc
ds_write_b128 v{FT+5}, v[{z}:{z+3}] offset:32768
s_mov_b64 exec, s[{sB}:{sB+1}]
""")

    def zero_acc2():
        z = PT
        a(f"""
v_add_u32 v{XT}, {ACC}, v{vT16}
ds_write_b128 v{XT}, v[{z}:{z+3}]
ds_write_b128 v{XT}, v[{z}:{z+3}] offset:16384
""")

    AK = (0, 2, 3)

    def decode(rc, t, a=a):
        a(f"""
v_alignbit_b32 v{t}, v{rc}, v{rc+1}, 19
v_lshlrev_b32 v{t+1}, 10, v{rc+1}
v_and_b32 v{t}, 0xfff8, v{t}
v_lshlrev_b32 v{t+2}, 20, v{rc+1}
v_alignbit_b32 v{t+1}, v{rc+2}, v{t+1}, 19
v_alignbit_b32 v{t+2}, v{rc+3}, v{t+2}, 19
v_and_b32 v{t+1}, 0xfff8, v{t+1}
v_and_b32 v{t+2}, 0xfff8, v{t+2}
""")

    def gissue(mk, t, ga, a=a, g2=None):
        g2 = ga + 4 if g2 is None else g2
        a(f"""
s_mov_b64 exec, s[{mk}:{mk+1}]
ds_read_b64 v[{ga}:{ga+1}], v{t}
s_mov_b64 exec, s[{mk+2}:{mk+3}]
ds_read_b64 v[{ga+2}:{ga+3}], v{t+1}
s_mov_b64 exec, s[{mk+4}:{mk+5}]
ds_read_b64 v[{g2}:{g2+1}], v{t+2}
""")

    def gathers(mk, rc, ga, a=a):
        decode(rc, PT, a)
        gissue(mk, PT, ga, a)

    def qcalc(t, g, ak, row, a=a):
        c = row
        a(f"""
v_and_b32 v{c}, v{vMHi}, v{ak}
v_lshlrev_b32 v{t}, 16, v{g}
v_and_b32 v{t+1}, v{vMHi}, v{g}
v_lshlrev_b32 v{t+2}, 16, v{g+1}
v_and_b32 v{t+3}, v{vMHi}, v{g+1}
v_fma_f32 v{t}, v{t}, v{c}, v{vMagic}
v_fma_f32 v{t+1}, v{t+1}, v{c}, v{vMagic}
v_fma_f32 v{t+2}, v{t+2}, v{c}, v{vMagic}
v_fma_f32 v{t+3}, v{t+3}, v{c}, v{vMagic}
v_and_b32 v{row}, 0xfff8, v{ak}
v_lshl_add_u64 v[{t}:{t+1}], v[{t}:{t+1}], 0, s[{sNK}:{sNK+1}]
v_add_u32 v{row}, {ACC}, v{row}
v_lshl_add_u64 v[{t+2}:{t+3}], v[{t+2}:{t+3}], 0, s[{sNK}:{sNK+1}]
""")

    def adds(mkp, row, t, a=a):
        a(f"""
s_mov_b64 exec, {"1" if 'a' in abl else "s[%d:%d]" % (mkp, mkp+1)}
ds_add_u64 v{row}, v[{t}:{t+1}]
ds_add_u64 v{row}, v[{t+2}:{t+3}] offset:{ACCB}
""")

    def held(h, g2, a2):
        qcalc(HQ + 4, g2, a2, HR + 1)
        adds(MK[h] + 4, HR + 1, HQ + 4)
        a("s_mov_b64 exec, -1")

    def f32_one(mkp, g, ak, a):
        t = XT
        a(f"""
v_and_b32 v{vX0}, v{vMHi}, v{ak}
v_and_b32 v{vX0+1}, 0xfff8, v{ak}
v_add_u32 v{vX0+1}, {ACC}, v{vX0+1}
v_lshlrev_b32 v{t}, 16, v{g}
v_and_b32 v{t+1}, v{vMHi}, v{g}
v_lshlrev_b32 v{t+2}, 16, v{g+1}
v_and_b32 v{t+3}, v{vMHi}, v{g+1}
v_mul_f32 v{t}, v{t}, v{vX0}
v_mul_f32 v{t+1}, v{t+1}, v{vX0}
v_mul_f32 v{t+2}, v{t+2}, v{vX0}
v_mul_f32 v{t+3}, v{t+3}, v{vX0}
s_mov_b64 exec, s[{mkp}:{mkp+1}]
ds_add_f32 v{vX0+1}, v{t}
ds_add_f32 v{vX0+1}, v{t+1} offset:4
ds_add_f32 v{vX0+1}, v{t+2} offset:{ACCB}
ds_add_f32 v{vX0+1}, v{t+3} offset:{ACCB+4}
s_mov_b64 exec, -1
s_waitcnt lgkmcnt(0)
""")

    def accum_main(h, rc, tag, g2, q0done=False):
        mk = MK[h]
        a(f"s_cmp_lg_u32 s{sMode}, 0")
        a(f"s_cbranch_scc1 k2_accf_{tag}")
        if not q0done:
            qcalc(PT, GA, rc + AK[0], vC0)
        adds(mk, vC0, PT)
        a("s_mov_b64 exec, -1")
        m_piece(MPS[h ^ 1], 'b')
        qcalc(HQ, GA + 2, rc + AK[1], HR)
        a(f"k2_acce_{tag}:")
        o(f"k2_accf_{tag}:")
        m_piece(MPS[h ^ 1], 'b', o)
        for k in range(3):
            f32_one(mk + 2 * k, (GA, GA + 2, g2)[k], rc + AK[k], o)
        o(f"""
s_mov_b64 s[{mk}:{mk+1}], 0
s_mov_b64 s[{mk+2}:{mk+3}], 0
s_mov_b64 s[{mk+4}:{mk+5}], 0
s_branch k2_acce_{tag}
""")

    def last_adds(h):
        adds(MK[h] + 2, HR, HQ)
        a("s_mov_b64 exec, -1")

    def window_now(mk, rc, tag):
        gathers(mk, rc, GX, o)
        o(f"""
s_mov_b64 exec, -1
s_cmp_lg_u32 s{sMode}, 0
s_waitcnt lgkmcnt(0)
s_cbranch_scc1 k2_wf_{tag}
""")
        for k in range(3):
            qcalc(XT, GX + 2 * k, rc + AK[k], vX0, o)
            adds(mk + 2 * k, vX0, XT, o)
            o("s_mov_b64 exec, -1")
        o(f"s_branch k2_we_{tag}")
        o(f"k2_wf_{tag}:")
        for k in range(3):
            f32_one(mk + 2 * k, GX + 2 * k, rc + AK[k], o)
        o(f"k2_we_{tag}:")

    def scale_setup():
        a(f"""
v_mov_b32 v{XT}, {NW}
ds_read_b128 v[{XT}:{XT+3}], v{XT}
s_mov_b32 s{sT2}, s{MXS+7}
s_waitcnt lgkmcnt(0)
v_add_u32 v{XT}, v{XT}, v{XT+1}
v_add_u32 v{XT+2}, v{XT+2}, v{XT+3}
v_add_u32 v{XT}, v{XT}, v{XT+2}
v_lshrrev_b32 v{XT}, 4, v{XT}
v_mul_u32_u24 v{XT}, 3, v{XT}
v_max_u32 v{XT}, 1024, v{XT}
s_nop 0
v_readfirstlane_b32 s{sT0}, v{XT}
v_cvt_f32_u32 v{XT}, v{XT}
v_mul_f32 v{XT}, s{sT2}, v{XT}
v_mul_f32 v{XT}, 0x3f802000, v{XT}
s_nop 0
v_readfirstlane_b32 s{sT1}, v{XT}
s_mov_b32 s{sMode}, 0
s_cmp_gt_u32 s{sT0}, 0x100000
s_cselect_b32 s{sMode}, 1, s{sMode}
s_cmp_gt_u32 s{sT2}, 0x70000000
s_cselect_b32 s{sMode}, 1, s{sMode}
s_cmp_lt_u32 s{sT2}, 0x18000000
s_cselect_b32 s{sMode}, 1, s{sMode}
s_and_b32 s{sT1}, s{sT1}, 0x7f800000
s_cmp_gt_u32 s{sT1}, s{MXS+6}
s_cselect_b32 s{sMode}, 1, s{sMode}
s_and_b32 s{sT2}, s{sT2}, 0x7f800000
s_sub_u32 s{sPf}, s{sT1}, s{sT2}
s_add_u32 s{sMsc}, s{sT2}, {6 << 23}
s_add_u32 s{sPf}, s{sPf}, {(121 - 30) << 23}
s_sub_u32 s{sT1}, s{sT1}, {(7 << 23) - 0x400000}
v_mov_b32 v{vMagic}, s{sT1}
s_sub_u32 s{sNK}, 0, s{sT1}
s_not_b32 s{sNK+1}, s{sT1}
s_barrier
""")

    def early_setup():
        QP = 782
        a(f"""
s_load_dword s{MN[1]}, s[{MN[0]}:{MN[0]+1}], 0
s_load_dword s{MN[1]+1}, s[{MX[0]}:{MX[0]+1}], 0
s_load_dword s{MN[1]+2}, s[{MX[0]+2}:{MX[0]+3}], 0
s_load_dword s{MN[1]+3}, s[{MX[0]+4}:{MX[0]+5}], 0
s_load_dword s{MN[1]+4}, s[{MX[0]+6}:{MX[0]+7}], 0
s_mul_i32 s{sT1}, s{sRb}, {RB*8}
s_mul_i32 s{sT2}, s{sCg}, {QP*16}
s_add_u32 s{sT1}, s{sT1}, s{sT2}
v_add_u32 v{vO16}, s{sT1}, v{vT16}
s_sub_u32 s{sT2}, {RB*8}, s{sT2}
s_min_u32 s{sT2}, s{sT2}, {QP*16}
v_cmp_gt_u32 s[{sB}:{sB+1}], s{sT2}, v{vT16}
s_mov_b32 s{S_P+2}, {E*2}
s_mov_b32 s{S_P+3}, 0x00020000
v_cndmask_b32 v{vO16}, v{vMHi}, v{vO16}, s[{sB}:{sB+1}]
v_lshrrev_b32 v{vD}, 2, v{vO16}
""")

    def early():
        a(f"""
buffer_load_dword v{vD}, v{vD}, s[{S_P}:{S_P+3}], 0 offen
buffer_load_dwordx4 v[{vM}:{vM+3}], v{vO16}, s[{S_T}:{S_T+3}], 0 offen
""")

    def wait_bar(mkp, n, tag, mid=None):
        a(f"""
s_cmp_eq_u64 s[{mkp}:{mkp+1}], 0
s_cbranch_scc1 k2_wz_{tag}
k2_w_{tag}:
s_setprio 3
s_waitcnt lgkmcnt({n})
""")
        if mid:
            mid()
        a("s_barrier")
        o(f"""
k2_wz_{tag}:
s_waitcnt lgkmcnt(0)
s_branch k2_w_{tag}
""")

    NM = 10 if TID else 3
    NBC = 4 if TID else 1
    NA = 4 if TID else 1
    if TID:
        a(f"""
s_mul_i32 s{sWk}, s{sW}, 2560
s_add_u32 s{sT0}, s{sWk}, s{sMo}
v_lshrrev_b32 v{vLW}, 2, v{vL16}
v_add_u32 v{vLW}, s{sT0}, v{vLW}
""")
    RD = (RC[0], RC[1], RXW[0], RXW[1])
    FINE = OPT['fine'] == '1'
    FS = [80, 82, 84, 86, 88, 90, 28, 30, 24, 26]

    def fs(i, on=True):
        if FINE and on:
            a(f"s_memtime s[{FS[i]}:{FS[i]+1}]")

    srd_off(a, MXS, P + 2, None, MAX_OFF, 1024)
    a(f"""
buffer_load_dwordx4 v[{HQ}:{HQ+3}], v{vL16}, s[{MXS}:{MXS+3}], 0 offen
s_lshl_b32 s{sT0}, s{sW}, 10
s_add_u32 m0, s{sT0}, {ACC}
s_nop 0
buffer_load_dwordx4 v{GA}, s[{S_T}:{S_T+3}], 0 offen lds
s_add_u32 m0, s{sT0}, {ACC+16384}
s_mov_b64 exec, s[{sC}:{sC+1}]
buffer_load_dwordx4 v{GA+1}, s[{S_T}:{S_T+3}], 0 offen lds
s_mov_b64 exec, -1
""")
    m_load()
    srd_off(a, S_T, P, None, 0, E * 8)
    a(f"v_mov_b32 v{EN+21}, 0")
    a(f"v_mov_b32 v{EN+22}, 0")
    a(f"v_mov_b32 v{EN+23}, 0")
    common_init()
    early_setup()
    zero_acc()
    a(f"s_waitcnt vmcnt({NM})")
    a("s_barrier")
    for i in range(5):
        a(f"ds_read_b128 v[{EN+4*i}:{EN+4*i+3}], v{FT} offset:{16*i}")
    a(f"ds_read_b32 v{EN+20}, v{FT} offset:80")
    a(f"""
v_add_f32 v{HQ+4}, v{HQ}, v{HQ+1}
v_add_f32 v{HQ+5}, v{HQ+2}, v{HQ+3}
v_add_f32 v{HQ+4}, v{HQ+4}, v{HQ+5}
v_pk_max_u16 v{HQ}, v{HQ}, v{HQ+1}
v_pk_max_u16 v{HQ+2}, v{HQ+2}, v{HQ+3}
v_pk_max_u16 v{HQ}, v{HQ}, v{HQ+2}
v_lshlrev_b32 v{HQ}, 16, v{HQ}
s_nop 0
""")
    for (sh, rm) in (("row_shr:1", '0xf'), ("row_shr:2", '0xf'), ("row_shr:4", '0xf'), ("row_shr:8", '0xf'), ("row_bcast:15", '0xa'), ("row_bcast:31", '0xc')):
        a(f"v_add_f32_dpp v{HQ+4}, v{HQ+4}, v{HQ+4} {sh} row_mask:{rm} bank_mask:0xf")
        a(f"v_max_u32_dpp v{HQ}, v{HQ}, v{HQ} {sh} row_mask:{rm} bank_mask:0xf")
        a("s_nop 0")
    a(f"""
v_mul_f32 v{HQ+4}, 0x3fa66666, v{HQ+4}
v_readlane_b32 s{MXS+7}, v{HQ}, 63
v_readlane_b32 s{MXS+6}, v{HQ+4}, 63
""")
    if OPT['pst2'] == '1':
        st_()
    a(f"""
s_cmp_lt_u32 s{sW}, 4
s_waitcnt lgkmcnt(0)
s_cbranch_scc1 k2_rem
""")
    def d_load(e, rc, t):
        a(f"""
v_and_b32 v{t}, 0x7fff0, v{e}
v_add_u32 v{t}, v{t}, v{vBase}
buffer_load_dwordx4 v[{rc}:{rc+3}], v{t}, s[{S_R}:{S_R+3}], 0 offen {ld}
""")

    d_load(EN, RD[0], FT)
    for i in range(20, 24):
        a(f"v_mov_b32 v{EN+i}, v{EN+19}")
    a(f"s_cmp_lt_u32 s{sW}, {OPT['gs']}")
    a("s_cbranch_scc1 k2_n2")
    d_load(EN + 1, RD[1], FT + 1)
    a("s_waitcnt vmcnt(2)")
    a("s_branch k2_n3")
    a("k2_n2:")
    a("s_waitcnt vmcnt(1)")
    a("k2_n3:")
    m_write()
    a("s_waitcnt lgkmcnt(0)")
    a("s_barrier")
    zero_acc2()
    scale_setup()
    m_load(MP2)

    def d_prep(r, off, par, n):
        mk = MK[r & 1]
        a(f"""
s_set_gpr_idx_on s{sJ}, 0x1
v_mov_b32 v{FT+1}, v{EN+off}
s_set_gpr_idx_off
v_cmp_le_u32 s[{mk}:{mk+1}], v{TH}, v{FT+1}
v_cmp_le_u32 s[{mk+2}:{mk+3}], v{TH+1}, v{FT+1}
v_cmp_le_u32 s[{mk+4}:{mk+5}], v{TH+2}, v{FT+1}
""")
        if n is not None:
            a(f"s_waitcnt vmcnt({n})")
        decode(RD[r], AD)

    GD2 = (GA + 4, GX)
    a(f"s_cmp_lt_u32 s{sW}, {OPT['gs']}")
    a("s_cbranch_scc1 k2_dv1")
    for par in (0, 1):
        if par == 1:
            a("k2_dv1:")
        if par == 1:
            d_load(EN + 1, RD[1], FT)
            d_load(EN + 2, RD[2], FT + 1)
        m_piece(MP, 'b')
        d_prep(0, 0, par, 1 + par + NM + NBC)
        a(f"k2_dloop{par}:")
        q0a = OPT['q0a'] == '2' or (OPT['q0a'] == '1' and par == 1)
        for r in range(4):
            h = r & 1
            mk = MK[h]
            on = r == int(OPT['fr'])
            fs(0, on)
            gissue(mk, AD, GA, a, GD2[h])
            a("s_setprio 0")
            a("s_mov_b64 exec, -1")
            fs(1, on)
            m_piece(MPS[h], 'c')
            m_piece(MPS[h], 'a')
            if h == par:
                a(f"""
s_set_gpr_idx_on s{sJ}, 0x2
v_and_b32 v{FT+2}, 0x7fff0, v{EN+r+2}
v_and_b32 v{FT+3}, 0x7fff0, v{EN+r+3}
s_set_gpr_idx_off
v_add_u32 v{FT+2}, v{FT+2}, v{vBase}
v_add_u32 v{FT+3}, v{FT+3}, v{vBase}
""")
            held(h ^ 1, GD2[h ^ 1], RD[(r + 3) & 3] + AK[2])
            fs(2, on)
            wait_bar(MK[h ^ 1] + 4, 2, f"da{par}{r}", (lambda: qcalc(PT, GA, RD[r] + AK[0], vC0)) if q0a else None)
            fs(3, on)
            a(f"s_waitcnt vmcnt({NM if h == par else NM+2})")
            if h == par:
                a(f"buffer_load_dwordx4 v[{RD[(r+2)&3]}:{RD[(r+2)&3]+3}], v{FT+2}, s[{S_R}:{S_R+3}], 0 offen {ld}")
                a(f"buffer_load_dwordx4 v[{RD[(r+3)&3]}:{RD[(r+3)&3]+3}], v{FT+3}, s[{S_R}:{S_R+3}], 0 offen {ld}")
            fs(4, on)
            m_write(MPS[h ^ 1])
            a("s_setprio 0")
            fs(5, on)
            accum_main(h, RD[r], f"d{par}{r}", GD2[h], q0a)
            fs(6, on)
            fs(7, on)
            d_prep((r + 1) & 3, r + 1, par, None if h == par else 1 + NM + NBC)
            if r == 3:
                a(f"s_add_u32 s{sJ}, s{sJ}, 4")
            last_adds(h)
            fs(8, on)
            wait_bar(mk + 2, 4, f"db{par}{r}")
            fs(9, on)
        a(f"""
s_cmp_lt_u32 s{sJ}, {NPH if not FINE else int(OPT['fn'])}
s_cbranch_scc0 k2_dend
s_cmp_lg_u32 s{sJ}, 8
s_cbranch_scc1 k2_dloop{par}
""")
        early()
        a(f"s_branch k2_dloop{par}")

    a("k2_dend:")
    held(1, GD2[1], RD[3] + AK[2])
    a("s_branch k2_epi")
    GR2 = (GA + 4, TH)
    vA2 = TH + 2
    nr, inc, pre, V, tg, val, e0 = FT, FT + 1, FT + 2, FT + 3, FT + 4, FT + 5, FT + 6
    dpp = "row_mask:0xf bank_mask:0xf"

    def flat_scan(ea, eb, stot, a=a):
        a(f"""
v_and_b32 v{nr}, 0x7fff0, v{eb}
v_and_b32 v{pre}, 0x7fff0, v{ea}
v_sub_u32 v{nr}, v{nr}, v{pre}
v_and_b32 v{V}, 0x7fff3, v{ea}
v_add_u32 v{nr}, -48, v{nr}
v_max_i32 v{nr}, 0, v{nr}
v_mov_b32 v{inc}, v{nr}
v_add_u32 v{V}, v{V}, v{vBase}
v_cmp_ne_u32 s[{sD}:{sD+1}], 0, v{nr}
""")
        scan(a, "v_add_u32", inc)
        a(f"""
v_sub_u32 v{pre}, v{inc}, v{nr}
v_readlane_b32 s{stot}, v{inc}, 63
v_sub_u32 v{V}, v{V}, v{pre}
""")

    def flat_push(swb, a=a):
        a(f"""
s_add_u32 s{sT1}, {swb}, 1024
v_cmp_ge_u32 s[{sA}:{sA+1}], {swb}, v{pre}
v_subrev_u32 v{tg}, {swb}, v{pre}
v_cmp_eq_u32 s[{sC}:{sC+1}], s{sT1}, v{inc}
s_bcnt1_i32_b64 s{sT0}, s[{sA}:{sA+1}]
v_add_u32 v{val}, -16, v{tg}
s_sub_u32 s{sT0}, s{sT0}, 1
v_cmp_gt_u32 vcc, 1008, v{val}
v_readlane_b32 s{sCarry}, v{V}, s{sT0}
v_lshrrev_b32 v{tg}, 2, v{tg}
s_and_b64 s[{sB}:{sB+1}], vcc, s[{sD}:{sD+1}]
v_cndmask_b32 v{tg}, 0, v{tg}, s[{sB}:{sB+1}]
v_cndmask_b32 v{val}, 0, v{V}, s[{sB}:{sB+1}]
ds_permute_b32 v{val}, v{tg}, v{val}
""")

    def flat_fin(swb, stot, mk, rc, a=a):
        a(f"""
v_cmp_ne_u32 s[{sA}:{sA+1}], 0, v{val}
v_add_u32 v{tg}, {swb}, v{vL16}
s_cmp_lg_u64 s[{sC}:{sC+1}], 0
v_max_u32_dpp v{val}, v{val}, v{val} row_shr:1 {dpp}
v_cmp_gt_u32 s[{mk}:{mk+1}], s{stot}, v{tg}
s_cselect_b32 s{sC+1}, 0x80000000, 0
v_max_u32_dpp v{val}, v{val}, v{val} row_shr:2 {dpp}
s_mov_b32 s{sC}, 0
s_lshr_b64 s[{sA}:{sA+1}], s[{sA}:{sA+1}], 1
v_max_u32_dpp v{val}, v{val}, v{val} row_shr:4 {dpp}
s_or_b64 s[{sC}:{sC+1}], s[{sC}:{sC+1}], s[{sA}:{sA+1}]
s_lshr_b64 s[{sA}:{sA+1}], s[{mk}:{mk+1}], 1
v_max_u32_dpp v{val}, v{val}, v{val} row_shr:8 {dpp}
s_andn2_b64 s[{sA}:{sA+1}], s[{mk}:{mk+1}], s[{sA}:{sA+1}]
s_bitset0_b64 s[{sA}:{sA+1}], 63
v_max_u32_dpp v{val}, v{val}, v{val} row_bcast:15 row_mask:0xa bank_mask:0xf
s_or_b64 s[{sC}:{sC+1}], s[{sC}:{sC+1}], s[{sA}:{sA+1}]
s_nop 0
v_max_u32_dpp v{val}, v{val}, v{val} row_bcast:31 row_mask:0xc bank_mask:0xf
v_max_u32 v{val}, s{sCarry}, v{val}
v_add_u32 v{tg}, v{tg}, v{val}
v_and_b32 v{val}, 3, v{val}
v_and_b32 v{tg}, -16, v{tg}
v_cmp_eq_u32 s[{sA}:{sA+1}], 2, v{val}
v_cmp_ne_u32 s[{sB}:{sB+1}], 0, v{val}
v_cndmask_b32 v{tg}, v{vMHi}, v{tg}, s[{mk}:{mk+1}]
buffer_load_dwordx4 v[{rc}:{rc+3}], v{vL16 if 'r' in abl else tg}, s[{S_R}:{S_R+3}], 0 offen {ld}
s_and_b64 s[{sA}:{sA+1}], s[{sA}:{sA+1}], s[{sC}:{sC+1}]
s_and_b64 s[{sB}:{sB+1}], s[{sB}:{sB+1}], s[{sC}:{sC+1}]
s_andn2_b64 s[{mk+2}:{mk+3}], s[{mk}:{mk+1}], s[{sA}:{sA+1}]
s_andn2_b64 s[{mk+4}:{mk+5}], s[{mk}:{mk+1}], s[{sB}:{sB+1}]
""")

    def second(h, tag):
        a(f"""
s_cmp_gt_u32 s{TOT[h]}, 1024
s_cbranch_scc1 k2_sy_{tag}
k2_ns_{tag}:
""")
        o(f"k2_sy_{tag}:")
        o(f"s_movk_i32 s{sXw}, 1024")
        flat_push(f"s{sXw}", o)
        o("s_waitcnt lgkmcnt(0)")
        flat_fin(f"s{sXw}", TOT[h], MX[h], RXW[h], o)
        o(f"s_branch k2_ns_{tag}")

    a("k2_rem:")
    a("s_setprio 1")
    a(f"s_mov_b32 s{sXp}, 0")
    flat_scan(EN, EN + 1, TOT[0])
    flat_push("0")
    a("s_waitcnt lgkmcnt(0)")
    flat_fin("0", TOT[0], MN[0], RC[0])
    second(0, "p0")
    if OPT['pst2'] == '1':
        st_()
    a(f"s_waitcnt vmcnt(1)")
    if OPT['pst2'] == '1':
        st_()
    m_write()
    a(f"""
v_and_b32 v{FT}, 0x7fff0, v{EN+20}
v_and_b32 v{FT+1}, 0x7fff0, v{EN}
v_sub_u32 v{FT}, v{FT}, v{FT+1}
s_lshl_b32 s{sT0}, s{sW}, 2
s_add_u32 s{sT0}, s{sT0}, {NW}
""")
    scan(a, "v_add_u32", FT)
    a(f"""
v_mov_b32 v{FT+3}, s{sT0}
{EXEC63}
ds_write_b32 v{FT+3}, v{FT}
s_mov_b64 exec, -1
s_waitcnt lgkmcnt(0)
s_barrier
""")
    st_()
    zero_acc2()
    scale_setup()
    st_()
    flat_scan(EN + 1, EN + 2, TOT[1])
    flat_push("0")
    m_load(MP2)
    m_piece(MP, 'b')
    a("s_waitcnt lgkmcnt(0)")
    flat_fin("0", TOT[1], MN[1], RC[1])
    second(1, "p1")

    def r_prep(h, off, n=NM+1):
        mk = MK[h]
        a(f"""
s_set_gpr_idx_on s{sJ}, 0x1
v_mov_b32 v{e0}, v{EN+off+2}
v_mov_b32 v{e0+1}, v{EN+off+3}
s_set_gpr_idx_off
""")
        flat_scan(e0, e0 + 1, sTN)
        a(f"s_waitcnt vmcnt({n})")
        for i in range(0, 6, 2):
            a(f"s_mov_b64 s[{mk+i}:{mk+i+1}], s[{MN[h]+i}:{MN[h]+i+1}]")
        decode(RC[h], AD)

    r_prep(0, 0, 1 + NM + NBC)
    if OPT['pst2'] == '1':
        st_()
    a("k2_rloop:")
    for h in range(2):
        mk = MK[h]
        on = h == (int(OPT['fr']) & 1)
        fs(0, on)
        gissue(mk, AD, GA, a, GR2[h])
        a("s_mov_b64 exec, -1")
        a(f"""
s_cmp_gt_u32 s{TOT[h]}, {1024 if not FINE else 0x7fffffff}
s_cbranch_scc1 k2_xy_{h}
k2_nx_{h}:
""")
        o(f"k2_xy_{h}:")
        o(f"s_cmp_gt_u32 s{TOT[h]}, 2048")
        o(f"s_cbranch_scc1 k2_xz_{h}")
        gathers(MX[h], RXW[h], GX, o)
        o(f"""
s_mov_b64 exec, -1
s_mov_b32 s{sXp}, 1
s_branch k2_nx_{h}
k2_xb_{h}:
s_mov_b32 s{sXp}, 0
s_cmp_lg_u32 s{sMode}, 0
s_cbranch_scc1 k2_xf_{h}
""")
        for k in range(3):
            qcalc(XT, GX + 2 * k, RXW[h] + AK[k], vX0, o)
            adds(MX[h] + 2 * k, vX0, XT, o)
            o("s_mov_b64 exec, -1")
        o(f"s_branch k2_xe_{h}")
        o(f"k2_xf_{h}:")
        for k in range(3):
            f32_one(MX[h] + 2 * k, GX + 2 * k, RXW[h] + AK[k], o)
        o(f"s_branch k2_xe_{h}")
        o(f"k2_xz_{h}:")
        window_now(MX[h], RXW[h], f"x{h}")
        o(f"""
s_waitcnt lgkmcnt(0)
s_cmp_le_u32 s{TOT[h]}, 2048
s_cbranch_scc1 k2_nx_{h}
s_movk_i32 s{sXw}, 2048
s_add_u32 s{sT2}, s{sJ}, {h}
s_call_b64 s[{sRet}:{sRet+1}], k2_slow
s_waitcnt lgkmcnt(0)
s_set_gpr_idx_on s{sJ}, 0x1
v_mov_b32 v{e0}, v{EN+h+2}
v_mov_b32 v{e0+1}, v{EN+h+3}
s_set_gpr_idx_off
""")
        flat_scan(e0, e0 + 1, sTN, o)
        o(f"s_branch k2_nx_{h}")
        flat_push("0")
        a("s_setprio 1")
        fs(1, on)
        m_piece(MPS[h], 'c')
        m_piece(MPS[h], 'a')
        a(f"s_mov_b32 s{TOT[h]}, s{sTN}")
        held(h ^ 1, GR2[h ^ 1], vA2)
        fs(2, on)
        wait_bar(MK[h ^ 1] + 4, 2, f"ra{h}")
        fs(3, on)
        a(f"s_waitcnt vmcnt({NM+1})")
        fs(4, on)
        m_write(MPS[h ^ 1])
        a("s_setprio 1")
        fs(5, on)
        accum_main(h, RC[h], f"r{h}", GR2[h])
        a(f"v_mov_b32 v{vA2}, v{RC[h]+AK[2]}")
        a(f"s_cmp_lg_u32 s{sXp}, 0")
        a(f"s_cbranch_scc1 k2_xb_{h}")
        a(f"k2_xe_{h}:")
        fs(6, on)
        flat_fin("0", TOT[h], MN[h], RC[h])
        if not FINE:
            second(h, f"l{h}")
        fs(7, on)
        r_prep(h ^ 1, h + 1)
        last_adds(h)
        fs(8, on)
        if h == 1:
            a(f"s_add_u32 s{sJ}, s{sJ}, 2")
        wait_bar(mk + 2, 4, f"rb{h}")
        fs(9, on)
        if OPT['pst2'] == '1':
            st_()
    a(f"""
s_cmp_lt_u32 s{sJ}, {NPH if not FINE else int(OPT['fn'])}
s_cbranch_scc0 k2_rend
s_cmp_lg_u32 s{sJ}, 8
s_cbranch_scc1 k2_rloop
""")
    early()
    a("s_branch k2_rloop")
    a("k2_rend:")
    held(1, GR2[1], vA2)
    def fused_epilogue():
        QP = 782
        EB = 64
        S_D, S_O, S_G = 4, 8, 24
        WR, WSB, WD, WU = 48, 64, 80, 88
        CE = 28
        CF = 80
        PP, PP2 = 20, 42
        tS = 40
        sSc, sFl = 44, 45
        vT = 9
        R = (16, 24)
        G = (32, 36)
        H = (40, 44)
        RP = (48, 52)
        S = (16, 20)
        AG = (24, 28)
        PL = 96
        a("k2_epi:")
        if FINE:
            a("s_waitcnt lgkmcnt(0)")
            for i2 in range(10):
                a(f"v_writelane_b32 v{FT}, s{FS[i2]}, {i2}")
            a(f"s_lshl_b32 s{sT0}, s2, 10")
            a(f"s_lshl_b32 s{sT1}, s{sW}, 6")
            a(f"s_add_u32 s{sT0}, s{sT0}, s{sT1}")
            srd_off(a, 8, P + 2, sT0, DIAG_OFF + 0x200000, 40)
            a(f"v_lshrrev_b32 v{FT+1}, 2, v{vL16}")
            a(f"buffer_store_dword v{FT}, v{FT+1}, s[8:11], 0 offen")
        a(f"""
s_load_dwordx2 s[{S_O}:{S_O+1}], s[0:1], {KA['out']}
s_load_dwordx2 s[{PP}:{PP+1}], s[0:1], {KA['centers']}
s_load_dwordx4 s[{WU}:{WU+3}], s[0:1], {KA['w_rbf']}
s_load_dwordx4 s[{WU+4}:{WU+7}], s[0:1], {KA['w_down']}
v_add_u32 v{vLW}, {ACC}, v{vT16}
v_add_u32 v{vBase}, {ACC+ACCB}, v{vT16}
v_mov_b32 v{vMagic}, s{sPf}
s_mul_i32 s{sT0}, s{sCg}, {E*8}
s_mul_i32 s{sT1}, s{sRb}, {RB*8}
s_add_u32 s{sT0}, s{sT0}, s{sT1}
v_cmp_ne_u32 s[{sNK}:{sNK+1}], v{vO16}, v{vMHi}
s_mov_b32 s{sJ}, s{sT0}
""")
        srd_off(a, S_P, P + 2, sT0, PART_OFF, RB * 8)
        srd_off(a, S_G, P + 2, None, HF_OFF, 8192)
        a(f"""
s_waitcnt vmcnt(0) lgkmcnt(0)
s_load_dwordx4 s[{CE}:{CE+3}], s[{PP}:{PP+1}], 0
s_load_dwordx16 s[{WR}:{WR+15}], s[{WU}:{WU+1}], 0
s_load_dwordx16 s[{WSB}:{WSB+15}], s[{WU+2}:{WU+3}], 0
s_mov_b64 s[{PP}:{PP+1}], s[{WU+4}:{WU+5}]
s_mov_b64 s[{PP2}:{PP2+1}], s[{WU+6}:{WU+7}]
s_barrier
""")
        st_()
        for it in range(4):
            b = EB + it * 8
            if it == 3:
                a(f"v_min_u32 v{vLW}, {ACC + 52*16}, v{vLW}")
                a(f"v_min_u32 v{vBase}, {ACC + ACCB + 52*16}, v{vBase}")
            a(f"ds_read_b128 v[{b}:{b+3}], v{vLW} offset:{it*16384}")
            a(f"ds_read_b128 v[{b+4}:{b+7}], v{vBase} offset:{it*16384}")
        a(f"""
s_mov_b32 s{S_O+2}, {E*8}
s_mov_b32 s{S_O+3}, 0x00020000
s_cmp_lg_u32 s{sMode}, 0
s_waitcnt lgkmcnt(0)
s_cbranch_scc1 k2_epf
""")
        for it in range(4):
            b = EB + it * 8
            for p in range(4):
                a(f"v_ashrrev_i32 v{FT+2+p}, 31, v{b+2*p}")
            for p in range(4):
                a(f"v_sub_u32 v{b+2*p+1}, v{b+2*p+1}, v{FT+2+p}")
            for p in range(8):
                a(f"v_cvt_f32_i32 v{b+p}, v{b+p}")
            for p in range(8):
                a(f"v_mul_f32 v{b+p}, v{vMagic}, v{b+p}")
            a(f"""
v_cvt_pk_f16_f32 v{b}, v{b}, v{b+1}
v_cvt_pk_f16_f32 v{b+1}, v{b+4}, v{b+5}
v_cvt_pk_f16_f32 v{b+2}, v{b+2}, v{b+3}
v_cvt_pk_f16_f32 v{b+3}, v{b+6}, v{b+7}
buffer_store_dwordx4 v[{b}:{b+3}], v{vT16}, s[{S_P}:{S_P+3}], 0 offen sc1
""")
            if it < 3:
                a(f"v_add_u32 v{vT16}, 16384, v{vT16}")
        a("k2_epj:")
        o("k2_epf:")
        o(f"s_lshl_b32 s{sT0}, s{sJ}, 1")
        srd_off(o, S_P, P + 2, sT0, P32_OFF, RB * 16)
        o(f"v_lshlrev_b32 v{vT16}, 1, v{vT16}")
        for it in range(4):
            b = EB + it * 8
            o(f"""
buffer_store_dwordx2 v[{b}:{b+1}], v{vT16}, s[{S_P}:{S_P+3}], 0 offen sc1
buffer_store_dwordx2 v[{b+4}:{b+5}], v{vT16}, s[{S_P}:{S_P+3}], 0 offen offset:8 sc1
buffer_store_dwordx2 v[{b+2}:{b+3}], v{vT16}, s[{S_P}:{S_P+3}], 0 offen offset:16 sc1
buffer_store_dwordx2 v[{b+6}:{b+7}], v{vT16}, s[{S_P}:{S_P+3}], 0 offen offset:24 sc1
v_add_u32 v{vT16}, 32768, v{vT16}
""")
        o("s_waitcnt vmcnt(0)")
        o("s_branch k2_epj")

        def rnd(x):
            a(f"v_cvt_pk_bf16_f32 v{x+1}, v{x}, v{x+1}")
            a(f"v_lshlrev_b32 v{x}, 16, v{x+1}")
            a(f"v_and_b32 v{x+1}, v{vMHi}, v{x+1}")

        a(f"""
s_cmp_gt_u32 s{sW}, 12
s_cbranch_scc1 k2_sig
""")
        for k in range(8):
            a(s_unpack(CF + k, CE, k))
        a(f"""
v_and_b32 v{vD+1}, v{vMHi}, v{vD}
v_lshlrev_b32 v{vD}, 16, v{vD}
""")
        for r in range(2):
            for k in range(0, 8, 2):
                a(f"v_pk_add_f32 v[{R[r]+k}:{R[r]+k+1}], v[{vD}:{vD+1}], s[{CF+k}:{CF+k+1}] op_sel:[{r},0] op_sel_hi:[{r},1] neg_lo:[0,1] neg_hi:[0,1]")
        a(f"s_load_dwordx8 s[{WD}:{WD+7}], s[{PP}:{PP+1}], 0")
        a(f"s_load_dwordx8 s[{WU}:{WU+7}], s[{PP2}:{PP2+1}], 0")
        allr = [R[r] + k for r in range(2) for k in range(8)]
        for x in allr[::2]:
            rnd(x)
        for x in allr:
            a(f"v_mul_f32 v{x}, v{x}, v{x}")
        for x in allr[::2]:
            rnd(x)
        for x in allr:
            a(f"v_mul_f32 v{x}, 0xc1200000, v{x}")
        for x in allr[::2]:
            rnd(x)
        st_()
        a("""
s_waitcnt vmcnt(0)
s_barrier
""")
        st_()
        for x in allr:
            a(f"v_mul_f32 v{x}, 0x3fb8aa3b, v{x}")
        for x in allr:
            a(f"v_exp_f32 v{x}, v{x}")
        a("s_nop 0")
        for r in range(2):
            for kk in range(4):
                a(f"v_cvt_pk_bf16_f32 v{RP[r]+kk}, v{R[r]+2*kk}, v{R[r]+2*kk+1}")
        cnt = [0]

        def wpair(base, kk, c):
            d = tS + (cnt[0] & 3)
            cnt[0] += 1
            op = "s_pack_ll_b32_b16" if c % 2 == 0 else "s_pack_hh_b32_b16"
            a(f"{op} s{d}, s{base + 4*kk + c//2}, s{base + 4*kk + 2 + c//2}")
            return d

        def dotmat(dst, src, base, nk):
            for kk in range(nk):
                for c in range(4):
                    w = wpair(base, kk, c)
                    for r in range(2):
                        acc = "0" if kk == 0 else f"v{dst[r]+c}"
                        a(f"v_dot2_f32_bf16 v{dst[r]+c}, v{src[r]+kk}, s{w}, {acc}")

        dotmat(H, RP, WR, 4)
        dotmat(G, RP, WSB, 4)
        for r in range(2):
            rnd(H[r])
            rnd(H[r] + 2)
        srd_off(a, S_P, P + 2, None, PART_OFF, 4 * E * 8)
        st_()
        a(f"""
v_mov_b32 v{vT}, {NW}
s_waitcnt lgkmcnt(0)
s_barrier
ds_read_b32 v{vT}, v{vT}
v_add_u32 v{FT}, {E*8}, v{vO16}
v_add_u32 v{FT+1}, {2*E*8}, v{vO16}
v_add_u32 v{FT+2}, {3*E*8}, v{vO16}
s_mov_b64 exec, s[{sNK}:{sNK+1}]
buffer_load_dwordx4 v[{PL}:{PL+3}], v{vO16}, s[{S_P}:{S_P+3}], 0 offen sc1
buffer_load_dwordx4 v[{PL+4}:{PL+7}], v{FT}, s[{S_P}:{S_P+3}], 0 offen sc1
buffer_load_dwordx4 v[{PL+8}:{PL+11}], v{FT+1}, s[{S_P}:{S_P+3}], 0 offen sc1
buffer_load_dwordx4 v[{PL+12}:{PL+15}], v{FT+2}, s[{S_P}:{S_P+3}], 0 offen sc1
s_waitcnt lgkmcnt(0)
v_readfirstlane_b32 s{sFl}, v{vT}
v_mov_b32 v{vT}, s{sMsc}
""")
        st_()
        a(f"""
s_cmp_gt_u32 s{sFl}, 255
s_cbranch_scc1 k2_fslow
s_waitcnt vmcnt(0)
""")
        for r in range(2):
            for c in range(4):
                reg = 2 * r + c // 2
                hi = c % 2
                d = S[r] + c
                a(f"v_fma_mix_f32 v{d}, v{PL+reg}, 1.0, v{PL+4+reg} op_sel:[{hi},0,{hi}] op_sel_hi:[1,0,1]")
                a(f"v_fma_mix_f32 v{d}, v{PL+8+reg}, 1.0, v{d} op_sel:[{hi},0,0] op_sel_hi:[1,0,0]")
                a(f"v_fma_mix_f32 v{d}, v{PL+12+reg}, 1.0, v{d} op_sel:[{hi},0,0] op_sel_hi:[1,0,0]")
        for r in range(2):
            for c in range(4):
                a(f"v_mul_f32 v{S[r]+c}, v{vT}, v{S[r]+c}")
        a("k2_fjoin:")
        for jj in range(4):
            for cp in range(2):
                d = tS + 2 * ((jj * 2 + cp) & 1)
                a(s_unpack(d, WD, jj * 4 + cp * 2))
                a(s_unpack(d + 1, WD, jj * 4 + cp * 2 + 1))
                for r in range(2):
                    sp = S[r] + (jj & ~1)
                    oo = jj & 1
                    dd = AG[r] + 2 * cp
                    if jj == 0:
                        a(f"v_pk_mul_f32 v[{dd}:{dd+1}], v[{sp}:{sp+1}], s[{d}:{d+1}] op_sel:[{oo},0] op_sel_hi:[{oo},1]")
                    else:
                        a(f"v_pk_fma_f32 v[{dd}:{dd+1}], v[{sp}:{sp+1}], s[{d}:{d+1}], v[{dd}:{dd+1}] op_sel:[{oo},0,0] op_sel_hi:[{oo},1,1]")
        for r in range(2):
            for c in range(4):
                a(f"v_mul_f32 v{AG[r]+c}, v{AG[r]+c}, v{G[r]+c}")
        for r in range(2):
            for kk in range(2):
                a(f"v_cvt_pk_bf16_f32 v{RP[r]+kk}, v{AG[r]+2*kk}, v{AG[r]+2*kk+1}")
        dotmat(G, RP, WU, 2)
        for r in range(2):
            for cp in range(2):
                a(f"v_lshlrev_b32 v{S[r]+2*cp}, 16, v{vM+2*r+cp}")
                a(f"v_and_b32 v{S[r]+2*cp+1}, v{vMHi}, v{vM+2*r+cp}")
        for r in range(2):
            rnd(G[r])
            rnd(G[r] + 2)
        for r in range(2):
            for c in range(4):
                a(f"v_mul_f32 v{G[r]+c}, v{G[r]+c}, v{H[r]+c}")
        for r in range(2):
            rnd(G[r])
            rnd(G[r] + 2)
        for r in range(2):
            for c in range(4):
                a(f"v_add_f32 v{G[r]+c}, v{G[r]+c}, v{S[r]+c}")
        for r in range(2):
            for cp in range(2):
                a(f"v_cvt_pk_bf16_f32 v{vM+2*r+cp}, v{G[r]+2*cp}, v{G[r]+2*cp+1}")
        a(f"buffer_store_dwordx4 v[{vM}:{vM+3}], v{vO16}, s[{S_O}:{S_O+3}], 0 offen")
        st_()
        st_.flush(FT)
        a("""
k2_done:
s_endpgm
""")
        a(f"""
k2_sig:
s_waitcnt vmcnt(0)
s_barrier
s_cmp_lg_u32 s{sW}, 15
s_cbranch_scc1 k2_sig_e
s_add_u32 s{sT0}, s{sCg}, 8
s_lshl_b32 s{sT0}, s{sMode}, s{sT0}
s_add_u32 s{sT0}, s{sT0}, 1
s_lshl_b32 s{sT1}, s{sRb}, 7
s_lshl_b32 s{sT2}, s{sCg}, 2
s_add_u32 s{sT2}, s{sT2}, s{sT1}
s_mov_b64 exec, 1
v_mov_b32 v{FT}, s{sT1}
v_mov_b32 v{FT+1}, s{sT0}
v_mov_b32 v{FT+2}, s{sT2}
buffer_store_dword v{FT+1}, v{FT+2}, s[{S_G}:{S_G+3}], 0 offen sc1
s_mov_b32 s{sT2}, 0x100000
k2_poll:
buffer_load_dwordx4 v[{FT+4}:{FT+7}], v{FT}, s[{S_G}:{S_G+3}], 0 offen sc1
s_waitcnt vmcnt(0)
v_add_u32 v{FT+1}, v{FT+4}, v{FT+5}
v_add3_u32 v{FT+1}, v{FT+1}, v{FT+6}, v{FT+7}
s_nop 0
v_readfirstlane_b32 s{sT1}, v{FT+1}
s_and_b32 s{sT1}, s{sT1}, 255
s_cmp_ge_u32 s{sT1}, 4
s_cbranch_scc1 k2_poll_e
s_sub_u32 s{sT2}, s{sT2}, 1
s_cbranch_scc1 k2_poll_e
s_sleep 1
s_branch k2_poll
k2_poll_e:
v_mov_b32 v{FT}, {NW}
ds_write_b32 v{FT}, v{FT+1}
s_waitcnt lgkmcnt(0)
k2_sig_e:
s_barrier
s_endpgm
""")
        o("k2_fslow:")
        srd_off(o, S_D, P + 2, None, P32_OFF, 4 * E * 16)
        o(f"v_lshlrev_b32 v{FT}, 1, v{vO16}")
        for i2 in range(8):
            o(f"v_mov_b32 v{S[0]+i2}, 0")
        o("s_waitcnt vmcnt(0)")
        for c in range(4):
            o(f"""
s_bitcmp1_b32 s{sFl}, {8+c}
s_cbranch_scc1 k2_s32_{c}
""")
            for r in range(2):
                for cc in range(4):
                    reg = 2 * r + cc // 2
                    o(f"v_fma_mix_f32 v{S[r]+cc}, v{PL+4*c+reg}, v{vT}, v{S[r]+cc} op_sel:[{cc%2},0,0] op_sel_hi:[1,0,0]")
            o(f"""
s_branch k2_sn_{c}
k2_s32_{c}:
buffer_load_dwordx4 v[24:27], v{FT}, s[{S_D}:{S_D+3}], 0 offen sc1
buffer_load_dwordx4 v[28:31], v{FT}, s[{S_D}:{S_D+3}], 0 offen offset:16 sc1
s_waitcnt vmcnt(0)
""")
            for i2 in range(8):
                o(f"v_add_f32 v{S[0]+i2}, v{S[0]+i2}, v{24+i2}")
            o(f"k2_sn_{c}:")
            o(f"v_add_u32 v{FT}, {E*16}, v{FT}")
        o("s_branch k2_fjoin")

    def plain_epilogue():
        a("k2_epi:")
        if FINE:
            a("s_waitcnt lgkmcnt(0)")
            for i2 in range(10):
                a(f"v_writelane_b32 v{FT}, s{FS[i2]}, {i2}")
            a(f"s_lshl_b32 s{sT0}, s2, 10")
            a(f"s_lshl_b32 s{sT1}, s{sW}, 6")
            a(f"s_add_u32 s{sT0}, s{sT0}, s{sT1}")
            srd_off(a, 8, P + 2, sT0, DIAG_OFF + 0x200000, 40)
            a(f"v_lshrrev_b32 v{FT+1}, 2, v{vL16}")
            a(f"buffer_store_dword v{FT}, v{FT+1}, s[8:11], 0 offen")
        EB = 64
        a(f"""
v_add_u32 v{vLW}, {ACC}, v{vT16}
v_add_u32 v{vBase}, {ACC+ACCB}, v{vT16}
v_mov_b32 v{vMagic}, s{sPf}
s_lshl_b32 s{sT0}, s{sCo}, 2
v_mov_b32 v{FT}, s{sT0}
v_mov_b32 v{FT+1}, s{sMode}
""")
        srd_off(a, S_T, P + 2, None, FLAG_OFF, 1024)
        a(f"""
s_mul_i32 s{sT0}, s{sCg}, {E*8}
s_mul_i32 s{sT1}, s{sRb}, {RB*8}
s_add_u32 s{sT0}, s{sT0}, s{sT1}
""")
        srd_off(a, S_P, P + 2, sT0, PART_OFF, RB * 8)
        a(f"s_lshl_b32 s{sT0}, s{sT0}, 1")
        srd_off(a, S_M, P + 2, sT0, P32_OFF, RB * 16)
        a(f"""
s_waitcnt vmcnt(0) lgkmcnt(0)
s_barrier
""")
        st_()
        for it in range(4):
            b = EB + it * 8
            if it == 3:
                a(f"v_min_u32 v{vLW}, {ACC + 52*16}, v{vLW}")
                a(f"v_min_u32 v{vBase}, {ACC + ACCB + 52*16}, v{vBase}")
            a(f"ds_read_b128 v[{b}:{b+3}], v{vLW} offset:{it*16384}")
            a(f"ds_read_b128 v[{b+4}:{b+7}], v{vBase} offset:{it*16384}")
        a(f"""
v_cmp_eq_u32 vcc, 0, v0
s_and_saveexec_b64 s[{sA}:{sA+1}], vcc
buffer_store_dword v{FT+1}, v{FT}, s[{S_T}:{S_T+3}], 0 offen
s_mov_b64 exec, s[{sA}:{sA+1}]
s_cmp_lg_u32 s{sMode}, 0
s_cbranch_scc1 k2_epf
""")
        for it in range(4):
            b = EB + it * 8
            a(f"s_waitcnt lgkmcnt({2*(3-it)})")
            for p in range(4):
                a(f"v_ashrrev_i32 v{FT+2+p}, 31, v{b+2*p}")
            for p in range(4):
                a(f"v_sub_u32 v{b+2*p+1}, v{b+2*p+1}, v{FT+2+p}")
            for p in range(8):
                a(f"v_cvt_f32_i32 v{b+p}, v{b+p}")
            for p in range(8):
                a(f"v_mul_f32 v{b+p}, v{vMagic}, v{b+p}")
            a(f"""
v_cvt_pk_f16_f32 v{b}, v{b}, v{b+1}
v_cvt_pk_f16_f32 v{b+1}, v{b+4}, v{b+5}
v_cvt_pk_f16_f32 v{b+2}, v{b+2}, v{b+3}
v_cvt_pk_f16_f32 v{b+3}, v{b+6}, v{b+7}
buffer_store_dwordx4 v[{b}:{b+3}], v{vT16}, s[{S_P}:{S_P+3}], 0 offen {pst}
""")
            if it < 3:
                a(f"v_add_u32 v{vT16}, 16384, v{vT16}")
        st_()
        if st_.on:
            a("s_waitcnt vmcnt(0)")
        st_()
        st_.flush(FT)
        a("""
k2_done:
s_endpgm
k2_epf:
s_waitcnt lgkmcnt(0)
""")
        a(f"v_lshlrev_b32 v{vT16}, 1, v{vT16}")
        for it in range(4):
            b = EB + it * 8
            a(f"""
buffer_store_dwordx2 v[{b}:{b+1}], v{vT16}, s[{S_M}:{S_M+3}], 0 offen
buffer_store_dwordx2 v[{b+4}:{b+5}], v{vT16}, s[{S_M}:{S_M+3}], 0 offen offset:8
buffer_store_dwordx2 v[{b+2}:{b+3}], v{vT16}, s[{S_M}:{S_M+3}], 0 offen offset:16
buffer_store_dwordx2 v[{b+6}:{b+7}], v{vT16}, s[{S_M}:{S_M+3}], 0 offen offset:24
v_add_u32 v{vT16}, 32768, v{vT16}
""")
        a("s_endpgm")

    if OPT['fuse'] == '1':
        fused_epilogue()
    else:
        plain_epilogue()
    o("k2_slow:")
    o(f"""
s_set_gpr_idx_on s{sT2}, 0x1
v_mov_b32 v{e0}, v{EN}
v_mov_b32 v{e0+1}, v{EN+1}
s_set_gpr_idx_off
""")
    flat_scan(e0, e0 + 1, sTot, o)
    o("k2_slow_l:")
    flat_push(f"s{sXw}", o)
    o("s_waitcnt lgkmcnt(0)")
    flat_fin(f"s{sXw}", sTot, MS, RS, o)
    o("s_waitcnt vmcnt(0)")
    window_now(MS, RS, "slow")
    o(f"""
s_add_u32 s{sXw}, s{sXw}, 1024
s_cmp_lt_u32 s{sXw}, s{sTot}
s_cbranch_scc1 k2_slow_l
s_setpc_b64 s[{sRet}:{sRet+1}]
""")
    txt = a.s
    if OPT['abl2']:
        i0 = txt.index('k2_dloop0:'); i1 = txt.index('k2_rem:'); i2 = txt.index('k2_rloop:'); i3 = txt.index('k2_epi:')
        def filt(t):
            out = []
            for l in t.split('\n'):
                x = l.strip()
                f = OPT['abl2']
                if 'v' in f and (x.startswith('buffer_') or x.startswith('s_waitcnt vmcnt')): continue
                if 'd' in f and x.startswith('ds_add'): continue
                if 'g' in f and x.startswith('ds_read'): continue
                if 'q' in f and (x.startswith('v_fma') or x.startswith('v_lshl_add_u64') or x.startswith('v_lshlrev_b32') or x.startswith('v_alignbit')): continue
                if 'p' in f and ('_dpp' in x or x.startswith('s_nop') or x.startswith('v_readlane') or x.startswith('v_cndmask') or x.startswith('ds_permute')): continue
                if 'e' in f and x.startswith('s_mov_b64 exec'): continue
                if 'b' in f and x.startswith('s_barrier'): continue
                if 'x' in f and (x.startswith('s_set_gpr')): continue
                out.append(l)
            return '\n'.join(out)
        txt = txt[:i0] + filt(txt[i0:i1]) + txt[i1:i2] + filt(txt[i2:i3]) + txt[i3:]
    return txt + o.s + "k2_code_end:\n    s_endpgm\n", NVG, NW + 64


def gen_k3():
    a = A()
    pld = OPT['pld']
    S_M, S_D, S_O, S_P = 4, 8, 12, 16
    WR, WSB, WD, WU, CE = 20, 36, 52, 60, 68
    CF = 72
    PP = 72
    FL = 84
    MXS = 88
    sT = 80
    sWs = 96
    st_ = Stamper(a, 2, 98, sWs, 60, S_P)
    st_.start()
    vO16, vD, vM, vHi = 1, 2, 4, 8
    PL = 12
    R = (28, 36)
    G = (44, 48)
    H = (52, 56)
    S = (28, 32)
    RP = (62, 66)
    vT = 9
    a(f"""
s_cmp_ge_u32 s2, 1600
s_cbranch_scc1 k3_done
s_load_dwordx2 s[{S_M}:{S_M+1}], s[0:1], {KA['m']}
s_load_dwordx2 s[{S_D}:{S_D+1}], s[0:1], {KA['dist']}
s_load_dwordx2 s[{S_O}:{S_O+1}], s[0:1], {KA['out']}
s_load_dwordx2 s[{sWs}:{sWs+1}], s[0:1], {KA['ws']}
s_load_dwordx2 s[{PP}:{PP+1}], s[0:1], {KA['centers']}
s_load_dwordx4 s[{PP+4}:{PP+7}], s[0:1], {KA['w_rbf']}
s_load_dwordx4 s[{PP+8}:{PP+11}], s[0:1], {KA['w_down']}
s_mul_i32 s3, s2, 2000
v_lshlrev_b32 v{vO16}, 4, v0
v_add_u32 v{vO16}, s3, v{vO16}
v_mov_b32 v{vHi}, 0xffff0000
v_cmp_gt_u32 vcc, 125, v0
s_and_b64 exec, exec, vcc
v_lshrrev_b32 v{vT}, 2, v{vO16}
s_mul_i32 s3, s2, 5243
s_lshr_b32 s3, s3, 17
s_lshl_b32 s3, s3, 4
s_waitcnt lgkmcnt(0)
""")
    a(srd(S_D, S_D, E * 2))
    a(f"buffer_load_dword v{vD}, v{vT}, s[{S_D}:{S_D+3}], 0 offen")
    a(f"""
s_load_dwordx4 s[{CE}:{CE+3}], s[{PP}:{PP+1}], 0
s_load_dwordx16 s[{WR}:{WR+15}], s[{PP+4}:{PP+5}], 0
s_load_dwordx16 s[{WSB}:{WSB+15}], s[{PP+6}:{PP+7}], 0
s_load_dwordx8 s[{WD}:{WD+7}], s[{PP+8}:{PP+9}], 0
s_load_dwordx8 s[{WU}:{WU+7}], s[{PP+10}:{PP+11}], 0
s_add_u32 s{PP+2}, s{sWs}, {MAX_OFF}
s_addc_u32 s{PP+3}, s{sWs+1}, 0
s_load_dwordx8 s[{MXS}:{MXS+7}], s[{PP+2}:{PP+3}], 0
s_add_u32 s{PP+2}, s{PP+2}, s3
s_addc_u32 s{PP+3}, s{PP+3}, 0
s_load_dwordx4 s[{FL}:{FL+3}], s[{PP+2}:{PP+3}], {FLAG_OFF-MAX_OFF}
""")
    srd_off(a, S_P, sWs, None, PART_OFF, 4 * E * 8)
    for c in range(4):
        if c:
            a(f"s_mov_b32 s3, {c*E*8}")
        a(f"buffer_load_dwordx4 v[{PL+4*c}:{PL+4*c+3}], v{vO16}, s[{S_P}:{S_P+3}], {'s3' if c else '0'} offen {pld}")
    a(srd(S_M, S_M, E * 8) + srd(S_O, S_O, E * 8))
    a(f"buffer_load_dwordx4 v[{vM}:{vM+3}], v{vO16}, s[{S_T}:{S_T+3}], 0 offen")
    a("s_waitcnt lgkmcnt(0)")
    for k in range(8):
        a(s_unpack(CF + k, CE, k))
    a(f"""
s_max_u32 s{MXS}, s{MXS}, s{MXS+1}
s_max_u32 s{MXS+2}, s{MXS+2}, s{MXS+3}
s_max_u32 s{MXS+4}, s{MXS+4}, s{MXS+5}
s_max_u32 s{MXS}, s{MXS}, s{MXS+2}
s_max_u32 s{MXS}, s{MXS}, s{MXS+4}
s_lshl_b32 s3, s{MXS}, 16
s_and_b32 s3, s3, 0x7f800000
s_add_u32 s3, s3, {2 << 23}
s_waitcnt vmcnt(5)
v_and_b32 v{vD+1}, v{vHi}, v{vD}
v_lshlrev_b32 v{vD}, 16, v{vD}
""")

    st_.init()
    st_()

    def rnd(x):
        a(f"v_cvt_pk_bf16_f32 v{x+1}, v{x}, v{x+1}")
        a(f"v_lshlrev_b32 v{x}, 16, v{x+1}")
        a(f"v_and_b32 v{x+1}, v{vHi}, v{x+1}")

    for r in range(2):
        for k in range(0, 8, 2):
            a(f"v_pk_add_f32 v[{R[r]+k}:{R[r]+k+1}], v[{vD}:{vD+1}], s[{CF+k}:{CF+k+1}] op_sel:[{r},0] op_sel_hi:[{r},1] neg_lo:[0,1] neg_hi:[0,1]")
    allr = [R[r] + k for r in range(2) for k in range(8)]
    for x in allr[::2]:
        rnd(x)
    for x in allr:
        a(f"v_mul_f32 v{x}, v{x}, v{x}")
    for x in allr[::2]:
        rnd(x)
    for x in allr:
        a(f"v_mul_f32 v{x}, 0xc1200000, v{x}")
    for x in allr[::2]:
        rnd(x)
    for x in allr:
        a(f"v_mul_f32 v{x}, 0x3fb8aa3b, v{x}")
    for x in allr:
        a(f"v_exp_f32 v{x}, v{x}")
    a("s_nop 0")
    for r in range(2):
        for kk in range(4):
            a(f"v_cvt_pk_bf16_f32 v{RP[r]+kk}, v{R[r]+2*kk}, v{R[r]+2*kk+1}")

    cnt = [0]

    def wpair(base, kk, c):
        d = sT + (cnt[0] & 3)
        cnt[0] += 1
        op = "s_pack_ll_b32_b16" if c % 2 == 0 else "s_pack_hh_b32_b16"
        a(f"{op} s{d}, s{base + 4*kk + c//2}, s{base + 4*kk + 2 + c//2}")
        return d

    def dotmat(dst, src, base, nk):
        for kk in range(nk):
            for c in range(4):
                w = wpair(base, kk, c)
                for r in range(2):
                    acc = "0" if kk == 0 else f"v{dst[r]+c}"
                    a(f"v_dot2_f32_bf16 v{dst[r]+c}, v{src[r]+kk}, s{w}, {acc}")

    dotmat(H, RP, WR, 4)
    dotmat(G, RP, WSB, 4)
    for r in range(2):
        rnd(H[r])
        rnd(H[r] + 2)
    a(f"""
s_or_b32 s{sT}, s{FL}, s{FL+1}
s_or_b32 s{sT+1}, s{FL+2}, s{FL+3}
s_or_b32 s{sT}, s{sT}, s{sT+1}
v_mov_b32 v{vT}, s3
s_cmp_lg_u32 s{sT}, 0
s_cbranch_scc1 k3_slow
s_waitcnt vmcnt(1)
""")
    for r in range(2):
        for c in range(4):
            reg = 2 * r + c // 2
            hi = c % 2
            d = S[r] + c
            a(f"v_fma_mix_f32 v{d}, v{PL+reg}, 1.0, v{PL+4+reg} op_sel:[{hi},0,{hi}] op_sel_hi:[1,0,1]")
            a(f"v_fma_mix_f32 v{d}, v{PL+8+reg}, 1.0, v{d} op_sel:[{hi},0,0] op_sel_hi:[1,0,0]")
            a(f"v_fma_mix_f32 v{d}, v{PL+12+reg}, 1.0, v{d} op_sel:[{hi},0,0] op_sel_hi:[1,0,0]")
    for r in range(2):
        for c in range(4):
            a(f"v_mul_f32 v{S[r]+c}, v{vT}, v{S[r]+c}")
    a("k3_join:")
    st_()
    AG = (36, 40)
    for j in range(4):
        for cp in range(2):
            d = sT + 2 * ((j * 2 + cp) & 1)
            a(s_unpack(d, WD, j * 4 + cp * 2))
            a(s_unpack(d + 1, WD, j * 4 + cp * 2 + 1))
            for r in range(2):
                sp = S[r] + (j & ~1)
                o = j & 1
                dd = AG[r] + 2 * cp
                if j == 0:
                    a(f"v_pk_mul_f32 v[{dd}:{dd+1}], v[{sp}:{sp+1}], s[{d}:{d+1}] op_sel:[{o},0] op_sel_hi:[{o},1]")
                else:
                    a(f"v_pk_fma_f32 v[{dd}:{dd+1}], v[{sp}:{sp+1}], s[{d}:{d+1}], v[{dd}:{dd+1}] op_sel:[{o},0,0] op_sel_hi:[{o},1,1]")
    for r in range(2):
        for c in range(4):
            a(f"v_mul_f32 v{AG[r]+c}, v{AG[r]+c}, v{G[r]+c}")
    for r in range(2):
        for kk in range(2):
            a(f"v_cvt_pk_bf16_f32 v{RP[r]+kk}, v{AG[r]+2*kk}, v{AG[r]+2*kk+1}")
    dotmat(G, RP, WU, 2)
    a("s_waitcnt vmcnt(0)")
    for r in range(2):
        for cp in range(2):
            a(f"v_lshlrev_b32 v{S[r]+2*cp}, 16, v{vM+2*r+cp}")
            a(f"v_and_b32 v{S[r]+2*cp+1}, v{vHi}, v{vM+2*r+cp}")
    for r in range(2):
        rnd(G[r])
        rnd(G[r] + 2)
    for r in range(2):
        for c in range(4):
            a(f"v_mul_f32 v{G[r]+c}, v{G[r]+c}, v{H[r]+c}")
    for r in range(2):
        rnd(G[r])
        rnd(G[r] + 2)
    for r in range(2):
        for c in range(4):
            a(f"v_add_f32 v{G[r]+c}, v{G[r]+c}, v{S[r]+c}")
    for r in range(2):
        for cp in range(2):
            a(f"v_cvt_pk_bf16_f32 v{vM+2*r+cp}, v{G[r]+2*cp}, v{G[r]+2*cp+1}")
    a(f"""
buffer_store_dwordx4 v[{vM}:{vM+3}], v{vO16}, s[{S_O}:{S_O+3}], 0 offen
""")
    st_()
    st_.flush(61)
    a(f"""
k3_done:
s_endpgm
k3_slow:
""")
    srd_off(a, S_D, sWs, None, P32_OFF, 4 * E * 16)
    a(f"v_lshlrev_b32 v{vT+1}, 1, v{vO16}")
    for i in range(8):
        a(f"v_mov_b32 v{S[0]+i}, 0")
    a("s_waitcnt vmcnt(0)")
    for c in range(4):
        a(f"""
s_cmp_lg_u32 s{FL+c}, 0
s_cbranch_scc1 k3_s32_{c}
""")
        for r in range(2):
            for cc in range(4):
                reg = 2 * r + cc // 2
                a(f"v_fma_mix_f32 v{S[r]+cc}, v{PL+4*c+reg}, v{vT}, v{S[r]+cc} op_sel:[{cc%2},0,0] op_sel_hi:[1,0,0]")
        a(f"""
s_branch k3_sn_{c}
k3_s32_{c}:
buffer_load_dwordx4 v[36:39], v{vT+1}, s[{S_D}:{S_D+3}], 0 offen
buffer_load_dwordx4 v[40:43], v{vT+1}, s[{S_D}:{S_D+3}], 0 offen offset:16
s_waitcnt vmcnt(0)
""")
        for i in range(8):
            a(f"v_add_f32 v{S[0]+i}, v{S[0]+i}, v{36+i}")
        a(f"k3_sn_{c}:")
        a(f"v_add_u32 v{vT+1}, {E*16}, v{vT+1}")
    a("s_branch k3_join")
    return a.s


k2, k2v, k2lds = gen_k2()
out = HEADER
out += """; Algorithm: agg[e] = ((sum_t cos_t * m[in_t]) @ w_down) * (rbf[e] @ w_sbf), i.e. a sparse (E x E) times (E x 4) product.
;  k2: workgroup (row block, column group) sweeps 20 column blocks of m through LDS, gathers from LDS and accumulates
;      with 64-bit integer LDS atomics (scaled fixed point; f32 LDS atomics when the data's range needs it), then the
"""
out += f"; @launch kernel=k1_kernel grid=({NT+NMX},1,1) block=(1024,1,1) lds={LDS_ALL}\n"
out += f"; @launch kernel=k2_kernel grid=(256,1,1) block=(1024,1,1) lds={k2lds}\n"
if OPT['fuse'] == '0':
    out += "; @launch kernel=k3_kernel grid=(1600,1,1) block=(128,1,1) lds=0\n"
out += '.amdgcn_target "amdgcn-amd-amdhsa--gfx950"\n'
out += kernel_begin('k1_kernel') + gen_k1()
out += kernel_begin('k2_kernel') + k2
if OPT['fuse'] == '0':
    out += kernel_begin('k3_kernel') + gen_k3()
out += kernel_desc('k1_kernel', 128, 80) + kernel_desc('k2_kernel', k2v, 102)
if OPT['fuse'] == '0':
    out += kernel_desc('k3_kernel', 70, 102 if OPT['diag'] == '1' else 98)
open(sys.argv[1], 'w').write(out)
```
